```python
import torch

def _softmax(x, axis=-1):
    return torch.softmax(x, dim=axis)
def _gelu(x):
    return torch.nn.functional.gelu(x, approximate="tanh")
def _silu(x):
    return torch.nn.functional.silu(x)
def _sigmoid(x):
    return torch.sigmoid(x)
def _layernorm(x, axis=-1, eps=1e-5):
    m = x.mean(dim=axis, keepdim=True)
    v = x.var(dim=axis, keepdim=True, unbiased=False)
    return (x - m) / torch.sqrt(v + eps)
def _scatter_add(tgt, idx, src, axis=0):
    return tgt.clone().index_add_(axis, idx, src)
def _segment_sum(src, seg, n):
    out = torch.zeros((n,) + src.shape[1:], dtype=src.dtype)
    return out.index_add_(0, seg, src)
def _pad(x, pw):
    flat = tuple(v for pair in reversed(pw) for v in pair)
    return torch.nn.functional.pad(x, flat)

kernel_name = 'sequential_preLN__softmax_full_mha__glu_gated_glu__prompt'

def setup_inputs():

    _w = (lambda a: (lambda t: t.to(torch.bfloat16) if t.is_floating_point() else t)(torch.as_tensor(a)))
    def _A_setup():
        B, S, D = 1, 2048, 448
        return {
            "x": _w((lambda *s: torch.randn(*s, dtype=torch.bfloat16) * 0.05)(B, S, D)),
            "wqkv": _w((lambda *s: torch.randn(*s, dtype=torch.bfloat16) * 0.05)(D, 3 * D)),
            "wo": _w((lambda *s: torch.randn(*s, dtype=torch.bfloat16) * 0.05)(D, D)),
        }
    _A_in = _A_setup()

    def _B_setup():
        B, S, D, F = 1, 2048, 448, 1792
        return {
            "x": _w((lambda *s: torch.randn(*s, dtype=torch.bfloat16) * 0.05)(B, S, D)),
            "w_gate": _w((lambda *s: torch.randn(*s, dtype=torch.bfloat16) * 0.05)(D, F)),
            "w_up": _w((lambda *s: torch.randn(*s, dtype=torch.bfloat16) * 0.05)(D, F)),
            "w_down": _w((lambda *s: torch.randn(*s, dtype=torch.bfloat16) * 0.05)(F, D)),
        }
    _B_in = _B_setup()

    return {
        "A_x": _A_in["x"],
        "A_wqkv": _A_in["wqkv"],
        "A_wo": _A_in["wo"],
        "B_x": _B_in["x"],
        "B_w_gate": _B_in["w_gate"],
        "B_w_up": _B_in["w_up"],
        "B_w_down": _B_in["w_down"],
    }

def reference(A_x, A_wqkv, A_wo, B_x, B_w_gate, B_w_up, B_w_down):
    def _A_ref(x, wqkv, wo):
        B, S, D = x.shape
        H = 16; Dh = D // H
        qkv = (lambda x, *d: x.permute(*d))((x @ wqkv).reshape(B, S, 3, H, Dh), 2, 0, 3, 1, 4)
        q, k, v = qkv[0], qkv[1], qkv[2]
        scale = Dh ** -0.5
        scores = torch.einsum("bhqd,bhkd->bhqk", q, k) * scale
        p = _softmax(scores, axis=-1)
        o = torch.einsum("bhqk,bhkd->bhqd", p, v)
        return (lambda x, *d: x.permute(*d))(o, 0, 2, 1, 3).reshape(B, S, D) @ wo

    def _B_ref(x, w_gate, w_up, w_down):
        g = torch.einsum("bsd,df->bsf", x, w_gate)
        u = torch.einsum("bsd,df->bsf", x, w_up)
        h = _sigmoid(g) * u
        return torch.einsum("bsf,fd->bsd", h, w_down)

    x = A_x
    h = x + _A_ref(_layernorm(x, axis=-1), A_wqkv, A_wo)
    h2 = h + _B_ref(_layernorm(h, axis=-1), B_w_gate, B_w_up, B_w_down)
    return h2
```

```python
import re
import subprocess

REG = re.compile(r"(?<![\w.])(-?\|?)([vas])(?:(\d+)|\[(\d+):(\d+)\])(?![\w])|(?<![\w])(vcc|exec|m0|vcc_lo|vcc_hi|exec_lo|exec_hi)(?![\w])")
TRANS = ("v_exp_", "v_log_", "v_rcp_", "v_rsq_", "v_sqrt_", "v_sin_", "v_cos_")
MODS = (" op_sel", " offen", " offset", " row_", " quad_perm", " neg_", " sc0", " sc1", " nt", " lds", " bitop3", " clamp", " glc", " mul:", " div:")


def regs_of(tok):
    out = set()
    for m in REG.finditer(tok):
        if m.group(6):
            n = m.group(6)
            if n.startswith("vcc"):
                out.add("vcc")
            elif n.startswith("exec"):
                out.add("exec")
            else:
                out.add(n)
        else:
            f = m.group(2)
            if m.group(3) is not None:
                out.add(f + m.group(3))
            else:
                for r in range(int(m.group(4)), int(m.group(5)) + 1):
                    out.add(f + str(r))
    return out


class Ins:
    def __init__(self, text):
        self.text = text
        t = text.split(";")[0].strip()
        self.label = t.endswith(":")
        self.directive = t.startswith(".") or t == ""
        self.op = t.split()[0] if t else ""
        self.rd, self.wr = set(), set()
        self.kind = "other"
        self.srcc = set()
        self.ab = set()
        self.data = set()
        if self.label or self.directive:
            return
        rest = " " + t[len(self.op):].strip()
        lds = " lds" in rest + " "
        self.dpp = (" row_" in rest) or (" quad_perm" in rest) or ("_dpp" in self.op)
        cut = len(rest)
        for m in MODS:
            i = rest.find(m)
            if i >= 0:
                cut = min(cut, i)
        ops = [o.strip() for o in rest[:cut].split(",")] if rest[:cut].strip() else []
        R = [regs_of(o) for o in ops]
        op = self.op
        if op.startswith("v_mfma"):
            self.kind = "mfma"
            self.passes = 4 if "16x16" in op else 8
            self.wr = R[0]
            self.ab = R[1] | R[2]
            self.srcc = R[3]
            self.rd = self.ab | self.srcc
        elif op.startswith("v_"):
            self.kind = "valu"
            self.wr = set(R[0]) if R else set()
            for r in R[1:]:
                self.rd |= r
            if op.startswith(("v_dot2c", "v_fmac", "v_writelane")):
                self.rd |= R[0]
                self.srcc = R[0]
            if op.startswith("v_dot2_"):
                self.srcc = R[3]
            if op.startswith("v_permlane"):
                self.rd |= R[0]
                self.wr |= R[1]
            if op.startswith("v_cmpx"):
                self.wr.add("exec")
            if "_co_" in op:
                self.wr |= R[1]
        elif op.startswith("ds_"):
            self.kind = "ds"
            if op.startswith(("ds_read", "ds_bpermute", "ds_permute", "ds_swizzle")) or "_rtn" in op:
                self.wr = R[0]
                for r in R[1:]:
                    self.rd |= r
            else:
                for r in R:
                    self.rd |= r
        elif op.startswith(("buffer_", "global_")):
            self.kind = "vmem"
            if "load" in op and not lds:
                self.wr = R[0]
                for r in R[1:]:
                    self.rd |= r
            else:
                for r in R:
                    self.rd |= r
                if lds:
                    self.rd.add("m0")
                    self.ldsdma = True
                if "store" in op and ("x4" in op or "x3" in op):
                    self.data = R[0] if op.startswith("buffer_") else R[1]
        elif op.startswith("s_"):
            self.kind = "salu"
            if op.startswith(("s_cmp", "s_cbranch", "s_branch", "s_waitcnt", "s_nop", "s_barrier", "s_endpgm", "s_setpc", "s_bitcmp", "s_setprio", "s_sleep")):
                for r in R:
                    self.rd |= r
            else:
                self.wr = set(R[0]) if R else set()
                for r in R[1:]:
                    self.rd |= r
                if "saveexec" in op:
                    self.wr.add("exec")

    def states(self):
        if self.label or self.directive:
            return 0
        if self.op == "s_nop":
            return int(self.text.split(";")[0].split()[1]) + 1
        return 1


def isv(r):
    return r[0] in "va" and r != "vcc"


def need(p, c):
    n = 0
    pv = {r for r in p.wr if isv(r)}
    ps = p.wr - pv
    if p.kind == "valu":
        isdot = p.op.startswith("v_dot")
        if c.kind == "mfma" and pv & c.rd:
            n = max(n, 3 if isdot else 2)
        if c.kind == "mfma" and "exec" in ps:
            n = max(n, 4)
        if isdot and pv & (c.rd | c.wr):
            same = c.op == p.op and not (pv & (c.rd - c.srcc))
            if not same:
                n = max(n, 3)
        if p.op.startswith(TRANS) and c.kind == "valu" and pv & c.rd:
            n = max(n, 1)
        if c.kind == "valu":
            if c.op.startswith(("v_readlane", "v_readfirstlane")) and pv & c.rd:
                n = max(n, 1)
            if (c.op.startswith("v_permlane") or c.dpp) and pv & c.rd:
                n = max(n, 2)
            if ps & c.rd:
                n = max(n, 4 if c.op.startswith(("v_readlane", "v_writelane")) else 2)
            if "exec" in ps and (c.dpp or c.op.startswith(("v_permlane", "v_readlane", "v_readfirstlane", "v_writelane"))):
                n = max(n, 5)
            if "op_sel" in p.text and not p.op.startswith("v_pk_") and pv & (c.rd | c.wr):
                n = max(n, 1)
        if c.kind == "vmem" and ps & c.rd:
            n = max(n, 5)
    elif p.kind == "mfma":
        big = p.passes == 8
        if c.kind == "mfma":
            if pv & c.ab:
                n = max(n, 12 if big else 8)
            if pv & c.srcc and not (c.srcc == pv and c.passes == p.passes):
                n = max(n, 10 if big else 6)
            if pv & c.wr and not (c.wr == pv and c.passes == p.passes):
                n = max(n, 10 if big else 6)
        elif c.kind in ("valu", "vmem", "ds"):
            if pv & (c.rd | c.wr):
                n = max(n, 12 if big else 8)
            if p.srcc & c.wr:
                n = max(n, 7 if big else 3)
    elif p.kind == "salu":
        if "m0" in p.wr and c.kind == "vmem" and "m0" in c.rd:
            n = max(n, 1)
    elif p.kind == "vmem":
        if p.data & c.wr:
            n = max(n, 2 if c.kind in ("valu", "mfma") else 1)
    return n


class K:
    def __init__(self):
        self.lines = []
        self.vm = []
        self.lg = []
        self.nlab = 0

    def __call__(self, text, tag=None):
        for t in text.strip().split("\n"):
            t = t.strip()
            if not t:
                continue
            self.lines.append(t)
            op = t.split()[0]
            if op.startswith(("buffer_", "global_")):
                self.vm.append(tag)
            elif op.startswith("ds_"):
                self.lg.append(tag)

    def note(self, text):
        self.lines.append("; " + text)

    def label(self, name):
        self.lines.append(name + ":")

    def newlabel(self, base):
        self.nlab += 1
        return f"L_{base}_{self.nlab}"

    @staticmethod
    def _count(lst, tags):
        if not isinstance(tags, list):
            tags = [tags]
        idx = -1
        for t in tags:
            for i in range(len(lst) - 1, -1, -1):
                if lst[i] == t:
                    idx = max(idx, i)
                    break
        if idx < 0:
            return None
        n = len(lst) - 1 - idx
        del lst[: idx + 1]
        return n

    def wait(self, vm=None, lg=None):
        parts = []
        if vm is not None:
            if vm == "all":
                self.vm.clear()
                parts.append("vmcnt(0)")
            else:
                n = self._count(self.vm, vm)
                if n is not None:
                    parts.append(f"vmcnt({min(n, 63)})")
        if lg is not None:
            if lg == "all":
                self.lg.clear()
                parts.append("lgkmcnt(0)")
            else:
                n = self._count(self.lg, lg)
                if n is not None:
                    parts.append(f"lgkmcnt({min(n, 15)})")
        if parts:
            self.lines.append("s_waitcnt " + " ".join(parts))
            return True
        return False

    def pad(self):
        ins = [Ins(t) for t in self.lines]
        added = 0

        def maps():
            labels = {x.text.split(";")[0].strip()[:-1]: i for i, x in enumerate(ins) if x.label}
            preds = {}
            for i, x in enumerate(ins):
                if x.op.startswith(("s_cbranch", "s_branch")):
                    tgt = x.text.split(";")[0].split()[1]
                    preds.setdefault(labels[tgt], []).append(i)
            return preds

        def scan(c, j, dist, depth, preds):
            req = 0
            start = j
            while j >= 0 and dist < 13:
                p = ins[j]
                if p.label and depth < 3:
                    for b in preds.get(j, []):
                        req = max(req, scan(c, b, dist, depth + 1, preds))
                if p.op in ("s_branch", "s_endpgm", "s_setpc_b64") and not (depth and j == start):
                    break
                if not (p.label or p.directive):
                    req = max(req, need(p, c) - dist)
                dist += p.states()
                j -= 1
            return req

        preds = maps()
        i = 0
        while i < len(ins):
            c = ins[i]
            if not (c.label or c.directive):
                req = scan(c, i - 1, 0, 0, preds)
                if req > 0:
                    ins.insert(i, Ins(f"s_nop {req - 1}"))
                    added += 1
                    preds = maps()
                    i += 1
            i += 1
        self.lines = [x.text for x in ins]
        return added


def sizes(lines):
    src = '.amdgcn_target "amdgcn-amd-amdhsa--gfx950"\n.text\n' + "\n".join(lines) + "\n"
    r = subprocess.run(["llvm-mc", "-triple", "amdgcn-amd-amdhsa", "-mcpu=gfx950", "-show-encoding"],
                       input=src, capture_output=True, text=True)
    if r.returncode:
        raise SystemExit(r.stderr[:3000])
    enc = [len(l.split("encoding: [")[1].split("]")[0].split(",")) for l in r.stdout.split("\n") if "encoding: [" in l]
    out, k = [], 0
    for t in lines:
        x = t.split(";")[0].strip()
        if not x or x.endswith(":") or x.startswith("."):
            out.append(0)
        else:
            out.append(enc[k])
            k += 1
    assert k == len(enc)
    return out
```

```python
import math
import struct
import sys

from asmlib import K, sizes

NAME = "sequential_preLN__softmax_full_mha__glu_gated_glu__prompt"

WS_QKV, WS_O, WS_H, WS_ACT = 0, 0x600000, 0x800000, 0xA00000
WS_WGU, WS_WD, WS_WO, WS_CS = 0x1100000, 0x1500000, 0x1700000, 0x1780000
WS_FA, WS_FB, WS_FC, WS_FD, WS_FP, WS_E = 0x1800000, 0x1808000, 0x1810000, 0x1818000, 0x1820000, 0x1828000
WS_TS = 0x1900000
WS_SIZE = 0x1A00000

X, WQ, WS, OUT, PA, PB = "s[4:7]", "s[8:11]", "s[12:15]", "s[16:19]", "s[20:23]", "s[24:27]"
sW, sA, sB, sTAG, sCNT, sONE, sFB = "s36", "s37", "s38", "s39", "s40", "s41", "s42"
sU, sPD, sPCS, sP0, sP1, sPST = "s43", "s44", "s45", "s46", "s47", "s48"
sXL = "s49"
LR = 114688
ONES = 0x3F803F80
U_D, U_O, U_END = 392, 588, 644


def f32(x):
    return hex(struct.unpack("<I", struct.pack("<f", x))[0])


def vr(b, n):
    return f"v[{b}:{b + n - 1}]"


def ar(b, n):
    return f"a[{b}:{b + n - 1}]"


class Gen:
    def __init__(self, ts=False, force_fb=False, **opt):
        self.k = K()
        self.ts = ts
        self.nts = 0
        self.tsn = []
        self.force_fb = force_fb
        self.opt = opt

    def stamp(self, name):
        if self.ts:
            self.k(f"s_memtime s[98:99]\ns_waitcnt lgkmcnt(0)\nv_writelane_b32 v255, s98, {self.nts + 2}")
            self.k.lg.clear()
            self.nts += 1
            self.tsn.append(name)

    def mfma(self, d, a, b, c=None):
        c = d if c is None else c
        self.k(f"v_mfma_f32_32x32x16_bf16 {d}, {a}, {b}, {c}")

    def poll(self, vaddr, vtmp, base):
        k = self.k
        L, Dn = k.newlabel("poll"), k.newlabel("seen")
        k(f"s_mov_b32 s60, {base}")
        k.label(L)
        k(f"buffer_load_dword {vtmp}, {vaddr}, {WS}, s60 offen sc1")
        k.wait(vm="all")
        k(f"""v_cmp_ne_u32 vcc, {sTAG}, {vtmp}
        s_cbranch_vccz {Dn}
        s_sub_u32 {sCNT}, {sCNT}, 1
        s_cselect_b32 {sCNT}, 0, {sCNT}
        s_cbranch_scc0 {L}""")
        k.label(Dn)

    def publish(self, base, sidx, vt):
        k = self.k
        L = k.newlabel("nf")
        for i in range(4):
            k(f"v_mov_b32 v{vt + i}, {sTAG}")
        k(f"s_lshl_b32 s60, {sidx}, 7\ns_add_u32 s60, s60, {base}")
        k.wait(vm="all")
        k(f"""s_barrier
        s_cmp_lg_u32 {sW}, 0
        s_cbranch_scc1 {L}
        s_mov_b64 exec, 0xff
        buffer_store_dwordx4 {vr(vt, 4)}, v1, {WS}, s60 offen sc1
        s_mov_b64 exec, -1""")
        k.vm.clear()
        k.label(L)

    def stats(self, vs, vq, t0, vb, vrs):
        k = self.k
        k(f"""v_permlane32_swap_b32 v{vs}, v{vq}
        v_add_f32 v{vs}, v{vs}, v{vq}
        v_mov_b32 v{vq}, v{vs}
        v_permlane32_swap_b32 v{vs}, v{vq}
        v_mul_f32 v{vs}, {f32(-1.0 / 448)}, v{vs}
        v_mul_f32 v{vq}, {f32(1.0 / 448)}, v{vq}
        v_cvt_pk_bf16_f32 v{t0}, v{vs}, v{vs}
        v_fma_f32 v{vq}, -v{vs}, v{vs}, v{vq}
        v_and_b32 v{t0}, 0xffff0000, v{t0}
        v_max_f32 v{vq}, 0, v{vq}
        v_sub_f32 v{t0}, v{vs}, v{t0}
        v_add_f32 v{vrs}, {f32(1e-5)}, v{vq}
        v_cvt_pk_bf16_f32 v{vb}, v{vs}, v{t0}
        v_cvt_pk_bf16_f32 v{vb + 1}, v{vs}, v{t0}""")

    def split2(self, vc, vd):
        self.k(f"""v_cvt_pk_bf16_f32 v{vd}, v{vc}, v{vc}
        v_and_b32 v{vd + 1}, 0xffff0000, v{vd}
        v_sub_f32 v{vd + 1}, v{vc}, v{vd + 1}
        v_cvt_pk_bf16_f32 v{vd + 1}, v{vd + 1}, v{vd + 1}""")

    def prologue(self):
        k = self.k
        k(f"""s_cmp_ge_u32 s2, 0x100
        s_cbranch_scc1 L_end
        s_load_dwordx16 s[64:79], s[0:1], 0
        s_load_dwordx2 s[12:13], s[0:1], 72""")
        if self.ts:
            k("s_memrealtime s[96:97]\ns_memtime s[98:99]")
        k(f"""v_lshrrev_b32 v2, 6, v0
        v_and_b32 v0, 63, v0
        s_and_b32 {sA}, s2, 7
        v_readfirstlane_b32 {sW}, v2
        s_lshl_b32 {sA}, {sA}, 1
        s_bfe_u32 s50, s2, 0x10003
        s_add_u32 {sA}, {sA}, s50
        s_lshr_b32 {sB}, s2, 4
        v_lshlrev_b32 v1, 4, v0
        s_mov_b32 {sCNT}, 0x40000
        s_mov_b32 {sONE}, {ONES}
        s_mov_b32 {sFB}, 0
        v_mov_b32 v254, 0""")
        k(f"""s_mul_i32 s50, {sB}, 168
        s_and_b32 s51, s50, 15
        s_sub_u32 s50, s50, s51
        s_mul_i32 s52, {sW}, {16 * 2688}
        s_add_u32 s50, s50, s52""")
        for t in range(3):
            k(f"""v_add_u32 v14, {64 * t}, v0
            v_mul_u32_u24 v15, 171, v14
            v_lshrrev_b32 v15, 11, v15
            v_mul_u32_u24 v16, 12, v15
            v_sub_u32 v16, v14, v16
            v_min_u32 v16, 10, v16
            v_mul_u32_u24 v15, 2688, v15
            v_lshlrev_b32 v16, 4, v16
            v_add3_u32 v{3 + t}, v15, v16, s50""")
        k(f"""v_lshrrev_b32 v14, 3, v0
        v_and_b32 v15, 7, v0
        v_lshrrev_b32 v16, 4, v0
        v_xor_b32 v16, v15, v16
        v_mul_u32_u24 v17, 896, v14
        s_lshl_b32 s52, {sA}, 2
        s_add_u32 s52, s52, {sW}
        s_mul_i32 s52, s52, {32 * 896}
        v_lshlrev_b32 v18, 4, v16
        v_add3_u32 v6, v17, v18, s52
        v_xor_b32 v7, 64, v6""")
        k(f"""v_bfe_u32 v16, v0, 2, 2
        v_lshrrev_b32 v17, 5, v0
        v_lshl_add_u32 v16, v17, 3, v16
        v_mul_u32_u24 v16, 192, v16
        v_bfe_u32 v18, v0, 4, 1
        v_lshlrev_b32 v18, 5, v18
        v_and_b32 v19, 3, v0
        v_lshl_add_u32 v18, v19, 3, v18
        v_add3_u32 v8, v16, v18, s51
        v_add_u32 v9, 49152, v8
        s_lshl_b32 {sXL}, {sW}, 14
        s_add_u32 {sXL}, {sXL}, 86016
        v_and_b32 v16, 31, v0
        v_bfe_u32 v18, v0, 1, 3
        v_xor_b32 v18, v18, v17
        v_lshlrev_b32 v18, 4, v18
        v_lshl_add_u32 v16, v16, 7, v18
        v_add_u32 v10, {sXL}, v16
        v_xor_b32 v11, 32, v10
        v_xor_b32 v12, 64, v10
        v_xor_b32 v13, 96, v10""")
        k(f"""s_lshr_b32 s53, s2, 3
        s_mul_i32 s54, s53, 37
        s_lshr_b32 s54, s54, 8
        s_mul_i32 s54, s54, 7
        s_sub_u32 s53, s53, s54
        s_mul_i32 s54, {sW}, 3072
        s_mov_b32 s6, {2048 * 896}
        s_mov_b32 s7, 0x20000
        s_mov_b32 s10, {448 * 2688}
        s_mov_b32 s11, 0x20000
        s_mov_b32 s14, {WS_SIZE}
        s_mov_b32 s15, 0x20000
        s_mov_b32 s18, {2048 * 896}
        s_mov_b32 s19, 0x20000
        s_mov_b32 s23, 0x20000
        s_mov_b32 s27, 0x20000
        s_mov_b32 s60, {WS_E}
        v_mov_b32 v16, 0
        s_waitcnt lgkmcnt(0)
        s_mov_b32 s4, s64
        s_mov_b32 s5, s65
        s_mov_b32 s8, s66
        s_mov_b32 s9, s67""")
        if self.ts:
            k("v_writelane_b32 v255, s96, 0\nv_writelane_b32 v255, s98, 1")

    def a_dma(self, c):
        g = []
        pre = f"s_mul_i32 s55, s53, {64 * 2688}\ns_lshl_b32 s56, s53, 7\n"
        for t in range(3):
            g.append(pre + f"s_add_u32 m0, s54, {c * 12288 + t * 1024}\ns_nop 0\nbuffer_load_dwordx4 v{3 + t}, {WQ}, s55 offen lds")
            pre = ""
        for t in range(4):
            post = "\ns_add_u32 s53, s53, 1\ns_cmp_eq_u32 s53, 7\ns_cselect_b32 s53, 0, s53" if t == 3 else ""
            g.append(f"s_add_u32 m0, {sXL}, {(c % 4) * 4096 + t * 1024}\ns_add_u32 s57, s56, {t * 8 * 896}\n"
                     f"buffer_load_dwordx4 v{6 + (t & 1)}, {X}, s57 offen lds" + post)
        return g

    def p_dma(self, h):
        slot = 3 if h == 0 else 0
        srd, sb = (PA, sP0) if h == 0 else (PB, sP1)
        g = []
        for t in range(4):
            g.append(f"s_add_u32 m0, {sXL}, {slot * 4096 + t * 1024}\ns_nop 0\nbuffer_load_dwordx4 v2, {srd}, {sb} offen lds\n"
                     f"s_add_u32 {sb}, {sb}, {sPST}")
        return g

    def unit_setup(self):
        k = self.k
        k(f"""s_mov_b32 s16, s78
        s_mov_b32 s17, s79
        s_lshl_b32 {sU}, {sW}, 8
        s_add_u32 {sU}, {sU}, s2
        s_cmp_ge_u32 {sU}, {U_D}
        s_cbranch_scc1 L_u1
        s_mov_b32 s20, s72
        s_mov_b32 s21, s73
        s_mov_b32 s24, s74
        s_mov_b32 s25, s75
        s_mov_b32 s22, {448 * 3584}
        s_mul_i32 s58, {sU}, 4682
        s_lshr_b32 s58, s58, 16
        s_mul_i32 s59, s58, 14
        s_sub_u32 s59, {sU}, s59
        s_mul_i32 {sP0}, s59, {32 * 3584}
        s_lshl_b32 s61, s58, 7
        s_add_u32 {sP0}, {sP0}, s61
        s_mov_b32 {sP1}, {sP0}
        s_mov_b32 {sPST}, 3584
        s_mul_i32 {sPD}, s58, {4 * 28 * 1024}
        s_lshl_b32 s61, s59, 11
        s_add_u32 {sPD}, {sPD}, s61
        s_add_u32 {sPD}, {sPD}, {WS_WGU}
        s_branch L_u3""")
        k.label("L_u1")
        k(f"""s_mov_b32 {sPST}, 896
        s_cmp_ge_u32 {sU}, {U_O}
        s_cbranch_scc1 L_u2
        s_mov_b32 s20, s76
        s_mov_b32 s21, s77
        s_mov_b32 s24, s76
        s_mov_b32 s25, s77
        s_mov_b32 s22, {1792 * 896}
        s_sub_u32 s61, {sU}, {U_D}
        s_mul_i32 s58, s61, 2341
        s_lshr_b32 s58, s58, 16
        s_mul_i32 s59, s58, 28
        s_sub_u32 s59, s61, s59
        s_mul_i32 {sP0}, s59, {64 * 896}
        s_lshl_b32 s58, s58, 7
        s_add_u32 {sP0}, {sP0}, s58
        s_add_u32 {sP1}, {sP0}, {32 * 896}
        s_lshl_b32 {sPD}, s61, 13
        s_add_u32 {sPD}, {sPD}, {WS_WD}
        s_branch L_u3""")
        k.label("L_u2")
        k(f"""s_mov_b32 s20, s68
        s_mov_b32 s21, s69
        s_mov_b32 s24, s68
        s_mov_b32 s25, s69
        s_cmp_lt_u32 {sU}, {U_END}
        s_cselect_b32 s22, {448 * 896}, 0
        s_sub_u32 s61, {sU}, {U_O}
        s_lshr_b32 s58, s61, 3
        s_and_b32 s59, s61, 7
        s_mul_i32 {sP0}, s59, {56 * 896}
        s_lshl_b32 s58, s58, 7
        s_add_u32 {sP0}, {sP0}, s58
        s_add_u32 {sP1}, {sP0}, {28 * 896}
        s_lshl_b32 {sPD}, s61, 13
        s_add_u32 {sPD}, {sPD}, {WS_WO}""")
        k.label("L_u3")
        k(f"""s_mov_b32 s26, s22
        v_lshrrev_b32 v14, 3, v0
        v_and_b32 v15, 7, v0
        v_mul_lo_u32 v14, v14, {sPST}
        v_lshl_add_u32 v2, v15, 4, v14
        s_lshl_b32 {sPST}, {sPST}, 3""")

    def phase_a(self):
        k = self.k
        DEP = self.opt.get("adep", 3)
        ACC, FR, ST = 16, 64, 96
        k(f"buffer_load_dword v101, v16, {WS}, s60 offen sc1", tag="E")
        for c in range(DEP):
            for g in self.a_dma(c):
                k(g, tag=("A", c))
        self.unit_setup()
        for i in range(5):
            k(f"v_mov_b32 v{ST + i}, 0")

        def reads(c, ks):
            n = 4 * c + ks
            f = FR + 16 * (n & 1)
            k(f"ds_read_b128 {vr(f, 4)}, v{10 + ks} offset:{(c % 4) * 4096}", tag=("r", n))
            for m in range(3):
                for q in range(2):
                    off = c * 12288 + (16 * ks + 4 * q) * 192 + 56 * m
                    va = "v8"
                    if c >= 4:
                        va, off = "v9", off - 49152
                    k(f"ds_read_b64_tr_b16 {vr(f + 4 + 4 * m + 2 * q, 2)}, {va} offset:{off}", tag=("r", n))

        for c in range(7):
            k.wait(vm=("A", c))
            k("s_barrier")
            if c == 0:
                self.stamp("A0")
            reads(c, 0)
            extra = []
            nx = c + DEP
            if nx < 7:
                extra = [(g, ("A", nx)) for g in self.a_dma(nx)]
            if c == 4:
                extra += [(g, "P") for g in self.p_dma(0)]
            if c == 5:
                extra += [(g, "P") for g in self.p_dma(1)]
            for ks in range(4):
                n = 4 * c + ks
                f = FR + 16 * (n & 1)
                if ks < 3:
                    reads(c, ks + 1)
                k.wait(lg=("r", n))
                for m in range(3):
                    self.mfma(vr(ACC + 16 * m, 16), vr(f + 4 + 4 * m, 4), vr(f, 4), "0" if n == 0 else None)
                    if extra:
                        g, tg = extra.pop(0)
                        k(g, tag=tg)
                    for j in range(4):
                        k(f"v_dot2c_f32_bf16 v{ST + 2 + m}, {sONE}, v{f + 4 + 4 * m + j}")
                        if m == 0:
                            k(f"v_dot2c_f32_bf16 v{ST}, {sONE}, v{f + j}")
                        if m == 1:
                            k(f"v_dot2c_f32_bf16 v{ST + 1}, v{f + j}, v{f + j}")
            assert not extra
        self.stamp("A1")
        k(f"v_readfirstlane_b32 {sTAG}, v101")
        self.stats(ST, ST + 1, 102, 104, 103)
        k(f"s_add_u32 {sTAG}, {sTAG}, 0x9e3779b9\nv_rsq_f32 v103, v103")
        for m in range(3):
            self.split2(ST + 2 + m, 106 + 2 * m)
        for m in range(3):
            k(f"v_mfma_f32_32x32x8bf16_1k {vr(ACC + 16 * m, 16)}, {vr(106 + 2 * m, 2)}, v[104:105], {vr(ACC + 16 * m, 16)}")
        qs = math.log2(math.e) / math.sqrt(28.0)
        k(f"s_mul_i32 s50, {sB}, 3\ns_lshl_b32 s51, {sA}, 2\ns_add_u32 s51, s51, {sW}\ns_lshl_b32 s51, s51, 11")
        k(f"""v_and_b32 v14, 31, v0
        v_mul_u32_u24 v14, 80, v14
        v_lshrrev_b32 v15, 5, v0
        v_lshl_add_u32 v14, v15, 3, v14
        v_bfe_u32 v112, v0, 2, 2
        v_lshl_add_u32 v15, v15, 2, v112
        v_mul_u32_u24 v15, 80, v15
        v_bfe_u32 v112, v0, 4, 1
        v_lshl_add_u32 v15, v112, 5, v15
        v_and_b32 v112, 3, v0
        v_lshl_add_u32 v15, v112, 3, v15
        v_add_u32 v14, {sXL}, v14
        v_add_u32 v15, {sXL}, v15""")
        for m in range(3):
            a, p = ACC + 16 * m, FR + 8 * m
            Lq, Ls = k.newlabel("nv"), k.newlabel("st")
            k(f"""s_add_u32 s52, s50, {m}
            s_lshl_b32 s55, s52, 17
            s_add_u32 s55, s55, s51
            s_cmp_lt_u32 s52, 16
            s_cselect_b32 s56, {f32(qs)}, 1.0
            s_cselect_b32 s57, 0, {sONE}
            s_cselect_b32 s58, 0, 0x3f80
            s_cmp_ge_u32 s52, 32
            s_cselect_b32 s57, 0x3f80, s57
            s_cselect_b32 s58, 0, s58
            v_mul_f32 v112, s56, v103""")
            for i in range(8):
                k(f"v_pk_mul_f32 {vr(a + 2 * i, 2)}, {vr(a + 2 * i, 2)}, v[112:113] op_sel_hi:[1,0]")
            for i in range(8):
                k(f"v_cvt_pk_bf16_f32 v{p + i}, v{a + 2 * i}, v{a + 2 * i + 1}")
            k(f"""s_mov_b32 exec_lo, 0
            v_mov_b32 v{p + 6}, s57
            v_mov_b32 v{p + 7}, s58
            s_mov_b32 exec_lo, -1
            s_cbranch_scc0 {Lq}""")
            for q in range(4):
                k(f"ds_write_b64 v14, {vr(p + 2 * q, 2)} offset:{4096 + 2560 * m + 16 * q}")
            for s in range(2):
                for q in range(2):
                    k(f"ds_read_b64_tr_b16 {vr(p + 4 * s + 2 * q, 2)}, v15 offset:{4096 + 2560 * m + (16 * s + 8 * q) * 80}")
            k.wait(lg="all")
            k.label(Lq)
            for s in range(2):
                k(f"buffer_store_dwordx4 {vr(p + 4 * s, 4)}, v1, {WS}, s55 offen offset:{1024 * s} sc1")
        k(f"s_lshl_b32 s50, {sA}, 4\ns_add_u32 s50, s50, {sB}")
        self.stamp("A2")
        self.publish(WS_FA, "s50", 16)
        self.stamp("A3")

    def prelayout(self):
        k = self.k
        F = 160
        k(f"""s_cmp_ge_u32 {sU}, {U_END}
        s_cbranch_scc1 L_p2
        v_bfe_u32 v20, v0, 2, 2
        v_lshrrev_b32 v21, 5, v0
        v_bfe_u32 v22, v0, 4, 1
        v_and_b32 v23, 3, v0
        s_cmp_ge_u32 {sU}, {U_D}
        s_cbranch_scc1 L_p1""")
        k(f"""v_lshl_add_u32 v20, v21, 4, v20
        v_lshlrev_b32 v20, 7, v20
        v_lshl_add_u32 v20, v23, 3, v20
        v_xor_b32 v22, 1, v22
        v_mul_u32_u24 v22, 12288, v22
        v_add3_u32 v20, v20, v22, {sXL}""")
        for q in range(4):
            k(f"v_mov_b32 v{24 + q}, 0")
        for q in range(4):
            for e in range(2):
                for h in range(2):
                    k(f"ds_read_b64_tr_b16 {vr(F + 8 * q + 4 * e + 2 * h, 2)}, v20 offset:{32 * q + (8 * e + 4 * h) * 128}", tag=("p", q))
        k(f"s_lshl_b32 s50, {sU}, 10\ns_add_u32 s50, s50, {WS_CS}")
        for q in range(4):
            k.wait(lg=("p", q))
            for e in range(2):
                k(f"buffer_store_dwordx4 {vr(F + 8 * q + 4 * e, 4)}, v1, {WS}, {sPD} offen offset:{1024 * e} sc1")
            k(f"s_add_u32 {sPD}, {sPD}, {28 * 1024}")
            for j in range(8):
                k(f"v_dot2c_f32_bf16 v{24 + q}, {sONE}, v{F + 8 * q + j}")
        k(f"buffer_store_dwordx4 v[24:27], v1, {WS}, s50 offen sc1")
        k("s_branch L_p2")
        k.label("L_p1")
        k(f"""v_lshl_add_u32 v20, v21, 2, v20
        v_lshlrev_b32 v20, 7, v20
        v_lshl_add_u32 v20, v22, 4, v20
        v_and_b32 v21, 1, v23
        v_lshl_add_u32 v20, v21, 5, v20
        v_lshrrev_b32 v21, 1, v23
        v_lshl_add_u32 v20, v21, 3, v20
        v_add_u32 v20, {sXL}, v20""")
        for e in range(4):
            for ct in range(2):
                for h in range(2):
                    off = (12288 if e < 2 else 0) + 64 * ct + (16 * (e & 1) + 8 * h) * 128
                    k(f"ds_read_b64_tr_b16 {vr(F + 8 * e + 4 * ct + 2 * h, 2)}, v20 offset:{off}", tag=("p", e))
        for e in range(4):
            k.wait(lg=("p", e))
            for ct in range(2):
                k(f"buffer_store_dwordx4 {vr(F + 8 * e + 4 * ct, 4)}, v1, {WS}, {sPD} offen offset:{1024 * ct + 2048 * (e & 1)} sc1")
            if e == 1:
                k(f"s_add_u32 {sPD}, {sPD}, 4096")
        k.label("L_p2")
        self.publish(WS_FP, "s2", 16)
        self.stamp("P")

    def phase_b(self):
        k = self.k
        Q, O, S, P, KV = 8, 40, 104, 136, 144
        DEP = 4
        sK, sV, sWD, sGU, sGL = "s50", "s51", "s52", "s53", "s54"
        k(f"""s_add_u32 s55, {sA}, 16
        s_mul_i32 s55, s55, 43
        s_lshr_b32 s55, s55, 7
        s_add_u32 s56, {sA}, 32
        s_mul_i32 s56, s56, 43
        s_lshr_b32 s56, s56, 7
        s_mul_i32 s57, {sA}, 43
        s_lshr_b32 s57, s57, 7
        s_lshl_b32 s58, {sB}, 4
        s_add_u32 s57, s57, s58
        s_lshl_b32 s58, {sW}, 6
        s_add_u32 s55, s55, s58
        s_add_u32 s56, s56, s58
        v_and_b32 v2, 3, v0
        v_lshlrev_b32 v2, 4, v2
        v_add_u32 v4, s55, v2
        v_add_u32 v5, s56, v2
        v_mov_b32 v2, s57
        v_cmp_gt_u32 vcc, 8, v0
        v_cndmask_b32 v2, v2, v5, vcc
        v_cmp_gt_u32 vcc, 4, v0
        v_cndmask_b32 v2, v2, v4, vcc
        v_lshlrev_b32 v2, 7, v2""")
        k(f"""s_mul_i32 s55, {sB}, 7
        s_lshr_b32 s55, s55, 2
        s_mul_i32 s55, s55, 14
        s_lshr_b32 s56, {sB}, 1
        s_min_u32 s56, s56, 6
        s_mul_i32 s57, s56, 28
        s_mul_i32 s58, {sW}, 7
        s_add_u32 s57, s57, s58
        s_lshl_b32 {sWD}, s57, 13
        s_add_u32 {sWD}, {sWD}, {WS_WD}
        s_add_u32 s57, s57, {U_D - 42}
        s_lshl_b32 s56, s56, 3
        s_lshl_b32 s58, {sW}, 1
        s_add_u32 s56, s56, s58
        s_add_u32 s56, s56, {U_O}
        v_add_u32 v4, s55, v0
        v_min_u32 v4, {U_D - 1}, v4
        v_add_u32 v5, s57, v0
        v_and_b32 v3, 1, v0
        v_add_u32 v3, s56, v3
        v_cmp_gt_u32 vcc, 49, v0
        v_cndmask_b32 v3, v3, v5, vcc
        v_cmp_gt_u32 vcc, 42, v0
        v_cndmask_b32 v3, v3, v4, vcc
        v_and_b32 v3, 255, v3
        v_lshlrev_b32 v3, 7, v3""")
        for u in range(3):
            k(f"""s_add_u32 s55, {sW}, {u + 1}
            s_and_b32 s55, s55, 3
            s_mul_i32 s55, s55, 12288
            s_add_u32 s55, s55, {LR + 4096 * u}
            v_add_u32 v{4 + u}, s55, v1""")
        k(f"""s_mul_i32 s55, {sW}, 12288
        s_add_u32 s55, s55, {LR}
        v_add_u32 v7, s55, v1
        v_and_b32 v208, 3, v0
        v_mul_u32_u24 v208, 12288, v208
        v_add_u32 v208, {LR + 3072 + 516}, v208
        s_lshr_b32 s55, {sW}, 1
        s_lshl_b32 s55, s55, 10
        v_add_u32 v251, s55, v1
        v_xor_b32 v250, 1024, v251""")
        self.poll("v2", "v209", WS_FA)
        self.stamp("B0")
        k(f"s_lshl_b32 s55, {sA}, 6\ns_lshl_b32 s56, {sB}, 2\ns_add_u32 s55, s55, s56")
        for u in range(4):
            k(f"s_add_u32 s56, {sW}, {u + 1}\ns_and_b32 s56, s56, 3\ns_add_u32 s56, s56, s55\ns_lshl_b32 s56, s56, 11")
            for s in range(2):
                k(f"buffer_load_dwordx4 {vr(Q + 8 * u + 4 * s, 4)}, v1, {WS}, s56 offen offset:{1024 * s} sc1", tag="Q")
        k.label("L_attn")
        k(f"""s_lshl_b32 {sK}, {sA}, 6
        s_lshl_b32 s55, {sW}, 4
        s_add_u32 {sK}, {sK}, s55
        s_add_u32 {sK}, {sK}, 1024
        s_lshl_b32 {sK}, {sK}, 11
        s_add_u32 {sV}, {sK}, {1024 * 2048}
        s_mul_i32 {sGL}, {sW}, 28672
        s_mul_i32 {sGU}, {sB}, {7 * 28672}
        s_add_u32 {sGU}, {sGU}, {sGL}
        s_add_u32 {sGU}, {sGU}, {WS_WGU}
        s_mov_b32 s59, {sWD}""")

        def kload(kt):
            b = KV + 16 * (kt % DEP)
            g = []
            for s in range(2):
                t = f"buffer_load_dwordx4 {vr(b + 4 * s, 4)}, v1, {WS}, {sK} offen offset:{2048 * (kt & 1) + 1024 * s} sc1"
                g.append((t, ("K", kt)))
            if kt & 1:
                g.append((f"s_add_u32 {sK}, {sK}, 4096", None))
            return g

        def vload(kt):
            b = KV + 16 * (kt % DEP) + 8
            g = []
            for s in range(2):
                t = f"buffer_load_dwordx4 {vr(b + 4 * s, 4)}, v1, {WS}, {sV} offen offset:{2048 * (kt & 1) + 1024 * s} sc1"
                g.append((t, ("V", kt)))
            if kt & 1:
                g.append((f"s_add_u32 {sV}, {sV}, 4096", None))
            return g

        for kt in range(DEP - 1):
            for t, tg in kload(kt) + vload(kt):
                k(t, tag=tg)

        pre = []
        for i in range(28):
            if i % 4 == 0:
                pre.append((f"s_add_u32 m0, {sGL}, {i * 1024}", None))
            pre.append((f"buffer_load_dwordx4 v1, {WS}, {sGU} offen offset:{(i % 4) * 1024} sc1 lds", "GU"))
            if i % 4 == 3:
                pre.append((f"s_add_u32 {sGU}, {sGU}, 4096", None))
        for i in range(56):
            pre.append((f"buffer_load_dwordx4 {ar(4 * i, 4)}, v{250 + (i & 1)}, {WS}, s59 offen offset:{(i & 2) * 1024} sc1", "WD"))
            if i % 4 == 3:
                pre.append(("s_add_u32 s59, s59, 4096", None))

        def smf(n, s):
            kt, u = divmod(n, 4)
            b = KV + 16 * (kt % DEP)
            d = vr(S + 16 * (n & 1), 16)
            self.mfma(d, vr(b + 4 * s, 4), vr(Q + 8 * u + 4 * s, 4), "0" if s == 0 else None)

        def pv(n, s):
            kt, u = divmod(n, 4)
            b = KV + 16 * (kt % DEP) + 8
            self.mfma(vr(O + 16 * u, 16), vr(b + 4 * s, 4), vr(P + 4 * s, 4), "0" if (kt == 0 and s == 0) else None)

        k.wait(vm=["Q", ("K", 0)])
        smf(0, 0)
        smf(0, 1)
        PCHK = self.opt.get("pchk", 3)
        queue = []

        def slot(cnt=1):
            for _ in range(cnt):
                if queue:
                    t, tg = queue.pop(0)
                    if callable(t):
                        t()
                    else:
                        k(t, tag=tg)

        def pcheck():
            L1, L2 = k.newlabel("pw"), k.newlabel("pok")
            k.wait(vm="PF")
            k(f"v_cmp_ne_u32 vcc, {sTAG}, v209\ns_cbranch_vccnz {L1}")
            k.label(L2)
            self.late.append((L1, L2))

        self.late = []
        for n in range(64):
            kt, u = divmod(n, 4)
            sb = S + 16 * (n & 1)
            if u == 1 and kt + DEP - 1 < 16:
                queue = kload(kt + DEP - 1) + vload(kt + DEP - 1) + queue
            if n == 4 * PCHK - 4:
                queue.append((f"s_mov_b32 s60, {WS_FP}", None))
                queue.append((f"buffer_load_dword v209, v3, {WS}, s60 offen sc1", "PF"))
            if n == 4 * PCHK + 2:
                queue.append((pcheck, None))
                queue += pre
            if n >= 62:
                t = n - 62
                queue += [(f"ds_write_b128 v{4 + t}, {vr(O + 16 * t + 4 * q, 4)} offset:{1024 * q}", None) for q in range(4)]

            def ex(i):
                k(f"v_exp_f32 v{sb + i}, v{sb + i}")

            def cv(i):
                k(f"v_cvt_pk_bf16_f32 v{P + i}, v{sb + 2 * i}, v{sb + 2 * i + 1}")

            ex(0), ex(1)
            if n > 0:
                pv(n - 1, 1)
                if u == 3 and n + 1 < 64:
                    if not k.wait(vm=("K", kt + 1)):
                        slot()
                else:
                    slot()
            ex(2), ex(3), cv(0), ex(4), ex(5), cv(1)
            if n + 1 < 64:
                smf(n + 1, 0)
            slot()
            ex(6), ex(7), cv(2), ex(8), ex(9), cv(3)
            if n + 1 < 64:
                smf(n + 1, 1)
            if u == 0:
                if not k.wait(vm=("V", kt)):
                    slot()
            else:
                slot()
            ex(10), ex(11), cv(4), ex(12), ex(13), cv(5)
            pv(n, 0)
            slot()
            ex(14), ex(15), cv(6), cv(7)
        assert not queue, len(queue)
        pv(63, 1)
        self.stamp("B1")
        for q in range(4):
            k(f"ds_write_b128 v6, {vr(O + 32 + 4 * q, 4)} offset:{1024 * q}")
        lo, hi = 2.0 ** -80, 2.0 ** 80
        k(f"""s_mov_b32 s55, {f32(lo)}
        s_mov_b32 s56, {f32(hi)}
        v_min_f32 v210, v{O + 12}, v{O + 28}
        v_add_f32 v211, v{O + 12}, v{O + 28}
        v_min3_f32 v210, v210, v{O + 44}, v{O + 60}
        v_add_f32 v211, v211, v{O + 44}
        v_add_f32 v211, v211, v{O + 60}
        v_cmp_nle_f32 s[56:57], v211, s56
        v_cmp_nge_f32 vcc, v210, s55
        s_or_b32 s57, s57, vcc_hi""")
        if self.force_fb:
            k("s_mov_b32 s57, 1")
        k(f"""v_mov_b32 v210, s57
        s_mov_b64 exec, 1
        ds_write_b32 v4, v210 offset:{3072 + 516}
        s_mov_b64 exec, -1""")
        k.wait(lg="all")
        k("s_barrier")
        R = 144
        k("ds_read_b32 v209, v208", tag="c")
        for j in range(3):
            for q in range(4):
                k(f"ds_read_b128 {vr(R + 16 * j + 4 * q, 4)}, v7 offset:{4096 * j + 1024 * q}", tag=("c", j))
        k(f"s_lshl_b32 s55, {sB}, 2\ns_add_u32 s55, s55, {sW}\ns_lshl_b32 s55, s55, 4\ns_add_u32 s55, s55, {sA}\ns_lshl_b32 s55, s55, 11\ns_add_u32 s55, s55, {WS_O}")
        k.wait(lg="c")
        k(f"""v_cmp_ne_u32 vcc, 0, v209
        s_andn2_b32 s56, vcc_lo, {sFB}
        s_cbranch_scc1 L_fb""")
        o = O + 48
        for j in range(3):
            k.wait(lg=("c", j))
            for i in range(8):
                k(f"v_pk_add_f32 {vr(o + 2 * i, 2)}, {vr(o + 2 * i, 2)}, {vr(R + 16 * j + 2 * i, 2)}")
        k(f"""v_mov_b32 v210, v{o + 12}
        v_mov_b32 v212, v{o + 12}
        v_permlane32_swap_b32 v210, v212
        v_rcp_f32 v212, v212""")
        for i in range(8):
            k(f"v_pk_mul_f32 {vr(o + 2 * i, 2)}, {vr(o + 2 * i, 2)}, v[212:213] op_sel_hi:[1,0]")
        for i in range(8):
            k(f"v_cvt_pk_bf16_f32 v{P + i}, v{o + 2 * i}, v{o + 2 * i + 1}")
        k(f"s_mov_b32 exec_lo, 0\nv_mov_b32 v{P + 6}, 0\nv_mov_b32 v{P + 7}, 0\ns_mov_b32 exec_lo, -1")
        for s in range(2):
            k(f"buffer_store_dwordx4 {vr(P + 4 * s, 4)}, v1, {WS}, s55 offen offset:{1024 * s} sc1")
        k(f"s_lshl_b32 s50, {sB}, 4\ns_add_u32 s50, s50, {sA}")
        self.stamp("B2")
        self.publish(WS_FB, "s50", 144)
        self.stamp("B3")

    def late_code(self):
        k = self.k
        Q, S, KV = 8, 104, 144
        for L1, L2 in self.late:
            k.label(L1)
            self.poll("v3", "v209", WS_FP)
            k(f"s_branch {L2}")
        k.label("L_fb")
        k(f"""s_waitcnt vmcnt(0) lgkmcnt(0)
        s_barrier
        s_mov_b32 {sFB}, -1
        s_lshl_b32 s50, {sA}, 6
        s_lshl_b32 s55, {sW}, 4
        s_add_u32 s50, s50, s55
        s_add_u32 s50, s50, 1024
        s_lshl_b32 s50, s50, 11
        s_mov_b32 s51, 16""")
        for u in range(4):
            k(f"v_mov_b32 v{212 + u}, 0xff800000")
        k.label("L_fbl")
        for s in range(2):
            k(f"buffer_load_dwordx4 {vr(KV + 4 * s, 4)}, v1, {WS}, s50 offen offset:{1024 * s} sc1")
        k("s_add_u32 s50, s50, 2048\ns_waitcnt vmcnt(0)")
        for u in range(4):
            self.mfma(vr(S, 16), vr(KV, 4), vr(Q + 8 * u, 4), "0")
            self.mfma(vr(S, 16), vr(KV + 4, 4), vr(Q + 8 * u + 4, 4))
            for i in range(8):
                k(f"v_max3_f32 v{212 + u}, v{212 + u}, v{S + 2 * i}, v{S + 2 * i + 1}")
        k("s_sub_u32 s51, s51, 1\ns_cmp_lg_u32 s51, 0\ns_cbranch_scc1 L_fbl")
        k(f"v_lshlrev_b32 v216, 2, v0\ns_lshl_b32 s57, {sW}, 8")
        for u in range(4):
            k(f"""v_mov_b32 v210, v{212 + u}
            v_permlane32_swap_b32 v210, v{212 + u}
            v_max_f32 v{212 + u}, v210, v{212 + u}
            s_add_u32 s55, {sW}, {u + 1}
            s_and_b32 s55, s55, 3
            s_lshl_b32 s55, s55, 10
            s_add_u32 s55, s55, {LR}
            v_add_u32 v{220 + u}, s55, v216
            v_add_u32 v217, s57, v{220 + u}
            ds_write_b32 v217, v{212 + u}""")
        k("s_waitcnt lgkmcnt(0)\ns_barrier")
        for u in range(4):
            for j in range(4):
                k(f"ds_read_b32 v{224 + j}, v{220 + u} offset:{256 * j}")
            k(f"""s_waitcnt lgkmcnt(0)
            v_max3_f32 v224, v224, v225, v226
            v_max_f32 v224, v224, v227
            v_sub_f32 v224, 0, v224
            v_cvt_pk_bf16_f32 v225, v224, v224
            v_and_b32 v225, 0xffff0000, v225
            v_sub_f32 v225, v224, v225
            v_cvt_pk_bf16_f32 v226, v224, v225
            v_and_b32 v227, 0xffff0000, v226
            v_sub_f32 v227, v225, v227
            v_cvt_pk_bf16_f32 v227, v227, 0
            s_mov_b32 exec_lo, 0
            v_mov_b32 v{Q + 8 * u + 6}, v226
            v_mov_b32 v{Q + 8 * u + 7}, v227
            s_mov_b32 exec_lo, -1""")
        k("s_barrier\ns_branch L_attn")
        k.vm.clear()
        k.lg.clear()

    def reduce4(self, ACC, R):
        k = self.k
        for t in range(3):
            for q in range(4):
                k(f"ds_write_b128 v{4 + t}, {vr(ACC + 16 * t + 4 * q, 4)} offset:{1024 * q}")
        k.wait(lg="all")
        k("s_barrier")
        for j in range(3):
            for q in range(4):
                k(f"ds_read_b128 {vr(R + 16 * j + 4 * q, 4)}, v7 offset:{4096 * j + 1024 * q}", tag=("c", j))
        o = ACC + 48
        for j in range(3):
            k.wait(lg=("c", j))
            for i in range(8):
                k(f"v_pk_add_f32 {vr(o + 2 * i, 2)}, {vr(o + 2 * i, 2)}, {vr(R + 16 * j + 2 * i, 2)}")

    def tile_addrs(self):
        k = self.k
        for t in range(3):
            k(f"""s_xor_b32 s55, {sW}, {3 - t}
            s_mul_i32 s55, s55, 12288
            s_add_u32 s55, s55, {LR + 4096 * t}
            v_add_u32 v{4 + t}, s55, v1""")

    def phase_c(self):
        k = self.k
        ACC, WO, OF, R = 8, 72, 136, 136
        CS = 200
        k(f"""s_mul_i32 s55, {sB}, 7
        s_lshr_b32 s55, s55, 2
        s_add_u32 s55, s55, {sW}
        s_min_u32 s55, s55, 27
        s_mul_i32 s55, s55, {14 * 1024}
        s_add_u32 s55, s55, {WS_CS}""")
        for i in range(14):
            k(f"buffer_load_dwordx4 {vr(136 + 4 * i, 4)}, v1, {WS}, s55 offen offset:{(i % 4) * 1024} sc1", tag=("cs", i))
            if i % 4 == 3:
                k("s_add_u32 s55, s55, 4096")
        k(f"s_cmp_ge_u32 {sB}, 14\ns_cbranch_scc1 L_c0")
        k(f"""s_lshr_b32 s50, {sB}, 1
        s_and_b32 s51, {sB}, 1
        s_lshl_b32 s51, s51, 1
        s_lshl_b32 s52, {sA}, 2
        s_add_u32 s51, s51, s52
        s_and_b32 s52, {sW}, 1
        s_add_u32 s62, s51, s52
        s_lshr_b32 s53, {sW}, 1
        s_lshl_b32 s63, s50, 1
        s_add_u32 s63, s63, s53
        s_lshl_b32 s55, s50, 2
        s_add_u32 s55, s55, {sW}
        s_lshl_b32 s55, s55, 14
        s_add_u32 s55, s55, {WS_WO}
        s_lshl_b32 s53, s53, 10
        v_add_u32 v3, s53, v1
        v_xor_b32 v2, 1024, v3""")
        for ks in range(8):
            for c in range(2):
                k(f"buffer_load_dwordx4 {vr(WO + 8 * ks + 4 * c, 4)}, v{2 + c}, {WS}, s55 offen offset:{2048 * (ks & 1)} sc1")
            if ks & 1:
                k("s_add_u32 s55, s55, 4096")
        k(f"""v_and_b32 v254, 31, v0
        v_mul_u32_u24 v254, 896, v254
        v_lshrrev_b32 v253, 5, v0
        v_lshl_add_u32 v254, v253, 5, v254
        s_mul_i32 s55, s62, {32 * 896}
        s_lshl_b32 s56, s63, 6
        s_add_u32 s55, s55, s56
        v_add_u32 v254, s55, v254
        buffer_load_dwordx4 v[192:195], v254, {X}, 0 offen
        buffer_load_dwordx4 v[196:199], v254, {X}, 0 offen offset:16""")
        self.tile_addrs()
        k.label("L_c0")
        k.wait(vm="all")
        for i in range(1, 14):
            for h in range(2):
                k(f"v_pk_add_f32 {vr(136 + 2 * h, 2)}, {vr(136 + 2 * h, 2)}, {vr(136 + 4 * i + 2 * h, 2)}")
        for q in range(4):
            self.split2(136 + q, CS + 2 * q)
        k(f"s_cmp_ge_u32 {sB}, 14\ns_cbranch_scc1 L_c1")
        for i in range(8):
            k(f"v_lshlrev_b32 v{ACC + 48 + 2 * i}, 16, v{192 + i}\nv_and_b32 v{ACC + 49 + 2 * i}, 0xffff0000, v{192 + i}")
        k(f"""s_lshl_b32 s55, {sA}, 4
        s_lshl_b32 s56, {sW}, 2
        s_add_u32 s55, s55, s56
        v_and_b32 v253, 3, v0
        v_add_u32 v253, s55, v253
        v_lshlrev_b32 v253, 7, v253
        s_lshl_b32 s55, s62, 4
        s_add_u32 s55, s55, s56
        s_lshl_b32 s55, s55, 11
        s_add_u32 s51, s55, {WS_O}
        s_xor_b32 s50, s55, 0x8000
        s_add_u32 s50, s50, {WS_O}""")
        self.poll("v253", "v252", WS_FB)
        self.stamp("C0")
        for ks in range(8):
            for t in range(2):
                k(f"buffer_load_dwordx4 {vr(OF + 8 * ks + 4 * t, 4)}, v1, {WS}, s{50 + t} offen offset:{1024 * (ks & 3)} sc1", tag=("O", ks))
            if ks == 3:
                k("s_add_u32 s50, s50, 4096\ns_add_u32 s51, s51, 4096")
        for ks in range(8):
            k.wait(vm=("O", ks))
            for c in range(2):
                for t in range(2):
                    lt = 2 * c + t
                    self.mfma(vr(ACC + 16 * lt, 16), vr(WO + 8 * ks + 4 * c, 4), vr(OF + 8 * ks + 4 * t, 4), "0" if (ks == 0 and lt < 3) else None)
        self.stamp("C1")
        self.reduce4(ACC, R)
        o = ACC + 48
        for i in range(8):
            k(f"v_cvt_pk_bf16_f32 v{ACC + i}, v{o + 2 * i}, v{o + 2 * i + 1}")
        k(f"s_mul_i32 s55, s62, 14\ns_add_u32 s55, s55, s63\ns_lshl_b32 s55, s55, 11\ns_add_u32 s55, s55, {WS_H}")
        for s in range(2):
            k(f"buffer_store_dwordx4 {vr(ACC + 4 * s, 4)}, v1, {WS}, s55 offen offset:{1024 * s} sc1")
        for i in range(16):
            k(f"v_accvgpr_write_b32 a{224 + i}, v{o + i}")
        k(f"s_lshl_b32 s50, {sA}, 4\ns_add_u32 s50, s50, {sB}")
        self.stamp("C2")
        self.publish(WS_FC, "s50", 136)
        k.label("L_c1")
        self.stamp("C3")

    def phase_d(self):
        k = self.k
        H, ACC, AB, T = 8, 120, 184, 216
        CS = 200
        LCS = LR + 28672
        sGU, sAC = "s53", "s54"
        k(f"""v_lshlrev_b32 v2, 3, v0
        s_lshl_b32 s55, {sW}, 11
        s_add_u32 s55, s55, {LCS}
        v_add_u32 v3, s55, v2""")
        for q in range(4):
            k(f"ds_write_b64 v3, {vr(CS + 2 * q, 2)} offset:{512 * q}")
        k(f"""s_mul_i32 s55, {sB}, 7
        s_and_b32 s55, s55, 3
        s_lshl_b32 s55, s55, 9
        s_add_u32 s55, s55, {LCS}
        v_add_u32 v3, s55, v2
        s_mul_i32 s52, {sW}, 7168
        s_mul_i32 {sGU}, {sB}, {7 * 28672}
        s_add_u32 {sGU}, {sGU}, s52
        s_add_u32 {sGU}, {sGU}, {WS_WGU + 4 * 28672}""")

        def gdma(ct, lds):
            g = []
            for i in range(7):
                t = ""
                if i % 4 == 0:
                    t = f"s_add_u32 m0, s52, {lds + i * 1024}\ns_add_u32 s56, {sGU}, {(ct - 4) * 28672 + i * 1024}\n"
                g.append((t + f"buffer_load_dwordx4 v1, {WS}, s56 offen offset:{(i % 4) * 1024} sc1 lds", ("G", ct)))
            return g

        for t, tg in gdma(4, LR):
            k(t, tag=tg)
        k(f"""s_lshl_b32 s55, {sA}, 4
        s_lshr_b32 s56, {sW}, 1
        s_add_u32 s55, s55, s56
        v_min_u32 v253, 6, v0
        v_lshlrev_b32 v253, 1, v253
        v_add_u32 v253, s55, v253
        v_lshlrev_b32 v253, 7, v253
        s_lshl_b32 s55, {sA}, 2
        s_add_u32 s55, s55, {sW}
        s_mul_i32 s50, s55, 28672
        s_add_u32 s50, s50, {WS_H}
        s_mul_i32 {sAC}, s55, {112 * 1024}
        s_mul_i32 s56, {sB}, 7168
        s_add_u32 {sAC}, {sAC}, s56
        s_add_u32 {sAC}, {sAC}, {WS_ACT}
        v_add_u32 v2, 57344, v1
        v_add_u32 v251, {LR}, v1
        v_mov_b32 v{T}, 0
        v_mov_b32 v{T + 1}, 0""")
        k.wait(lg="all")
        self.poll("v253", "v252", WS_FC)
        self.stamp("D0")
        for ks in range(28):
            k(f"buffer_load_dwordx4 {vr(H + 4 * ks, 4)}, v1, {WS}, s50 offen offset:{1024 * (ks & 3)} sc1", tag=("H", ks))
            if ks & 3 == 3:
                k("s_add_u32 s50, s50, 4096")

        slot_of = {0: 0, 1: 1, 2: 2, 3: 3, 4: "R", 5: 0, 6: 1}
        seq = [(ct, ks) for ks in range(28) for ct in range(3)] + [(ct, ks) for ct in range(3, 7) for ks in range(28)]
        NB = 8
        AH = 5

        def aread(i):
            ct, ks = seq[i]
            s = slot_of[ct]
            if s == "R":
                va, off = "v251", ks * 1024
            elif s < 2:
                va, off = "v1", s * 28672 + ks * 1024
            else:
                va, off = "v2", (s - 2) * 28672 + ks * 1024
            k(f"ds_read_b128 {vr(AB + 4 * (i % NB), 4)}, {va} offset:{off}", tag=("a", i))

        VB, VC, VS = T + 2, T + 4, T + 6
        CA = T + 8
        E = T + 16

        def epilogue(ct):
            a = ACC + 16 * (ct % 4)
            e = []
            for i in range(4):
                e.append(f"v_pk_mul_f32 {vr(a + 2 * i, 2)}, {vr(a + 2 * i, 2)}, {vr(VC, 2)} op_sel_hi:[1,0]")
            for i in range(8):
                e.append(f"v_exp_f32 v{a + i}, v{a + i}")
            for i in range(4):
                e.append(f"v_pk_fma_f32 {vr(a + 2 * i, 2)}, {vr(a + 2 * i, 2)}, {vr(VS, 2)}, {vr(VS, 2)} op_sel_hi:[1,0,0]")
            for i in range(8):
                e.append(f"v_rcp_f32 v{a + i}, v{a + i}")
            for i in range(4):
                e.append(f"v_pk_mul_f32 {vr(a + 2 * i, 2)}, {vr(a + 2 * i, 2)}, {vr(a + 8 + 2 * i, 2)}")
            p = E + 4 * (ct & 1)
            for i in range(4):
                e.append(f"v_cvt_pk_bf16_f32 v{p + i}, v{a + 2 * i}, v{a + 2 * i + 1}")
            pre = f"s_add_u32 {sAC}, {sAC}, 4096\n" if ct == 4 else ""
            e.append(pre + f"buffer_store_dwordx4 {vr(p, 4)}, v1, {WS}, {sAC} offen offset:{1024 * (ct & 3)} sc1")
            return e

        def corr(ct):
            a = vr(ACC + 16 * (ct % 4), 16)
            k(f"v_mfma_f32_32x32x8bf16_1k {a}, {vr(CA + 2 * (ct % 4), 2)}, {vr(VB, 2)}, {a}")

        def csread(ct):
            k(f"ds_read_b64 {vr(CA + 2 * (ct % 4), 2)}, v3 offset:{512 * ct}", tag=("cs", ct))

        for i in range(AH):
            aread(i)
        queue = []
        hold = 0
        for i, (ct, ks) in enumerate(seq):
            nxt = i + AH
            if nxt < len(seq):
                nct, nks = seq[nxt]
                if nks == 0 and nct == 5:
                    k.wait(vm=[("G", 5), ("G", 6)])
                    k("s_barrier")
            if i < 84 and ct == 0:
                k.wait(vm=("H", ks), lg=("a", i))
            else:
                k.wait(lg=("a", i))
            self.mfma(vr(ACC + 16 * (ct % 4), 16), vr(AB + 4 * (i % NB), 4), vr(H + 4 * ks, 4), "0" if ks == 0 else None)
            if nxt < len(seq):
                aread(nxt)
            if i < 84 and ct < 2:
                for j in range(4):
                    src = sONE if ct == 0 else f"v{H + 4 * ks + j}"
                    k(f"v_dot2c_f32_bf16 v{T + ct}, {src}, v{H + 4 * ks + j}")
            if i == 83:
                k("s_barrier")
                for c in range(4):
                    csread(c)
                self.stats(T, T + 1, VC, VB, VS)
                k(f"v_rsq_f32 v{VC}, v{VS}\nv_sqrt_f32 v{VS}, v{VS}\nv_mul_f32 v{VC}, {f32(-math.log2(math.e))}, v{VC}")
                k.wait(lg=("cs", 3))
                for c in range(3):
                    corr(c)
                queue += gdma(5, 0) + gdma(6, 28672)
                for c in range(3):
                    queue += [(t, "st") for t in epilogue(c)]
                self.stamp("D1")
            elif i > 83:
                if ks == 27:
                    assert not queue, (ct, len(queue))
                    k.wait(lg=("cs", ct))
                    corr(ct)
                    queue += [(t, "st") for t in epilogue(ct)]
                    hold = 4
                elif ks == 8 and ct < 6:
                    csread(ct + 1)
                elif hold:
                    hold -= 1
                else:
                    for _ in range(5 if ct == 3 else 2):
                        if queue:
                            t, tg = queue.pop(0)
                            k(t, tag=tg)
        self.stamp("D2")
        for t, tg in queue:
            k(t, tag=tg)
        k(f"s_lshl_b32 s50, {sA}, 4\ns_add_u32 s50, s50, {sB}")
        self.stamp("D3")
        self.publish(WS_FD, "s50", 184)
        self.stamp("D4")

    def phase_e(self):
        k = self.k
        ACC, BF, R = 8, 72, 72
        NB, AH = 20, 8
        k(f"s_cmp_ge_u32 {sB}, 14\ns_cbranch_scc1 L_tail")
        for i in range(16):
            k(f"v_accvgpr_read_b32 v{ACC + 48 + i}, a{224 + i}")
        k(f"""s_lshl_b32 s55, {sA}, 4
        s_lshl_b32 s56, {sW}, 2
        s_add_u32 s55, s55, s56
        v_and_b32 v253, 3, v0
        v_add_u32 v253, s55, v253
        v_lshlrev_b32 v253, 7, v253
        s_mul_i32 s56, {sW}, 28672
        s_add_u32 s56, s56, {WS_ACT}
        s_mul_i32 s51, s62, {112 * 1024}
        s_add_u32 s51, s51, s56
        s_xor_b32 s50, s62, 1
        s_mul_i32 s50, s50, {112 * 1024}
        s_add_u32 s50, s50, s56""")
        self.poll("v253", "v252", WS_FD)
        self.stamp("E0")

        def load(ks):
            for t in range(2):
                k(f"buffer_load_dwordx4 {vr(BF + 8 * (ks % NB) + 4 * t, 4)}, v1, {WS}, s{50 + t} offen offset:{1024 * (ks & 3)} sc1", tag=("B", ks))
            if ks & 3 == 3:
                k("s_add_u32 s50, s50, 4096\ns_add_u32 s51, s51, 4096")

        for ks in range(AH):
            load(ks)
        for ks in range(28):
            k.wait(vm=("B", ks))
            for c in range(2):
                for t in range(2):
                    lt = 2 * c + t
                    self.mfma(vr(ACC + 16 * lt, 16), ar(8 * ks + 4 * c, 4), vr(BF + 8 * (ks % NB) + 4 * t, 4), "0" if (ks == 0 and lt < 3) else None)
                    if lt == 0 and ks + AH < 28:
                        load(ks + AH)
        self.stamp("E1")
        self.reduce4(ACC, R)
        o = ACC + 48
        for i in range(8):
            k(f"v_cvt_pk_bf16_f32 v{ACC + i}, v{o + 2 * i}, v{o + 2 * i + 1}")
        for s in range(2):
            k(f"buffer_store_dwordx4 {vr(ACC + 4 * s, 4)}, v254, {OUT}, 0 offen offset:{16 * s}")
        self.stamp("E2")
        k("s_branch L_fin")
        k.label("L_tail")
        k(f"""s_cmp_lg_u32 s2, 255
        s_cbranch_scc1 L_fin
        s_lshl_b32 s55, {sW}, 6
        v_add_u32 v253, s55, v0
        v_lshlrev_b32 v253, 7, v253""")
        self.poll("v253", "v252", WS_FP)
        k("s_mov_b32 s50, 0")
        self.publish(WS_E, "s50", 8)
        k.label("L_fin")
        if self.ts:
            k(f"""s_lshl_b32 s55, s2, 2
            s_add_u32 s55, s55, {sW}
            s_lshl_b32 s55, s55, 8
            s_add_u32 s55, s55, {WS_TS}
            v_lshlrev_b32 v2, 2, v0
            buffer_store_dword v255, v2, {WS}, s55 offen""")
        k("s_waitcnt vmcnt(0)")
        k.label("L_end")
        k("s_endpgm")

    def build(self):
        self.prologue()
        self.phase_a()
        self.prelayout()
        self.phase_b()
        self.phase_c()
        self.phase_d()
        self.phase_e()
        self.late_code()
        n = self.k.pad()
        ref = open(f"cdna_kernels/{NAME}.s.ref").read().split("\n")
        head = [l for l in ref if l.startswith(";") and "@launch" not in l]
        out = head + ["; @launch grid=(256,1,1) block=(256,1,1) lds=163840",
                      '.amdgcn_target "amdgcn-amd-amdhsa--gfx950"', ".text", f".globl {NAME}_kernel", ".p2align 8",
                      f".type {NAME}_kernel,@function", f"{NAME}_kernel:"]
        out += [l if l.endswith(":") else "    " + l for l in self.k.lines]
        out += ['.section .rodata,"a"', ".p2align 6", f".amdhsa_kernel {NAME}_kernel",
                "  .amdhsa_next_free_vgpr 512", "  .amdhsa_next_free_sgpr 102", "  .amdhsa_accum_offset 256",
                "  .amdhsa_group_segment_fixed_size 0", "  .amdhsa_kernarg_size 80", "  .amdhsa_user_sgpr_count 2",
                "  .amdhsa_user_sgpr_kernarg_segment_ptr 1", "  .amdhsa_system_sgpr_workgroup_id_x 1", ".end_amdhsa_kernel", ""]
        self.nbytes = sum(sizes(self.k.lines))
        self.nnop = n
        return "\n".join(out)


if __name__ == "__main__":
    args = dict(a.split("=") for a in sys.argv[2:])
    args = {a: int(b) for a, b in args.items()}
    g = Gen(**args)
    text = g.build()
    open(sys.argv[1], "w").write(text)
    if g.ts:
        open(sys.argv[1] + ".ts", "w").write(" ".join(g.tsn))
    print(f"{sys.argv[1]}: {g.nbytes} bytes of code, {g.nnop} pads")
```

```python
import re
import subprocess

REG = re.compile(r"(?<![\w.])(-?\|?)([vas])(?:(\d+)|\[(\d+):(\d+)\])(?![\w])|(?<![\w])(vcc|exec|m0|vcc_lo|vcc_hi|exec_lo|exec_hi)(?![\w])")
TRANS = ("v_exp_", "v_log_", "v_rcp_", "v_rsq_", "v_sqrt_", "v_sin_", "v_cos_")
MODS = (" op_sel", " offen", " offset", " row_", " quad_perm", " neg_", " sc0", " sc1", " nt", " lds", " bitop3", " clamp", " glc", " mul:", " div:")


def regs_of(tok):
    out = set()
    for m in REG.finditer(tok):
        if m.group(6):
            n = m.group(6)
            if n.startswith("vcc"):
                out.add("vcc")
            elif n.startswith("exec"):
                out.add("exec")
            else:
                out.add(n)
        else:
            f = m.group(2)
            if m.group(3) is not None:
                out.add(f + m.group(3))
            else:
                for r in range(int(m.group(4)), int(m.group(5)) + 1):
                    out.add(f + str(r))
    return out


class Ins:
    def __init__(self, text):
        self.text = text
        t = text.split(";")[0].strip()
        self.label = t.endswith(":")
        self.directive = t.startswith(".") or t == ""
        self.op = t.split()[0] if t else ""
        self.rd, self.wr = set(), set()
        self.kind = "other"
        self.srcc = set()
        self.ab = set()
        self.data = set()
        if self.label or self.directive:
            return
        rest = " " + t[len(self.op):].strip()
        lds = " lds" in rest + " "
        self.dpp = (" row_" in rest) or (" quad_perm" in rest) or ("_dpp" in self.op)
        cut = len(rest)
        for m in MODS:
            i = rest.find(m)
            if i >= 0:
                cut = min(cut, i)
        ops = [o.strip() for o in rest[:cut].split(",")] if rest[:cut].strip() else []
        R = [regs_of(o) for o in ops]
        op = self.op
        if op.startswith("v_mfma"):
            self.kind = "mfma"
            self.passes = 2 if "4x4x4" in op else 4 if "16x16" in op else 8
            self.wr = R[0]
            self.ab = R[1] | R[2]
            self.srcc = R[3]
            self.rd = self.ab | self.srcc
        elif op.startswith("v_"):
            self.kind = "valu"
            self.wr = set(R[0]) if R else set()
            for r in R[1:]:
                self.rd |= r
            if op.startswith(("v_dot2c", "v_fmac", "v_writelane")):
                self.rd |= R[0]
                self.srcc = R[0]
            if op.startswith("v_dot2_"):
                self.srcc = R[3]
            if op.startswith("v_permlane"):
                self.rd |= R[0]
                self.wr |= R[1]
            if op.startswith("v_cmpx"):
                self.wr.add("exec")
            if "_co_" in op:
                self.wr |= R[1]
        elif op.startswith("ds_"):
            self.kind = "ds"
            if op.startswith(("ds_read", "ds_bpermute", "ds_permute", "ds_swizzle")) or "_rtn" in op:
                self.wr = R[0]
                for r in R[1:]:
                    self.rd |= r
            else:
                for r in R:
                    self.rd |= r
        elif op.startswith(("buffer_", "global_")):
            self.kind = "vmem"
            if "load" in op and not lds:
                self.wr = R[0]
                for r in R[1:]:
                    self.rd |= r
            else:
                for r in R:
                    self.rd |= r
                if lds:
                    self.rd.add("m0")
                    self.ldsdma = True
                if "store" in op and ("x4" in op or "x3" in op):
                    self.data = R[0] if op.startswith("buffer_") else R[1]
        elif op.startswith("s_"):
            self.kind = "salu"
            if op.startswith(("s_cmp", "s_cbranch", "s_branch", "s_waitcnt", "s_nop", "s_barrier", "s_endpgm", "s_setpc", "s_bitcmp", "s_setprio", "s_sleep")):
                for r in R:
                    self.rd |= r
            else:
                self.wr = set(R[0]) if R else set()
                for r in R[1:]:
                    self.rd |= r
                if "saveexec" in op:
                    self.wr.add("exec")

    def states(self):
        if self.label or self.directive:
            return 0
        if self.op == "s_nop":
            return int(self.text.split(";")[0].split()[1]) + 1
        return 1


def isv(r):
    return r[0] in "va" and r != "vcc"


def need(p, c):
    n = 0
    pv = {r for r in p.wr if isv(r)}
    ps = p.wr - pv
    if p.kind == "valu":
        isdot = p.op.startswith("v_dot")
        if c.kind == "mfma" and pv & c.rd:
            n = max(n, 3 if isdot else 2)
        if c.kind == "mfma" and "exec" in ps:
            n = max(n, 4)
        if isdot and pv & (c.rd | c.wr):
            same = c.op == p.op and not (pv & (c.rd - c.srcc))
            if not same:
                n = max(n, 3)
        if p.op.startswith(TRANS) and c.kind == "valu" and pv & c.rd:
            n = max(n, 1)
        if c.kind == "valu":
            if c.op.startswith(("v_readlane", "v_readfirstlane")) and pv & c.rd:
                n = max(n, 1)
            if (c.op.startswith("v_permlane") or c.dpp) and pv & c.rd:
                n = max(n, 2)
            if ps & c.rd:
                n = max(n, 4 if c.op.startswith(("v_readlane", "v_writelane")) else 2)
            if "exec" in ps and (c.dpp or c.op.startswith(("v_permlane", "v_readlane", "v_readfirstlane", "v_writelane"))):
                n = max(n, 5)
            if "op_sel" in p.text and not p.op.startswith("v_pk_") and pv & (c.rd | c.wr):
                n = max(n, 1)
        if c.kind == "vmem" and ps & c.rd:
            n = max(n, 5)
    elif p.kind == "mfma":
        full, part, war, same = {2: (5, 4, 1, 2), 4: (8, 6, 3, 0), 8: (12, 10, 7, 0)}[p.passes]
        if c.kind == "mfma":
            if pv & c.ab:
                n = max(n, full)
            if pv & c.srcc:
                n = max(n, same if (c.srcc == pv and c.passes == p.passes) else part)
            if pv & c.wr:
                n = max(n, same if (c.wr == pv and c.passes == p.passes) else part)
        elif c.kind in ("valu", "vmem", "ds"):
            if pv & (c.rd | c.wr):
                n = max(n, full)
            if p.srcc & c.wr:
                n = max(n, war)
    elif p.kind == "salu":
        if "m0" in p.wr and c.kind == "vmem" and "m0" in c.rd:
            n = max(n, 1)
    elif p.kind == "vmem":
        if p.data & c.wr:
            n = max(n, 2 if c.kind in ("valu", "mfma") else 1)
    return n


class K:
    def __init__(self):
        self.lines = []
        self.vm = []
        self.lg = []
        self.nlab = 0

    def __call__(self, text, tag=None):
        for t in text.strip().split("\n"):
            t = t.strip()
            if not t:
                continue
            self.lines.append(t)
            op = t.split()[0]
            if op.startswith(("buffer_", "global_")):
                self.vm.append(tag)
            elif op.startswith("ds_"):
                self.lg.append(tag)

    def note(self, text):
        self.lines.append("; " + text)

    def label(self, name):
        self.lines.append(name + ":")

    def newlabel(self, base):
        self.nlab += 1
        return f"L_{base}_{self.nlab}"

    @staticmethod
    def _count(lst, tags):
        if not isinstance(tags, list):
            tags = [tags]
        idx = -1
        for t in tags:
            for i in range(len(lst) - 1, -1, -1):
                if lst[i] == t:
                    idx = max(idx, i)
                    break
        if idx < 0:
            return None
        n = len(lst) - 1 - idx
        del lst[: idx + 1]
        return n

    def wait(self, vm=None, lg=None):
        parts = []
        if vm is not None:
            if vm == "all":
                self.vm.clear()
                parts.append("vmcnt(0)")
            else:
                n = self._count(self.vm, vm)
                if n is not None:
                    parts.append(f"vmcnt({min(n, 63)})")
        if lg is not None:
            if lg == "all":
                self.lg.clear()
                parts.append("lgkmcnt(0)")
            else:
                n = self._count(self.lg, lg)
                if n is not None:
                    parts.append(f"lgkmcnt({min(n, 15)})")
        if parts:
            self.lines.append("s_waitcnt " + " ".join(parts))
            return True
        return False

    def pad(self):
        ins = [Ins(t) for t in self.lines]
        added = 0

        def maps():
            labels = {x.text.split(";")[0].strip()[:-1]: i for i, x in enumerate(ins) if x.label}
            preds = {}
            for i, x in enumerate(ins):
                if x.op.startswith(("s_cbranch", "s_branch")):
                    tgt = x.text.split(";")[0].split()[1]
                    preds.setdefault(labels[tgt], []).append(i)
            return preds

        def scan(c, j, dist, depth, preds):
            req = 0
            start = j
            while j >= 0 and dist < 13:
                p = ins[j]
                if p.label and depth < 3:
                    for b in preds.get(j, []):
                        req = max(req, scan(c, b, dist, depth + 1, preds))
                if p.op in ("s_branch", "s_endpgm", "s_setpc_b64") and not (depth and j == start):
                    break
                if not (p.label or p.directive):
                    req = max(req, need(p, c) - dist)
                dist += p.states()
                j -= 1
            return req

        preds = maps()
        i = 0
        while i < len(ins):
            c = ins[i]
            if not (c.label or c.directive):
                req = scan(c, i - 1, 0, 0, preds)
                if req > 0:
                    ins.insert(i, Ins(f"s_nop {req - 1}"))
                    added += 1
                    preds = maps()
                    i += 1
            i += 1
        self.lines = [x.text for x in ins]
        return added


def sizes(lines):
    src = '.amdgcn_target "amdgcn-amd-amdhsa--gfx950"\n.text\n' + "\n".join(lines) + "\n"
    r = subprocess.run(["llvm-mc", "-triple", "amdgcn-amd-amdhsa", "-mcpu=gfx950", "-show-encoding"],
                       input=src, capture_output=True, text=True)
    if r.returncode:
        raise SystemExit(r.stderr[:3000])
    enc = [len(l.split("encoding: [")[1].split("]")[0].split(",")) for l in r.stdout.split("\n") if "encoding: [" in l]
    out, k = [], 0
    for t in lines:
        x = t.split(";")[0].strip()
        if not x or x.endswith(":") or x.startswith("."):
            out.append(0)
        else:
            out.append(enc[k])
            k += 1
    assert k == len(enc)
    return out


PROMOTE = ("v_exp_f32", "v_rcp_f32", "v_mul_f32", "v_add_f32", "v_sub_f32", "v_mov_b32", "v_max_f32", "v_min_f32",
           "v_lshlrev_b32", "v_lshrrev_b32", "v_and_b32", "v_xor_b32", "v_add_u32", "v_rsq_f32", "v_sqrt_f32")


def align8(lines):
    sz = sizes(lines)
    off = 0
    run = []
    left = 0
    for i, t in enumerate(lines):
        if sz[i] == 0:
            continue
        if sz[i] == 4:
            run.append((i, off))
        else:
            if off % 8:
                for j, o in reversed(run):
                    op = lines[j].split()[0]
                    if o % 8 == 0 and op in PROMOTE:
                        lines[j] = op + "_e64" + lines[j][len(op):]
                        off += 4
                        break
                else:
                    left += 1
            run = []
        off += sz[i]
    return left
```

```python
import math
import struct
import sys

from asmlib import K, sizes, align8

NAME = "sequential_preLN__softmax_full_mha__glu_gated_glu__prompt"

WS_QKV, WS_O, WS_H, WS_ACT = 0, 0x600000, 0x800000, 0xA00000
WS_WGU, WS_WD, WS_WO, WS_CS = 0x1100000, 0x1500000, 0x1700000, 0x1780000
WS_FA, WS_FB, WS_FC, WS_FD, WS_E, WS_FP = 0x1800000, 0x1808000, 0x1810000, 0x1818000, 0x1820000, 0x1828000
WS_ST = 0x1880000
OOB = 0x40000000
WS_TS = 0x1900000
WS_SIZE = 0x1A00000

X, WQ, WS, OUT, PA, PB = "s[4:7]", "s[8:11]", "s[12:15]", "s[16:19]", "s[20:23]", "s[24:27]"
sW, sA, sB, sTAG, sCNT, sONE, sFB = "s36", "s37", "s38", "s39", "s40", "s41", "s42"
sU, sPD, sPCS, sP0, sP1, sPST = "s43", "s44", "s45", "s46", "s47", "s48"
sXL = "s49"
sA2, sB2, sPS, sPF = "s28", "s29", "s30", "s31"
vFLAG, vTAG = "v211", 212
LR = 114688
ONES = 0x3F803F80
U_D, U_O, U_END = 392, 588, 644


def f32(x):
    return hex(struct.unpack("<I", struct.pack("<f", x))[0])


def vr(b, n):
    return f"v[{b}:{b + n - 1}]"


def ar(b, n):
    return f"a[{b}:{b + n - 1}]"


class Gen:
    def __init__(self, ts=False, force_fb=False, **opt):
        self.k = K()
        self.ts = ts
        self.nts = 0
        self.tsn = []
        self.force_fb = force_fb
        self.opt = opt

    def stamp(self, name):
        if self.ts:
            self.k(f"s_memtime s[98:99]\ns_waitcnt lgkmcnt(0)\nv_writelane_b32 v255, s98, {self.nts + 2}")
            self.k.lg.clear()
            self.nts += 1
            self.tsn.append(name)

    def mfma(self, d, a, b, c=None):
        c = d if c is None else c
        self.k(f"v_mfma_f32_32x32x16_bf16 {d}, {a}, {b}, {c}")

    def poll(self, vaddr, vtmp, base):
        k = self.k
        L, Dn = k.newlabel("poll"), k.newlabel("seen")
        k(f"s_mov_b32 s60, {base}")
        k.label(L)
        k(f"buffer_load_dword {vtmp}, {vaddr}, {WS}, s60 offen sc1")
        k.wait(vm="all")
        k(f"""v_cmp_ne_u32 vcc, {sTAG}, {vtmp}
        s_cbranch_vccz {Dn}
        s_sub_u32 {sCNT}, {sCNT}, 1
        s_cselect_b32 {sCNT}, 0, {sCNT}
        s_cbranch_scc0 {L}""")
        k.label(Dn)

    def publish(self, base, sidx, vt, vo):
        k = self.k
        for i in range(4):
            k(f"v_mov_b32 v{vt + i}, {sTAG}")
        k(f"""s_lshl_b32 s60, {sidx}, 7
        s_add_u32 s60, s60, {base}
        s_cmp_eq_u32 {sW}, 0
        s_cselect_b32 s60, s60, {OOB}
        v_lshrrev_b32 v{vo}, 3, v0
        v_lshl_add_u32 v{vo}, v{vo}, 26, v1""")
        k.wait(vm="all")
        k(f"s_barrier\nbuffer_store_dwordx4 {vr(vt, 4)}, v{vo}, {WS}, s60 offen sc1")

    def stats(self, vs, vq, t0, vb, vrs):
        return f"""v_mov_b32 v{vq}, v{vs}
        v_permlane32_swap_b32 v{vs}, v{vq}
        v_mul_f32 v{vs}, {f32(-1.0 / 448)}, v{vs}
        v_mul_f32 v{vq}, {f32(1.0 / 448)}, v{vq}
        v_cvt_pk_bf16_f32 v{t0}, v{vs}, v{vs}
        v_fma_f32 v{vq}, -v{vs}, v{vs}, v{vq}
        v_and_b32 v{t0}, 0xffff0000, v{t0}
        v_max_f32 v{vq}, 0, v{vq}
        v_sub_f32 v{t0}, v{vs}, v{t0}
        v_add_f32 v{vrs}, {f32(1e-5)}, v{vq}
        v_cvt_pk_bf16_f32 v{vb}, v{vs}, v{t0}
        v_cvt_pk_bf16_f32 v{vb + 1}, v{vs}, v{t0}""".split("\n")

    def split2(self, vc, vd):
        return f"""v_cvt_pk_bf16_f32 v{vd}, v{vc}, v{vc}
        v_and_b32 v{vd + 1}, 0xffff0000, v{vd}
        v_sub_f32 v{vd + 1}, v{vc}, v{vd + 1}
        v_cvt_pk_bf16_f32 v{vd + 1}, v{vd + 1}, v{vd + 1}""".split("\n")

    def prologue(self):
        k = self.k
        k(f"""s_cmp_ge_u32 s2, 0x100
        s_cbranch_scc1 L_end
        s_load_dwordx16 s[64:79], s[0:1], 0
        s_load_dwordx2 s[12:13], s[0:1], 72""")
        if self.ts:
            k("s_memrealtime s[96:97]\ns_memtime s[98:99]")
        if self.opt.get("touch", 1):
            k.note("pull the whole code object into this die's L2 ahead of instruction fetch")
            k("""s_getpc_b64 s[86:87]
            v_lshlrev_b32 v127, 7, v0
            global_load_dword v200, v127, s[86:87]
            v_add_u32 v127, 0x8000, v127
            v_min_u32 v127, CODE_LAST, v127
            global_load_dword v201, v127, s[86:87]""")
        k(f"""v_lshrrev_b32 v2, 6, v0
        v_and_b32 v0, 63, v0
        s_and_b32 {sA}, s2, 7
        v_readfirstlane_b32 {sW}, v2
        s_lshl_b32 {sA}, {sA}, 1
        s_bfe_u32 s50, s2, 0x10003
        s_add_u32 {sA}, {sA}, s50
        s_lshr_b32 {sB}, s2, 4
        s_bfe_u32 {sA2}, s2, 0x20001
        s_lshl_b32 {sA2}, {sA2}, 2
        s_bfe_u32 s50, s2, 0x20003
        s_add_u32 {sA2}, {sA2}, s50
        s_and_b32 {sB2}, s2, 1
        s_lshl_b32 {sB2}, {sB2}, 3
        s_lshr_b32 s50, s2, 5
        s_add_u32 {sB2}, {sB2}, s50
        v_lshlrev_b32 v1, 4, v0
        s_mov_b32 {sCNT}, 0x40000
        s_mov_b32 {sONE}, {ONES}
        s_mov_b32 {sFB}, 0
        v_mov_b32 v254, 0""")
        k(f"""s_mul_i32 s50, {sB2}, 168
        s_and_b32 s51, s50, 15
        s_sub_u32 s50, s50, s51
        s_mul_i32 s52, {sW}, {16 * 2688}
        s_add_u32 s50, s50, s52""")
        for t in range(3):
            k(f"""v_add_u32 v14, {64 * t}, v0
            v_mul_u32_u24 v15, 171, v14
            v_lshrrev_b32 v15, 11, v15
            v_mul_u32_u24 v16, 12, v15
            v_sub_u32 v16, v14, v16
            v_min_u32 v16, 10, v16
            v_mul_u32_u24 v15, 2688, v15
            v_lshlrev_b32 v16, 4, v16
            v_add3_u32 v{3 + t}, v15, v16, s50""")
        k(f"""v_lshrrev_b32 v14, 3, v0
        v_and_b32 v15, 7, v0
        v_lshrrev_b32 v16, 4, v0
        v_xor_b32 v16, v15, v16
        v_mul_u32_u24 v17, 896, v14
        s_lshl_b32 s52, {sA2}, 2
        s_add_u32 s52, s52, {sW}
        s_mul_i32 s52, s52, {32 * 896}
        v_lshlrev_b32 v18, 4, v16
        v_add3_u32 v6, v17, v18, s52
        v_xor_b32 v7, 64, v6""")
        k(f"""s_lshl_b32 {sXL}, {sW}, 14
        s_add_u32 {sXL}, {sXL}, 86016""")
        k(f"""s_lshr_b32 s53, s2, 3
        s_mul_i32 s54, s53, 37
        s_lshr_b32 s54, s54, 8
        s_mul_i32 s54, s54, 7
        s_sub_u32 s53, s53, s54
        s_mul_i32 s54, {sW}, 3072
        s_mov_b32 s6, {2048 * 896}
        s_mov_b32 s7, 0x20000
        s_mov_b32 s10, {448 * 2688}
        s_mov_b32 s11, 0x20000
        s_mov_b32 s14, {WS_SIZE}
        s_mov_b32 s15, 0x20000
        s_mov_b32 s18, {2048 * 896}
        s_mov_b32 s19, 0x20000
        s_mov_b32 s23, 0x20000
        s_mov_b32 s27, 0x20000
        s_mov_b32 s60, {WS_E}
        v_mov_b32 v16, 0
        s_waitcnt lgkmcnt(0)
        s_mov_b32 s4, s64
        s_mov_b32 s5, s65
        s_mov_b32 s8, s66
        s_mov_b32 s9, s67""")
        if self.ts:
            k("v_writelane_b32 v255, s96, 0\nv_writelane_b32 v255, s98, 1")

    def a_dma(self, c):
        g = []
        pre = f"s_mul_i32 s55, s53, {64 * 2688}\ns_lshl_b32 s56, s53, 7\n"
        for t in range(3):
            g.append(pre + f"s_add_u32 m0, s54, {c * 12288 + t * 1024}\ns_nop 0\nbuffer_load_dwordx4 v{3 + t}, {WQ}, s55 offen lds")
            pre = ""
        for t in range(4):
            post = "\ns_add_u32 s53, s53, 1\ns_cmp_eq_u32 s53, 7\ns_cselect_b32 s53, 0, s53" if t == 3 else ""
            g.append(f"s_add_u32 m0, {sXL}, {(c % 4) * 4096 + t * 1024}\ns_add_u32 s57, s56, {t * 8 * 896}\n"
                     f"buffer_load_dwordx4 v{6 + (t & 1)}, {X}, s57 offen lds" + post)
        return g

    def p_dma(self, h):
        slot = 3 if h == 0 else 0
        srd, sb = (PA, sP0) if h == 0 else (PB, sP1)
        g = []
        for t in range(4):
            g.append(f"s_add_u32 m0, {sXL}, {slot * 4096 + t * 1024}\ns_nop 0\nbuffer_load_dwordx4 v2, {srd}, {sb} offen lds\n"
                     f"s_add_u32 {sb}, {sb}, {sPST}")
        return g

    def unit_setup(self):
        k = self.k
        k(f"""s_mov_b32 s16, s78
        s_mov_b32 s17, s79
        s_lshl_b32 {sU}, {sW}, 8
        s_add_u32 {sU}, {sU}, s2
        s_cmp_ge_u32 {sU}, {U_D}
        s_cbranch_scc1 L_u1
        s_mov_b32 s20, s72
        s_mov_b32 s21, s73
        s_mov_b32 s24, s74
        s_mov_b32 s25, s75
        s_mov_b32 s22, {448 * 3584}
        s_mul_i32 s58, {sU}, 4682
        s_lshr_b32 s58, s58, 16
        s_mul_i32 s59, s58, 14
        s_sub_u32 s59, {sU}, s59
        s_mul_i32 {sP0}, s59, {32 * 3584}
        s_lshl_b32 s61, s58, 7
        s_add_u32 {sP0}, {sP0}, s61
        s_mov_b32 {sP1}, {sP0}
        s_mov_b32 {sPST}, 3584
        s_mul_i32 {sPD}, s58, {4 * 28 * 1024}
        s_lshl_b32 s61, s59, 11
        s_add_u32 {sPD}, {sPD}, s61
        s_add_u32 {sPD}, {sPD}, {WS_WGU}
        s_mov_b32 {sPS}, 28672
        s_lshl_b32 {sPCS}, {sU}, 10
        s_add_u32 {sPCS}, {sPCS}, {WS_CS}
        s_branch L_u3""")
        k.label("L_u1")
        k(f"""s_mov_b32 {sPST}, 896
        s_mov_b32 {sPS}, 2048
        s_mov_b32 {sPCS}, {OOB}
        s_cmp_ge_u32 {sU}, {U_O}
        s_cbranch_scc1 L_u2
        s_mov_b32 s20, s76
        s_mov_b32 s21, s77
        s_mov_b32 s24, s76
        s_mov_b32 s25, s77
        s_mov_b32 s22, {1792 * 896}
        s_sub_u32 s61, {sU}, {U_D}
        s_mul_i32 s58, s61, 2341
        s_lshr_b32 s58, s58, 16
        s_mul_i32 s59, s58, 28
        s_sub_u32 s59, s61, s59
        s_mul_i32 {sP0}, s59, {64 * 896}
        s_lshl_b32 s58, s58, 7
        s_add_u32 {sP0}, {sP0}, s58
        s_add_u32 {sP1}, {sP0}, {32 * 896}
        s_lshl_b32 {sPD}, s61, 13
        s_add_u32 {sPD}, {sPD}, {WS_WD}
        s_branch L_u3""")
        k.label("L_u2")
        k(f"""s_mov_b32 s20, s68
        s_mov_b32 s21, s69
        s_mov_b32 s24, s68
        s_mov_b32 s25, s69
        s_cmp_lt_u32 {sU}, {U_END}
        s_cselect_b32 s22, {448 * 896}, 0
        s_sub_u32 s61, {sU}, {U_O}
        s_lshr_b32 s58, s61, 3
        s_and_b32 s59, s61, 7
        s_mul_i32 {sP0}, s59, {56 * 896}
        s_lshl_b32 s58, s58, 7
        s_add_u32 {sP0}, {sP0}, s58
        s_add_u32 {sP1}, {sP0}, {28 * 896}
        s_lshl_b32 {sPD}, s61, 13
        s_add_u32 {sPD}, {sPD}, {WS_WO}
        s_cmp_lt_u32 {sU}, {U_END}
        s_cselect_b32 {sPD}, {sPD}, {OOB}""")
        k.label("L_u3")
        k(f"""s_mov_b32 s26, s22
        s_lshl_b32 {sPF}, {sU}, 7
        s_add_u32 {sPF}, {sPF}, {WS_FP}
        s_cmp_lt_u32 {sU}, {U_END}
        s_cselect_b32 {sPF}, {sPF}, {OOB}
        v_lshrrev_b32 v16, 3, v0
        v_and_b32 v17, 7, v0
        v_mul_lo_u32 v16, v16, {sPST}
        v_lshl_add_u32 v2, v17, 4, v16
        s_lshl_b32 {sPST}, {sPST}, 3""")

    def phase_a(self):
        k = self.k
        DEP = self.opt.get("adep", 3)
        ACC, FR, SQ, SM, CS, ON, T = 16, 64, 96, 104, 112, 124, 128
        LX = 151552
        k(f"buffer_load_dword v126, v16, {WS}, s60 offen sc1", tag="E")
        for c in range(DEP):
            for g in self.a_dma(c):
                k(g, tag=("A", c))
            if c == 0:
                k.note("LDS read addresses: v8..v11 W (transposed), v12..v15 x; k-step order rotated by the wave index")
                k(f"""v_bfe_u32 v16, v0, 2, 2
                v_lshrrev_b32 v17, 5, v0
                v_lshl_add_u32 v16, v17, 3, v16
                v_mul_u32_u24 v16, 192, v16
                v_bfe_u32 v18, v0, 4, 1
                v_lshlrev_b32 v18, 5, v18
                v_and_b32 v19, 3, v0
                v_lshl_add_u32 v18, v19, 3, v18
                v_add3_u32 v19, v16, v18, s51
                v_and_b32 v16, 31, v0
                v_bfe_u32 v18, v0, 1, 3
                v_xor_b32 v18, v18, v17
                v_lshlrev_b32 v18, 4, v18
                v_lshl_add_u32 v16, v16, 7, v18
                v_add_u32 v16, {sXL}, v16
                v_mov_b32 v{ON}, {sONE}
                v_mov_b32 v{ON + 1}, {sONE}""")
                for p in range(4):
                    k(f"""s_add_u32 s58, {sW}, {p}
                    s_and_b32 s58, s58, 3
                    s_mul_i32 s59, s58, 3072
                    s_lshl_b32 s58, s58, 5
                    v_add_u32 v{8 + p}, s59, v19
                    v_xor_b32 v{12 + p}, s58, v16""")
            if c == 1:
                self.unit_setup()
        k(f"""v_and_b32 v{T}, 31, v0
        v_mul_u32_u24 v{T}, 80, v{T}
        v_lshrrev_b32 v{T + 1}, 5, v0
        v_lshl_add_u32 v{T}, v{T + 1}, 3, v{T}
        v_bfe_u32 v16, v0, 2, 2
        v_lshl_add_u32 v{T + 1}, v{T + 1}, 2, v16
        v_mul_u32_u24 v{T + 1}, 80, v{T + 1}
        v_bfe_u32 v16, v0, 4, 1
        v_lshl_add_u32 v{T + 1}, v16, 5, v{T + 1}
        v_and_b32 v16, 3, v0
        v_lshl_add_u32 v{T + 1}, v16, 3, v{T + 1}
        v_add_u32 v{T}, {sXL}, v{T}
        v_add_u32 v{T + 1}, {sXL}, v{T + 1}
        v_add_u32 v{T + 3}, {LX}, v1
        s_lshl_b32 s58, {sW}, 2
        v_add_u32 v{T + 2}, s58, v{T + 3}
        v_cmp_eq_u32 s[80:81], 1, v16
        v_cmp_eq_u32 s[82:83], 2, v16
        v_cmp_eq_u32 s[84:85], 3, v16""")

        def reads(c, ks):
            n = 4 * c + ks
            f = FR + 16 * (n & 1)
            if c == 4:
                k(f"v_add_u32 v{8 + ks}, 49152, v{8 + ks}")
            k(f"ds_read_b128 {vr(f, 4)}, v{12 + ks} offset:{(c % 4) * 4096}", tag=("r", n))
            for m in range(3):
                for q in range(2):
                    off = (c % 4) * 12288 + 4 * q * 192 + 56 * m
                    k(f"ds_read_b64_tr_b16 {vr(f + 4 + 4 * m + 2 * q, 2)}, v{8 + ks} offset:{off}", tag=("r", n))

        def small(d, a, b, first):
            k(f"v_mfma_f32_4x4x4bf16_1k {vr(d, 4)}, {vr(a, 2)}, {vr(b, 2)}, {'0' if first else vr(d, 4)}")

        CX = 136
        VB, VR_, CA = 150, 149, 152
        for c in range(7):
            k.wait(vm=("A", c))
            k("s_barrier")
            self.stamp(f"A{c}")
            reads(c, 0)
            extra = []
            nx = c + DEP
            if nx < 7:
                extra = [(g, ("A", nx)) for g in self.a_dma(nx)]
            if c == 4:
                extra += [(g, "P") for g in self.p_dma(0)]
            if c == 5:
                extra += [(g, "P") for g in self.p_dma(1)]
            for ks in range(4):
                n = 4 * c + ks
                f = FR + 16 * (n & 1)
                if ks < 3:
                    reads(c, ks + 1)
                k.wait(lg=("r", n))
                for h in range(2):
                    small(SQ + 4 * h, f + 2 * h, f + 2 * h, n == 0)
                    small(SM + 4 * h, ON, f + 2 * h, n == 0)
                if ks == 0:
                    for h in range(2):
                        for m in range(3):
                            small(CS + 4 * m, ON, f + 4 + 4 * m + 2 * h, n == 0 and h == 0)
                tail = []
                if n == 27:
                    tail = [f"v_add_f32 v{SQ + i}, v{SQ + i}, v{SQ + 4 + i}" for i in range(4)]
                    tail += [f"v_add_f32 v{SM}, v{SM}, v{SM + 4}"]
                    tail += [f"v_cndmask_b32 v{SQ}, v{SQ}, v{SQ + i}, s[{78 + 2 * i}:{79 + 2 * i}]" for i in range(1, 4)]
                    tail += [f"v_permlane32_swap_b32 v{SM}, v{SQ}", f"v_add_f32 v{SM}, v{SM}, v{SQ}"]
                    tail += self.stats(SM, SQ, 148, VB, VR_) + [f"v_rsq_f32 v{VR_}, v{VR_}"]
                if n == 26:
                    k.wait(lg="cx")
                    for m in range(3):
                        tail += [f"v_add_f32 v{CX + 4 * m}, v{CX + 4 * m}, v{CX + 4 * m + i}" for i in range(1, 4)]
                        tail += self.split2(CX + 4 * m, CA + 2 * m)
                for m in range(3):
                    self.mfma(vr(ACC + 16 * m, 16), vr(f + 4 + 4 * m, 4), vr(f, 4), "0" if n == 0 else None)
                    if extra:
                        g, tg = extra.pop(0)
                        k(g, tag=tg)
                    if n == 24 and m == 2:
                        for j in range(3):
                            k(f"ds_write_b32 v{T + 2}, v{CS + 4 * j} offset:{1024 * j}", tag="cw")
                    if n == 25 and m == 0:
                        k.wait(lg="cw")
                        k("s_barrier")
                        for j in range(3):
                            k(f"ds_read_b128 {vr(CX + 4 * j, 4)}, v{T + 3} offset:{1024 * j}", tag="cx")
                    cnt = len(tail) if m == 2 else 7
                    for t in tail[:cnt]:
                        k(t)
                    tail = tail[cnt:]
            assert not extra
        self.stamp("A7")
        for m in range(3):
            k(f"v_mfma_f32_32x32x8bf16_1k {vr(ACC + 16 * m, 16)}, {vr(CA + 2 * m, 2)}, {vr(VB, 2)}, {vr(ACC + 16 * m, 16)}")
        qs = math.log2(math.e) / math.sqrt(28.0)
        k(f"""v_readfirstlane_b32 {sTAG}, v126
        s_mul_i32 s50, {sB2}, 3
        s_lshl_b32 s51, {sA2}, 2
        s_add_u32 s51, s51, {sW}
        s_lshl_b32 s51, s51, 11
        s_add_u32 {sTAG}, {sTAG}, 0x9e3779b9""")
        for m in range(3):
            a, p = ACC + 16 * m, FR + 8 * m
            Lq = k.newlabel("nv")
            k(f"""s_add_u32 s52, s50, {m}
            s_lshl_b32 s55, s52, 17
            s_add_u32 s55, s55, s51
            s_cmp_lt_u32 s52, 16
            s_cselect_b32 s56, {f32(qs)}, 1.0
            s_cselect_b32 s57, 0, {sONE}
            s_cselect_b32 s58, 0, 0x3f80
            s_cmp_ge_u32 s52, 32
            s_cselect_b32 s57, 0x3f80, s57
            s_cselect_b32 s58, 0, s58
            v_mul_f32 v{SQ}, s56, v{VR_}""")
            for i in range(8):
                k(f"v_pk_mul_f32 {vr(a + 2 * i, 2)}, {vr(a + 2 * i, 2)}, {vr(SQ, 2)} op_sel_hi:[1,0]")
            for i in range(8):
                k(f"v_cvt_pk_bf16_f32 v{p + i}, v{a + 2 * i}, v{a + 2 * i + 1}")
            k(f"""s_mov_b32 exec_lo, 0
            v_mov_b32 v{p + 6}, s57
            v_mov_b32 v{p + 7}, s58
            s_mov_b32 exec_lo, -1
            s_cbranch_scc0 {Lq}""")
            for q in range(4):
                k(f"ds_write_b64 v{T}, {vr(p + 2 * q, 2)} offset:{4096 + 2560 * m + 16 * q}")
            for s in range(2):
                for q in range(2):
                    k(f"ds_read_b64_tr_b16 {vr(p + 4 * s + 2 * q, 2)}, v{T + 1} offset:{4096 + 2560 * m + (16 * s + 8 * q) * 80}")
            k.wait(lg="all")
            k.label(Lq)
            for s in range(2):
                k(f"buffer_store_dwordx4 {vr(p + 4 * s, 4)}, v1, {WS}, s55 offen offset:{1024 * s} sc1")
        self.stamp("A8")
        self.prelayout()
        k(f"s_lshl_b32 s50, {sA2}, 4\ns_add_u32 s50, s50, {sB2}")
        self.publish(WS_FA, "s50", vTAG, 211)
        self.stamp("A9")

    def prelayout(self):
        k = self.k
        F = 216
        k(f"""v_bfe_u32 v20, v0, 2, 2
        v_lshrrev_b32 v21, 5, v0
        v_bfe_u32 v22, v0, 4, 1
        v_and_b32 v23, 3, v0""")
        for q in range(4):
            k(f"v_mov_b32 v{F + 32 + q}, 0")
        k.wait(vm="P")
        k(f"s_cmp_ge_u32 {sU}, {U_D}\ns_cbranch_scc1 L_p1")
        k(f"""v_lshl_add_u32 v20, v21, 4, v20
        v_lshlrev_b32 v20, 7, v20
        v_lshl_add_u32 v20, v23, 3, v20
        v_xor_b32 v22, 1, v22
        v_mul_u32_u24 v22, 12288, v22
        v_add3_u32 v20, v20, v22, {sXL}""")
        for q in range(4):
            for e in range(2):
                for h in range(2):
                    k(f"ds_read_b64_tr_b16 {vr(F + 8 * q + 4 * e + 2 * h, 2)}, v20 offset:{32 * q + (8 * e + 4 * h) * 128}", tag=("p", q))
        for q in range(4):
            k.wait(lg=("p", q))
            for j in range(8):
                k(f"v_dot2c_f32_bf16 v{F + 32 + q}, {sONE}, v{F + 8 * q + j}")
        k("s_branch L_p2")
        k.label("L_p1")
        k(f"""v_lshl_add_u32 v20, v21, 2, v20
        v_lshlrev_b32 v20, 7, v20
        v_lshl_add_u32 v20, v22, 4, v20
        v_and_b32 v21, 1, v23
        v_lshl_add_u32 v20, v21, 5, v20
        v_lshrrev_b32 v21, 1, v23
        v_lshl_add_u32 v20, v21, 3, v20
        v_add_u32 v20, {sXL}, v20""")
        for e in range(4):
            for ct in range(2):
                for h in range(2):
                    off = (12288 if e < 2 else 0) + 64 * ct + (16 * (e & 1) + 8 * h) * 128
                    k(f"ds_read_b64_tr_b16 {vr(F + 8 * e + 4 * ct + 2 * h, 2)}, v20 offset:{off}")
        k.wait(lg="all")
        k.label("L_p2")

    def phase_b(self):
        k = self.k
        Q, O, S, P, KV = 8, 40, 104, 136, 144
        DEP = 4
        sK, sV, sWD, sGU, sGL = "s50", "s51", "s32", "s53", "s54"
        k(f"""s_add_u32 s55, {sA}, 16
        s_mul_i32 s55, s55, 43
        s_lshr_b32 s55, s55, 7
        s_add_u32 s56, {sA}, 32
        s_mul_i32 s56, s56, 43
        s_lshr_b32 s56, s56, 7
        s_mul_i32 s57, {sA}, 43
        s_lshr_b32 s57, s57, 7
        s_lshl_b32 s58, {sB}, 4
        s_add_u32 s57, s57, s58
        s_lshl_b32 s58, {sW}, 6
        s_add_u32 s55, s55, s58
        s_add_u32 s56, s56, s58
        v_and_b32 v2, 3, v0
        v_lshlrev_b32 v2, 4, v2
        v_add_u32 v4, s55, v2
        v_add_u32 v5, s56, v2
        v_mov_b32 v2, s57
        v_cmp_gt_u32 vcc, 8, v0
        v_cndmask_b32 v2, v2, v5, vcc
        v_cmp_gt_u32 vcc, 4, v0
        v_cndmask_b32 v2, v2, v4, vcc
        v_lshlrev_b32 v2, 7, v2""")
        k(f"""s_mul_i32 s55, {sB2}, 7
        s_lshr_b32 s55, s55, 2
        s_mul_i32 s55, s55, 14
        s_lshr_b32 s56, {sB}, 1
        s_min_u32 s56, s56, 6
        s_mul_i32 s57, s56, 28
        s_mul_i32 s58, {sW}, 7
        s_add_u32 s57, s57, s58
        s_lshl_b32 {sWD}, s57, 13
        s_add_u32 {sWD}, {sWD}, {WS_WD}
        s_add_u32 s57, s57, {U_D - 42}
        s_lshl_b32 s56, s56, 3
        s_lshl_b32 s58, {sW}, 1
        s_add_u32 s56, s56, s58
        s_lshl_b32 s35, s56, 13
        s_add_u32 s35, s35, {WS_WO}
        s_add_u32 s56, s56, {U_O}
        v_add_u32 v4, s55, v0
        v_min_u32 v4, {U_D - 1}, v4
        v_add_u32 v5, s57, v0
        v_and_b32 v3, 1, v0
        v_add_u32 v3, s56, v3
        v_cmp_gt_u32 vcc, 49, v0
        v_cndmask_b32 v3, v3, v5, vcc
        v_cmp_gt_u32 vcc, 42, v0
        v_cndmask_b32 v3, v3, v4, vcc
        v_lshlrev_b32 v3, 7, v3""")
        for u in range(3):
            k(f"""s_add_u32 s55, {sW}, {u + 1}
            s_and_b32 s55, s55, 3
            s_mul_i32 s55, s55, 12288
            s_add_u32 s55, s55, {LR + 4096 * u}
            v_add_u32 v{4 + u}, s55, v1""")
        k(f"""s_mul_i32 s55, {sW}, 12288
        s_add_u32 s55, s55, {LR}
        v_add_u32 v7, s55, v1
        v_and_b32 v208, 3, v0
        v_mul_u32_u24 v208, 12288, v208
        v_add_u32 v208, {LR + 3072 + 516}, v208
        s_lshr_b32 s55, {sW}, 1
        s_lshl_b32 s55, s55, 10
        v_add_u32 v253, s55, v1
        v_xor_b32 v252, 1024, v253""")
        self.poll("v2", "v209", WS_FA)
        self.stamp("B0")
        k(f"s_lshl_b32 s55, {sA}, 6\ns_lshl_b32 s56, {sB}, 2\ns_add_u32 s55, s55, s56")
        for u in range(4):
            k(f"s_add_u32 s56, {sW}, {u + 1}\ns_and_b32 s56, s56, 3\ns_add_u32 s56, s56, s55\ns_lshl_b32 s56, s56, 11")
            for s in range(2):
                k(f"buffer_load_dwordx4 {vr(Q + 8 * u + 4 * s, 4)}, v1, {WS}, s56 offen offset:{1024 * s} sc1", tag="Q")
        k.label("L_attn")
        k(f"""s_lshl_b32 {sK}, {sA}, 6
        s_lshl_b32 s55, {sW}, 4
        s_add_u32 {sK}, {sK}, s55
        s_add_u32 {sK}, {sK}, 1024
        s_lshl_b32 {sK}, {sK}, 11
        s_add_u32 {sV}, {sK}, {1024 * 2048}
        s_mul_i32 {sGL}, {sW}, 28672
        s_mul_i32 {sGU}, {sB2}, {7 * 28672}
        s_add_u32 {sGU}, {sGU}, {sGL}
        s_add_u32 {sGU}, {sGU}, {WS_WGU}
        s_mov_b32 s33, {sWD}
        s_mov_b32 s59, s35""")

        def kload(kt):
            b = KV + 16 * (kt % DEP)
            g = []
            for s in range(2):
                t = f"buffer_load_dwordx4 {vr(b + 4 * s, 4)}, v1, {WS}, {sK} offen offset:{2048 * (kt & 1) + 1024 * s} sc1"
                g.append((t, ("K", kt)))
            if kt & 1:
                g.append((f"s_add_u32 {sK}, {sK}, 4096", None))
            return g

        def vload(kt):
            b = KV + 16 * (kt % DEP) + 8
            g = []
            for s in range(2):
                t = f"buffer_load_dwordx4 {vr(b + 4 * s, 4)}, v1, {WS}, {sV} offen offset:{2048 * (kt & 1) + 1024 * s} sc1"
                g.append((t, ("V", kt)))
            if kt & 1:
                g.append((f"s_add_u32 {sV}, {sV}, 4096", None))
            return g

        for kt in range(DEP - 1):
            for t, tg in kload(kt) + vload(kt):
                k(t, tag=tg)

        pre = []
        for i in range(28):
            if i % 4 == 0:
                pre.append((f"s_add_u32 m0, {sGL}, {i * 1024}", None))
            pre.append((f"buffer_load_dwordx4 v1, {WS}, {sGU} offen offset:{(i % 4) * 1024} sc1 lds", "GU"))
            if i % 4 == 3:
                pre.append((f"s_add_u32 {sGU}, {sGU}, 4096", None))
        for i in range(16):
            pre.append((f"buffer_load_dwordx4 {ar(160 + 4 * i, 4)}, v{252 + (i & 1)}, {WS}, s59 offen offset:{(i & 2) * 1024} sc1", "WO"))
            if i % 4 == 3:
                pre.append(("s_add_u32 s59, s59, 4096", None))
        NWD = self.opt.get("nwd", 24)
        pre += self.wd_loads(0, NWD)
        pst = []
        for p in range(4):
            for e in range(2):
                pst.append((f"buffer_store_dwordx4 {vr(216 + 8 * p + 4 * e, 4)}, v1, {WS}, {sPD} offen offset:{1024 * e} sc1", "PS"))
            pst.append((f"s_add_u32 {sPD}, {sPD}, {sPS}", None))
        pst.append((f"buffer_store_dwordx4 v[248:251], v1, {WS}, {sPCS} offen sc1", "PS"))

        def smf(n, s):
            kt, u = divmod(n, 4)
            b = KV + 16 * (kt % DEP)
            d = vr(S + 16 * (n & 1), 16)
            self.mfma(d, vr(b + 4 * s, 4), vr(Q + 8 * u + 4 * s, 4), "0" if s == 0 else None)

        def pv(n, s):
            kt, u = divmod(n, 4)
            b = KV + 16 * (kt % DEP) + 8
            self.mfma(vr(O + 16 * u, 16), vr(b + 4 * s, 4), vr(P + 4 * s, 4), "0" if (kt == 0 and s == 0) else None)

        k.wait(vm=["Q", ("K", 0)])
        smf(0, 0)
        smf(0, 1)
        PFL = self.opt.get("pfl", 9)
        PCHK = self.opt.get("pchk", 16)
        queue = list(pst)

        def slot(cnt=1):
            for _ in range(cnt):
                if queue:
                    t, tg = queue.pop(0)
                    if callable(t):
                        t()
                    else:
                        k(t, tag=tg)

        def pcheck():
            L1, L2 = k.newlabel("pw"), k.newlabel("pok")
            k.wait(vm="PF")
            k(f"v_cmp_ne_u32 vcc, {sTAG}, v209\ns_cbranch_vccnz {L1}")
            k.label(L2)
            self.late.append((L1, L2))

        self.late = []
        for n in range(64):
            kt, u = divmod(n, 4)
            sb = S + 16 * (n & 1)
            if u == (1 if kt else 3) and kt + DEP - 1 < 16:
                queue = kload(kt + DEP - 1) + vload(kt + DEP - 1) + queue
            if n == PFL:
                queue.append((lambda: k.wait(vm="PS"), None))
                queue.append((f"buffer_store_dwordx4 {vr(vTAG, 4)}, {vFLAG}, {WS}, {sPF} offen sc1", None))
            if n == PCHK:
                queue.append((f"s_mov_b32 s60, {WS_FP}", None))
                queue.append((f"buffer_load_dword v209, v3, {WS}, s60 offen sc1", "PF"))
            if n == PCHK + 5:
                queue.append((pcheck, None))
                queue += pre
            if n >= 62:
                t = n - 62
                queue += [(f"ds_write_b128 v{4 + t}, {vr(O + 16 * t + 4 * q, 4)} offset:{1024 * q}", None) for q in range(4)]

            def ex(i):
                k(f"v_exp_f32 v{sb + i}, v{sb + i}")

            def cv(i):
                k(f"v_cvt_pk_bf16_f32 v{P + i}, v{sb + 2 * i}, v{sb + 2 * i + 1}")

            ex(0), ex(1)
            if n > 0:
                pv(n - 1, 1)
                if u == 3 and n + 1 < 64:
                    if not k.wait(vm=("K", kt + 1)):
                        slot()
                else:
                    slot()
            ex(2), ex(3), cv(0), ex(4), ex(5), cv(1)
            if n + 1 < 64:
                smf(n + 1, 0)
            slot()
            ex(6), ex(7), cv(2), ex(8), ex(9), cv(3)
            if n + 1 < 64:
                smf(n + 1, 1)
            if u == 0:
                if not k.wait(vm=("V", kt)):
                    slot()
            else:
                slot()
            ex(10), ex(11), cv(4), ex(12), ex(13), cv(5)
            pv(n, 0)
            slot()
            ex(14), ex(15), cv(6), cv(7)
        assert not queue, len(queue)
        pv(63, 1)
        self.stamp("B1")
        for q in range(4):
            k(f"ds_write_b128 v6, {vr(O + 32 + 4 * q, 4)} offset:{1024 * q}")
        lo, hi = 2.0 ** -80, 2.0 ** 80
        k(f"""s_mov_b32 s55, {f32(lo)}
        s_mov_b32 s56, {f32(hi)}
        v_min_f32 v210, v{O + 12}, v{O + 28}
        v_add_f32 v209, v{O + 12}, v{O + 28}
        v_add_f32 v209, v209, v{O + 44}
        v_min3_f32 v210, v210, v{O + 44}, v{O + 60}
        v_add_f32 v209, v209, v{O + 60}
        v_cmp_nle_f32 s[56:57], v209, s56
        v_cmp_nge_f32 vcc, v210, s55
        s_or_b32 s57, s57, vcc_hi""")
        if self.force_fb:
            k("s_mov_b32 s57, 1")
        k(f"""v_mov_b32 v210, s57
        s_mov_b64 exec, 1
        ds_write_b32 v4, v210 offset:{3072 + 516}
        s_mov_b64 exec, -1""")
        k.wait(lg="all")
        k("s_barrier")
        R = 144
        k("ds_read_b32 v209, v208", tag="c")
        for j in range(3):
            for q in range(4):
                k(f"ds_read_b128 {vr(R + 16 * j + 4 * q, 4)}, v7 offset:{4096 * j + 1024 * q}", tag=("c", j))
        k(f"s_lshl_b32 s55, {sB}, 2\ns_add_u32 s55, s55, {sW}\ns_lshl_b32 s55, s55, 4\ns_add_u32 s55, s55, {sA}\ns_lshl_b32 s55, s55, 11\ns_add_u32 s55, s55, {WS_O}")
        k.wait(lg="c")
        k(f"""v_cmp_ne_u32 vcc, 0, v209
        s_andn2_b32 s56, vcc_lo, {sFB}
        s_cbranch_scc1 L_fb""")
        o = O + 48
        for j in range(3):
            k.wait(lg=("c", j))
            for i in range(8):
                k(f"v_pk_add_f32 {vr(o + 2 * i, 2)}, {vr(o + 2 * i, 2)}, {vr(R + 16 * j + 2 * i, 2)}")
        k(f"""v_mov_b32 v210, v{o + 12}
        v_mov_b32 v212, v{o + 12}
        v_permlane32_swap_b32 v210, v212
        v_rcp_f32 v212, v212""")
        for i in range(8):
            k(f"v_pk_mul_f32 {vr(o + 2 * i, 2)}, {vr(o + 2 * i, 2)}, v[212:213] op_sel_hi:[1,0]")
        for i in range(8):
            k(f"v_cvt_pk_bf16_f32 v{P + i}, v{o + 2 * i}, v{o + 2 * i + 1}")
        k(f"s_mov_b32 exec_lo, 0\nv_mov_b32 v{P + 6}, 0\nv_mov_b32 v{P + 7}, 0\ns_mov_b32 exec_lo, -1")
        for s in range(2):
            k(f"buffer_store_dwordx4 {vr(P + 4 * s, 4)}, v1, {WS}, s55 offen offset:{1024 * s} sc1")
        k(f"s_lshl_b32 s50, {sB}, 4\ns_add_u32 s50, s50, {sA}")
        self.stamp("B2")
        self.publish(WS_FB, "s50", 144, 148)
        self.stamp("B3")

    def wd_loads(self, lo, hi):
        g = []
        for i in range(lo, hi):
            g.append((f"buffer_load_dwordx4 {ar(4 * i, 4)}, v{252 + (i & 1)}, {WS}, s33 offen offset:{(i & 2) * 1024} sc1", "WD"))
            if i % 4 == 3:
                g.append(("s_add_u32 s33, s33, 4096", None))
        return g

    def late_code(self):
        k = self.k
        Q, S, KV = 8, 104, 144
        for L1, L2 in self.late:
            k.label(L1)
            self.poll("v3", "v209", WS_FP)
            k(f"s_branch {L2}")
        k.label("L_fb")
        k(f"""s_waitcnt vmcnt(0) lgkmcnt(0)
        s_barrier
        s_mov_b32 {sFB}, -1
        s_mov_b32 {sPD}, {OOB}
        s_mov_b32 {sPCS}, {OOB}
        s_mov_b32 {sPF}, {OOB}
        s_lshl_b32 s50, {sA}, 6
        s_lshl_b32 s55, {sW}, 4
        s_add_u32 s50, s50, s55
        s_add_u32 s50, s50, 1024
        s_lshl_b32 s50, s50, 11
        s_mov_b32 s51, 16""")
        for u in range(4):
            k(f"v_mov_b32 v{212 + u}, 0xff800000")
        k.label("L_fbl")
        for s in range(2):
            k(f"buffer_load_dwordx4 {vr(KV + 4 * s, 4)}, v1, {WS}, s50 offen offset:{1024 * s} sc1")
        k("s_add_u32 s50, s50, 2048\ns_waitcnt vmcnt(0)")
        for u in range(4):
            self.mfma(vr(S, 16), vr(KV, 4), vr(Q + 8 * u, 4), "0")
            self.mfma(vr(S, 16), vr(KV + 4, 4), vr(Q + 8 * u + 4, 4))
            for i in range(8):
                k(f"v_max3_f32 v{212 + u}, v{212 + u}, v{S + 2 * i}, v{S + 2 * i + 1}")
        k("s_sub_u32 s51, s51, 1\ns_cmp_lg_u32 s51, 0\ns_cbranch_scc1 L_fbl")
        k(f"v_lshlrev_b32 v216, 2, v0\ns_lshl_b32 s57, {sW}, 8")
        for u in range(4):
            k(f"""v_mov_b32 v210, v{212 + u}
            v_permlane32_swap_b32 v210, v{212 + u}
            v_max_f32 v{212 + u}, v210, v{212 + u}
            s_add_u32 s55, {sW}, {u + 1}
            s_and_b32 s55, s55, 3
            s_lshl_b32 s55, s55, 10
            s_add_u32 s55, s55, {LR}
            v_add_u32 v{220 + u}, s55, v216
            v_add_u32 v217, s57, v{220 + u}
            ds_write_b32 v217, v{212 + u}""")
        k("s_waitcnt lgkmcnt(0)\ns_barrier")
        for u in range(4):
            for j in range(4):
                k(f"ds_read_b32 v{224 + j}, v{220 + u} offset:{256 * j}")
            k(f"""s_waitcnt lgkmcnt(0)
            v_max3_f32 v224, v224, v225, v226
            v_max_f32 v224, v224, v227
            v_sub_f32 v224, 0, v224
            v_cvt_pk_bf16_f32 v225, v224, v224
            v_and_b32 v225, 0xffff0000, v225
            v_sub_f32 v225, v224, v225
            v_cvt_pk_bf16_f32 v226, v224, v225
            v_and_b32 v227, 0xffff0000, v226
            v_sub_f32 v227, v225, v227
            v_cvt_pk_bf16_f32 v227, v227, 0
            s_mov_b32 exec_lo, 0
            v_mov_b32 v{Q + 8 * u + 6}, v226
            v_mov_b32 v{Q + 8 * u + 7}, v227
            s_mov_b32 exec_lo, -1""")
        k("s_barrier\ns_branch L_attn")
        k.vm.clear()
        k.lg.clear()

    def reduce4(self, ACC, R):
        k = self.k
        for t in range(3):
            for q in range(4):
                k(f"ds_write_b128 v{4 + t}, {vr(ACC + 16 * t + 4 * q, 4)} offset:{1024 * q}")
        k.wait(lg="all")
        k("s_barrier")
        for j in range(3):
            for q in range(4):
                k(f"ds_read_b128 {vr(R + 16 * j + 4 * q, 4)}, v7 offset:{4096 * j + 1024 * q}", tag=("c", j))
        o = ACC + 48
        for j in range(3):
            k.wait(lg=("c", j))
            for i in range(8):
                k(f"v_pk_add_f32 {vr(o + 2 * i, 2)}, {vr(o + 2 * i, 2)}, {vr(R + 16 * j + 2 * i, 2)}")

    def tile_addrs(self):
        k = self.k
        for t in range(3):
            k(f"""s_xor_b32 s55, {sW}, {3 - t}
            s_mul_i32 s55, s55, 12288
            s_add_u32 s55, s55, {LR + 4096 * t}
            v_add_u32 v{4 + t}, s55, v1""")

    def phase_c(self):
        k = self.k
        ACC, WO, OF, R = 8, 72, 136, 136
        CS = 200
        k(f"""s_mul_i32 s55, {sB2}, 7
        s_lshr_b32 s55, s55, 2
        s_add_u32 s55, s55, {sW}
        s_min_u32 s55, s55, 27
        s_mul_i32 s55, s55, {14 * 1024}
        s_add_u32 s55, s55, {WS_CS}
        s_cmp_lt_u32 {sW}, 3
        s_cselect_b32 s55, s55, {OOB}""")
        for i in range(14):
            k(f"buffer_load_dwordx4 {vr(136 + 4 * i, 4)}, v1, {WS}, s55 offen offset:{(i % 4) * 1024} sc1", tag=("cs", i))
            if i % 4 == 3:
                k("s_add_u32 s55, s55, 4096")
        k(f"s_cmp_ge_u32 {sB}, 14\ns_cbranch_scc1 L_c0")
        k(f"""s_lshr_b32 s50, {sB}, 1
        s_and_b32 s51, {sB}, 1
        s_lshl_b32 s51, s51, 1
        s_lshl_b32 s52, {sA}, 2
        s_add_u32 s51, s51, s52
        s_and_b32 s52, {sW}, 1
        s_add_u32 s62, s51, s52
        s_lshr_b32 s53, {sW}, 1
        s_lshl_b32 s63, s50, 1
        s_add_u32 s63, s63, s53
        """)
        k(f"""v_and_b32 v254, 31, v0
        v_mul_u32_u24 v254, 896, v254
        v_lshrrev_b32 v2, 5, v0
        v_lshl_add_u32 v254, v2, 5, v254
        s_mul_i32 s55, s62, {32 * 896}
        s_lshl_b32 s56, s63, 6
        s_add_u32 s55, s55, s56
        v_add_u32 v254, s55, v254
        buffer_load_dwordx4 v[192:195], v254, {X}, 0 offen
        buffer_load_dwordx4 v[196:199], v254, {X}, 0 offen offset:16""")
        self.tile_addrs()
        k.label("L_c0")
        k.wait(vm="all")
        for i in range(1, 14):
            for h in range(2):
                k(f"v_pk_add_f32 {vr(136 + 2 * h, 2)}, {vr(136 + 2 * h, 2)}, {vr(136 + 4 * i + 2 * h, 2)}")
        for q in range(4):
            k("\n".join(self.split2(136 + q, CS + 2 * q)))
        k(f"s_cmp_ge_u32 {sB}, 14\ns_cbranch_scc1 L_c1")
        for i in range(8):
            k(f"v_lshlrev_b32 v{ACC + 48 + 2 * i}, 16, v{192 + i}\nv_and_b32 v{ACC + 49 + 2 * i}, 0xffff0000, v{192 + i}")
        k(f"""s_lshl_b32 s55, {sA}, 4
        s_lshl_b32 s56, {sW}, 2
        s_add_u32 s55, s55, s56
        v_and_b32 v2, 3, v0
        v_add_u32 v2, s55, v2
        v_lshlrev_b32 v2, 7, v2
        s_lshl_b32 s55, s62, 4
        s_add_u32 s55, s55, s56
        s_lshl_b32 s55, s55, 11
        s_add_u32 s51, s55, {WS_O}
        s_xor_b32 s50, s55, 0x8000
        s_add_u32 s50, s50, {WS_O}""")
        self.poll("v2", "v3", WS_FB)
        self.stamp("C0")
        for ks in range(8):
            for t in range(2):
                k(f"buffer_load_dwordx4 {vr(OF + 8 * ks + 4 * t, 4)}, v1, {WS}, s{50 + t} offen offset:{1024 * (ks & 3)} sc1", tag=("O", ks))
            if ks == 3:
                k("s_add_u32 s50, s50, 4096\ns_add_u32 s51, s51, 4096")
        for ks in range(8):
            k.wait(vm=("O", ks))
            for c in range(2):
                for t in range(2):
                    lt = 2 * c + t
                    self.mfma(vr(ACC + 16 * lt, 16), ar(160 + 8 * ks + 4 * c, 4), vr(OF + 8 * ks + 4 * t, 4), "0" if (ks == 0 and lt < 3) else None)
        self.stamp("C1")
        self.reduce4(ACC, R)
        o = ACC + 48
        for i in range(8):
            k(f"v_cvt_pk_bf16_f32 v{ACC + i}, v{o + 2 * i}, v{o + 2 * i + 1}")
        k(f"s_mul_i32 s55, s62, 14\ns_add_u32 s55, s55, s63\ns_lshl_b32 s56, s55, 8\ns_lshl_b32 s55, s55, 11\ns_add_u32 s55, s55, {WS_H}\ns_add_u32 s56, s56, {WS_ST}")
        for s in range(2):
            k(f"buffer_store_dwordx4 {vr(ACC + 4 * s, 4)}, v1, {WS}, s55 offen offset:{1024 * s} sc1")
        k(f"v_pk_add_f32 v[16:17], {vr(o, 2)}, {vr(o + 2, 2)}\nv_pk_mul_f32 v[18:19], {vr(o, 2)}, {vr(o, 2)}")
        for i in range(1, 8):
            if i > 1:
                k(f"v_pk_add_f32 v[16:17], v[16:17], {vr(o + 2 * i, 2)}")
            k(f"v_pk_fma_f32 v[18:19], {vr(o + 2 * i, 2)}, {vr(o + 2 * i, 2)}, v[18:19]")
        k(f"""v_add_f32 v16, v16, v17
        v_add_f32 v18, v18, v19
        v_lshlrev_b32 v2, 2, v0
        v_permlane32_swap_b32 v16, v18
        v_add_f32 v16, v16, v18
        buffer_store_dword v16, v2, {WS}, s56 offen sc1""")
        for i in range(16):
            k(f"v_accvgpr_write_b32 a{224 + i}, v{o + i}")
        k(f"s_lshl_b32 s50, {sA}, 4\ns_add_u32 s50, s50, {sB}")
        self.stamp("C2")
        self.publish(WS_FC, "s50", 136, 140)
        k.label("L_c1")
        self.stamp("C3")

    def phase_d(self):
        k = self.k
        H, ACC, AB, T = 8, 120, 184, 216
        CS = 200
        LCS = LR + 28672
        sGU, sAC = "s53", "s54"
        k(f"""v_lshlrev_b32 v2, 3, v0
        s_lshl_b32 s55, {sW}, 11
        s_add_u32 s55, s55, {LCS}
        v_add_u32 v3, s55, v2""")
        for q in range(4):
            k(f"ds_write_b64 v3, {vr(CS + 2 * q, 2)} offset:{512 * q}")
        k(f"""s_mul_i32 s55, {sB2}, 7
        s_and_b32 s55, s55, 3
        s_lshl_b32 s55, s55, 9
        s_add_u32 s55, s55, {LCS}
        v_add_u32 v3, s55, v2
        s_mul_i32 s52, {sW}, 7168
        s_mul_i32 {sGU}, {sB2}, {7 * 28672}
        s_add_u32 {sGU}, {sGU}, s52
        s_add_u32 {sGU}, {sGU}, {WS_WGU + 4 * 28672}""")

        def gdma(ct, lds):
            g = []
            for i in range(7):
                t = ""
                if i % 4 == 0:
                    t = f"s_add_u32 m0, s52, {lds + i * 1024}\ns_add_u32 s56, {sGU}, {(ct - 4) * 28672 + i * 1024}\n"
                g.append((t + f"buffer_load_dwordx4 v1, {WS}, s56 offen offset:{(i % 4) * 1024} sc1 lds", ("G", ct)))
            return g

        for t, tg in gdma(4, LR):
            k(t, tag=tg)
        k(f"""s_lshl_b32 s55, {sA2}, 4
        s_lshr_b32 s56, {sW}, 1
        s_add_u32 s55, s55, s56
        v_min_u32 v249, 6, v0
        v_lshlrev_b32 v249, 1, v249
        v_add_u32 v249, s55, v249
        v_lshlrev_b32 v249, 7, v249
        s_lshl_b32 s55, {sA2}, 2
        s_add_u32 s55, s55, {sW}
        s_mul_i32 s50, s55, 28672
        s_add_u32 s50, s50, {WS_H}
        s_mul_i32 s51, s55, 3584
        s_add_u32 s51, s51, {WS_ST}
        s_mul_i32 {sAC}, s55, {112 * 1024}
        s_mul_i32 s56, {sB2}, 7168
        s_add_u32 {sAC}, {sAC}, s56
        s_add_u32 {sAC}, {sAC}, {WS_ACT}
        v_add_u32 v2, 57344, v1
        v_add_u32 v251, {LR}, v1
        v_lshlrev_b32 v250, 2, v0""")
        k.wait(lg="all")

        slot_of = {0: 0, 1: 1, 2: 2, 3: 3, 4: "R", 5: 0, 6: 1}
        seq = [(ct, ks) for ks in range(28) for ct in range(3)] + [(ct, ks) for ct in range(3, 7) for ks in range(28)]
        NB = 8
        AH = self.opt.get("dah", 5)

        def aread(i):
            ct, ks = seq[i]
            s = slot_of[ct]
            if s == "R":
                va, off = "v251", ks * 1024
            elif s < 2:
                va, off = "v1", s * 28672 + ks * 1024
            else:
                va, off = "v2", (s - 2) * 28672 + ks * 1024
            k(f"ds_read_b128 {vr(AB + 4 * (i % NB), 4)}, {va} offset:{off}", tag=("a", i))

        for i in range(AH):
            aread(i)
        self.poll("v249", "v248", WS_FC)
        self.stamp("D0")
        HA = self.opt.get("dha", 12)

        def hload(ks):
            t = f"buffer_load_dwordx4 {vr(H + 4 * ks, 4)}, v1, {WS}, s50 offen offset:{1024 * (ks & 3)} sc1"
            if ks & 3 == 3:
                t += "\ns_add_u32 s50, s50, 4096"
            return (t, ("H", ks))

        SL = ACC + 48
        queue = [hload(ks) for ks in range(28)]
        queue += [(f"buffer_load_dword v{SL + c}, v250, {WS}, s51 offen offset:{256 * c} sc1", "S") for c in range(14)]
        for _ in range(HA):
            t, tg = queue.pop(0)
            k(t, tag=tg)

        VB, VC, VS = T + 2, T + 4, T + 6
        CA = T + 8
        E = T + 16

        def epilogue(ct, packed):
            a = ACC + 16 * (ct % 4)
            e = []
            if packed:
                e += [f"v_pk_mul_f32 {vr(a + 2 * i, 2)}, {vr(a + 2 * i, 2)}, {vr(VC, 2)} op_sel_hi:[1,0]" for i in range(4)]
            else:
                e += [f"v_mul_f32 v{a + i}, v{VC}, v{a + i}" for i in range(8)]
            e += [f"v_exp_f32 v{a + i}, v{a + i}" for i in range(8)]
            if packed:
                e += [f"v_pk_fma_f32 {vr(a + 2 * i, 2)}, {vr(a + 2 * i, 2)}, {vr(VS, 2)}, {vr(VS, 2)} op_sel_hi:[1,0,0]" for i in range(4)]
            else:
                e += [f"v_fma_f32 v{a + i}, v{a + i}, v{VS}, v{VS}" for i in range(8)]
            e += [f"v_rcp_f32 v{a + i}, v{a + i}" for i in range(8)]
            if packed:
                e += [f"v_pk_mul_f32 {vr(a + 2 * i, 2)}, {vr(a + 2 * i, 2)}, {vr(a + 8 + 2 * i, 2)}" for i in range(4)]
            else:
                e += [f"v_mul_f32 v{a + i}, v{a + i}, v{a + 8 + i}" for i in range(8)]
            p = E + 4 * (ct & 1)
            e += [f"v_cvt_pk_bf16_f32 v{p + i}, v{a + 2 * i}, v{a + 2 * i + 1}" for i in range(4)]
            pre = f"s_add_u32 {sAC}, {sAC}, 4096\n" if ct == 4 else ""
            e.append(pre + f"buffer_store_dwordx4 {vr(p, 4)}, v1, {WS}, {sAC} offen offset:{1024 * (ct & 3)} sc1")
            return [(t, ("e", ct)) for t in e]

        def corr(ct):
            a = vr(ACC + 16 * (ct % 4), 16)
            k(f"v_mfma_f32_32x32x8bf16_1k {a}, {vr(CA + 2 * (ct % 4), 2)}, {vr(VB, 2)}, {a}")

        def csread(ct):
            k(f"ds_read_b64 {vr(CA + 2 * (ct % 4), 2)}, v3 offset:{512 * ct}", tag=("cs", ct))

        def cost(t):
            if callable(t):
                return 4
            return sum(8 if l.startswith(("v_exp", "v_rcp", "v_rsq", "v_sqrt", "buffer")) else 4 for l in t.split("\n"))

        BUD = self.opt.get("dbud", 18)
        mem = []
        hold = 0
        b = 0
        for i, (ct, ks) in enumerate(seq):
            nxt = i + AH
            if nxt < len(seq):
                nct, nks = seq[nxt]
                if nks == 0 and nct == 5:
                    assert not any(tg in (("G", 5), ("G", 6)) for _, tg in mem)
                    k.wait(vm=[("G", 5), ("G", 6)])
                    k("s_barrier")
            if ks == 0 and ct >= 4:
                assert not any(tg == ("e", ct - 4) for _, tg in queue), ct
            if i < 84 and ct == 0:
                assert not any(tg == ("H", ks) for _, tg in queue)
                k.wait(vm=("H", ks), lg=("a", i))
            else:
                k.wait(lg=("a", i))
            self.mfma(vr(ACC + 16 * (ct % 4), 16), vr(AB + 4 * (i % NB), 4), vr(H + 4 * ks, 4), "0" if ks == 0 else None)
            if nxt < len(seq):
                aread(nxt)
            if i == self.opt.get("dwd", 40):
                mem += self.wd_loads(self.opt.get("nwd", 24), 56)
            if i == 66:
                assert not queue
                queue.append((lambda: k.wait(vm="S"), None))
                queue += [(f"v_add_f32 v{SL}, v{SL}, v{SL + c}", None) for c in range(1, 14)]
                queue += [(t.strip(), None) for t in self.stats(SL, SL + 1, VC, VB, VS)]
                queue += [(f"v_rsq_f32 v{VC}, v{VS}", None), (f"v_sqrt_f32 v{VS}, v{VS}", None),
                          (f"v_mul_f32 v{VC}, {f32(-math.log2(math.e))}, v{VC}", None)]
            if i == 83:
                assert not queue
                k("s_barrier")
                for c in range(4):
                    csread(c)
                mem = gdma(5, 0) + gdma(6, 28672) + mem
                self.stamp("D1")
                continue
            if i == 86:
                k.wait(lg=("cs", 3))
                for c in range(3):
                    corr(c)
                    queue += epilogue(c, False)
                hold = 3
                continue
            if i > 83 and ks == 27:
                k.wait(lg=("cs", ct))
                corr(ct)
                if not queue:
                    hold = 4
                queue += epilogue(ct, ct == 6)
                continue
            if i > 83 and ks == 8 and ct < 6:
                csread(ct + 1)
            b = min(b, 4) + BUD
            if mem and (hold or i & 1):
                t, tg = mem.pop(0)
                k(t, tag=tg)
                b -= cost(t)
                if mem and mem[0][1] is None:
                    k(mem.pop(0)[0])
                    b -= 4
            if hold:
                hold -= 1
                continue
            while queue and b >= cost(queue[0][0]):
                t, tg = queue.pop(0)
                b -= cost(t)
                if callable(t):
                    t()
                else:
                    k(t, tag=tg)
                if i < 66:
                    break
        assert not mem, len(mem)
        self.stamp("D2")
        self.dleft = len(queue)
        for t, tg in queue:
            k(t, tag=tg)
        k(f"s_lshl_b32 s50, {sA2}, 4\ns_add_u32 s50, s50, {sB2}")
        self.stamp("D3")
        self.publish(WS_FD, "s50", 184, 188)
        self.stamp("D4")

    def phase_e(self):
        k = self.k
        ACC, BF, R = 8, 72, 72
        NB, AH = 20, 8
        k(f"s_cmp_ge_u32 {sB}, 14\ns_cbranch_scc1 L_tail")
        for i in range(16):
            k(f"v_accvgpr_read_b32 v{ACC + 48 + i}, a{224 + i}")
        k(f"""s_lshl_b32 s55, {sA}, 4
        s_lshl_b32 s56, {sW}, 2
        s_add_u32 s55, s55, s56
        v_and_b32 v2, 3, v0
        v_add_u32 v2, s55, v2
        v_lshlrev_b32 v2, 7, v2
        s_mul_i32 s56, {sW}, 28672
        s_add_u32 s56, s56, {WS_ACT}
        s_mul_i32 s51, s62, {112 * 1024}
        s_add_u32 s51, s51, s56
        s_xor_b32 s50, s62, 1
        s_mul_i32 s50, s50, {112 * 1024}
        s_add_u32 s50, s50, s56""")
        self.poll("v2", "v3", WS_FD)
        self.stamp("E0")

        def load(ks):
            for t in range(2):
                k(f"buffer_load_dwordx4 {vr(BF + 8 * (ks % NB) + 4 * t, 4)}, v1, {WS}, s{50 + t} offen offset:{1024 * (ks & 3)} sc1", tag=("B", ks))
            if ks & 3 == 3:
                k("s_add_u32 s50, s50, 4096\ns_add_u32 s51, s51, 4096")

        for ks in range(AH):
            load(ks)
        for ks in range(28):
            k.wait(vm=("B", ks))
            for c in range(2):
                for t in range(2):
                    lt = 2 * c + t
                    self.mfma(vr(ACC + 16 * lt, 16), ar(8 * ks + 4 * c, 4), vr(BF + 8 * (ks % NB) + 4 * t, 4), "0" if (ks == 0 and lt < 3) else None)
                    if lt == 0 and ks + AH < 28:
                        load(ks + AH)
        self.stamp("E1")
        self.reduce4(ACC, R)
        o = ACC + 48
        for i in range(8):
            k(f"v_cvt_pk_bf16_f32 v{ACC + i}, v{o + 2 * i}, v{o + 2 * i + 1}")
        for s in range(2):
            k(f"buffer_store_dwordx4 {vr(ACC + 4 * s, 4)}, v254, {OUT}, 0 offen offset:{16 * s}")
        self.stamp("E2")
        k("s_branch L_fin")
        k.label("L_tail")
        k(f"""s_cmp_lg_u32 s2, 255
        s_cbranch_scc1 L_fin
        s_lshl_b32 s55, {sW}, 6
        v_add_u32 v2, s55, v0
        v_lshlrev_b32 v2, 7, v2""")
        self.poll("v2", "v3", WS_FP)
        k("s_mov_b32 s50, 0")
        self.publish(WS_E, "s50", 8, 12)
        k.label("L_fin")
        if self.ts:
            k(f"""s_memrealtime s[96:97]
            s_memtime s[98:99]
            s_waitcnt lgkmcnt(0)
            v_writelane_b32 v255, s96, 62
            v_writelane_b32 v255, s98, 63
            s_lshl_b32 s55, s2, 2
            s_add_u32 s55, s55, {sW}
            s_lshl_b32 s55, s55, 8
            s_add_u32 s55, s55, {WS_TS}
            v_lshlrev_b32 v2, 2, v0
            buffer_store_dword v255, v2, {WS}, s55 offen""")
        k("s_waitcnt vmcnt(0)")
        k.label("L_end")
        k("s_endpgm")

    def build(self):
        self.prologue()
        self.phase_a()
        self.phase_b()
        self.phase_c()
        self.phase_d()
        self.phase_e()
        self.late_code()
        self.k.lines = [l.replace("CODE_LAST", "0x8000") for l in self.k.lines]
        n = self.k.pad()
        self.misal = align8(self.k.lines)
        last = (sum(sizes(self.k.lines)) - 128) & ~3
        assert last >= 0x8000
        self.k.lines = [l.replace("v_min_u32 v127, 0x8000", f"v_min_u32 v127, {last}") for l in self.k.lines]
        ref = open(f"cdna_kernels/{NAME}.s.ref").read().split("\n")
        head = [l for l in ref if l.startswith(";") and "@launch" not in l]
        out = head + ["; @launch grid=(256,1,1) block=(256,1,1) lds=163840",
                      '.amdgcn_target "amdgcn-amd-amdhsa--gfx950"', ".text", f".globl {NAME}_kernel", ".p2align 8",
                      f".type {NAME}_kernel,@function", f"{NAME}_kernel:"]
        out += [l if l.endswith(":") else "    " + l for l in self.k.lines]
        out += ['.section .rodata,"a"', ".p2align 6", f".amdhsa_kernel {NAME}_kernel",
                "  .amdhsa_next_free_vgpr 512", "  .amdhsa_next_free_sgpr 102", "  .amdhsa_accum_offset 256",
                "  .amdhsa_group_segment_fixed_size 0", "  .amdhsa_kernarg_size 80", "  .amdhsa_user_sgpr_count 2",
                "  .amdhsa_user_sgpr_kernarg_segment_ptr 1", "  .amdhsa_system_sgpr_workgroup_id_x 1", ".end_amdhsa_kernel", ""]
        self.nbytes = sum(sizes(self.k.lines))
        self.nnop = n
        return "\n".join(out)


if __name__ == "__main__":
    args = dict(a.split("=") for a in sys.argv[2:])
    args = {a: int(b) for a, b in args.items()}
    g = Gen(**args)
    text = g.build()
    open(sys.argv[1], "w").write(text)
    if g.ts:
        open(sys.argv[1] + ".ts", "w").write(" ".join(g.tsn))
    print(f"{sys.argv[1]}: {g.nbytes} bytes of code, {g.nnop} pads, {g.misal} misaligned, D tail {g.dleft}")
```

```python
import math
import struct
import sys

from asmlib import K, sizes, align8

NAME = "sequential_preLN__softmax_full_mha__glu_gated_glu__prompt"

WS_QKV, WS_O, WS_H, WS_ACT = 0, 0x600000, 0x800000, 0xA00000
WS_WGU, WS_WD, WS_WO, WS_CS = 0x1100000, 0x1500000, 0x1700000, 0x1780000
WS_FA, WS_FB, WS_FC, WS_FD, WS_E, WS_FP = 0x1800000, 0x1808000, 0x1810000, 0x1818000, 0x1820000, 0x1828000
WS_ST = 0x1880000
OOB = 0x40000000
WS_TS = 0x1900000
WS_SIZE = 0x1A00000

X, WQ, WS, OUT, PA, PB = "s[4:7]", "s[8:11]", "s[12:15]", "s[16:19]", "s[20:23]", "s[24:27]"
sW, sA, sB, sTAG, sCNT, sONE, sFB = "s36", "s37", "s38", "s39", "s40", "s41", "s42"
sU, sPD, sPCS, sP0, sP1, sPST = "s43", "s44", "s45", "s46", "s47", "s48"
sXL = "s49"
sA2, sB2, sPS, sPF = "s28", "s29", "s30", "s31"
vFLAG, vTAG = "v211", 212
LR = 114688
ONES = 0x3F803F80
U_D, U_O, U_END = 392, 588, 644


def f32(x):
    return hex(struct.unpack("<I", struct.pack("<f", x))[0])


def vr(b, n):
    return f"v[{b}:{b + n - 1}]"


def ar(b, n):
    return f"a[{b}:{b + n - 1}]"


class Gen:
    def __init__(self, ts=False, force_fb=False, **opt):
        self.k = K()
        self.ts = ts
        self.nts = 0
        self.tsn = []
        self.force_fb = force_fb
        self.opt = opt

    def stamp(self, name):
        if self.ts == 2 and name not in ("A0", "A3", "A7", "A9", "B0", "B1", "B3", "C0", "C3", "D0", "D4", "E0", "E2"):
            return
        if self.ts:
            self.k(f"s_memtime s[98:99]\ns_waitcnt lgkmcnt(0)\nv_writelane_b32 v255, s98, {self.nts + 2}")
            self.k.lg.clear()
            self.nts += 1
            self.tsn.append(name)

    def mfma(self, d, a, b, c=None):
        c = d if c is None else c
        self.k(f"v_mfma_f32_32x32x16_bf16 {d}, {a}, {b}, {c}")

    def poll(self, vaddr, vtmp, base):
        k = self.k
        L, Dn = k.newlabel("poll"), k.newlabel("seen")
        k(f"s_mov_b32 s60, {base}")
        k.label(L)
        k(f"buffer_load_dword {vtmp}, {vaddr}, {WS}, s60 offen sc1")
        k.wait(vm="all")
        k(f"""v_cmp_ne_u32 vcc, {sTAG}, {vtmp}
        s_cbranch_vccz {Dn}
        s_sub_u32 {sCNT}, {sCNT}, 1
        s_cselect_b32 {sCNT}, 0, {sCNT}
        s_cbranch_scc0 {L}""")
        k.label(Dn)

    def publish(self, base, sidx, vt, vo):
        k = self.k
        for i in range(4):
            k(f"v_mov_b32 v{vt + i}, {sTAG}")
        k(f"""s_lshl_b32 s60, {sidx}, 7
        s_add_u32 s60, s60, {base}
        s_cmp_eq_u32 {sW}, 0
        s_cselect_b32 s60, s60, {OOB}
        v_lshrrev_b32 v{vo}, 3, v0
        v_lshl_add_u32 v{vo}, v{vo}, 26, v1""")
        k.wait(vm="all")
        k(f"s_barrier\nbuffer_store_dwordx4 {vr(vt, 4)}, v{vo}, {WS}, s60 offen sc1")

    def stats(self, vs, vq, t0, vb, vrs):
        return f"""v_mov_b32 v{vq}, v{vs}
        v_permlane32_swap_b32 v{vs}, v{vq}
        v_mul_f32 v{vs}, {f32(-1.0 / 448)}, v{vs}
        v_mul_f32 v{vq}, {f32(1.0 / 448)}, v{vq}
        v_cvt_pk_bf16_f32 v{t0}, v{vs}, v{vs}
        v_fma_f32 v{vq}, -v{vs}, v{vs}, v{vq}
        v_and_b32 v{t0}, 0xffff0000, v{t0}
        v_max_f32 v{vq}, 0, v{vq}
        v_sub_f32 v{t0}, v{vs}, v{t0}
        v_add_f32 v{vrs}, {f32(1e-5)}, v{vq}
        v_cvt_pk_bf16_f32 v{vb}, v{vs}, v{t0}
        v_cvt_pk_bf16_f32 v{vb + 1}, v{vs}, v{t0}""".split("\n")

    def split2(self, vc, vd):
        return f"""v_cvt_pk_bf16_f32 v{vd}, v{vc}, v{vc}
        v_and_b32 v{vd + 1}, 0xffff0000, v{vd}
        v_sub_f32 v{vd + 1}, v{vc}, v{vd + 1}
        v_cvt_pk_bf16_f32 v{vd + 1}, v{vd + 1}, v{vd + 1}""".split("\n")

    def prologue(self):
        k = self.k
        k(f"""s_cmp_ge_u32 s2, 0x100
        s_cbranch_scc1 L_end
        s_load_dwordx16 s[64:79], s[0:1], 0
        s_load_dwordx2 s[12:13], s[0:1], 72""")
        if self.ts:
            k("s_memrealtime s[96:97]\ns_memtime s[98:99]")
        if self.opt.get("touch", 1):
            k.note("pull the whole code object into this die's L2 ahead of instruction fetch")
            k("""s_getpc_b64 s[86:87]
            v_lshlrev_b32 v127, 7, v0
            global_load_dword v200, v127, s[86:87]
            v_add_u32 v127, 0x8000, v127
            v_min_u32 v127, CODE_LAST, v127
            global_load_dword v201, v127, s[86:87]""")
        k(f"""v_lshrrev_b32 v2, 6, v0
        v_and_b32 v0, 63, v0
        s_and_b32 {sA}, s2, 7
        v_readfirstlane_b32 {sW}, v2
        s_lshl_b32 {sA}, {sA}, 1
        s_bfe_u32 s50, s2, 0x10003
        s_add_u32 {sA}, {sA}, s50
        s_lshr_b32 {sB}, s2, 4
        s_bfe_u32 {sA2}, s2, 0x20001
        s_lshl_b32 {sA2}, {sA2}, 2
        s_bfe_u32 s50, s2, 0x20003
        s_add_u32 {sA2}, {sA2}, s50
        s_and_b32 {sB2}, s2, 1
        s_lshl_b32 {sB2}, {sB2}, 3
        s_lshr_b32 s50, s2, 5
        s_add_u32 {sB2}, {sB2}, s50
        v_lshlrev_b32 v1, 4, v0
        s_mov_b32 {sCNT}, 0x40000
        s_mov_b32 {sONE}, {ONES}
        s_mov_b32 {sFB}, 0
        v_mov_b32 v254, 0""")
        k(f"""s_mul_i32 s50, {sB2}, 168
        s_and_b32 s51, s50, 15
        s_sub_u32 s50, s50, s51
        s_mul_i32 s52, {sW}, {16 * 2688}
        s_add_u32 s50, s50, s52""")
        for t in range(3):
            k(f"""v_add_u32 v14, {64 * t}, v0
            v_mul_u32_u24 v15, 171, v14
            v_lshrrev_b32 v15, 11, v15
            v_mul_u32_u24 v16, 12, v15
            v_sub_u32 v16, v14, v16
            v_min_u32 v16, 10, v16
            v_mul_u32_u24 v15, 2688, v15
            v_lshlrev_b32 v16, 4, v16
            v_add3_u32 v{3 + t}, v15, v16, s50""")
        k(f"""v_lshrrev_b32 v14, 3, v0
        v_and_b32 v15, 7, v0
        v_lshrrev_b32 v16, 4, v0
        v_xor_b32 v16, v15, v16
        v_mul_u32_u24 v17, 896, v14
        s_lshl_b32 s52, {sA2}, 2
        s_add_u32 s52, s52, {sW}
        s_mul_i32 s52, s52, {32 * 896}
        v_lshlrev_b32 v18, 4, v16
        v_add3_u32 v6, v17, v18, s52
        v_xor_b32 v7, 64, v6""")
        k(f"""s_lshl_b32 {sXL}, {sW}, 14
        s_add_u32 {sXL}, {sXL}, 86016""")
        k(f"""s_lshr_b32 s53, s2, 3
        s_mul_i32 s54, s53, 37
        s_lshr_b32 s54, s54, 8
        s_mul_i32 s54, s54, 7
        s_sub_u32 s53, s53, s54
        s_mul_i32 s54, {sW}, 3072
        s_mov_b32 s6, {2048 * 896}
        s_mov_b32 s7, 0x20000
        s_mov_b32 s10, {448 * 2688}
        s_mov_b32 s11, 0x20000
        s_mov_b32 s14, {WS_SIZE}
        s_mov_b32 s15, 0x20000
        s_mov_b32 s18, {2048 * 896}
        s_mov_b32 s19, 0x20000
        s_mov_b32 s23, 0x20000
        s_mov_b32 s27, 0x20000
        s_mov_b32 s60, {WS_E}
        v_mov_b32 v16, 0
        s_waitcnt lgkmcnt(0)
        s_mov_b32 s4, s64
        s_mov_b32 s5, s65
        s_mov_b32 s8, s66
        s_mov_b32 s9, s67""")
        if self.ts:
            k("v_writelane_b32 v255, s96, 0\nv_writelane_b32 v255, s98, 1")

    def a_dma(self, c):
        g = []
        pre = f"s_mul_i32 s55, s53, {64 * 2688}\ns_lshl_b32 s56, s53, 7\n"
        for t in range(3):
            g.append(pre + f"s_add_u32 m0, s54, {c * 12288 + t * 1024}\ns_nop 0\nbuffer_load_dwordx4 v{3 + t}, {WQ}, s55 offen lds")
            pre = ""
        for t in range(4):
            post = "\ns_add_u32 s53, s53, 1\ns_cmp_eq_u32 s53, 7\ns_cselect_b32 s53, 0, s53" if t == 3 else ""
            g.append(f"s_add_u32 m0, {sXL}, {(c % 4) * 4096 + t * 1024}\ns_add_u32 s57, s56, {t * 8 * 896}\n"
                     f"buffer_load_dwordx4 v{6 + (t & 1)}, {X}, s57 offen lds" + post)
        return g

    def p_dma(self, h):
        slot = 3 if h == 0 else 0
        srd, sb = (PA, sP0) if h == 0 else (PB, sP1)
        g = []
        for t in range(4):
            g.append(f"s_add_u32 m0, {sXL}, {slot * 4096 + t * 1024}\ns_nop 0\nbuffer_load_dwordx4 v2, {srd}, {sb} offen lds\n"
                     f"s_add_u32 {sb}, {sb}, {sPST}")
        return g

    def unit_setup(self):
        k = self.k
        k(f"""s_mov_b32 s16, s78
        s_mov_b32 s17, s79
        s_lshl_b32 {sU}, {sW}, 8
        s_add_u32 {sU}, {sU}, s2
        s_cmp_ge_u32 {sU}, {U_D}
        s_cbranch_scc1 L_u1
        s_mov_b32 s20, s72
        s_mov_b32 s21, s73
        s_mov_b32 s24, s74
        s_mov_b32 s25, s75
        s_mov_b32 s22, {448 * 3584}
        s_mul_i32 s58, {sU}, 4682
        s_lshr_b32 s58, s58, 16
        s_mul_i32 s59, s58, 14
        s_sub_u32 s59, {sU}, s59
        s_mul_i32 {sP0}, s59, {32 * 3584}
        s_lshl_b32 s61, s58, 7
        s_add_u32 {sP0}, {sP0}, s61
        s_mov_b32 {sP1}, {sP0}
        s_mov_b32 {sPST}, 3584
        s_mul_i32 {sPD}, s58, {4 * 28 * 1024}
        s_lshl_b32 s61, s59, 11
        s_add_u32 {sPD}, {sPD}, s61
        s_add_u32 {sPD}, {sPD}, {WS_WGU}
        s_mov_b32 {sPS}, 28672
        s_lshl_b32 {sPCS}, {sU}, 10
        s_add_u32 {sPCS}, {sPCS}, {WS_CS}
        s_branch L_u3""")
        k.label("L_u1")
        k(f"""s_mov_b32 {sPST}, 896
        s_mov_b32 {sPS}, 2048
        s_mov_b32 {sPCS}, {OOB}
        s_cmp_ge_u32 {sU}, {U_O}
        s_cbranch_scc1 L_u2
        s_mov_b32 s20, s76
        s_mov_b32 s21, s77
        s_mov_b32 s24, s76
        s_mov_b32 s25, s77
        s_mov_b32 s22, {1792 * 896}
        s_sub_u32 s61, {sU}, {U_D}
        s_mul_i32 s58, s61, 2341
        s_lshr_b32 s58, s58, 16
        s_mul_i32 s59, s58, 28
        s_sub_u32 s59, s61, s59
        s_mul_i32 {sP0}, s59, {64 * 896}
        s_lshl_b32 s58, s58, 7
        s_add_u32 {sP0}, {sP0}, s58
        s_add_u32 {sP1}, {sP0}, {32 * 896}
        s_lshl_b32 {sPD}, s61, 13
        s_add_u32 {sPD}, {sPD}, {WS_WD}
        s_branch L_u3""")
        k.label("L_u2")
        k(f"""s_mov_b32 s20, s68
        s_mov_b32 s21, s69
        s_mov_b32 s24, s68
        s_mov_b32 s25, s69
        s_cmp_lt_u32 {sU}, {U_END}
        s_cselect_b32 s22, {448 * 896}, 0
        s_sub_u32 s61, {sU}, {U_O}
        s_lshr_b32 s58, s61, 3
        s_and_b32 s59, s61, 7
        s_mul_i32 {sP0}, s59, {56 * 896}
        s_lshl_b32 s58, s58, 7
        s_add_u32 {sP0}, {sP0}, s58
        s_add_u32 {sP1}, {sP0}, {28 * 896}
        s_lshl_b32 {sPD}, s61, 13
        s_add_u32 {sPD}, {sPD}, {WS_WO}
        s_cmp_lt_u32 {sU}, {U_END}
        s_cselect_b32 {sPD}, {sPD}, {OOB}""")
        k.label("L_u3")
        k(f"""s_mov_b32 s26, s22
        s_lshl_b32 {sPF}, {sU}, 7
        s_add_u32 {sPF}, {sPF}, {WS_FP}
        s_cmp_lt_u32 {sU}, {U_END}
        s_cselect_b32 {sPF}, {sPF}, {OOB}
        v_lshrrev_b32 v16, 3, v0
        v_and_b32 v17, 7, v0
        v_mul_lo_u32 v16, v16, {sPST}
        v_lshl_add_u32 v2, v17, 4, v16
        s_lshl_b32 {sPST}, {sPST}, 3""")

    def phase_a(self):
        k = self.k
        DEP = self.opt.get("adep", 3)
        ACC, FR, SQ, SM, CS, ON, T = 16, 64, 96, 104, 112, 124, 128
        LX = 151552
        k(f"buffer_load_dword v126, v16, {WS}, s60 offen sc1", tag="E")
        for c in range(DEP):
            for g in self.a_dma(c):
                k(g, tag=("A", c))
            if c == 0:
                k.note("LDS read addresses: v8..v11 W (transposed), v12..v15 x; k-step order rotated by the wave index")
                k(f"""v_bfe_u32 v16, v0, 2, 2
                v_lshrrev_b32 v17, 5, v0
                v_lshl_add_u32 v16, v17, 3, v16
                v_mul_u32_u24 v16, 192, v16
                v_bfe_u32 v18, v0, 4, 1
                v_lshlrev_b32 v18, 5, v18
                v_and_b32 v19, 3, v0
                v_lshl_add_u32 v18, v19, 3, v18
                v_add3_u32 v19, v16, v18, s51
                v_and_b32 v16, 31, v0
                v_bfe_u32 v18, v0, 1, 3
                v_xor_b32 v18, v18, v17
                v_lshlrev_b32 v18, 4, v18
                v_lshl_add_u32 v16, v16, 7, v18
                v_add_u32 v16, {sXL}, v16
                v_mov_b32 v{ON}, {sONE}
                v_mov_b32 v{ON + 1}, {sONE}""")
                for p in range(4):
                    k(f"""s_add_u32 s58, {sW}, {p}
                    s_and_b32 s58, s58, 3
                    s_mul_i32 s59, s58, 3072
                    s_lshl_b32 s58, s58, 5
                    v_add_u32 v{8 + p}, s59, v19
                    v_xor_b32 v{12 + p}, s58, v16""")
            if c == 1:
                self.unit_setup()
        k(f"""v_and_b32 v{T}, 31, v0
        v_mul_u32_u24 v{T}, 80, v{T}
        v_lshrrev_b32 v{T + 1}, 5, v0
        v_lshl_add_u32 v{T}, v{T + 1}, 3, v{T}
        v_bfe_u32 v16, v0, 2, 2
        v_lshl_add_u32 v{T + 1}, v{T + 1}, 2, v16
        v_mul_u32_u24 v{T + 1}, 80, v{T + 1}
        v_bfe_u32 v16, v0, 4, 1
        v_lshl_add_u32 v{T + 1}, v16, 5, v{T + 1}
        v_and_b32 v16, 3, v0
        v_lshl_add_u32 v{T + 1}, v16, 3, v{T + 1}
        v_add_u32 v{T}, {sXL}, v{T}
        v_add_u32 v{T + 1}, {sXL}, v{T + 1}
        v_add_u32 v{T + 3}, {LX}, v1
        s_lshl_b32 s58, {sW}, 2
        v_add_u32 v{T + 2}, s58, v{T + 3}
        v_cmp_eq_u32 s[80:81], 1, v16
        v_cmp_eq_u32 s[82:83], 2, v16
        v_cmp_eq_u32 s[84:85], 3, v16""")

        def reads(c, ks):
            n = 4 * c + ks
            f = FR + 16 * (n & 1)
            if c == 4:
                k(f"v_add_u32 v{8 + ks}, 49152, v{8 + ks}")
            k(f"ds_read_b128 {vr(f, 4)}, v{12 + ks} offset:{(c % 4) * 4096}", tag=("r", n))
            for m in range(3):
                for q in range(2):
                    off = (c % 4) * 12288 + 4 * q * 192 + 56 * m
                    k(f"ds_read_b64_tr_b16 {vr(f + 4 + 4 * m + 2 * q, 2)}, v{8 + ks} offset:{off}", tag=("r", n))

        def small(d, a, b, first):
            k(f"v_mfma_f32_4x4x4bf16_1k {vr(d, 4)}, {vr(a, 2)}, {vr(b, 2)}, {'0' if first else vr(d, 4)}")

        CX = 136
        VB, VR_, CA = 150, 149, 152
        for c in range(7):
            k.wait(vm=("A", c))
            k("s_barrier")
            self.stamp(f"A{c}")
            reads(c, 0)
            extra = []
            nx = c + DEP
            if nx < 7:
                extra = [(g, ("A", nx)) for g in self.a_dma(nx)]
            if c == 4:
                extra += [(g, "P") for g in self.p_dma(0)]
            if c == 5:
                extra += [(g, "P") for g in self.p_dma(1)]
            for ks in range(4):
                n = 4 * c + ks
                f = FR + 16 * (n & 1)
                if ks < 3:
                    reads(c, ks + 1)
                k.wait(lg=("r", n))
                for h in range(2):
                    small(SQ + 4 * h, f + 2 * h, f + 2 * h, n == 0)
                    small(SM + 4 * h, ON, f + 2 * h, n == 0)
                if ks == 0:
                    for h in range(2):
                        for m in range(3):
                            small(CS + 4 * m, ON, f + 4 + 4 * m + 2 * h, n == 0 and h == 0)
                tail = []
                if n == 27:
                    tail = [f"v_add_f32 v{SQ + i}, v{SQ + i}, v{SQ + 4 + i}" for i in range(4)]
                    tail += [f"v_add_f32 v{SM}, v{SM}, v{SM + 4}"]
                    tail += [f"v_cndmask_b32 v{SQ}, v{SQ}, v{SQ + i}, s[{78 + 2 * i}:{79 + 2 * i}]" for i in range(1, 4)]
                    tail += [f"v_permlane32_swap_b32 v{SM}, v{SQ}", f"v_add_f32 v{SM}, v{SM}, v{SQ}"]
                    tail += self.stats(SM, SQ, 148, VB, VR_) + [f"v_rsq_f32 v{VR_}, v{VR_}"]
                if n == 26:
                    k.wait(lg="cx")
                    for m in range(3):
                        tail += [f"v_add_f32 v{CX + 4 * m}, v{CX + 4 * m}, v{CX + 4 * m + i}" for i in range(1, 4)]
                        tail += self.split2(CX + 4 * m, CA + 2 * m)
                for m in range(3):
                    self.mfma(vr(ACC + 16 * m, 16), vr(f + 4 + 4 * m, 4), vr(f, 4), "0" if n == 0 else None)
                    if extra:
                        g, tg = extra.pop(0)
                        k(g, tag=tg)
                    if n == 24 and m == 2:
                        for j in range(3):
                            k(f"ds_write_b32 v{T + 2}, v{CS + 4 * j} offset:{1024 * j}", tag="cw")
                    if n == 25 and m == 0:
                        k.wait(lg="cw")
                        k("s_barrier")
                        for j in range(3):
                            k(f"ds_read_b128 {vr(CX + 4 * j, 4)}, v{T + 3} offset:{1024 * j}", tag="cx")
                    cnt = len(tail) if m == 2 else 7
                    for t in tail[:cnt]:
                        k(t)
                    tail = tail[cnt:]
            assert not extra
        self.stamp("A7")
        for m in range(3):
            k(f"v_mfma_f32_32x32x8bf16_1k {vr(ACC + 16 * m, 16)}, {vr(CA + 2 * m, 2)}, {vr(VB, 2)}, {vr(ACC + 16 * m, 16)}")
        qs = math.log2(math.e) / math.sqrt(28.0)
        k(f"""v_readfirstlane_b32 {sTAG}, v126
        s_mul_i32 s50, {sB2}, 3
        s_lshl_b32 s51, {sA2}, 2
        s_add_u32 s51, s51, {sW}
        s_lshl_b32 s51, s51, 11
        s_add_u32 {sTAG}, {sTAG}, 0x9e3779b9""")
        for m in range(3):
            a, p = ACC + 16 * m, FR + 8 * m
            Lq = k.newlabel("nv")
            k(f"""s_add_u32 s52, s50, {m}
            s_lshl_b32 s55, s52, 17
            s_add_u32 s55, s55, s51
            s_cmp_lt_u32 s52, 16
            s_cselect_b32 s56, {f32(qs)}, 1.0
            s_cselect_b32 s57, 0, {sONE}
            s_cselect_b32 s58, 0, 0x3f80
            s_cmp_ge_u32 s52, 32
            s_cselect_b32 s57, 0x3f80, s57
            s_cselect_b32 s58, 0, s58
            v_mul_f32 v{SQ}, s56, v{VR_}""")
            for i in range(8):
                k(f"v_pk_mul_f32 {vr(a + 2 * i, 2)}, {vr(a + 2 * i, 2)}, {vr(SQ, 2)} op_sel_hi:[1,0]")
            for i in range(8):
                k(f"v_cvt_pk_bf16_f32 v{p + i}, v{a + 2 * i}, v{a + 2 * i + 1}")
            k(f"""s_mov_b32 exec_lo, 0
            v_mov_b32 v{p + 6}, s57
            v_mov_b32 v{p + 7}, s58
            s_mov_b32 exec_lo, -1
            s_cbranch_scc0 {Lq}""")
            for q in range(4):
                k(f"ds_write_b64 v{T}, {vr(p + 2 * q, 2)} offset:{4096 + 2560 * m + 16 * q}")
            for s in range(2):
                for q in range(2):
                    k(f"ds_read_b64_tr_b16 {vr(p + 4 * s + 2 * q, 2)}, v{T + 1} offset:{4096 + 2560 * m + (16 * s + 8 * q) * 80}")
            k.wait(lg="all")
            k.label(Lq)
            for s in range(2):
                k(f"buffer_store_dwordx4 {vr(p + 4 * s, 4)}, v1, {WS}, s55 offen offset:{1024 * s} sc1")
        self.stamp("A8")
        self.prelayout()
        k(f"s_lshl_b32 s50, {sA2}, 4\ns_add_u32 s50, s50, {sB2}")
        self.publish(WS_FA, "s50", vTAG, 211)
        self.stamp("A9")

    def prelayout(self):
        k = self.k
        F = 216
        k(f"""v_bfe_u32 v20, v0, 2, 2
        v_lshrrev_b32 v21, 5, v0
        v_bfe_u32 v22, v0, 4, 1
        v_and_b32 v23, 3, v0""")
        for q in range(4):
            k(f"v_mov_b32 v{F + 32 + q}, 0")
        k.wait(vm="P")
        k(f"s_cmp_ge_u32 {sU}, {U_D}\ns_cbranch_scc1 L_p1")
        k(f"""v_lshl_add_u32 v20, v21, 4, v20
        v_lshlrev_b32 v20, 7, v20
        v_lshl_add_u32 v20, v23, 3, v20
        v_xor_b32 v22, 1, v22
        v_mul_u32_u24 v22, 12288, v22
        v_add3_u32 v20, v20, v22, {sXL}""")
        for q in range(4):
            for e in range(2):
                for h in range(2):
                    k(f"ds_read_b64_tr_b16 {vr(F + 8 * q + 4 * e + 2 * h, 2)}, v20 offset:{32 * q + (8 * e + 4 * h) * 128}", tag=("p", q))
        for q in range(4):
            k.wait(lg=("p", q))
            for j in range(8):
                k(f"v_dot2c_f32_bf16 v{F + 32 + q}, {sONE}, v{F + 8 * q + j}")
        k("s_branch L_p2")
        k.label("L_p1")
        k(f"""v_lshl_add_u32 v20, v21, 2, v20
        v_lshlrev_b32 v20, 7, v20
        v_lshl_add_u32 v20, v22, 4, v20
        v_and_b32 v21, 1, v23
        v_lshl_add_u32 v20, v21, 5, v20
        v_lshrrev_b32 v21, 1, v23
        v_lshl_add_u32 v20, v21, 3, v20
        v_add_u32 v20, {sXL}, v20""")
        for e in range(4):
            for ct in range(2):
                for h in range(2):
                    off = (12288 if e < 2 else 0) + 64 * ct + (16 * (e & 1) + 8 * h) * 128
                    k(f"ds_read_b64_tr_b16 {vr(F + 8 * e + 4 * ct + 2 * h, 2)}, v20 offset:{off}")
        k.wait(lg="all")
        k.label("L_p2")

    def phase_b(self):
        k = self.k
        Q, O, S, P, KV = 8, 40, 104, 136, 144
        DEP = 4
        sK, sV, sWD, sGU, sGL = "s50", "s51", "s32", "s53", "s54"
        k(f"""s_add_u32 s55, {sA}, 16
        s_mul_i32 s55, s55, 43
        s_lshr_b32 s55, s55, 7
        s_add_u32 s56, {sA}, 32
        s_mul_i32 s56, s56, 43
        s_lshr_b32 s56, s56, 7
        s_mul_i32 s57, {sA}, 43
        s_lshr_b32 s57, s57, 7
        s_lshl_b32 s58, {sB}, 4
        s_add_u32 s57, s57, s58
        s_lshl_b32 s58, {sW}, 6
        s_add_u32 s55, s55, s58
        s_add_u32 s56, s56, s58
        v_and_b32 v2, 3, v0
        v_lshlrev_b32 v2, 4, v2
        v_add_u32 v4, s55, v2
        v_add_u32 v5, s56, v2
        v_mov_b32 v2, s57
        v_cmp_gt_u32 vcc, 8, v0
        v_cndmask_b32 v2, v2, v5, vcc
        v_cmp_gt_u32 vcc, 4, v0
        v_cndmask_b32 v2, v2, v4, vcc
        v_lshlrev_b32 v2, 7, v2""")
        k(f"""s_mul_i32 s55, {sB2}, 7
        s_lshr_b32 s55, s55, 2
        s_mul_i32 s55, s55, 14
        s_lshr_b32 s56, {sB}, 1
        s_min_u32 s56, s56, 6
        s_mul_i32 s57, s56, 28
        s_mul_i32 s58, {sW}, 7
        s_add_u32 s57, s57, s58
        s_lshl_b32 {sWD}, s57, 13
        s_add_u32 {sWD}, {sWD}, {WS_WD}
        s_add_u32 s57, s57, {U_D - 42}
        s_lshl_b32 s56, s56, 3
        s_lshl_b32 s58, {sW}, 1
        s_add_u32 s56, s56, s58
        s_lshl_b32 s35, s56, 13
        s_add_u32 s35, s35, {WS_WO}
        s_add_u32 s56, s56, {U_O}
        v_add_u32 v4, s55, v0
        v_min_u32 v4, {U_D - 1}, v4
        v_add_u32 v5, s57, v0
        v_and_b32 v3, 1, v0
        v_add_u32 v3, s56, v3
        v_cmp_gt_u32 vcc, 49, v0
        v_cndmask_b32 v3, v3, v5, vcc
        v_cmp_gt_u32 vcc, 42, v0
        v_cndmask_b32 v3, v3, v4, vcc
        v_lshlrev_b32 v3, 7, v3""")
        for u in range(3):
            k(f"""s_add_u32 s55, {sW}, {u + 1}
            s_and_b32 s55, s55, 3
            s_mul_i32 s55, s55, 12288
            s_add_u32 s55, s55, {LR + 4096 * u}
            v_add_u32 v{4 + u}, s55, v1""")
        k(f"""s_mul_i32 s55, {sW}, 12288
        s_add_u32 s55, s55, {LR}
        v_add_u32 v7, s55, v1
        v_and_b32 v208, 3, v0
        v_mul_u32_u24 v208, 12288, v208
        v_add_u32 v208, {LR + 3072 + 516}, v208
        s_lshr_b32 s55, {sW}, 1
        s_lshl_b32 s55, s55, 10
        v_add_u32 v253, s55, v1
        v_xor_b32 v252, 1024, v253""")
        self.poll("v2", "v209", WS_FA)
        self.stamp("B0")
        k(f"s_lshl_b32 s55, {sA}, 6\ns_lshl_b32 s56, {sB}, 2\ns_add_u32 s55, s55, s56")
        for u in range(4):
            k(f"s_add_u32 s56, {sW}, {u + 1}\ns_and_b32 s56, s56, 3\ns_add_u32 s56, s56, s55\ns_lshl_b32 s56, s56, 11")
            for s in range(2):
                k(f"buffer_load_dwordx4 {vr(Q + 8 * u + 4 * s, 4)}, v1, {WS}, s56 offen offset:{1024 * s} sc1", tag="Q")
        k.label("L_attn")
        k(f"""s_lshl_b32 {sK}, {sA}, 6
        s_lshl_b32 s55, {sW}, 4
        s_add_u32 {sK}, {sK}, s55
        s_add_u32 {sK}, {sK}, 1024
        s_lshl_b32 {sK}, {sK}, 11
        s_add_u32 {sV}, {sK}, {1024 * 2048}
        s_mul_i32 {sGL}, {sW}, 28672
        s_mul_i32 {sGU}, {sB2}, {7 * 28672}
        s_add_u32 {sGU}, {sGU}, {sGL}
        s_add_u32 {sGU}, {sGU}, {WS_WGU}
        s_mov_b32 s33, {sWD}
        s_mov_b32 s59, s35""")

        def kload(kt):
            b = KV + 16 * (kt % DEP)
            g = []
            for s in range(2):
                t = f"buffer_load_dwordx4 {vr(b + 4 * s, 4)}, v1, {WS}, {sK} offen offset:{2048 * (kt & 1) + 1024 * s} sc1"
                g.append((t, ("K", kt)))
            if kt & 1:
                g.append((f"s_add_u32 {sK}, {sK}, 4096", None))
            return g

        def vload(kt):
            b = KV + 16 * (kt % DEP) + 8
            g = []
            for s in range(2):
                t = f"buffer_load_dwordx4 {vr(b + 4 * s, 4)}, v1, {WS}, {sV} offen offset:{2048 * (kt & 1) + 1024 * s} sc1"
                g.append((t, ("V", kt)))
            if kt & 1:
                g.append((f"s_add_u32 {sV}, {sV}, 4096", None))
            return g

        for kt in range(DEP - 1):
            for t, tg in kload(kt) + vload(kt):
                k(t, tag=tg)

        pre = []
        for i in range(28):
            if i % 4 == 0:
                pre.append((f"s_add_u32 m0, {sGL}, {i * 1024}", None))
            pre.append((f"buffer_load_dwordx4 v1, {WS}, {sGU} offen offset:{(i % 4) * 1024} sc1 lds", "GU"))
            if i % 4 == 3:
                pre.append((f"s_add_u32 {sGU}, {sGU}, 4096", None))
        for i in range(16):
            pre.append((f"buffer_load_dwordx4 {ar(160 + 4 * i, 4)}, v{252 + (i & 1)}, {WS}, s59 offen offset:{(i & 2) * 1024} sc1", "WO"))
            if i % 4 == 3:
                pre.append(("s_add_u32 s59, s59, 4096", None))
        NWD = self.opt.get("nwd", 24)
        pre += self.wd_loads(0, NWD)
        pst = []
        for p in range(4):
            for e in range(2):
                pst.append((f"buffer_store_dwordx4 {vr(216 + 8 * p + 4 * e, 4)}, v1, {WS}, {sPD} offen offset:{1024 * e} sc1", "PS"))
            pst.append((f"s_add_u32 {sPD}, {sPD}, {sPS}", None))
        pst.append((f"buffer_store_dwordx4 v[248:251], v1, {WS}, {sPCS} offen sc1", "PS"))

        def smf(n, s):
            kt, u = divmod(n, 4)
            b = KV + 16 * (kt % DEP)
            d = vr(S + 16 * (n & 1), 16)
            self.mfma(d, vr(b + 4 * s, 4), vr(Q + 8 * u + 4 * s, 4), "0" if s == 0 else None)

        def pv(n, s):
            kt, u = divmod(n, 4)
            b = KV + 16 * (kt % DEP) + 8
            self.mfma(vr(O + 16 * u, 16), vr(b + 4 * s, 4), vr(P + 4 * s, 4), "0" if (kt == 0 and s == 0) else None)

        k.wait(vm=["Q", ("K", 0)])
        smf(0, 0)
        smf(0, 1)
        PFL = self.opt.get("pfl", 9)
        PCHK = self.opt.get("pchk", 16)
        queue = list(pst)

        def slot(cnt=1):
            for _ in range(cnt):
                if queue:
                    t, tg = queue.pop(0)
                    if callable(t):
                        t()
                    else:
                        k(t, tag=tg)

        def pcheck():
            L1, L2 = k.newlabel("pw"), k.newlabel("pok")
            k.wait(vm="PF")
            k(f"v_cmp_ne_u32 vcc, {sTAG}, v209\ns_cbranch_vccnz {L1}")
            k.label(L2)
            self.late.append((L1, L2))

        self.late = []
        for n in range(64):
            kt, u = divmod(n, 4)
            sb = S + 16 * (n & 1)
            if u == (1 if kt else 3) and kt + DEP - 1 < 16:
                queue = kload(kt + DEP - 1) + vload(kt + DEP - 1) + queue
            if n == PFL:
                queue.append((lambda: k.wait(vm="PS"), None))
                queue.append((f"buffer_store_dwordx4 {vr(vTAG, 4)}, {vFLAG}, {WS}, {sPF} offen sc1", None))
            if n == PCHK:
                queue.append((f"s_mov_b32 s60, {WS_FP}", None))
                queue.append((f"buffer_load_dword v209, v3, {WS}, s60 offen sc1", "PF"))
            if n == PCHK + 5:
                queue.append((pcheck, None))
                queue += pre
            if n >= 62:
                t = n - 62
                queue += [(f"ds_write_b128 v{4 + t}, {vr(O + 16 * t + 4 * q, 4)} offset:{1024 * q}", None) for q in range(4)]

            def ex(i):
                k(f"v_exp_f32 v{sb + i}, v{sb + i}")

            def cv(i):
                k(f"v_cvt_pk_bf16_f32 v{P + i}, v{sb + 2 * i}, v{sb + 2 * i + 1}")

            ex(0), ex(1)
            if n > 0:
                pv(n - 1, 1)
                if u == 3 and n + 1 < 64:
                    if not k.wait(vm=("K", kt + 1)):
                        slot()
                else:
                    slot()
            ex(2), ex(3), cv(0), ex(4), ex(5), cv(1)
            if n + 1 < 64:
                smf(n + 1, 0)
            slot()
            ex(6), ex(7), cv(2), ex(8), ex(9), cv(3)
            if n + 1 < 64:
                smf(n + 1, 1)
            if u == 0:
                if not k.wait(vm=("V", kt)):
                    slot()
            else:
                slot()
            ex(10), ex(11), cv(4), ex(12), ex(13), cv(5)
            pv(n, 0)
            slot()
            ex(14), ex(15), cv(6), cv(7)
        assert not queue, len(queue)
        pv(63, 1)
        self.stamp("B1")
        for q in range(4):
            k(f"ds_write_b128 v6, {vr(O + 32 + 4 * q, 4)} offset:{1024 * q}")
        lo, hi = 2.0 ** -80, 2.0 ** 80
        k(f"""s_mov_b32 s55, {f32(lo)}
        s_mov_b32 s56, {f32(hi)}
        v_min_f32 v210, v{O + 12}, v{O + 28}
        v_add_f32 v209, v{O + 12}, v{O + 28}
        v_add_f32 v209, v209, v{O + 44}
        v_min3_f32 v210, v210, v{O + 44}, v{O + 60}
        v_add_f32 v209, v209, v{O + 60}
        v_cmp_nle_f32 s[56:57], v209, s56
        v_cmp_nge_f32 vcc, v210, s55
        s_or_b32 s57, s57, vcc_hi""")
        if self.force_fb:
            k("s_mov_b32 s57, 1")
        k(f"""v_mov_b32 v210, s57
        s_mov_b64 exec, 1
        ds_write_b32 v4, v210 offset:{3072 + 516}
        s_mov_b64 exec, -1""")
        k.wait(lg="all")
        k("s_barrier")
        R = 144
        k("ds_read_b32 v209, v208", tag="c")
        for j in range(3):
            for q in range(4):
                k(f"ds_read_b128 {vr(R + 16 * j + 4 * q, 4)}, v7 offset:{4096 * j + 1024 * q}", tag=("c", j))
        k(f"s_lshl_b32 s55, {sB}, 2\ns_add_u32 s55, s55, {sW}\ns_lshl_b32 s55, s55, 4\ns_add_u32 s55, s55, {sA}\ns_lshl_b32 s55, s55, 11\ns_add_u32 s55, s55, {WS_O}")
        k.wait(lg="c")
        k(f"""v_cmp_ne_u32 vcc, 0, v209
        s_andn2_b32 s56, vcc_lo, {sFB}
        s_cbranch_scc1 L_fb""")
        o = O + 48
        for j in range(3):
            k.wait(lg=("c", j))
            for i in range(8):
                k(f"v_pk_add_f32 {vr(o + 2 * i, 2)}, {vr(o + 2 * i, 2)}, {vr(R + 16 * j + 2 * i, 2)}")
        k(f"""v_mov_b32 v210, v{o + 12}
        v_mov_b32 v212, v{o + 12}
        v_permlane32_swap_b32 v210, v212
        v_rcp_f32 v212, v212""")
        for i in range(8):
            k(f"v_pk_mul_f32 {vr(o + 2 * i, 2)}, {vr(o + 2 * i, 2)}, v[212:213] op_sel_hi:[1,0]")
        for i in range(8):
            k(f"v_cvt_pk_bf16_f32 v{P + i}, v{o + 2 * i}, v{o + 2 * i + 1}")
        k(f"s_mov_b32 exec_lo, 0\nv_mov_b32 v{P + 6}, 0\nv_mov_b32 v{P + 7}, 0\ns_mov_b32 exec_lo, -1")
        for s in range(2):
            k(f"buffer_store_dwordx4 {vr(P + 4 * s, 4)}, v1, {WS}, s55 offen offset:{1024 * s} sc1")
        k(f"s_lshl_b32 s50, {sB}, 4\ns_add_u32 s50, s50, {sA}")
        self.stamp("B2")
        self.publish(WS_FB, "s50", 144, 148)
        self.stamp("B3")

    def wd_loads(self, lo, hi):
        g = []
        for i in range(lo, hi):
            g.append((f"buffer_load_dwordx4 {ar(4 * i, 4)}, v{252 + (i & 1)}, {WS}, s33 offen offset:{(i & 2) * 1024} sc1", "WD"))
            if i % 4 == 3:
                g.append(("s_add_u32 s33, s33, 4096", None))
        return g

    def late_code(self):
        k = self.k
        Q, S, KV = 8, 104, 144
        for L1, L2 in self.late:
            k.label(L1)
            self.poll("v3", "v209", WS_FP)
            k(f"s_branch {L2}")
        k.label("L_fb")
        k(f"""s_waitcnt vmcnt(0) lgkmcnt(0)
        s_barrier
        s_mov_b32 {sFB}, -1
        s_mov_b32 {sPD}, {OOB}
        s_mov_b32 {sPCS}, {OOB}
        s_mov_b32 {sPF}, {OOB}
        s_lshl_b32 s50, {sA}, 6
        s_lshl_b32 s55, {sW}, 4
        s_add_u32 s50, s50, s55
        s_add_u32 s50, s50, 1024
        s_lshl_b32 s50, s50, 11
        s_mov_b32 s51, 16""")
        for u in range(4):
            k(f"v_mov_b32 v{212 + u}, 0xff800000")
        k.label("L_fbl")
        for s in range(2):
            k(f"buffer_load_dwordx4 {vr(KV + 4 * s, 4)}, v1, {WS}, s50 offen offset:{1024 * s} sc1")
        k("s_add_u32 s50, s50, 2048\ns_waitcnt vmcnt(0)")
        for u in range(4):
            self.mfma(vr(S, 16), vr(KV, 4), vr(Q + 8 * u, 4), "0")
            self.mfma(vr(S, 16), vr(KV + 4, 4), vr(Q + 8 * u + 4, 4))
            for i in range(8):
                k(f"v_max3_f32 v{212 + u}, v{212 + u}, v{S + 2 * i}, v{S + 2 * i + 1}")
        k("s_sub_u32 s51, s51, 1\ns_cmp_lg_u32 s51, 0\ns_cbranch_scc1 L_fbl")
        k(f"v_lshlrev_b32 v216, 2, v0\ns_lshl_b32 s57, {sW}, 8")
        for u in range(4):
            k(f"""v_mov_b32 v210, v{212 + u}
            v_permlane32_swap_b32 v210, v{212 + u}
            v_max_f32 v{212 + u}, v210, v{212 + u}
            s_add_u32 s55, {sW}, {u + 1}
            s_and_b32 s55, s55, 3
            s_lshl_b32 s55, s55, 10
            s_add_u32 s55, s55, {LR}
            v_add_u32 v{220 + u}, s55, v216
            v_add_u32 v217, s57, v{220 + u}
            ds_write_b32 v217, v{212 + u}""")
        k("s_waitcnt lgkmcnt(0)\ns_barrier")
        for u in range(4):
            for j in range(4):
                k(f"ds_read_b32 v{224 + j}, v{220 + u} offset:{256 * j}")
            k(f"""s_waitcnt lgkmcnt(0)
            v_max3_f32 v224, v224, v225, v226
            v_max_f32 v224, v224, v227
            v_sub_f32 v224, 0, v224
            v_cvt_pk_bf16_f32 v225, v224, v224
            v_and_b32 v225, 0xffff0000, v225
            v_sub_f32 v225, v224, v225
            v_cvt_pk_bf16_f32 v226, v224, v225
            v_and_b32 v227, 0xffff0000, v226
            v_sub_f32 v227, v225, v227
            v_cvt_pk_bf16_f32 v227, v227, 0
            s_mov_b32 exec_lo, 0
            v_mov_b32 v{Q + 8 * u + 6}, v226
            v_mov_b32 v{Q + 8 * u + 7}, v227
            s_mov_b32 exec_lo, -1""")
        k("s_barrier\ns_branch L_attn")
        k.vm.clear()
        k.lg.clear()

    def reduce4(self, ACC, R):
        k = self.k
        for t in range(3):
            for q in range(4):
                k(f"ds_write_b128 v{4 + t}, {vr(ACC + 16 * t + 4 * q, 4)} offset:{1024 * q}")
        k.wait(lg="all")
        k("s_barrier")
        for j in range(3):
            for q in range(4):
                k(f"ds_read_b128 {vr(R + 16 * j + 4 * q, 4)}, v7 offset:{4096 * j + 1024 * q}", tag=("c", j))
        o = ACC + 48
        for j in range(3):
            k.wait(lg=("c", j))
            for i in range(8):
                k(f"v_pk_add_f32 {vr(o + 2 * i, 2)}, {vr(o + 2 * i, 2)}, {vr(R + 16 * j + 2 * i, 2)}")

    def tile_addrs(self):
        k = self.k
        for t in range(3):
            k(f"""s_xor_b32 s55, {sW}, {3 - t}
            s_mul_i32 s55, s55, 12288
            s_add_u32 s55, s55, {LR + 4096 * t}
            v_add_u32 v{4 + t}, s55, v1""")

    def phase_c(self):
        k = self.k
        ACC, WO, OF, R = 8, 72, 136, 136
        CS = 200
        k(f"""s_mul_i32 s55, {sB2}, 7
        s_lshr_b32 s55, s55, 2
        s_add_u32 s55, s55, {sW}
        s_min_u32 s55, s55, 27
        s_mul_i32 s55, s55, {14 * 1024}
        s_add_u32 s55, s55, {WS_CS}
        s_cmp_lt_u32 {sW}, 3
        s_cselect_b32 s55, s55, {OOB}""")
        for i in range(14):
            k(f"buffer_load_dwordx4 {vr(136 + 4 * i, 4)}, v1, {WS}, s55 offen offset:{(i % 4) * 1024} sc1", tag=("cs", i))
            if i % 4 == 3:
                k("s_add_u32 s55, s55, 4096")
        k(f"s_cmp_ge_u32 {sB}, 14\ns_cbranch_scc1 L_c0")
        k(f"""s_lshr_b32 s50, {sB}, 1
        s_and_b32 s51, {sB}, 1
        s_lshl_b32 s51, s51, 1
        s_lshl_b32 s52, {sA}, 2
        s_add_u32 s51, s51, s52
        s_and_b32 s52, {sW}, 1
        s_add_u32 s62, s51, s52
        s_lshr_b32 s53, {sW}, 1
        s_lshl_b32 s63, s50, 1
        s_add_u32 s63, s63, s53
        """)
        k(f"""v_and_b32 v254, 31, v0
        v_mul_u32_u24 v254, 896, v254
        v_lshrrev_b32 v2, 5, v0
        v_lshl_add_u32 v254, v2, 5, v254
        s_mul_i32 s55, s62, {32 * 896}
        s_lshl_b32 s56, s63, 6
        s_add_u32 s55, s55, s56
        v_add_u32 v254, s55, v254
        buffer_load_dwordx4 v[192:195], v254, {X}, 0 offen
        buffer_load_dwordx4 v[196:199], v254, {X}, 0 offen offset:16""")
        self.tile_addrs()
        k.label("L_c0")
        k.wait(vm="all")
        for i in range(1, 14):
            for h in range(2):
                k(f"v_pk_add_f32 {vr(136 + 2 * h, 2)}, {vr(136 + 2 * h, 2)}, {vr(136 + 4 * i + 2 * h, 2)}")
        for q in range(4):
            k("\n".join(self.split2(136 + q, CS + 2 * q)))
        k(f"s_cmp_ge_u32 {sB}, 14\ns_cbranch_scc1 L_c1")
        for i in range(8):
            k(f"v_lshlrev_b32 v{ACC + 48 + 2 * i}, 16, v{192 + i}\nv_and_b32 v{ACC + 49 + 2 * i}, 0xffff0000, v{192 + i}")
        k(f"""s_lshl_b32 s55, {sA}, 4
        s_lshl_b32 s56, {sW}, 2
        s_add_u32 s55, s55, s56
        v_and_b32 v2, 3, v0
        v_add_u32 v2, s55, v2
        v_lshlrev_b32 v2, 7, v2
        s_lshl_b32 s55, s62, 4
        s_add_u32 s55, s55, s56
        s_lshl_b32 s55, s55, 11
        s_add_u32 s51, s55, {WS_O}
        s_xor_b32 s50, s55, 0x8000
        s_add_u32 s50, s50, {WS_O}""")
        self.poll("v2", "v3", WS_FB)
        self.stamp("C0")
        for ks in range(8):
            for t in range(2):
                k(f"buffer_load_dwordx4 {vr(OF + 8 * ks + 4 * t, 4)}, v1, {WS}, s{50 + t} offen offset:{1024 * (ks & 3)} sc1", tag=("O", ks))
            if ks == 3:
                k("s_add_u32 s50, s50, 4096\ns_add_u32 s51, s51, 4096")
        for ks in range(8):
            k.wait(vm=("O", ks))
            for c in range(2):
                for t in range(2):
                    lt = 2 * c + t
                    self.mfma(vr(ACC + 16 * lt, 16), ar(160 + 8 * ks + 4 * c, 4), vr(OF + 8 * ks + 4 * t, 4), "0" if (ks == 0 and lt < 3) else None)
        self.stamp("C1")
        self.reduce4(ACC, R)
        o = ACC + 48
        for i in range(8):
            k(f"v_cvt_pk_bf16_f32 v{ACC + i}, v{o + 2 * i}, v{o + 2 * i + 1}")
        k(f"s_mul_i32 s55, s62, 14\ns_add_u32 s55, s55, s63\ns_lshl_b32 s56, s55, 8\ns_lshl_b32 s55, s55, 11\ns_add_u32 s55, s55, {WS_H}\ns_add_u32 s56, s56, {WS_ST}")
        for s in range(2):
            k(f"buffer_store_dwordx4 {vr(ACC + 4 * s, 4)}, v1, {WS}, s55 offen offset:{1024 * s} sc1")
        k(f"v_pk_add_f32 v[16:17], {vr(o, 2)}, {vr(o + 2, 2)}\nv_pk_mul_f32 v[18:19], {vr(o, 2)}, {vr(o, 2)}")
        for i in range(1, 8):
            if i > 1:
                k(f"v_pk_add_f32 v[16:17], v[16:17], {vr(o + 2 * i, 2)}")
            k(f"v_pk_fma_f32 v[18:19], {vr(o + 2 * i, 2)}, {vr(o + 2 * i, 2)}, v[18:19]")
        k(f"""v_add_f32 v16, v16, v17
        v_add_f32 v18, v18, v19
        v_lshlrev_b32 v2, 2, v0
        v_permlane32_swap_b32 v16, v18
        v_add_f32 v16, v16, v18
        buffer_store_dword v16, v2, {WS}, s56 offen sc1""")
        for i in range(16):
            k(f"v_accvgpr_write_b32 a{224 + i}, v{o + i}")
        k(f"s_lshl_b32 s50, {sA}, 4\ns_add_u32 s50, s50, {sB}")
        self.stamp("C2")
        self.publish(WS_FC, "s50", 136, 140)
        k.label("L_c1")
        self.stamp("C3")

    def phase_d(self):
        k = self.k
        H, ACC, AB, T = 8, 120, 184, 216
        CS = 200
        LCS = LR + 28672
        sGU, sAC = "s53", "s54"
        k(f"""v_lshlrev_b32 v2, 3, v0
        s_lshl_b32 s55, {sW}, 11
        s_add_u32 s55, s55, {LCS}
        v_add_u32 v3, s55, v2""")
        for q in range(4):
            k(f"ds_write_b64 v3, {vr(CS + 2 * q, 2)} offset:{512 * q}")
        k(f"""s_mul_i32 s55, {sB2}, 7
        s_and_b32 s55, s55, 3
        s_lshl_b32 s55, s55, 9
        s_add_u32 s55, s55, {LCS}
        v_add_u32 v3, s55, v2
        s_mul_i32 s52, {sW}, 7168
        s_mul_i32 {sGU}, {sB2}, {7 * 28672}
        s_add_u32 {sGU}, {sGU}, s52
        s_add_u32 {sGU}, {sGU}, {WS_WGU + 4 * 28672}""")

        def gdma(ct, lds):
            g = []
            for i in range(7):
                t = ""
                if i % 4 == 0:
                    t = f"s_add_u32 m0, s52, {lds + i * 1024}\ns_add_u32 s56, {sGU}, {(ct - 4) * 28672 + i * 1024}\n"
                g.append((t + f"buffer_load_dwordx4 v1, {WS}, s56 offen offset:{(i % 4) * 1024} sc1 lds", ("G", ct)))
            return g

        for t, tg in gdma(4, LR):
            k(t, tag=tg)
        k(f"""s_lshl_b32 s55, {sA2}, 4
        s_lshr_b32 s56, {sW}, 1
        s_add_u32 s55, s55, s56
        v_min_u32 v249, 6, v0
        v_lshlrev_b32 v249, 1, v249
        v_add_u32 v249, s55, v249
        v_lshlrev_b32 v249, 7, v249
        s_lshl_b32 s55, {sA2}, 2
        s_add_u32 s55, s55, {sW}
        s_mul_i32 s50, s55, 28672
        s_add_u32 s50, s50, {WS_H}
        s_mul_i32 s51, s55, 3584
        s_add_u32 s51, s51, {WS_ST}
        s_mul_i32 {sAC}, s55, {112 * 1024}
        s_mul_i32 s56, {sB2}, 7168
        s_add_u32 {sAC}, {sAC}, s56
        s_add_u32 {sAC}, {sAC}, {WS_ACT}
        v_add_u32 v2, 57344, v1
        v_add_u32 v251, {LR}, v1
        v_lshlrev_b32 v250, 2, v0""")
        k.wait(lg="all")

        slot_of = {0: 0, 1: 1, 2: 2, 3: 3, 4: "R", 5: 0, 6: 1}
        seq = [(ct, ks) for ks in range(28) for ct in range(3)] + [(ct, ks) for ct in range(3, 7) for ks in range(28)]
        NB = 8
        AH = self.opt.get("dah", 5)

        def aread(i):
            ct, ks = seq[i]
            s = slot_of[ct]
            if s == "R":
                va, off = "v251", ks * 1024
            elif s < 2:
                va, off = "v1", s * 28672 + ks * 1024
            else:
                va, off = "v2", (s - 2) * 28672 + ks * 1024
            k(f"ds_read_b128 {vr(AB + 4 * (i % NB), 4)}, {va} offset:{off}", tag=("a", i))

        for i in range(AH):
            aread(i)
        self.poll("v249", "v248", WS_FC)
        self.stamp("D0")
        HA = self.opt.get("dha", 12)

        def hload(ks):
            t = f"buffer_load_dwordx4 {vr(H + 4 * ks, 4)}, v1, {WS}, s50 offen offset:{1024 * (ks & 3)} sc1"
            if ks & 3 == 3:
                t += "\ns_add_u32 s50, s50, 4096"
            return (t, ("H", ks))

        SL = ACC + 48
        queue = [hload(ks) for ks in range(28)]
        queue += [(f"buffer_load_dword v{SL + c}, v250, {WS}, s51 offen offset:{256 * c} sc1", "S") for c in range(14)]
        for _ in range(HA):
            t, tg = queue.pop(0)
            k(t, tag=tg)

        VB, VC, VS = T + 2, T + 4, T + 6
        CA = T + 8
        E = T + 16

        def epilogue(ct, packed):
            a = ACC + 16 * (ct % 4)
            e = []
            if packed:
                e += [f"v_pk_mul_f32 {vr(a + 2 * i, 2)}, {vr(a + 2 * i, 2)}, {vr(VC, 2)} op_sel_hi:[1,0]" for i in range(4)]
            else:
                e += [f"v_mul_f32 v{a + i}, v{VC}, v{a + i}" for i in range(8)]
            e += [f"v_exp_f32 v{a + i}, v{a + i}" for i in range(8)]
            if packed:
                e += [f"v_pk_fma_f32 {vr(a + 2 * i, 2)}, {vr(a + 2 * i, 2)}, {vr(VS, 2)}, {vr(VS, 2)} op_sel_hi:[1,0,0]" for i in range(4)]
            else:
                e += [f"v_fma_f32 v{a + i}, v{a + i}, v{VS}, v{VS}" for i in range(8)]
            e += [f"v_rcp_f32 v{a + i}, v{a + i}" for i in range(8)]
            if packed:
                e += [f"v_pk_mul_f32 {vr(a + 2 * i, 2)}, {vr(a + 2 * i, 2)}, {vr(a + 8 + 2 * i, 2)}" for i in range(4)]
            else:
                e += [f"v_mul_f32 v{a + i}, v{a + i}, v{a + 8 + i}" for i in range(8)]
            p = E + 4 * (ct & 1)
            e += [f"v_cvt_pk_bf16_f32 v{p + i}, v{a + 2 * i}, v{a + 2 * i + 1}" for i in range(4)]
            pre = f"s_add_u32 {sAC}, {sAC}, 4096\n" if ct == 4 else ""
            e.append(pre + f"buffer_store_dwordx4 {vr(p, 4)}, v1, {WS}, {sAC} offen offset:{1024 * (ct & 3)} sc1")
            return [(t, ("e", ct)) for t in e]

        def corr(ct):
            a = vr(ACC + 16 * (ct % 4), 16)
            k(f"v_mfma_f32_32x32x8bf16_1k {a}, {vr(CA + 2 * (ct % 4), 2)}, {vr(VB, 2)}, {a}")

        def csread(ct):
            k(f"ds_read_b64 {vr(CA + 2 * (ct % 4), 2)}, v3 offset:{512 * ct}", tag=("cs", ct))

        def cost(t):
            if callable(t):
                return 4
            return sum(8 if l.startswith(("v_exp", "v_rcp", "v_rsq", "v_sqrt", "buffer")) else 4 for l in t.split("\n"))

        BUD = self.opt.get("dbud", 18)
        mem = []
        hold = 0
        b = 0
        for i, (ct, ks) in enumerate(seq):
            nxt = i + AH
            if nxt < len(seq):
                nct, nks = seq[nxt]
                if nks == 0 and nct == 5:
                    assert not any(tg in (("G", 5), ("G", 6)) for _, tg in mem)
                    k.wait(vm=[("G", 5), ("G", 6)])
                    k("s_barrier")
            if ks == 0 and ct >= 4:
                assert not any(tg == ("e", ct - 4) for _, tg in queue), ct
            if i < 84 and ct == 0:
                assert not any(tg == ("H", ks) for _, tg in queue)
                k.wait(vm=("H", ks), lg=("a", i))
            else:
                k.wait(lg=("a", i))
            self.mfma(vr(ACC + 16 * (ct % 4), 16), vr(AB + 4 * (i % NB), 4), vr(H + 4 * ks, 4), "0" if ks == 0 else None)
            if nxt < len(seq):
                aread(nxt)
            if i == self.opt.get("dwd", 40):
                mem += self.wd_loads(self.opt.get("nwd", 24), 56)
            if i == 66:
                assert not queue
                queue.append((lambda: k.wait(vm="S"), None))
                queue += [(f"v_add_f32 v{SL}, v{SL}, v{SL + c}", None) for c in range(1, 14)]
                queue += [(t.strip(), None) for t in self.stats(SL, SL + 1, VC, VB, VS)]
                queue += [(f"v_rsq_f32 v{VC}, v{VS}", None), (f"v_sqrt_f32 v{VS}, v{VS}", None),
                          (f"v_mul_f32 v{VC}, {f32(-math.log2(math.e))}, v{VC}", None)]
            if i == 83:
                assert not queue
                k("s_barrier")
                for c in range(4):
                    csread(c)
                mem = gdma(5, 0) + gdma(6, 28672) + mem
                self.stamp("D1")
                continue
            if i == 86:
                k.wait(lg=("cs", 3))
                for c in range(3):
                    corr(c)
                    queue += epilogue(c, False)
                hold = 3
                continue
            if i > 83 and ks == 27:
                k.wait(lg=("cs", ct))
                corr(ct)
                if not queue:
                    hold = 4
                queue += epilogue(ct, ct == 6)
                continue
            if i > 83 and ks == 8 and ct < 6:
                csread(ct + 1)
            b = min(b, 4) + BUD
            if mem and (hold or i & 1):
                t, tg = mem.pop(0)
                k(t, tag=tg)
                b -= cost(t)
                if mem and mem[0][1] is None:
                    k(mem.pop(0)[0])
                    b -= 4
            if hold:
                hold -= 1
                continue
            while queue and b >= cost(queue[0][0]):
                t, tg = queue.pop(0)
                b -= cost(t)
                if callable(t):
                    t()
                else:
                    k(t, tag=tg)
                if i < 66:
                    break
        assert not mem, len(mem)
        self.stamp("D2")
        self.dleft = len(queue)
        for t, tg in queue:
            k(t, tag=tg)
        k(f"s_lshl_b32 s50, {sA2}, 4\ns_add_u32 s50, s50, {sB2}")
        self.stamp("D3")
        self.publish(WS_FD, "s50", 184, 188)
        self.stamp("D4")

    def phase_e(self):
        k = self.k
        ACC, BF, R = 8, 72, 72
        NB, AH = 20, 8
        k(f"s_cmp_ge_u32 {sB}, 14\ns_cbranch_scc1 L_tail")
        for i in range(16):
            k(f"v_accvgpr_read_b32 v{ACC + 48 + i}, a{224 + i}")
        k(f"""s_lshl_b32 s55, {sA}, 4
        s_lshl_b32 s56, {sW}, 2
        s_add_u32 s55, s55, s56
        v_and_b32 v2, 3, v0
        v_add_u32 v2, s55, v2
        v_lshlrev_b32 v2, 7, v2
        s_mul_i32 s56, {sW}, 28672
        s_add_u32 s56, s56, {WS_ACT}
        s_mul_i32 s51, s62, {112 * 1024}
        s_add_u32 s51, s51, s56
        s_xor_b32 s50, s62, 1
        s_mul_i32 s50, s50, {112 * 1024}
        s_add_u32 s50, s50, s56""")
        self.poll("v2", "v3", WS_FD)
        self.stamp("E0")

        def load(ks):
            for t in range(2):
                k(f"buffer_load_dwordx4 {vr(BF + 8 * (ks % NB) + 4 * t, 4)}, v1, {WS}, s{50 + t} offen offset:{1024 * (ks & 3)} sc1", tag=("B", ks))
            if ks & 3 == 3:
                k("s_add_u32 s50, s50, 4096\ns_add_u32 s51, s51, 4096")

        for ks in range(AH):
            load(ks)
        for ks in range(28):
            k.wait(vm=("B", ks))
            for c in range(2):
                for t in range(2):
                    lt = 2 * c + t
                    self.mfma(vr(ACC + 16 * lt, 16), ar(8 * ks + 4 * c, 4), vr(BF + 8 * (ks % NB) + 4 * t, 4), "0" if (ks == 0 and lt < 3) else None)
                    if lt == 0 and ks + AH < 28:
                        load(ks + AH)
        self.stamp("E1")
        self.reduce4(ACC, R)
        o = ACC + 48
        for i in range(8):
            k(f"v_cvt_pk_bf16_f32 v{ACC + i}, v{o + 2 * i}, v{o + 2 * i + 1}")
        for s in range(2):
            k(f"buffer_store_dwordx4 {vr(ACC + 4 * s, 4)}, v254, {OUT}, 0 offen offset:{16 * s}")
        self.stamp("E2")
        k("s_branch L_fin")
        k.label("L_tail")
        k(f"""s_cmp_lg_u32 s2, 255
        s_cbranch_scc1 L_fin
        s_lshl_b32 s55, {sW}, 6
        v_add_u32 v2, s55, v0
        v_lshlrev_b32 v2, 7, v2""")
        self.poll("v2", "v3", WS_FP)
        k("s_mov_b32 s50, 0")
        self.publish(WS_E, "s50", 8, 12)
        k.label("L_fin")
        if self.ts:
            k(f"""s_memrealtime s[96:97]
            s_memtime s[98:99]
            s_waitcnt lgkmcnt(0)
            v_writelane_b32 v255, s96, 62
            v_writelane_b32 v255, s98, 63
            s_lshl_b32 s55, s2, 2
            s_add_u32 s55, s55, {sW}
            s_lshl_b32 s55, s55, 8
            s_add_u32 s55, s55, {WS_TS}
            v_lshlrev_b32 v2, 2, v0
            buffer_store_dword v255, v2, {WS}, s55 offen""")
            if self.ts == 2:
                k(f"""s_load_dwordx2 s[20:21], s[0:1], 64
                s_mov_b32 s22, 256
                v_readlane_b32 s56, v255, 0
                v_readlane_b32 s57, v255, 1
                s_sub_u32 s56, s96, s56
                v_subrev_u32 v255, s57, v255
                v_writelane_b32 v255, s56, 0
                s_lshl_b32 s55, s2, 2
                s_add_u32 s55, s55, {sW}
                s_lshl_b32 s55, s55, 8
                s_waitcnt lgkmcnt(0)
                buffer_store_dword v255, v2, {PA}, s55 offen""")
        k("s_waitcnt vmcnt(0)")
        k.label("L_end")
        k("s_endpgm")

    def build(self):
        self.prologue()
        self.phase_a()
        self.phase_b()
        self.phase_c()
        self.phase_d()
        self.phase_e()
        self.late_code()
        self.k.lines = [l.replace("CODE_LAST", "0x8000") for l in self.k.lines]
        n = self.k.pad()
        self.misal = align8(self.k.lines)
        last = (sum(sizes(self.k.lines)) - 128) & ~3
        assert last >= 0x8000
        self.k.lines = [l.replace("v_min_u32 v127, 0x8000", f"v_min_u32 v127, {last}") for l in self.k.lines]
        ref = open(f"cdna_kernels/{NAME}.s.ref").read().split("\n")
        head = [l for l in ref if l.startswith(";") and "@launch" not in l]
        out = head + ["; @launch grid=(256,1,1) block=(256,1,1) lds=163840",
                      '.amdgcn_target "amdgcn-amd-amdhsa--gfx950"', ".text", f".globl {NAME}_kernel", ".p2align 8",
                      f".type {NAME}_kernel,@function", f"{NAME}_kernel:"]
        out += [l if l.endswith(":") else "    " + l for l in self.k.lines]
        out += ['.section .rodata,"a"', ".p2align 6", f".amdhsa_kernel {NAME}_kernel",
                "  .amdhsa_next_free_vgpr 512", "  .amdhsa_next_free_sgpr 102", "  .amdhsa_accum_offset 256",
                "  .amdhsa_group_segment_fixed_size 0", "  .amdhsa_kernarg_size 80", "  .amdhsa_user_sgpr_count 2",
                "  .amdhsa_user_sgpr_kernarg_segment_ptr 1", "  .amdhsa_system_sgpr_workgroup_id_x 1", ".end_amdhsa_kernel", ""]
        self.nbytes = sum(sizes(self.k.lines))
        self.nnop = n
        return "\n".join(out)


if __name__ == "__main__":
    args = dict(a.split("=") for a in sys.argv[2:])
    args = {a: int(b) for a, b in args.items()}
    g = Gen(**args)
    text = g.build()
    open(sys.argv[1], "w").write(text)
    if g.ts:
        open(sys.argv[1] + ".ts", "w").write(" ".join(g.tsn))
    print(f"{sys.argv[1]}: {g.nbytes} bytes of code, {g.nnop} pads, {g.misal} misaligned, D tail {g.dleft}")
```

```python
import math
import struct
import sys

from asmlib import K, sizes, align8

NAME = "sequential_preLN__softmax_full_mha__glu_gated_glu__prompt"

WS_QKV, WS_O, WS_H, WS_ACT = 0, 0x600000, 0x800000, 0xA00000
WS_WGU, WS_WD, WS_WO, WS_CS = 0x1100000, 0x1500000, 0x1700000, 0x1780000
WS_FA, WS_FB, WS_FC, WS_FD, WS_E, WS_FP = 0x1800000, 0x1808000, 0x1810000, 0x1818000, 0x1820000, 0x1828000
WS_ST = 0x1880000
OOB = 0x40000000
WS_TS = 0x1900000
WS_SIZE = 0x1A00000

X, WQ, WS, OUT, PA, PB = "s[4:7]", "s[8:11]", "s[12:15]", "s[16:19]", "s[20:23]", "s[24:27]"
sW, sA, sB, sTAG, sCNT, sONE, sFB = "s36", "s37", "s38", "s39", "s40", "s41", "s42"
sU, sPD, sPCS, sP0, sP1, sPST = "s43", "s44", "s45", "s46", "s47", "s48"
sXL = "s49"
sA2, sB2, sPS, sPF = "s28", "s29", "s30", "s31"
vFLAG, vTAG = "v211", 212
LR = 114688
ONES = 0x3F803F80
U_D, U_O, U_END = 392, 588, 644


def f32(x):
    return hex(struct.unpack("<I", struct.pack("<f", x))[0])


def vr(b, n):
    return f"v[{b}:{b + n - 1}]"


def ar(b, n):
    return f"a[{b}:{b + n - 1}]"


class Gen:
    def __init__(self, ts=False, force_fb=False, **opt):
        self.k = K()
        self.ts = ts
        self.nts = 0
        self.tsn = []
        self.force_fb = force_fb
        self.opt = opt

    def stamp(self, name):
        if self.opt.get("spa") == name:
            self.k("s_memrealtime s[92:93]")
        if self.opt.get("spb") == name:
            self.k("s_memrealtime s[94:95]")
        if self.ts == 2 and name not in ("A0", "A3", "A7", "A9", "B0", "B1", "B3", "C0", "C3", "D0", "D4", "E0", "E2"):
            return
        if self.ts:
            self.k(f"s_memtime s[98:99]\ns_waitcnt lgkmcnt(0)\nv_writelane_b32 v255, s98, {self.nts + 2}")
            self.k.lg.clear()
            self.nts += 1
            self.tsn.append(name)

    def mfma(self, d, a, b, c=None):
        c = d if c is None else c
        self.k(f"v_mfma_f32_32x32x16_bf16 {d}, {a}, {b}, {c}")

    def poll(self, vaddr, vtmp, base):
        k = self.k
        L, Dn = k.newlabel("poll"), k.newlabel("seen")
        k(f"s_mov_b32 s60, {base}")
        k.label(L)
        k(f"buffer_load_dword {vtmp}, {vaddr}, {WS}, s60 offen sc1")
        k.wait(vm="all")
        k(f"""v_cmp_ne_u32 vcc, {sTAG}, {vtmp}
        s_cbranch_vccz {Dn}
        s_sub_u32 {sCNT}, {sCNT}, 1
        s_cselect_b32 {sCNT}, 0, {sCNT}
        s_cbranch_scc0 {L}""")
        k.label(Dn)

    def publish(self, base, sidx, vt, vo):
        k = self.k
        for i in range(4):
            k(f"v_mov_b32 v{vt + i}, {sTAG}")
        k(f"""s_lshl_b32 s60, {sidx}, 7
        s_add_u32 s60, s60, {base}
        s_cmp_eq_u32 {sW}, 0
        s_cselect_b32 s60, s60, {OOB}
        v_lshrrev_b32 v{vo}, 3, v0
        v_lshl_add_u32 v{vo}, v{vo}, 26, v1""")
        k.wait(vm="all")
        k(f"s_barrier\nbuffer_store_dwordx4 {vr(vt, 4)}, v{vo}, {WS}, s60 offen sc1")

    def stats(self, vs, vq, t0, vb, vrs):
        return f"""v_mov_b32 v{vq}, v{vs}
        v_permlane32_swap_b32 v{vs}, v{vq}
        v_mul_f32 v{vs}, {f32(-1.0 / 448)}, v{vs}
        v_mul_f32 v{vq}, {f32(1.0 / 448)}, v{vq}
        v_cvt_pk_bf16_f32 v{t0}, v{vs}, v{vs}
        v_fma_f32 v{vq}, -v{vs}, v{vs}, v{vq}
        v_and_b32 v{t0}, 0xffff0000, v{t0}
        v_max_f32 v{vq}, 0, v{vq}
        v_sub_f32 v{t0}, v{vs}, v{t0}
        v_add_f32 v{vrs}, {f32(1e-5)}, v{vq}
        v_cvt_pk_bf16_f32 v{vb}, v{vs}, v{t0}
        v_cvt_pk_bf16_f32 v{vb + 1}, v{vs}, v{t0}""".split("\n")

    def split2(self, vc, vd):
        return f"""v_cvt_pk_bf16_f32 v{vd}, v{vc}, v{vc}
        v_and_b32 v{vd + 1}, 0xffff0000, v{vd}
        v_sub_f32 v{vd + 1}, v{vc}, v{vd + 1}
        v_cvt_pk_bf16_f32 v{vd + 1}, v{vd + 1}, v{vd + 1}""".split("\n")

    def prologue(self):
        k = self.k
        k(f"""s_cmp_ge_u32 s2, 0x100
        s_cbranch_scc1 L_end
        s_load_dwordx16 s[64:79], s[0:1], 0
        s_load_dwordx2 s[12:13], s[0:1], 72""")
        if self.ts:
            k("s_memrealtime s[96:97]\ns_memtime s[98:99]")
        if "spa" in self.opt:
            k("s_memrealtime s[92:93]\ns_memrealtime s[94:95]")
        if self.opt.get("touch", 1):
            k.note("pull the whole code object into this die's L2 ahead of instruction fetch")
            k("""s_getpc_b64 s[86:87]
            v_lshlrev_b32 v127, 7, v0
            global_load_dword v200, v127, s[86:87]
            v_add_u32 v127, 0x8000, v127
            v_min_u32 v127, CODE_LAST, v127
            global_load_dword v201, v127, s[86:87]""")
        k(f"""v_lshrrev_b32 v2, 6, v0
        v_and_b32 v0, 63, v0
        s_and_b32 {sA}, s2, 7
        v_readfirstlane_b32 {sW}, v2
        s_lshl_b32 {sA}, {sA}, 1
        s_bfe_u32 s50, s2, 0x10003
        s_add_u32 {sA}, {sA}, s50
        s_lshr_b32 {sB}, s2, 4
        s_bfe_u32 {sA2}, s2, 0x20001
        s_lshl_b32 {sA2}, {sA2}, 2
        s_bfe_u32 s50, s2, 0x20003
        s_add_u32 {sA2}, {sA2}, s50
        s_and_b32 {sB2}, s2, 1
        s_lshl_b32 {sB2}, {sB2}, 3
        s_lshr_b32 s50, s2, 5
        s_add_u32 {sB2}, {sB2}, s50
        v_lshlrev_b32 v1, 4, v0
        s_mov_b32 {sCNT}, 0x40000
        s_mov_b32 {sONE}, {ONES}
        s_mov_b32 {sFB}, 0
        v_mov_b32 v254, 0""")
        k(f"""s_mul_i32 s50, {sB2}, 168
        s_and_b32 s51, s50, 15
        s_sub_u32 s50, s50, s51
        s_mul_i32 s52, {sW}, {16 * 2688}
        s_add_u32 s50, s50, s52""")
        for t in range(3):
            k(f"""v_add_u32 v14, {64 * t}, v0
            v_mul_u32_u24 v15, 171, v14
            v_lshrrev_b32 v15, 11, v15
            v_mul_u32_u24 v16, 12, v15
            v_sub_u32 v16, v14, v16
            v_min_u32 v16, 10, v16
            v_mul_u32_u24 v15, 2688, v15
            v_lshlrev_b32 v16, 4, v16
            v_add3_u32 v{3 + t}, v15, v16, s50""")
        k(f"""v_lshrrev_b32 v14, 3, v0
        v_and_b32 v15, 7, v0
        v_lshrrev_b32 v16, 4, v0
        v_xor_b32 v16, v15, v16
        v_mul_u32_u24 v17, 896, v14
        s_lshl_b32 s52, {sA2}, 2
        s_add_u32 s52, s52, {sW}
        s_mul_i32 s52, s52, {32 * 896}
        v_lshlrev_b32 v18, 4, v16
        v_add3_u32 v6, v17, v18, s52
        v_xor_b32 v7, 64, v6""")
        k(f"""s_lshl_b32 {sXL}, {sW}, 14
        s_add_u32 {sXL}, {sXL}, 86016""")
        k(f"""s_lshr_b32 s53, s2, 3
        s_mul_i32 s54, s53, 37
        s_lshr_b32 s54, s54, 8
        s_mul_i32 s54, s54, 7
        s_sub_u32 s53, s53, s54
        s_mul_i32 s54, {sW}, 3072
        s_mov_b32 s6, {2048 * 896}
        s_mov_b32 s7, 0x20000
        s_mov_b32 s10, {448 * 2688}
        s_mov_b32 s11, 0x20000
        s_mov_b32 s14, {WS_SIZE}
        s_mov_b32 s15, 0x20000
        s_mov_b32 s18, {2048 * 896}
        s_mov_b32 s19, 0x20000
        s_mov_b32 s23, 0x20000
        s_mov_b32 s27, 0x20000
        s_mov_b32 s60, {WS_E}
        v_mov_b32 v16, 0
        s_waitcnt lgkmcnt(0)
        s_mov_b32 s4, s64
        s_mov_b32 s5, s65
        s_mov_b32 s8, s66
        s_mov_b32 s9, s67""")
        if self.ts:
            k("v_writelane_b32 v255, s96, 0\nv_writelane_b32 v255, s98, 1")

    def a_dma(self, c):
        g = []
        pre = f"s_mul_i32 s55, s53, {64 * 2688}\ns_lshl_b32 s56, s53, 7\n"
        for t in range(3):
            g.append(pre + f"s_add_u32 m0, s54, {c * 12288 + t * 1024}\ns_nop 0\nbuffer_load_dwordx4 v{3 + t}, {WQ}, s55 offen lds")
            pre = ""
        for t in range(4):
            post = "\ns_add_u32 s53, s53, 1\ns_cmp_eq_u32 s53, 7\ns_cselect_b32 s53, 0, s53" if t == 3 else ""
            g.append(f"s_add_u32 m0, {sXL}, {(c % 4) * 4096 + t * 1024}\ns_add_u32 s57, s56, {t * 8 * 896}\n"
                     f"buffer_load_dwordx4 v{6 + (t & 1)}, {X}, s57 offen lds" + post)
        return g

    def p_dma(self, h):
        slot = 3 if h == 0 else 0
        srd, sb = (PA, sP0) if h == 0 else (PB, sP1)
        g = []
        for t in range(4):
            g.append(f"s_add_u32 m0, {sXL}, {slot * 4096 + t * 1024}\ns_nop 0\nbuffer_load_dwordx4 v2, {srd}, {sb} offen lds\n"
                     f"s_add_u32 {sb}, {sb}, {sPST}")
        return g

    def unit_setup(self):
        k = self.k
        k(f"""s_mov_b32 s16, s78
        s_mov_b32 s17, s79
        s_lshl_b32 {sU}, {sW}, 8
        s_add_u32 {sU}, {sU}, s2
        s_cmp_ge_u32 {sU}, {U_D}
        s_cbranch_scc1 L_u1
        s_mov_b32 s20, s72
        s_mov_b32 s21, s73
        s_mov_b32 s24, s74
        s_mov_b32 s25, s75
        s_mov_b32 s22, {448 * 3584}
        s_mul_i32 s58, {sU}, 4682
        s_lshr_b32 s58, s58, 16
        s_mul_i32 s59, s58, 14
        s_sub_u32 s59, {sU}, s59
        s_mul_i32 {sP0}, s59, {32 * 3584}
        s_lshl_b32 s61, s58, 7
        s_add_u32 {sP0}, {sP0}, s61
        s_mov_b32 {sP1}, {sP0}
        s_mov_b32 {sPST}, 3584
        s_mul_i32 {sPD}, s58, {4 * 28 * 1024}
        s_lshl_b32 s61, s59, 11
        s_add_u32 {sPD}, {sPD}, s61
        s_add_u32 {sPD}, {sPD}, {WS_WGU}
        s_mov_b32 {sPS}, 28672
        s_lshl_b32 {sPCS}, {sU}, 10
        s_add_u32 {sPCS}, {sPCS}, {WS_CS}
        s_branch L_u3""")
        k.label("L_u1")
        k(f"""s_mov_b32 {sPST}, 896
        s_mov_b32 {sPS}, 2048
        s_mov_b32 {sPCS}, {OOB}
        s_cmp_ge_u32 {sU}, {U_O}
        s_cbranch_scc1 L_u2
        s_mov_b32 s20, s76
        s_mov_b32 s21, s77
        s_mov_b32 s24, s76
        s_mov_b32 s25, s77
        s_mov_b32 s22, {1792 * 896}
        s_sub_u32 s61, {sU}, {U_D}
        s_mul_i32 s58, s61, 2341
        s_lshr_b32 s58, s58, 16
        s_mul_i32 s59, s58, 28
        s_sub_u32 s59, s61, s59
        s_mul_i32 {sP0}, s59, {64 * 896}
        s_lshl_b32 s58, s58, 7
        s_add_u32 {sP0}, {sP0}, s58
        s_add_u32 {sP1}, {sP0}, {32 * 896}
        s_lshl_b32 {sPD}, s61, 13
        s_add_u32 {sPD}, {sPD}, {WS_WD}
        s_branch L_u3""")
        k.label("L_u2")
        k(f"""s_mov_b32 s20, s68
        s_mov_b32 s21, s69
        s_mov_b32 s24, s68
        s_mov_b32 s25, s69
        s_cmp_lt_u32 {sU}, {U_END}
        s_cselect_b32 s22, {448 * 896}, 0
        s_sub_u32 s61, {sU}, {U_O}
        s_lshr_b32 s58, s61, 3
        s_and_b32 s59, s61, 7
        s_mul_i32 {sP0}, s59, {56 * 896}
        s_lshl_b32 s58, s58, 7
        s_add_u32 {sP0}, {sP0}, s58
        s_add_u32 {sP1}, {sP0}, {28 * 896}
        s_lshl_b32 {sPD}, s61, 13
        s_add_u32 {sPD}, {sPD}, {WS_WO}
        s_cmp_lt_u32 {sU}, {U_END}
        s_cselect_b32 {sPD}, {sPD}, {OOB}""")
        k.label("L_u3")
        k(f"""s_mov_b32 s26, s22
        s_lshl_b32 {sPF}, {sU}, 7
        s_add_u32 {sPF}, {sPF}, {WS_FP}
        s_cmp_lt_u32 {sU}, {U_END}
        s_cselect_b32 {sPF}, {sPF}, {OOB}
        v_lshrrev_b32 v16, 3, v0
        v_and_b32 v17, 7, v0
        v_mul_lo_u32 v16, v16, {sPST}
        v_lshl_add_u32 v2, v17, 4, v16
        s_lshl_b32 {sPST}, {sPST}, 3""")

    def phase_a(self):
        k = self.k
        DEP = self.opt.get("adep", 3)
        ACC, FR, SQ, SM, CS, ON, T = 16, 64, 96, 104, 112, 124, 128
        LX = 151552
        k(f"buffer_load_dword v126, v16, {WS}, s60 offen sc1", tag="E")
        for c in range(DEP):
            for g in self.a_dma(c):
                k(g, tag=("A", c))
            if c == 0:
                k.note("LDS read addresses: v8..v11 W (transposed), v12..v15 x; k-step order rotated by the wave index")
                k(f"""v_bfe_u32 v16, v0, 2, 2
                v_lshrrev_b32 v17, 5, v0
                v_lshl_add_u32 v16, v17, 3, v16
                v_mul_u32_u24 v16, 192, v16
                v_bfe_u32 v18, v0, 4, 1
                v_lshlrev_b32 v18, 5, v18
                v_and_b32 v19, 3, v0
                v_lshl_add_u32 v18, v19, 3, v18
                v_add3_u32 v19, v16, v18, s51
                v_and_b32 v16, 31, v0
                v_bfe_u32 v18, v0, 1, 3
                v_xor_b32 v18, v18, v17
                v_lshlrev_b32 v18, 4, v18
                v_lshl_add_u32 v16, v16, 7, v18
                v_add_u32 v16, {sXL}, v16
                v_mov_b32 v{ON}, {sONE}
                v_mov_b32 v{ON + 1}, {sONE}""")
                for p in range(4):
                    k(f"""s_add_u32 s58, {sW}, {p}
                    s_and_b32 s58, s58, 3
                    s_mul_i32 s59, s58, 3072
                    s_lshl_b32 s58, s58, 5
                    v_add_u32 v{8 + p}, s59, v19
                    v_xor_b32 v{12 + p}, s58, v16""")
            if c == 1:
                self.unit_setup()
        k(f"""v_and_b32 v{T}, 31, v0
        v_mul_u32_u24 v{T}, 80, v{T}
        v_lshrrev_b32 v{T + 1}, 5, v0
        v_lshl_add_u32 v{T}, v{T + 1}, 3, v{T}
        v_bfe_u32 v16, v0, 2, 2
        v_lshl_add_u32 v{T + 1}, v{T + 1}, 2, v16
        v_mul_u32_u24 v{T + 1}, 80, v{T + 1}
        v_bfe_u32 v16, v0, 4, 1
        v_lshl_add_u32 v{T + 1}, v16, 5, v{T + 1}
        v_and_b32 v16, 3, v0
        v_lshl_add_u32 v{T + 1}, v16, 3, v{T + 1}
        v_add_u32 v{T}, {sXL}, v{T}
        v_add_u32 v{T + 1}, {sXL}, v{T + 1}
        v_add_u32 v{T + 3}, {LX}, v1
        s_lshl_b32 s58, {sW}, 2
        v_add_u32 v{T + 2}, s58, v{T + 3}
        v_cmp_eq_u32 s[80:81], 1, v16
        v_cmp_eq_u32 s[82:83], 2, v16
        v_cmp_eq_u32 s[84:85], 3, v16""")

        def reads(c, ks):
            n = 4 * c + ks
            f = FR + 16 * (n & 1)
            if c == 4:
                k(f"v_add_u32 v{8 + ks}, 49152, v{8 + ks}")
            k(f"ds_read_b128 {vr(f, 4)}, v{12 + ks} offset:{(c % 4) * 4096}", tag=("r", n))
            for m in range(3):
                for q in range(2):
                    off = (c % 4) * 12288 + 4 * q * 192 + 56 * m
                    k(f"ds_read_b64_tr_b16 {vr(f + 4 + 4 * m + 2 * q, 2)}, v{8 + ks} offset:{off}", tag=("r", n))

        def small(d, a, b, first):
            k(f"v_mfma_f32_4x4x4bf16_1k {vr(d, 4)}, {vr(a, 2)}, {vr(b, 2)}, {'0' if first else vr(d, 4)}")

        CX = 136
        VB, VR_, CA = 150, 149, 152
        for c in range(7):
            k.wait(vm=("A", c))
            k("s_barrier")
            self.stamp(f"A{c}")
            reads(c, 0)
            extra = []
            nx = c + DEP
            if nx < 7:
                extra = [(g, ("A", nx)) for g in self.a_dma(nx)]
            if c == 4:
                extra += [(g, "P") for g in self.p_dma(0)]
            if c == 5:
                extra += [(g, "P") for g in self.p_dma(1)]
            for ks in range(4):
                n = 4 * c + ks
                f = FR + 16 * (n & 1)
                if ks < 3:
                    reads(c, ks + 1)
                k.wait(lg=("r", n))
                for h in range(2):
                    small(SQ + 4 * h, f + 2 * h, f + 2 * h, n == 0)
                    small(SM + 4 * h, ON, f + 2 * h, n == 0)
                if ks == 0:
                    for h in range(2):
                        for m in range(3):
                            small(CS + 4 * m, ON, f + 4 + 4 * m + 2 * h, n == 0 and h == 0)
                tail = []
                if n == 27:
                    tail = [f"v_add_f32 v{SQ + i}, v{SQ + i}, v{SQ + 4 + i}" for i in range(4)]
                    tail += [f"v_add_f32 v{SM}, v{SM}, v{SM + 4}"]
                    tail += [f"v_cndmask_b32 v{SQ}, v{SQ}, v{SQ + i}, s[{78 + 2 * i}:{79 + 2 * i}]" for i in range(1, 4)]
                    tail += [f"v_permlane32_swap_b32 v{SM}, v{SQ}", f"v_add_f32 v{SM}, v{SM}, v{SQ}"]
                    tail += self.stats(SM, SQ, 148, VB, VR_) + [f"v_rsq_f32 v{VR_}, v{VR_}"]
                if n == 26:
                    k.wait(lg="cx")
                    for m in range(3):
                        tail += [f"v_add_f32 v{CX + 4 * m}, v{CX + 4 * m}, v{CX + 4 * m + i}" for i in range(1, 4)]
                        tail += self.split2(CX + 4 * m, CA + 2 * m)
                for m in range(3):
                    self.mfma(vr(ACC + 16 * m, 16), vr(f + 4 + 4 * m, 4), vr(f, 4), "0" if n == 0 else None)
                    if extra:
                        g, tg = extra.pop(0)
                        k(g, tag=tg)
                    if n == 24 and m == 2:
                        for j in range(3):
                            k(f"ds_write_b32 v{T + 2}, v{CS + 4 * j} offset:{1024 * j}", tag="cw")
                    if n == 25 and m == 0:
                        k.wait(lg="cw")
                        k("s_barrier")
                        for j in range(3):
                            k(f"ds_read_b128 {vr(CX + 4 * j, 4)}, v{T + 3} offset:{1024 * j}", tag="cx")
                    cnt = len(tail) if m == 2 else 7
                    for t in tail[:cnt]:
                        k(t)
                    tail = tail[cnt:]
            assert not extra
        self.stamp("A7")
        for m in range(3):
            k(f"v_mfma_f32_32x32x8bf16_1k {vr(ACC + 16 * m, 16)}, {vr(CA + 2 * m, 2)}, {vr(VB, 2)}, {vr(ACC + 16 * m, 16)}")
        qs = math.log2(math.e) / math.sqrt(28.0)
        k(f"""v_readfirstlane_b32 {sTAG}, v126
        s_mul_i32 s50, {sB2}, 3
        s_lshl_b32 s51, {sA2}, 2
        s_add_u32 s51, s51, {sW}
        s_lshl_b32 s51, s51, 11
        s_add_u32 {sTAG}, {sTAG}, 0x9e3779b9""")
        for m in range(3):
            a, p = ACC + 16 * m, FR + 8 * m
            Lq = k.newlabel("nv")
            k(f"""s_add_u32 s52, s50, {m}
            s_lshl_b32 s55, s52, 17
            s_add_u32 s55, s55, s51
            s_cmp_lt_u32 s52, 16
            s_cselect_b32 s56, {f32(qs)}, 1.0
            s_cselect_b32 s57, 0, {sONE}
            s_cselect_b32 s58, 0, 0x3f80
            s_cmp_ge_u32 s52, 32
            s_cselect_b32 s57, 0x3f80, s57
            s_cselect_b32 s58, 0, s58
            v_mul_f32 v{SQ}, s56, v{VR_}""")
            for i in range(8):
                k(f"v_pk_mul_f32 {vr(a + 2 * i, 2)}, {vr(a + 2 * i, 2)}, {vr(SQ, 2)} op_sel_hi:[1,0]")
            for i in range(8):
                k(f"v_cvt_pk_bf16_f32 v{p + i}, v{a + 2 * i}, v{a + 2 * i + 1}")
            k(f"""s_mov_b32 exec_lo, 0
            v_mov_b32 v{p + 6}, s57
            v_mov_b32 v{p + 7}, s58
            s_mov_b32 exec_lo, -1
            s_cbranch_scc0 {Lq}""")
            for q in range(4):
                k(f"ds_write_b64 v{T}, {vr(p + 2 * q, 2)} offset:{4096 + 2560 * m + 16 * q}")
            for s in range(2):
                for q in range(2):
                    k(f"ds_read_b64_tr_b16 {vr(p + 4 * s + 2 * q, 2)}, v{T + 1} offset:{4096 + 2560 * m + (16 * s + 8 * q) * 80}")
            k.wait(lg="all")
            k.label(Lq)
            for s in range(2):
                k(f"buffer_store_dwordx4 {vr(p + 4 * s, 4)}, v1, {WS}, s55 offen offset:{1024 * s} sc1")
        self.stamp("A8")
        self.prelayout()
        k(f"s_lshl_b32 s50, {sA2}, 4\ns_add_u32 s50, s50, {sB2}")
        self.publish(WS_FA, "s50", vTAG, 211)
        self.stamp("A9")

    def prelayout(self):
        k = self.k
        F = 216
        k(f"""v_bfe_u32 v20, v0, 2, 2
        v_lshrrev_b32 v21, 5, v0
        v_bfe_u32 v22, v0, 4, 1
        v_and_b32 v23, 3, v0""")
        for q in range(4):
            k(f"v_mov_b32 v{F + 32 + q}, 0")
        k.wait(vm="P")
        k(f"s_cmp_ge_u32 {sU}, {U_D}\ns_cbranch_scc1 L_p1")
        k(f"""v_lshl_add_u32 v20, v21, 4, v20
        v_lshlrev_b32 v20, 7, v20
        v_lshl_add_u32 v20, v23, 3, v20
        v_xor_b32 v22, 1, v22
        v_mul_u32_u24 v22, 12288, v22
        v_add3_u32 v20, v20, v22, {sXL}""")
        for q in range(4):
            for e in range(2):
                for h in range(2):
                    k(f"ds_read_b64_tr_b16 {vr(F + 8 * q + 4 * e + 2 * h, 2)}, v20 offset:{32 * q + (8 * e + 4 * h) * 128}", tag=("p", q))
        for q in range(4):
            k.wait(lg=("p", q))
            for j in range(8):
                k(f"v_dot2c_f32_bf16 v{F + 32 + q}, {sONE}, v{F + 8 * q + j}")
        k("s_branch L_p2")
        k.label("L_p1")
        k(f"""v_lshl_add_u32 v20, v21, 2, v20
        v_lshlrev_b32 v20, 7, v20
        v_lshl_add_u32 v20, v22, 4, v20
        v_and_b32 v21, 1, v23
        v_lshl_add_u32 v20, v21, 5, v20
        v_lshrrev_b32 v21, 1, v23
        v_lshl_add_u32 v20, v21, 3, v20
        v_add_u32 v20, {sXL}, v20""")
        for e in range(4):
            for ct in range(2):
                for h in range(2):
                    off = (12288 if e < 2 else 0) + 64 * ct + (16 * (e & 1) + 8 * h) * 128
                    k(f"ds_read_b64_tr_b16 {vr(F + 8 * e + 4 * ct + 2 * h, 2)}, v20 offset:{off}")
        k.wait(lg="all")
        k.label("L_p2")

    def phase_b(self):
        k = self.k
        Q, O, S, P, KV = 8, 40, 104, 136, 144
        DEP = 4
        sK, sV, sWD, sGU, sGL = "s50", "s51", "s32", "s53", "s54"
        k(f"""s_add_u32 s55, {sA}, 16
        s_mul_i32 s55, s55, 43
        s_lshr_b32 s55, s55, 7
        s_add_u32 s56, {sA}, 32
        s_mul_i32 s56, s56, 43
        s_lshr_b32 s56, s56, 7
        s_mul_i32 s57, {sA}, 43
        s_lshr_b32 s57, s57, 7
        s_lshl_b32 s58, {sB}, 4
        s_add_u32 s57, s57, s58
        s_lshl_b32 s58, {sW}, 6
        s_add_u32 s55, s55, s58
        s_add_u32 s56, s56, s58
        v_and_b32 v2, 3, v0
        v_lshlrev_b32 v2, 4, v2
        v_add_u32 v4, s55, v2
        v_add_u32 v5, s56, v2
        v_mov_b32 v2, s57
        v_cmp_gt_u32 vcc, 8, v0
        v_cndmask_b32 v2, v2, v5, vcc
        v_cmp_gt_u32 vcc, 4, v0
        v_cndmask_b32 v2, v2, v4, vcc
        v_lshlrev_b32 v2, 7, v2""")
        k(f"""s_mul_i32 s55, {sB2}, 7
        s_lshr_b32 s55, s55, 2
        s_mul_i32 s55, s55, 14
        s_lshr_b32 s56, {sB}, 1
        s_min_u32 s56, s56, 6
        s_mul_i32 s57, s56, 28
        s_mul_i32 s58, {sW}, 7
        s_add_u32 s57, s57, s58
        s_lshl_b32 {sWD}, s57, 13
        s_add_u32 {sWD}, {sWD}, {WS_WD}
        s_add_u32 s57, s57, {U_D - 42}
        s_lshl_b32 s56, s56, 3
        s_lshl_b32 s58, {sW}, 1
        s_add_u32 s56, s56, s58
        s_lshl_b32 s35, s56, 13
        s_add_u32 s35, s35, {WS_WO}
        s_add_u32 s56, s56, {U_O}
        v_add_u32 v4, s55, v0
        v_min_u32 v4, {U_D - 1}, v4
        v_add_u32 v5, s57, v0
        v_and_b32 v3, 1, v0
        v_add_u32 v3, s56, v3
        v_cmp_gt_u32 vcc, 49, v0
        v_cndmask_b32 v3, v3, v5, vcc
        v_cmp_gt_u32 vcc, 42, v0
        v_cndmask_b32 v3, v3, v4, vcc
        v_lshlrev_b32 v3, 7, v3""")
        for u in range(3):
            k(f"""s_add_u32 s55, {sW}, {u + 1}
            s_and_b32 s55, s55, 3
            s_mul_i32 s55, s55, 12288
            s_add_u32 s55, s55, {LR + 4096 * u}
            v_add_u32 v{4 + u}, s55, v1""")
        k(f"""s_mul_i32 s55, {sW}, 12288
        s_add_u32 s55, s55, {LR}
        v_add_u32 v7, s55, v1
        v_and_b32 v208, 3, v0
        v_mul_u32_u24 v208, 12288, v208
        v_add_u32 v208, {LR + 3072 + 516}, v208
        s_lshr_b32 s55, {sW}, 1
        s_lshl_b32 s55, s55, 10
        v_add_u32 v253, s55, v1
        v_xor_b32 v252, 1024, v253""")
        self.poll("v2", "v209", WS_FA)
        self.stamp("B0")
        k(f"s_lshl_b32 s55, {sA}, 6\ns_lshl_b32 s56, {sB}, 2\ns_add_u32 s55, s55, s56")
        for u in range(4):
            k(f"s_add_u32 s56, {sW}, {u + 1}\ns_and_b32 s56, s56, 3\ns_add_u32 s56, s56, s55\ns_lshl_b32 s56, s56, 11")
            for s in range(2):
                k(f"buffer_load_dwordx4 {vr(Q + 8 * u + 4 * s, 4)}, v1, {WS}, s56 offen offset:{1024 * s} sc1", tag="Q")
        k.label("L_attn")
        k(f"""s_lshl_b32 {sK}, {sA}, 6
        s_lshl_b32 s55, {sW}, 4
        s_add_u32 {sK}, {sK}, s55
        s_add_u32 {sK}, {sK}, 1024
        s_lshl_b32 {sK}, {sK}, 11
        s_add_u32 {sV}, {sK}, {1024 * 2048}
        s_mul_i32 {sGL}, {sW}, 28672
        s_mul_i32 {sGU}, {sB2}, {7 * 28672}
        s_add_u32 {sGU}, {sGU}, {sGL}
        s_add_u32 {sGU}, {sGU}, {WS_WGU}
        s_mov_b32 s33, {sWD}
        s_mov_b32 s59, s35""")

        def kload(kt):
            b = KV + 16 * (kt % DEP)
            g = []
            for s in range(2):
                t = f"buffer_load_dwordx4 {vr(b + 4 * s, 4)}, v1, {WS}, {sK} offen offset:{2048 * (kt & 1) + 1024 * s} sc1"
                g.append((t, ("K", kt)))
            if kt & 1:
                g.append((f"s_add_u32 {sK}, {sK}, 4096", None))
            return g

        def vload(kt):
            b = KV + 16 * (kt % DEP) + 8
            g = []
            for s in range(2):
                t = f"buffer_load_dwordx4 {vr(b + 4 * s, 4)}, v1, {WS}, {sV} offen offset:{2048 * (kt & 1) + 1024 * s} sc1"
                g.append((t, ("V", kt)))
            if kt & 1:
                g.append((f"s_add_u32 {sV}, {sV}, 4096", None))
            return g

        for kt in range(DEP - 1):
            for t, tg in kload(kt) + vload(kt):
                k(t, tag=tg)

        pre = []
        for i in range(28):
            if i % 4 == 0:
                pre.append((f"s_add_u32 m0, {sGL}, {i * 1024}", None))
            pre.append((f"buffer_load_dwordx4 v1, {WS}, {sGU} offen offset:{(i % 4) * 1024} sc1 lds", "GU"))
            if i % 4 == 3:
                pre.append((f"s_add_u32 {sGU}, {sGU}, 4096", None))
        for i in range(16):
            pre.append((f"buffer_load_dwordx4 {ar(160 + 4 * i, 4)}, v{252 + (i & 1)}, {WS}, s59 offen offset:{(i & 2) * 1024} sc1", "WO"))
            if i % 4 == 3:
                pre.append(("s_add_u32 s59, s59, 4096", None))
        NWD = self.opt.get("nwd", 24)
        pre += self.wd_loads(0, NWD)
        pst = []
        for p in range(4):
            for e in range(2):
                pst.append((f"buffer_store_dwordx4 {vr(216 + 8 * p + 4 * e, 4)}, v1, {WS}, {sPD} offen offset:{1024 * e} sc1", "PS"))
            pst.append((f"s_add_u32 {sPD}, {sPD}, {sPS}", None))
        pst.append((f"buffer_store_dwordx4 v[248:251], v1, {WS}, {sPCS} offen sc1", "PS"))

        def smf(n, s):
            kt, u = divmod(n, 4)
            b = KV + 16 * (kt % DEP)
            d = vr(S + 16 * (n & 1), 16)
            self.mfma(d, vr(b + 4 * s, 4), vr(Q + 8 * u + 4 * s, 4), "0" if s == 0 else None)

        def pv(n, s):
            kt, u = divmod(n, 4)
            b = KV + 16 * (kt % DEP) + 8
            self.mfma(vr(O + 16 * u, 16), vr(b + 4 * s, 4), vr(P + 4 * s, 4), "0" if (kt == 0 and s == 0) else None)

        k.wait(vm=["Q", ("K", 0)])
        smf(0, 0)
        smf(0, 1)
        PFL = self.opt.get("pfl", 9)
        PCHK = self.opt.get("pchk", 16)
        queue = list(pst)

        def slot(cnt=1):
            for _ in range(cnt):
                if queue:
                    t, tg = queue.pop(0)
                    if callable(t):
                        t()
                    else:
                        k(t, tag=tg)

        def pcheck():
            L1, L2 = k.newlabel("pw"), k.newlabel("pok")
            k.wait(vm="PF")
            k(f"v_cmp_ne_u32 vcc, {sTAG}, v209\ns_cbranch_vccnz {L1}")
            k.label(L2)
            self.late.append((L1, L2))

        self.late = []
        for n in range(64):
            kt, u = divmod(n, 4)
            sb = S + 16 * (n & 1)
            if u == (1 if kt else 3) and kt + DEP - 1 < 16:
                queue = kload(kt + DEP - 1) + vload(kt + DEP - 1) + queue
            if n == PFL:
                queue.append((lambda: k.wait(vm="PS"), None))
                queue.append((f"buffer_store_dwordx4 {vr(vTAG, 4)}, {vFLAG}, {WS}, {sPF} offen sc1", None))
            if n == PCHK:
                queue.append((f"s_mov_b32 s60, {WS_FP}", None))
                queue.append((f"buffer_load_dword v209, v3, {WS}, s60 offen sc1", "PF"))
            if n == PCHK + 5:
                queue.append((pcheck, None))
                queue += pre
            if n >= 62:
                t = n - 62
                queue += [(f"ds_write_b128 v{4 + t}, {vr(O + 16 * t + 4 * q, 4)} offset:{1024 * q}", None) for q in range(4)]

            def ex(i):
                k(f"v_exp_f32 v{sb + i}, v{sb + i}")

            def cv(i):
                k(f"v_cvt_pk_bf16_f32 v{P + i}, v{sb + 2 * i}, v{sb + 2 * i + 1}")

            ex(0), ex(1)
            if n > 0:
                pv(n - 1, 1)
                if u == 3 and n + 1 < 64:
                    if not k.wait(vm=("K", kt + 1)):
                        slot()
                else:
                    slot()
            ex(2), ex(3), cv(0), ex(4), ex(5), cv(1)
            if n + 1 < 64:
                smf(n + 1, 0)
            slot()
            ex(6), ex(7), cv(2), ex(8), ex(9), cv(3)
            if n + 1 < 64:
                smf(n + 1, 1)
            if u == 0:
                if not k.wait(vm=("V", kt)):
                    slot()
            else:
                slot()
            ex(10), ex(11), cv(4), ex(12), ex(13), cv(5)
            pv(n, 0)
            slot()
            ex(14), ex(15), cv(6), cv(7)
        assert not queue, len(queue)
        pv(63, 1)
        self.stamp("B1")
        for q in range(4):
            k(f"ds_write_b128 v6, {vr(O + 32 + 4 * q, 4)} offset:{1024 * q}")
        lo, hi = 2.0 ** -80, 2.0 ** 80
        k(f"""s_mov_b32 s55, {f32(lo)}
        s_mov_b32 s56, {f32(hi)}
        v_min_f32 v210, v{O + 12}, v{O + 28}
        v_add_f32 v209, v{O + 12}, v{O + 28}
        v_add_f32 v209, v209, v{O + 44}
        v_min3_f32 v210, v210, v{O + 44}, v{O + 60}
        v_add_f32 v209, v209, v{O + 60}
        v_cmp_nle_f32 s[56:57], v209, s56
        v_cmp_nge_f32 vcc, v210, s55
        s_or_b32 s57, s57, vcc_hi""")
        if self.force_fb:
            k("s_mov_b32 s57, 1")
        k(f"""v_mov_b32 v210, s57
        s_mov_b64 exec, 1
        ds_write_b32 v4, v210 offset:{3072 + 516}
        s_mov_b64 exec, -1""")
        k.wait(lg="all")
        k("s_barrier")
        R = 144
        k("ds_read_b32 v209, v208", tag="c")
        for j in range(3):
            for q in range(4):
                k(f"ds_read_b128 {vr(R + 16 * j + 4 * q, 4)}, v7 offset:{4096 * j + 1024 * q}", tag=("c", j))
        k(f"s_lshl_b32 s55, {sB}, 2\ns_add_u32 s55, s55, {sW}\ns_lshl_b32 s55, s55, 4\ns_add_u32 s55, s55, {sA}\ns_lshl_b32 s55, s55, 11\ns_add_u32 s55, s55, {WS_O}")
        k.wait(lg="c")
        k(f"""v_cmp_ne_u32 vcc, 0, v209
        s_andn2_b32 s56, vcc_lo, {sFB}
        s_cbranch_scc1 L_fb""")
        o = O + 48
        for j in range(3):
            k.wait(lg=("c", j))
            for i in range(8):
                k(f"v_pk_add_f32 {vr(o + 2 * i, 2)}, {vr(o + 2 * i, 2)}, {vr(R + 16 * j + 2 * i, 2)}")
        k(f"""v_mov_b32 v210, v{o + 12}
        v_mov_b32 v212, v{o + 12}
        v_permlane32_swap_b32 v210, v212
        v_rcp_f32 v212, v212""")
        for i in range(8):
            k(f"v_pk_mul_f32 {vr(o + 2 * i, 2)}, {vr(o + 2 * i, 2)}, v[212:213] op_sel_hi:[1,0]")
        for i in range(8):
            k(f"v_cvt_pk_bf16_f32 v{P + i}, v{o + 2 * i}, v{o + 2 * i + 1}")
        k(f"s_mov_b32 exec_lo, 0\nv_mov_b32 v{P + 6}, 0\nv_mov_b32 v{P + 7}, 0\ns_mov_b32 exec_lo, -1")
        for s in range(2):
            k(f"buffer_store_dwordx4 {vr(P + 4 * s, 4)}, v1, {WS}, s55 offen offset:{1024 * s} sc1")
        k(f"s_lshl_b32 s50, {sB}, 4\ns_add_u32 s50, s50, {sA}")
        self.stamp("B2")
        self.publish(WS_FB, "s50", 144, 148)
        self.stamp("B3")

    def wd_loads(self, lo, hi):
        g = []
        for i in range(lo, hi):
            g.append((f"buffer_load_dwordx4 {ar(4 * i, 4)}, v{252 + (i & 1)}, {WS}, s33 offen offset:{(i & 2) * 1024} sc1", "WD"))
            if i % 4 == 3:
                g.append(("s_add_u32 s33, s33, 4096", None))
        return g

    def late_code(self):
        k = self.k
        Q, S, KV = 8, 104, 144
        for L1, L2 in self.late:
            k.label(L1)
            self.poll("v3", "v209", WS_FP)
            k(f"s_branch {L2}")
        k.label("L_fb")
        k(f"""s_waitcnt vmcnt(0) lgkmcnt(0)
        s_barrier
        s_mov_b32 {sFB}, -1
        s_mov_b32 {sPD}, {OOB}
        s_mov_b32 {sPCS}, {OOB}
        s_mov_b32 {sPF}, {OOB}
        s_lshl_b32 s50, {sA}, 6
        s_lshl_b32 s55, {sW}, 4
        s_add_u32 s50, s50, s55
        s_add_u32 s50, s50, 1024
        s_lshl_b32 s50, s50, 11
        s_mov_b32 s51, 16""")
        for u in range(4):
            k(f"v_mov_b32 v{212 + u}, 0xff800000")
        k.label("L_fbl")
        for s in range(2):
            k(f"buffer_load_dwordx4 {vr(KV + 4 * s, 4)}, v1, {WS}, s50 offen offset:{1024 * s} sc1")
        k("s_add_u32 s50, s50, 2048\ns_waitcnt vmcnt(0)")
        for u in range(4):
            self.mfma(vr(S, 16), vr(KV, 4), vr(Q + 8 * u, 4), "0")
            self.mfma(vr(S, 16), vr(KV + 4, 4), vr(Q + 8 * u + 4, 4))
            for i in range(8):
                k(f"v_max3_f32 v{212 + u}, v{212 + u}, v{S + 2 * i}, v{S + 2 * i + 1}")
        k("s_sub_u32 s51, s51, 1\ns_cmp_lg_u32 s51, 0\ns_cbranch_scc1 L_fbl")
        k(f"v_lshlrev_b32 v216, 2, v0\ns_lshl_b32 s57, {sW}, 8")
        for u in range(4):
            k(f"""v_mov_b32 v210, v{212 + u}
            v_permlane32_swap_b32 v210, v{212 + u}
            v_max_f32 v{212 + u}, v210, v{212 + u}
            s_add_u32 s55, {sW}, {u + 1}
            s_and_b32 s55, s55, 3
            s_lshl_b32 s55, s55, 10
            s_add_u32 s55, s55, {LR}
            v_add_u32 v{220 + u}, s55, v216
            v_add_u32 v217, s57, v{220 + u}
            ds_write_b32 v217, v{212 + u}""")
        k("s_waitcnt lgkmcnt(0)\ns_barrier")
        for u in range(4):
            for j in range(4):
                k(f"ds_read_b32 v{224 + j}, v{220 + u} offset:{256 * j}")
            k(f"""s_waitcnt lgkmcnt(0)
            v_max3_f32 v224, v224, v225, v226
            v_max_f32 v224, v224, v227
            v_sub_f32 v224, 0, v224
            v_cvt_pk_bf16_f32 v225, v224, v224
            v_and_b32 v225, 0xffff0000, v225
            v_sub_f32 v225, v224, v225
            v_cvt_pk_bf16_f32 v226, v224, v225
            v_and_b32 v227, 0xffff0000, v226
            v_sub_f32 v227, v225, v227
            v_cvt_pk_bf16_f32 v227, v227, 0
            s_mov_b32 exec_lo, 0
            v_mov_b32 v{Q + 8 * u + 6}, v226
            v_mov_b32 v{Q + 8 * u + 7}, v227
            s_mov_b32 exec_lo, -1""")
        k("s_barrier\ns_branch L_attn")
        k.vm.clear()
        k.lg.clear()

    def reduce4(self, ACC, R):
        k = self.k
        for t in range(3):
            for q in range(4):
                k(f"ds_write_b128 v{4 + t}, {vr(ACC + 16 * t + 4 * q, 4)} offset:{1024 * q}")
        k.wait(lg="all")
        k("s_barrier")
        for j in range(3):
            for q in range(4):
                k(f"ds_read_b128 {vr(R + 16 * j + 4 * q, 4)}, v7 offset:{4096 * j + 1024 * q}", tag=("c", j))
        o = ACC + 48
        for j in range(3):
            k.wait(lg=("c", j))
            for i in range(8):
                k(f"v_pk_add_f32 {vr(o + 2 * i, 2)}, {vr(o + 2 * i, 2)}, {vr(R + 16 * j + 2 * i, 2)}")

    def tile_addrs(self):
        k = self.k
        for t in range(3):
            k(f"""s_xor_b32 s55, {sW}, {3 - t}
            s_mul_i32 s55, s55, 12288
            s_add_u32 s55, s55, {LR + 4096 * t}
            v_add_u32 v{4 + t}, s55, v1""")

    def phase_c(self):
        k = self.k
        ACC, WO, OF, R = 8, 72, 136, 136
        CS = 200
        k(f"""s_mul_i32 s55, {sB2}, 7
        s_lshr_b32 s55, s55, 2
        s_add_u32 s55, s55, {sW}
        s_min_u32 s55, s55, 27
        s_mul_i32 s55, s55, {14 * 1024}
        s_add_u32 s55, s55, {WS_CS}
        s_cmp_lt_u32 {sW}, 3
        s_cselect_b32 s55, s55, {OOB}""")
        for i in range(14):
            k(f"buffer_load_dwordx4 {vr(136 + 4 * i, 4)}, v1, {WS}, s55 offen offset:{(i % 4) * 1024} sc1", tag=("cs", i))
            if i % 4 == 3:
                k("s_add_u32 s55, s55, 4096")
        k(f"s_cmp_ge_u32 {sB}, 14\ns_cbranch_scc1 L_c0")
        k(f"""s_lshr_b32 s50, {sB}, 1
        s_and_b32 s51, {sB}, 1
        s_lshl_b32 s51, s51, 1
        s_lshl_b32 s52, {sA}, 2
        s_add_u32 s51, s51, s52
        s_and_b32 s52, {sW}, 1
        s_add_u32 s62, s51, s52
        s_lshr_b32 s53, {sW}, 1
        s_lshl_b32 s63, s50, 1
        s_add_u32 s63, s63, s53
        """)
        k(f"""v_and_b32 v254, 31, v0
        v_mul_u32_u24 v254, 896, v254
        v_lshrrev_b32 v2, 5, v0
        v_lshl_add_u32 v254, v2, 5, v254
        s_mul_i32 s55, s62, {32 * 896}
        s_lshl_b32 s56, s63, 6
        s_add_u32 s55, s55, s56
        v_add_u32 v254, s55, v254
        buffer_load_dwordx4 v[192:195], v254, {X}, 0 offen
        buffer_load_dwordx4 v[196:199], v254, {X}, 0 offen offset:16""")
        self.tile_addrs()
        k.label("L_c0")
        k.wait(vm="all")
        for i in range(1, 14):
            for h in range(2):
                k(f"v_pk_add_f32 {vr(136 + 2 * h, 2)}, {vr(136 + 2 * h, 2)}, {vr(136 + 4 * i + 2 * h, 2)}")
        for q in range(4):
            k("\n".join(self.split2(136 + q, CS + 2 * q)))
        k(f"s_cmp_ge_u32 {sB}, 14\ns_cbranch_scc1 L_c1")
        for i in range(8):
            k(f"v_lshlrev_b32 v{ACC + 48 + 2 * i}, 16, v{192 + i}\nv_and_b32 v{ACC + 49 + 2 * i}, 0xffff0000, v{192 + i}")
        k(f"""s_lshl_b32 s55, {sA}, 4
        s_lshl_b32 s56, {sW}, 2
        s_add_u32 s55, s55, s56
        v_and_b32 v2, 3, v0
        v_add_u32 v2, s55, v2
        v_lshlrev_b32 v2, 7, v2
        s_lshl_b32 s55, s62, 4
        s_add_u32 s55, s55, s56
        s_lshl_b32 s55, s55, 11
        s_add_u32 s51, s55, {WS_O}
        s_xor_b32 s50, s55, 0x8000
        s_add_u32 s50, s50, {WS_O}""")
        self.poll("v2", "v3", WS_FB)
        self.stamp("C0")
        for ks in range(8):
            for t in range(2):
                k(f"buffer_load_dwordx4 {vr(OF + 8 * ks + 4 * t, 4)}, v1, {WS}, s{50 + t} offen offset:{1024 * (ks & 3)} sc1", tag=("O", ks))
            if ks == 3:
                k("s_add_u32 s50, s50, 4096\ns_add_u32 s51, s51, 4096")
        for ks in range(8):
            k.wait(vm=("O", ks))
            for c in range(2):
                for t in range(2):
                    lt = 2 * c + t
                    self.mfma(vr(ACC + 16 * lt, 16), ar(160 + 8 * ks + 4 * c, 4), vr(OF + 8 * ks + 4 * t, 4), "0" if (ks == 0 and lt < 3) else None)
        self.stamp("C1")
        self.reduce4(ACC, R)
        o = ACC + 48
        for i in range(8):
            k(f"v_cvt_pk_bf16_f32 v{ACC + i}, v{o + 2 * i}, v{o + 2 * i + 1}")
        k(f"s_mul_i32 s55, s62, 14\ns_add_u32 s55, s55, s63\ns_lshl_b32 s56, s55, 8\ns_lshl_b32 s55, s55, 11\ns_add_u32 s55, s55, {WS_H}\ns_add_u32 s56, s56, {WS_ST}")
        for s in range(2):
            k(f"buffer_store_dwordx4 {vr(ACC + 4 * s, 4)}, v1, {WS}, s55 offen offset:{1024 * s} sc1")
        k(f"v_pk_add_f32 v[16:17], {vr(o, 2)}, {vr(o + 2, 2)}\nv_pk_mul_f32 v[18:19], {vr(o, 2)}, {vr(o, 2)}")
        for i in range(1, 8):
            if i > 1:
                k(f"v_pk_add_f32 v[16:17], v[16:17], {vr(o + 2 * i, 2)}")
            k(f"v_pk_fma_f32 v[18:19], {vr(o + 2 * i, 2)}, {vr(o + 2 * i, 2)}, v[18:19]")
        k(f"""v_add_f32 v16, v16, v17
        v_add_f32 v18, v18, v19
        v_lshlrev_b32 v2, 2, v0
        v_permlane32_swap_b32 v16, v18
        v_add_f32 v16, v16, v18
        buffer_store_dword v16, v2, {WS}, s56 offen sc1""")
        for i in range(16):
            k(f"v_accvgpr_write_b32 a{224 + i}, v{o + i}")
        k(f"s_lshl_b32 s50, {sA}, 4\ns_add_u32 s50, s50, {sB}")
        self.stamp("C2")
        self.publish(WS_FC, "s50", 136, 140)
        k.label("L_c1")
        self.stamp("C3")

    def phase_d(self):
        k = self.k
        H, ACC, AB, T = 8, 120, 184, 216
        CS = 200
        LCS = LR + 28672
        sGU, sAC = "s53", "s54"
        k(f"""v_lshlrev_b32 v2, 3, v0
        s_lshl_b32 s55, {sW}, 11
        s_add_u32 s55, s55, {LCS}
        v_add_u32 v3, s55, v2""")
        for q in range(4):
            k(f"ds_write_b64 v3, {vr(CS + 2 * q, 2)} offset:{512 * q}")
        k(f"""s_mul_i32 s55, {sB2}, 7
        s_and_b32 s55, s55, 3
        s_lshl_b32 s55, s55, 9
        s_add_u32 s55, s55, {LCS}
        v_add_u32 v3, s55, v2
        s_mul_i32 s52, {sW}, 7168
        s_mul_i32 {sGU}, {sB2}, {7 * 28672}
        s_add_u32 {sGU}, {sGU}, s52
        s_add_u32 {sGU}, {sGU}, {WS_WGU + 4 * 28672}""")

        def gdma(ct, lds):
            g = []
            for i in range(7):
                t = ""
                if i % 4 == 0:
                    t = f"s_add_u32 m0, s52, {lds + i * 1024}\ns_add_u32 s56, {sGU}, {(ct - 4) * 28672 + i * 1024}\n"
                g.append((t + f"buffer_load_dwordx4 v1, {WS}, s56 offen offset:{(i % 4) * 1024} sc1 lds", ("G", ct)))
            return g

        for t, tg in gdma(4, LR):
            k(t, tag=tg)
        k(f"""s_lshl_b32 s55, {sA2}, 4
        s_lshr_b32 s56, {sW}, 1
        s_add_u32 s55, s55, s56
        v_min_u32 v249, 6, v0
        v_lshlrev_b32 v249, 1, v249
        v_add_u32 v249, s55, v249
        v_lshlrev_b32 v249, 7, v249
        s_lshl_b32 s55, {sA2}, 2
        s_add_u32 s55, s55, {sW}
        s_mul_i32 s50, s55, 28672
        s_add_u32 s50, s50, {WS_H}
        s_mul_i32 s51, s55, 3584
        s_add_u32 s51, s51, {WS_ST}
        s_mul_i32 {sAC}, s55, {112 * 1024}
        s_mul_i32 s56, {sB2}, 7168
        s_add_u32 {sAC}, {sAC}, s56
        s_add_u32 {sAC}, {sAC}, {WS_ACT}
        v_add_u32 v2, 57344, v1
        v_add_u32 v251, {LR}, v1
        v_lshlrev_b32 v250, 2, v0""")
        k.wait(lg="all")

        slot_of = {0: 0, 1: 1, 2: 2, 3: 3, 4: "R", 5: 0, 6: 1}
        seq = [(ct, ks) for ks in range(28) for ct in range(3)] + [(ct, ks) for ct in range(3, 7) for ks in range(28)]
        NB = 8
        AH = self.opt.get("dah", 5)

        def aread(i):
            ct, ks = seq[i]
            s = slot_of[ct]
            if s == "R":
                va, off = "v251", ks * 1024
            elif s < 2:
                va, off = "v1", s * 28672 + ks * 1024
            else:
                va, off = "v2", (s - 2) * 28672 + ks * 1024
            k(f"ds_read_b128 {vr(AB + 4 * (i % NB), 4)}, {va} offset:{off}", tag=("a", i))

        for i in range(AH):
            aread(i)
        self.poll("v249", "v248", WS_FC)
        self.stamp("D0")
        HA = self.opt.get("dha", 12)

        def hload(ks):
            t = f"buffer_load_dwordx4 {vr(H + 4 * ks, 4)}, v1, {WS}, s50 offen offset:{1024 * (ks & 3)} sc1"
            if ks & 3 == 3:
                t += "\ns_add_u32 s50, s50, 4096"
            return (t, ("H", ks))

        SL = ACC + 48
        queue = [hload(ks) for ks in range(28)]
        queue += [(f"buffer_load_dword v{SL + c}, v250, {WS}, s51 offen offset:{256 * c} sc1", "S") for c in range(14)]
        for _ in range(HA):
            t, tg = queue.pop(0)
            k(t, tag=tg)

        VB, VC, VS = T + 2, T + 4, T + 6
        CA = T + 8
        E = T + 16

        def epilogue(ct, packed):
            a = ACC + 16 * (ct % 4)
            e = []
            if packed:
                e += [f"v_pk_mul_f32 {vr(a + 2 * i, 2)}, {vr(a + 2 * i, 2)}, {vr(VC, 2)} op_sel_hi:[1,0]" for i in range(4)]
            else:
                e += [f"v_mul_f32 v{a + i}, v{VC}, v{a + i}" for i in range(8)]
            e += [f"v_exp_f32 v{a + i}, v{a + i}" for i in range(8)]
            if packed:
                e += [f"v_pk_fma_f32 {vr(a + 2 * i, 2)}, {vr(a + 2 * i, 2)}, {vr(VS, 2)}, {vr(VS, 2)} op_sel_hi:[1,0,0]" for i in range(4)]
            else:
                e += [f"v_fma_f32 v{a + i}, v{a + i}, v{VS}, v{VS}" for i in range(8)]
            e += [f"v_rcp_f32 v{a + i}, v{a + i}" for i in range(8)]
            if packed:
                e += [f"v_pk_mul_f32 {vr(a + 2 * i, 2)}, {vr(a + 2 * i, 2)}, {vr(a + 8 + 2 * i, 2)}" for i in range(4)]
            else:
                e += [f"v_mul_f32 v{a + i}, v{a + i}, v{a + 8 + i}" for i in range(8)]
            p = E + 4 * (ct & 1)
            e += [f"v_cvt_pk_bf16_f32 v{p + i}, v{a + 2 * i}, v{a + 2 * i + 1}" for i in range(4)]
            pre = f"s_add_u32 {sAC}, {sAC}, 4096\n" if ct == 4 else ""
            e.append(pre + f"buffer_store_dwordx4 {vr(p, 4)}, v1, {WS}, {sAC} offen offset:{1024 * (ct & 3)} sc1")
            return [(t, ("e", ct)) for t in e]

        def corr(ct):
            a = vr(ACC + 16 * (ct % 4), 16)
            k(f"v_mfma_f32_32x32x8bf16_1k {a}, {vr(CA + 2 * (ct % 4), 2)}, {vr(VB, 2)}, {a}")

        def csread(ct):
            k(f"ds_read_b64 {vr(CA + 2 * (ct % 4), 2)}, v3 offset:{512 * ct}", tag=("cs", ct))

        def cost(t):
            if callable(t):
                return 4
            return sum(8 if l.startswith(("v_exp", "v_rcp", "v_rsq", "v_sqrt", "buffer")) else 4 for l in t.split("\n"))

        BUD = self.opt.get("dbud", 18)
        mem = []
        hold = 0
        b = 0
        for i, (ct, ks) in enumerate(seq):
            nxt = i + AH
            if nxt < len(seq):
                nct, nks = seq[nxt]
                if nks == 0 and nct == 5:
                    assert not any(tg in (("G", 5), ("G", 6)) for _, tg in mem)
                    k.wait(vm=[("G", 5), ("G", 6)])
                    k("s_barrier")
            if ks == 0 and ct >= 4:
                assert not any(tg == ("e", ct - 4) for _, tg in queue), ct
            if i < 84 and ct == 0:
                assert not any(tg == ("H", ks) for _, tg in queue)
                k.wait(vm=("H", ks), lg=("a", i))
            else:
                k.wait(lg=("a", i))
            self.mfma(vr(ACC + 16 * (ct % 4), 16), vr(AB + 4 * (i % NB), 4), vr(H + 4 * ks, 4), "0" if ks == 0 else None)
            if nxt < len(seq):
                aread(nxt)
            if i == self.opt.get("dwd", 40):
                mem += self.wd_loads(self.opt.get("nwd", 24), 56)
            if i == 66:
                assert not queue
                queue.append((lambda: k.wait(vm="S"), None))
                queue += [(f"v_add_f32 v{SL}, v{SL}, v{SL + c}", None) for c in range(1, 14)]
                queue += [(t.strip(), None) for t in self.stats(SL, SL + 1, VC, VB, VS)]
                queue += [(f"v_rsq_f32 v{VC}, v{VS}", None), (f"v_sqrt_f32 v{VS}, v{VS}", None),
                          (f"v_mul_f32 v{VC}, {f32(-math.log2(math.e))}, v{VC}", None)]
            if i == 83:
                assert not queue
                k("s_barrier")
                for c in range(4):
                    csread(c)
                mem = gdma(5, 0) + gdma(6, 28672) + mem
                self.stamp("D1")
                continue
            if i == 86:
                k.wait(lg=("cs", 3))
                for c in range(3):
                    corr(c)
                    queue += epilogue(c, False)
                hold = 3
                continue
            if i > 83 and ks == 27:
                k.wait(lg=("cs", ct))
                corr(ct)
                if not queue:
                    hold = 4
                queue += epilogue(ct, ct == 6)
                continue
            if i > 83 and ks == 8 and ct < 6:
                csread(ct + 1)
            b = min(b, 4) + BUD
            if mem and (hold or i & 1):
                t, tg = mem.pop(0)
                k(t, tag=tg)
                b -= cost(t)
                if mem and mem[0][1] is None:
                    k(mem.pop(0)[0])
                    b -= 4
            if hold:
                hold -= 1
                continue
            while queue and b >= cost(queue[0][0]):
                t, tg = queue.pop(0)
                b -= cost(t)
                if callable(t):
                    t()
                else:
                    k(t, tag=tg)
                if i < 66:
                    break
        assert not mem, len(mem)
        self.stamp("D2")
        self.dleft = len(queue)
        for t, tg in queue:
            k(t, tag=tg)
        k(f"s_lshl_b32 s50, {sA2}, 4\ns_add_u32 s50, s50, {sB2}")
        self.stamp("D3")
        self.publish(WS_FD, "s50", 184, 188)
        self.stamp("D4")

    def phase_e(self):
        k = self.k
        ACC, BF, R = 8, 72, 72
        NB, AH = 20, 8
        k(f"s_cmp_ge_u32 {sB}, 14\ns_cbranch_scc1 L_tail")
        for i in range(16):
            k(f"v_accvgpr_read_b32 v{ACC + 48 + i}, a{224 + i}")
        k(f"""s_lshl_b32 s55, {sA}, 4
        s_lshl_b32 s56, {sW}, 2
        s_add_u32 s55, s55, s56
        v_and_b32 v2, 3, v0
        v_add_u32 v2, s55, v2
        v_lshlrev_b32 v2, 7, v2
        s_mul_i32 s56, {sW}, 28672
        s_add_u32 s56, s56, {WS_ACT}
        s_mul_i32 s51, s62, {112 * 1024}
        s_add_u32 s51, s51, s56
        s_xor_b32 s50, s62, 1
        s_mul_i32 s50, s50, {112 * 1024}
        s_add_u32 s50, s50, s56""")
        self.poll("v2", "v3", WS_FD)
        self.stamp("E0")

        def load(ks):
            for t in range(2):
                k(f"buffer_load_dwordx4 {vr(BF + 8 * (ks % NB) + 4 * t, 4)}, v1, {WS}, s{50 + t} offen offset:{1024 * (ks & 3)} sc1", tag=("B", ks))
            if ks & 3 == 3:
                k("s_add_u32 s50, s50, 4096\ns_add_u32 s51, s51, 4096")

        for ks in range(AH):
            load(ks)
        for ks in range(28):
            k.wait(vm=("B", ks))
            for c in range(2):
                for t in range(2):
                    lt = 2 * c + t
                    self.mfma(vr(ACC + 16 * lt, 16), ar(8 * ks + 4 * c, 4), vr(BF + 8 * (ks % NB) + 4 * t, 4), "0" if (ks == 0 and lt < 3) else None)
                    if lt == 0 and ks + AH < 28:
                        load(ks + AH)
        self.stamp("E1")
        self.reduce4(ACC, R)
        o = ACC + 48
        for i in range(8):
            k(f"v_cvt_pk_bf16_f32 v{ACC + i}, v{o + 2 * i}, v{o + 2 * i + 1}")
        for s in range(2):
            k(f"buffer_store_dwordx4 {vr(ACC + 4 * s, 4)}, v254, {OUT}, 0 offen offset:{16 * s}")
        self.stamp("E2")
        k("s_branch L_fin")
        k.label("L_tail")
        k(f"""s_cmp_lg_u32 s2, 255
        s_cbranch_scc1 L_fin
        s_lshl_b32 s55, {sW}, 6
        v_add_u32 v2, s55, v0
        v_lshlrev_b32 v2, 7, v2""")
        self.poll("v2", "v3", WS_FP)
        k("s_mov_b32 s50, 0")
        self.publish(WS_E, "s50", 8, 12)
        k.label("L_fin")
        if self.ts:
            k(f"""s_memrealtime s[96:97]
            s_memtime s[98:99]
            s_waitcnt lgkmcnt(0)
            v_writelane_b32 v255, s96, 62
            v_writelane_b32 v255, s98, 63
            s_lshl_b32 s55, s2, 2
            s_add_u32 s55, s55, {sW}
            s_lshl_b32 s55, s55, 8
            s_add_u32 s55, s55, {WS_TS}
            v_lshlrev_b32 v2, 2, v0
            buffer_store_dword v255, v2, {WS}, s55 offen""")
            if self.ts == 2:
                k(f"""s_load_dwordx2 s[20:21], s[0:1], 64
                s_mov_b32 s22, 256
                v_readlane_b32 s56, v255, 0
                v_readlane_b32 s57, v255, 1
                s_sub_u32 s56, s96, s56
                v_subrev_u32 v255, s57, v255
                v_writelane_b32 v255, s56, 0
                s_lshl_b32 s55, s2, 2
                s_add_u32 s55, s55, {sW}
                s_lshl_b32 s55, s55, 8
                s_waitcnt lgkmcnt(0)
                buffer_store_dword v255, v2, {PA}, s55 offen""")
        if "spa" in self.opt:
            k(f"""s_cmp_lg_u32 s2, {self.opt.get("spw", 0)}
            s_cbranch_scc1 L_nospin
            s_memrealtime s[90:91]
            s_waitcnt lgkmcnt(0)
            s_sub_u32 s94, s94, s92
            s_min_u32 s94, s94, 20000
            s_mul_i32 s94, s94, 4""")
            k.label("L_spin")
            k("""s_memrealtime s[88:89]
            s_waitcnt lgkmcnt(0)
            s_sub_u32 s88, s88, s90
            s_cmp_lt_u32 s88, s94
            s_cbranch_scc1 L_spin""")
            k.label("L_nospin")
        k("s_waitcnt vmcnt(0)")
        k.label("L_end")
        k("s_endpgm")

    def build(self):
        self.prologue()
        self.phase_a()
        self.phase_b()
        self.phase_c()
        self.phase_d()
        self.phase_e()
        self.late_code()
        self.k.lines = [l.replace("CODE_LAST", "0x8000") for l in self.k.lines]
        n = self.k.pad()
        self.misal = align8(self.k.lines)
        last = (sum(sizes(self.k.lines)) - 128) & ~3
        assert last >= 0x8000
        self.k.lines = [l.replace("v_min_u32 v127, 0x8000", f"v_min_u32 v127, {last}") for l in self.k.lines]
        ref = open(f"cdna_kernels/{NAME}.s.ref").read().split("\n")
        head = [l for l in ref if l.startswith(";") and "@launch" not in l]
        out = head + ["; @launch grid=(256,1,1) block=(256,1,1) lds=163840",
                      '.amdgcn_target "amdgcn-amd-amdhsa--gfx950"', ".text", f".globl {NAME}_kernel", ".p2align 8",
                      f".type {NAME}_kernel,@function", f"{NAME}_kernel:"]
        out += [l if l.endswith(":") else "    " + l for l in self.k.lines]
        out += ['.section .rodata,"a"', ".p2align 6", f".amdhsa_kernel {NAME}_kernel",
                "  .amdhsa_next_free_vgpr 512", "  .amdhsa_next_free_sgpr 102", "  .amdhsa_accum_offset 256",
                "  .amdhsa_group_segment_fixed_size 0", "  .amdhsa_kernarg_size 80", "  .amdhsa_user_sgpr_count 2",
                "  .amdhsa_user_sgpr_kernarg_segment_ptr 1", "  .amdhsa_system_sgpr_workgroup_id_x 1", ".end_amdhsa_kernel", ""]
        self.nbytes = sum(sizes(self.k.lines))
        self.nnop = n
        return "\n".join(out)


if __name__ == "__main__":
    args = dict(a.split("=") for a in sys.argv[2:])
    args = {a: int(b) if b.lstrip('-').isdigit() else b for a, b in args.items()}
    g = Gen(**args)
    text = g.build()
    open(sys.argv[1], "w").write(text)
    if g.ts:
        open(sys.argv[1] + ".ts", "w").write(" ".join(g.tsn))
    print(f"{sys.argv[1]}: {g.nbytes} bytes of code, {g.nnop} pads, {g.misal} misaligned, D tail {g.dleft}")
```

```python
import math
import struct
import sys

from asmlib import K, sizes, align8

NAME = "sequential_preLN__softmax_full_mha__glu_gated_glu__prompt"

WS_QKV, WS_O, WS_H, WS_ACT = 0, 0x600000, 0x800000, 0xA00000
WS_WGU, WS_WD, WS_WO, WS_CS = 0x1100000, 0x1500000, 0x1700000, 0x1780000
WS_FA, WS_FB, WS_FC, WS_FD, WS_E, WS_FP = 0x1800000, 0x1808000, 0x1810000, 0x1818000, 0x1820000, 0x1828000
WS_ST = 0x1880000
OOB = 0x40000000
WS_TS = 0x1900000
WS_SIZE = 0x1A00000

X, WQ, WS, OUT, PA, PB = "s[4:7]", "s[8:11]", "s[12:15]", "s[16:19]", "s[20:23]", "s[24:27]"
sW, sA, sB, sTAG, sCNT, sONE, sFB = "s36", "s37", "s38", "s39", "s40", "s41", "s42"
sU, sPD, sPCS, sP0, sP1, sPST = "s43", "s44", "s45", "s46", "s47", "s48"
sXL = "s49"
sO, sH, sST, sAC = "s3", "s34", "s100", "s101"
sA2, sB2, sPS, sPF = "s28", "s29", "s30", "s31"
vFLAG, vTAG = "v211", 212
LR = 114688
ONES = 0x3F803F80
U_D, U_O, U_END = 392, 588, 644


def f32(x):
    return hex(struct.unpack("<I", struct.pack("<f", x))[0])


def vr(b, n):
    return f"v[{b}:{b + n - 1}]"


def ar(b, n):
    return f"a[{b}:{b + n - 1}]"


class Gen:
    def __init__(self, ts=False, force_fb=False, **opt):
        self.k = K()
        self.ts = ts
        self.nts = 0
        self.tsn = []
        self.force_fb = force_fb
        self.opt = opt

    def stamp(self, name):
        if self.opt.get("spa") == name:
            self.k("s_memrealtime s[92:93]")
        if self.opt.get("spb") == name:
            self.k("s_memrealtime s[94:95]")
        if self.ts == 2 and name not in ("A0", "A3", "A7", "A9", "B0", "B1", "B3", "C0", "C3", "D0", "D4", "E0", "E2"):
            return
        if self.ts:
            op = "s_memrealtime" if self.ts == 3 else "s_memtime"
            self.k(f"{op} s[98:99]\ns_waitcnt lgkmcnt(0)\nv_writelane_b32 v255, s98, {self.nts + 2}")
            self.k.lg.clear()
            self.nts += 1
            self.tsn.append(name)

    def mfma(self, d, a, b, c=None):
        c = d if c is None else c
        self.k(f"v_mfma_f32_32x32x16_bf16 {d}, {a}, {b}, {c}")

    def poll(self, vaddr, vtmp, base):
        k = self.k
        L, Dn = k.newlabel("poll"), k.newlabel("seen")
        k(f"s_mov_b32 s60, {base}")
        k.label(L)
        k(f"buffer_load_dword {vtmp}, {vaddr}, {WS}, s60 offen sc1")
        k.wait(vm="all")
        k(f"""v_cmp_ne_u32 vcc, {sTAG}, {vtmp}
        s_cbranch_vccz {Dn}
        s_sub_u32 {sCNT}, {sCNT}, 1
        s_cselect_b32 {sCNT}, 0, {sCNT}
        s_cbranch_scc0 {L}""")
        k.label(Dn)

    def publish(self, base, sidx, vt, vo):
        k = self.k
        for i in range(4):
            k(f"v_mov_b32 v{vt + i}, {sTAG}")
        k(f"""s_lshl_b32 s60, {sidx}, 7
        s_add_u32 s60, s60, {base}
        s_cmp_eq_u32 {sW}, 0
        s_cselect_b32 s60, s60, {OOB}
        v_lshrrev_b32 v{vo}, 3, v0
        v_lshl_add_u32 v{vo}, v{vo}, 26, v1""")
        k.wait(vm="all")
        k(f"s_barrier\nbuffer_store_dwordx4 {vr(vt, 4)}, v{vo}, {WS}, s60 offen sc1")

    def stats(self, vs, vq, t0, vb, vrs):
        return f"""v_mov_b32 v{vq}, v{vs}
        v_permlane32_swap_b32 v{vs}, v{vq}
        v_mul_f32 v{vs}, {f32(-1.0 / 448)}, v{vs}
        v_mul_f32 v{vq}, {f32(1.0 / 448)}, v{vq}
        v_cvt_pk_bf16_f32 v{t0}, v{vs}, v{vs}
        v_fma_f32 v{vq}, -v{vs}, v{vs}, v{vq}
        v_and_b32 v{t0}, 0xffff0000, v{t0}
        v_max_f32 v{vq}, 0, v{vq}
        v_sub_f32 v{t0}, v{vs}, v{t0}
        v_add_f32 v{vrs}, {f32(1e-5)}, v{vq}
        v_cvt_pk_bf16_f32 v{vb}, v{vs}, v{t0}
        v_cvt_pk_bf16_f32 v{vb + 1}, v{vs}, v{t0}""".split("\n")

    def split2(self, vc, vd):
        return f"""v_cvt_pk_bf16_f32 v{vd}, v{vc}, v{vc}
        v_and_b32 v{vd + 1}, 0xffff0000, v{vd}
        v_sub_f32 v{vd + 1}, v{vc}, v{vd + 1}
        v_cvt_pk_bf16_f32 v{vd + 1}, v{vd + 1}, v{vd + 1}""".split("\n")

    def prologue(self):
        k = self.k
        k(f"""s_cmp_ge_u32 s2, 0x100
        s_cbranch_scc1 L_end
        s_load_dwordx16 s[64:79], s[0:1], 0
        s_load_dwordx2 s[12:13], s[0:1], 72""")
        if self.ts:
            k("s_memrealtime s[96:97]\ns_memtime s[98:99]")
        if "spa" in self.opt:
            k("s_memrealtime s[92:93]\ns_memrealtime s[94:95]")
        if self.opt.get("touch", 1):
            k.note("pull the whole code object into this die's L2 ahead of instruction fetch")
            k("""s_getpc_b64 s[86:87]
            v_lshlrev_b32 v127, 7, v0
            global_load_dword v200, v127, s[86:87]
            v_add_u32 v127, 0x8000, v127
            v_min_u32 v127, CODE_LAST, v127
            global_load_dword v201, v127, s[86:87]""")
        k(f"""v_lshrrev_b32 v2, 6, v0
        v_and_b32 v0, 63, v0
        s_and_b32 {sA}, s2, 7
        v_readfirstlane_b32 {sW}, v2
        s_lshl_b32 {sA}, {sA}, 1
        s_bfe_u32 s50, s2, 0x10003
        s_add_u32 {sA}, {sA}, s50
        s_lshr_b32 {sB}, s2, 4
        s_bfe_u32 {sA2}, s2, 0x20001
        s_lshl_b32 {sA2}, {sA2}, 2
        s_bfe_u32 s50, s2, 0x20003
        s_add_u32 {sA2}, {sA2}, s50
        s_and_b32 {sB2}, s2, 1
        s_lshl_b32 {sB2}, {sB2}, 3
        s_lshr_b32 s50, s2, 5
        s_add_u32 {sB2}, {sB2}, s50
        v_lshlrev_b32 v1, 4, v0
        s_mov_b32 {sCNT}, 0x40000
        s_mov_b32 {sONE}, {ONES}
        s_mov_b32 {sFB}, 0
        v_mov_b32 v254, 0""")
        k(f"""s_mul_i32 s50, {sB2}, 168
        s_and_b32 s51, s50, 15
        s_sub_u32 s50, s50, s51
        s_mul_i32 s52, {sW}, {16 * 2688}
        s_add_u32 s50, s50, s52""")
        for t in range(3):
            k(f"""v_add_u32 v14, {64 * t}, v0
            v_mul_u32_u24 v15, 171, v14
            v_lshrrev_b32 v15, 11, v15
            v_mul_u32_u24 v16, 12, v15
            v_sub_u32 v16, v14, v16
            v_min_u32 v16, 10, v16
            v_mul_u32_u24 v15, 2688, v15
            v_lshlrev_b32 v16, 4, v16
            v_add3_u32 v{3 + t}, v15, v16, s50""")
        k(f"""v_lshrrev_b32 v14, 3, v0
        v_and_b32 v15, 7, v0
        v_lshrrev_b32 v16, 4, v0
        v_xor_b32 v16, v15, v16
        v_mul_u32_u24 v17, 896, v14
        s_lshl_b32 s52, {sA2}, 2
        s_add_u32 s52, s52, {sW}
        s_mul_i32 s52, s52, {32 * 896}
        v_lshlrev_b32 v18, 4, v16
        v_add3_u32 v6, v17, v18, s52
        v_xor_b32 v7, 64, v6""")
        k(f"""s_lshl_b32 {sXL}, {sW}, 14
        s_add_u32 {sXL}, {sXL}, 86016""")
        k(f"""s_lshr_b32 s53, s2, 3
        s_mul_i32 s54, s53, 37
        s_lshr_b32 s54, s54, 8
        s_mul_i32 s54, s54, 7
        s_sub_u32 s53, s53, s54
        s_mul_i32 s54, {sW}, 3072
        s_mov_b32 s6, {2048 * 896}
        s_mov_b32 s7, 0x20000
        s_mov_b32 s10, {448 * 2688}
        s_mov_b32 s11, 0x20000
        s_mov_b32 s14, {WS_SIZE}
        s_mov_b32 s15, 0x20000
        s_mov_b32 s18, {2048 * 896}
        s_mov_b32 s19, 0x20000
        s_mov_b32 s23, 0x20000
        s_mov_b32 s27, 0x20000
        s_mov_b32 s60, {WS_E}
        v_mov_b32 v16, 0
        s_waitcnt lgkmcnt(0)
        s_mov_b32 s4, s64
        s_mov_b32 s5, s65
        s_mov_b32 s8, s66
        s_mov_b32 s9, s67""")
        if self.ts:
            k("v_writelane_b32 v255, s96, 0\nv_writelane_b32 v255, s98, 1")

    def a_dma(self, c):
        g = []
        pre = f"s_mul_i32 s55, s53, {64 * 2688}\ns_lshl_b32 s56, s53, 7\n"
        for t in range(3):
            g.append(pre + f"s_add_u32 m0, s54, {c * 12288 + t * 1024}\ns_nop 0\nbuffer_load_dwordx4 v{3 + t}, {WQ}, s55 offen lds")
            pre = ""
        for t in range(4):
            post = "\ns_add_u32 s53, s53, 1\ns_cmp_eq_u32 s53, 7\ns_cselect_b32 s53, 0, s53" if t == 3 else ""
            g.append(f"s_add_u32 m0, {sXL}, {(c % 4) * 4096 + t * 1024}\ns_add_u32 s57, s56, {t * 8 * 896}\n"
                     f"buffer_load_dwordx4 v{6 + (t & 1)}, {X}, s57 offen lds" + post)
        return g

    def p_dma(self, h):
        slot = 3 if h == 0 else 0
        srd, sb = (PA, sP0) if h == 0 else (PB, sP1)
        g = []
        for t in range(4):
            g.append(f"s_add_u32 m0, {sXL}, {slot * 4096 + t * 1024}\ns_nop 0\nbuffer_load_dwordx4 v2, {srd}, {sb} offen lds\n"
                     f"s_add_u32 {sb}, {sb}, {sPST}")
        return g

    def unit_setup(self):
        k = self.k
        k(f"""s_mov_b32 s16, s78
        s_mov_b32 s17, s79
        s_lshl_b32 {sU}, {sW}, 8
        s_add_u32 {sU}, {sU}, s2
        s_cmp_ge_u32 {sU}, {U_D}
        s_cbranch_scc1 L_u1
        s_mov_b32 s20, s72
        s_mov_b32 s21, s73
        s_mov_b32 s24, s74
        s_mov_b32 s25, s75
        s_mov_b32 s22, {448 * 3584}
        s_mul_i32 s58, {sU}, 4682
        s_lshr_b32 s58, s58, 16
        s_mul_i32 s59, s58, 14
        s_sub_u32 s59, {sU}, s59
        s_mul_i32 {sP0}, s59, {32 * 3584}
        s_lshl_b32 s61, s58, 7
        s_add_u32 {sP0}, {sP0}, s61
        s_mov_b32 {sP1}, {sP0}
        s_mov_b32 {sPST}, 3584
        s_mul_i32 {sPD}, s58, {4 * 28 * 1024}
        s_lshl_b32 s61, s59, 11
        s_add_u32 {sPD}, {sPD}, s61
        s_add_u32 {sPD}, {sPD}, {WS_WGU}
        s_mov_b32 {sPS}, 28672
        s_lshl_b32 {sPCS}, {sU}, 10
        s_add_u32 {sPCS}, {sPCS}, {WS_CS}
        s_branch L_u3""")
        k.label("L_u1")
        k(f"""s_mov_b32 {sPST}, 896
        s_mov_b32 {sPS}, 2048
        s_mov_b32 {sPCS}, {OOB}
        s_cmp_ge_u32 {sU}, {U_O}
        s_cbranch_scc1 L_u2
        s_mov_b32 s20, s76
        s_mov_b32 s21, s77
        s_mov_b32 s24, s76
        s_mov_b32 s25, s77
        s_mov_b32 s22, {1792 * 896}
        s_sub_u32 s61, {sU}, {U_D}
        s_mul_i32 s58, s61, 2341
        s_lshr_b32 s58, s58, 16
        s_mul_i32 s59, s58, 28
        s_sub_u32 s59, s61, s59
        s_mul_i32 {sP0}, s59, {64 * 896}
        s_lshl_b32 s58, s58, 7
        s_add_u32 {sP0}, {sP0}, s58
        s_add_u32 {sP1}, {sP0}, {32 * 896}
        s_lshl_b32 {sPD}, s61, 13
        s_add_u32 {sPD}, {sPD}, {WS_WD}
        s_branch L_u3""")
        k.label("L_u2")
        k(f"""s_mov_b32 s20, s68
        s_mov_b32 s21, s69
        s_mov_b32 s24, s68
        s_mov_b32 s25, s69
        s_cmp_lt_u32 {sU}, {U_END}
        s_cselect_b32 s22, {448 * 896}, 0
        s_sub_u32 s61, {sU}, {U_O}
        s_lshr_b32 s58, s61, 3
        s_and_b32 s59, s61, 7
        s_mul_i32 {sP0}, s59, {56 * 896}
        s_lshl_b32 s58, s58, 7
        s_add_u32 {sP0}, {sP0}, s58
        s_add_u32 {sP1}, {sP0}, {28 * 896}
        s_lshl_b32 {sPD}, s61, 13
        s_add_u32 {sPD}, {sPD}, {WS_WO}
        s_cmp_lt_u32 {sU}, {U_END}
        s_cselect_b32 {sPD}, {sPD}, {OOB}""")
        k.label("L_u3")
        k(f"""s_mov_b32 s26, s22
        s_lshl_b32 {sPF}, {sU}, 7
        s_add_u32 {sPF}, {sPF}, {WS_FP}
        s_cmp_lt_u32 {sU}, {U_END}
        s_cselect_b32 {sPF}, {sPF}, {OOB}
        v_lshrrev_b32 v16, 3, v0
        v_and_b32 v17, 7, v0
        v_mul_lo_u32 v16, v16, {sPST}
        v_lshl_add_u32 v2, v17, 4, v16
        s_lshl_b32 {sPST}, {sPST}, 3""")

    def out_addrs(self):
        k = self.k
        k(f"""s_lshl_b32 s58, {sB}, 2
        s_add_u32 s58, s58, {sW}
        s_lshl_b32 s58, s58, 4
        s_add_u32 s58, s58, {sA}
        s_lshl_b32 s58, s58, 11
        s_add_u32 {sO}, s58, {WS_O}
        s_and_b32 s58, {sB}, 1
        s_lshl_b32 s58, s58, 1
        s_lshl_b32 s59, {sA}, 2
        s_add_u32 s58, s58, s59
        s_and_b32 s59, {sW}, 1
        s_add_u32 s62, s58, s59
        s_lshr_b32 s59, {sW}, 1
        s_and_b32 s63, {sB}, 14
        s_add_u32 s63, s63, s59
        s_mul_i32 s58, s62, 14
        s_add_u32 s58, s58, s63
        s_lshl_b32 {sST}, s58, 8
        s_lshl_b32 {sH}, s58, 11
        s_add_u32 {sH}, {sH}, {WS_H}
        s_add_u32 {sST}, {sST}, {WS_ST}
        s_cmp_ge_u32 {sB}, 14
        s_cselect_b32 {sH}, {OOB}, {sH}
        s_cselect_b32 {sST}, {OOB}, {sST}
        s_lshl_b32 s58, {sA2}, 2
        s_add_u32 s58, s58, {sW}
        s_mul_i32 {sAC}, s58, {112 * 1024}
        s_mul_i32 s59, {sB2}, 7168
        s_add_u32 {sAC}, {sAC}, s59
        s_add_u32 {sAC}, {sAC}, {WS_ACT}""")

    def clears(self, vd, va):
        g = [f"buffer_store_dwordx4 {vr(vd, 4)}, v1, {WS}, {b} offen offset:{1024 * s} sc1" for b in (sO, sH) for s in range(2)]
        g += [f"buffer_store_dword v{vd}, v{va}, {WS}, {sST} offen sc1"]
        g += [f"buffer_store_dwordx4 {vr(vd, 4)}, v1, {WS}, {sAC} offen offset:{1024 * s} sc1" for s in range(4)]
        g += [f"buffer_store_dwordx4 {vr(vd, 4)}, v{va + 1}, {WS}, {sAC} offen offset:{1024 * s} sc1" for s in range(3)]
        return g

    def phase_a(self):
        k = self.k
        DEP = self.opt.get("adep", 3)
        ACC, FR, SQ, SM, CS, ON, T = 16, 64, 96, 104, 112, 124, 128
        LX = 151552
        k(f"buffer_load_dword v126, v16, {WS}, s60 offen sc1", tag="E")
        for c in range(DEP):
            for g in self.a_dma(c):
                k(g, tag=("A", c))
            if c == 0:
                k.note("LDS read addresses: v8..v11 W (transposed), v12..v15 x; k-step order rotated by the wave index")
                k(f"""v_bfe_u32 v16, v0, 2, 2
                v_lshrrev_b32 v17, 5, v0
                v_lshl_add_u32 v16, v17, 3, v16
                v_mul_u32_u24 v16, 192, v16
                v_bfe_u32 v18, v0, 4, 1
                v_lshlrev_b32 v18, 5, v18
                v_and_b32 v19, 3, v0
                v_lshl_add_u32 v18, v19, 3, v18
                v_add3_u32 v19, v16, v18, s51
                v_and_b32 v16, 31, v0
                v_bfe_u32 v18, v0, 1, 3
                v_xor_b32 v18, v18, v17
                v_lshlrev_b32 v18, 4, v18
                v_lshl_add_u32 v16, v16, 7, v18
                v_add_u32 v16, {sXL}, v16
                v_mov_b32 v{ON}, {sONE}
                v_mov_b32 v{ON + 1}, {sONE}""")
                for p in range(4):
                    k(f"""s_add_u32 s58, {sW}, {p}
                    s_and_b32 s58, s58, 3
                    s_mul_i32 s59, s58, 3072
                    s_lshl_b32 s58, s58, 5
                    v_add_u32 v{8 + p}, s59, v19
                    v_xor_b32 v{12 + p}, s58, v16""")
            if c == 0:
                self.out_addrs()
                k("v_mov_b32 v204, -1\nv_mov_b32 v205, -1\nv_mov_b32 v206, -1\nv_mov_b32 v207, -1\nv_lshlrev_b32 v202, 2, v0\nv_add_u32 v203, 4096, v1")
            if c == self.opt.get("clr", 0):
                for g in self.clears(204, 202):
                    k(g)
            if c == 1:
                self.unit_setup()
        k(f"""v_and_b32 v{T}, 31, v0
        v_mul_u32_u24 v{T}, 80, v{T}
        v_lshrrev_b32 v{T + 1}, 5, v0
        v_lshl_add_u32 v{T}, v{T + 1}, 3, v{T}
        v_bfe_u32 v16, v0, 2, 2
        v_lshl_add_u32 v{T + 1}, v{T + 1}, 2, v16
        v_mul_u32_u24 v{T + 1}, 80, v{T + 1}
        v_bfe_u32 v16, v0, 4, 1
        v_lshl_add_u32 v{T + 1}, v16, 5, v{T + 1}
        v_and_b32 v16, 3, v0
        v_lshl_add_u32 v{T + 1}, v16, 3, v{T + 1}
        v_add_u32 v{T}, {sXL}, v{T}
        v_add_u32 v{T + 1}, {sXL}, v{T + 1}
        v_add_u32 v{T + 3}, {LX}, v1
        s_lshl_b32 s58, {sW}, 2
        v_add_u32 v{T + 2}, s58, v{T + 3}
        v_cmp_eq_u32 s[80:81], 1, v16
        v_cmp_eq_u32 s[82:83], 2, v16
        v_cmp_eq_u32 s[84:85], 3, v16""")

        def reads(c, ks):
            n = 4 * c + ks
            f = FR + 16 * (n & 1)
            if c == 4:
                k(f"v_add_u32 v{8 + ks}, 49152, v{8 + ks}")
            k(f"ds_read_b128 {vr(f, 4)}, v{12 + ks} offset:{(c % 4) * 4096}", tag=("r", n))
            for m in range(3):
                for q in range(2):
                    off = (c % 4) * 12288 + 4 * q * 192 + 56 * m
                    k(f"ds_read_b64_tr_b16 {vr(f + 4 + 4 * m + 2 * q, 2)}, v{8 + ks} offset:{off}", tag=("r", n))

        def small(d, a, b, first):
            k(f"v_mfma_f32_4x4x4bf16_1k {vr(d, 4)}, {vr(a, 2)}, {vr(b, 2)}, {'0' if first else vr(d, 4)}")

        CX = 136
        VB, VR_, CA = 150, 149, 152
        clr = []
        for c in range(7):
            k.wait(vm=("A", c))
            k("s_barrier")
            self.stamp(f"A{c}")
            reads(c, 0)
            extra = []
            nx = c + DEP
            if nx < 7:
                extra = [(g, ("A", nx)) for g in self.a_dma(nx)]
            if c + 10 == self.opt.get("clr", 0):
                clr = self.clears(204, 202)
            while clr and len(extra) < 12 - (4 if c in (4, 5) else 0):
                extra.append((clr.pop(0), None))
            if c == 4:
                extra += [(g, "P") for g in self.p_dma(0)]
            if c == 5:
                extra += [(g, "P") for g in self.p_dma(1)]
            for ks in range(4):
                n = 4 * c + ks
                f = FR + 16 * (n & 1)
                if ks < 3:
                    reads(c, ks + 1)
                k.wait(lg=("r", n))
                for h in range(2):
                    small(SQ + 4 * h, f + 2 * h, f + 2 * h, n == 0)
                    small(SM + 4 * h, ON, f + 2 * h, n == 0)
                if ks == 0:
                    for h in range(2):
                        for m in range(3):
                            small(CS + 4 * m, ON, f + 4 + 4 * m + 2 * h, n == 0 and h == 0)
                tail = []
                if n == 27:
                    tail = [f"v_add_f32 v{SQ + i}, v{SQ + i}, v{SQ + 4 + i}" for i in range(4)]
                    tail += [f"v_add_f32 v{SM}, v{SM}, v{SM + 4}"]
                    tail += [f"v_cndmask_b32 v{SQ}, v{SQ}, v{SQ + i}, s[{78 + 2 * i}:{79 + 2 * i}]" for i in range(1, 4)]
                    tail += [f"v_permlane32_swap_b32 v{SM}, v{SQ}", f"v_add_f32 v{SM}, v{SM}, v{SQ}"]
                    tail += self.stats(SM, SQ, 148, VB, VR_) + [f"v_rsq_f32 v{VR_}, v{VR_}"]
                if n == 26:
                    k.wait(lg="cx")
                    for m in range(3):
                        tail += [f"v_add_f32 v{CX + 4 * m}, v{CX + 4 * m}, v{CX + 4 * m + i}" for i in range(1, 4)]
                        tail += self.split2(CX + 4 * m, CA + 2 * m)
                for m in range(3):
                    self.mfma(vr(ACC + 16 * m, 16), vr(f + 4 + 4 * m, 4), vr(f, 4), "0" if n == 0 else None)
                    if extra:
                        g, tg = extra.pop(0)
                        k(g, tag=tg)
                    if n == 24 and m == 2:
                        for j in range(3):
                            k(f"ds_write_b32 v{T + 2}, v{CS + 4 * j} offset:{1024 * j}", tag="cw")
                    if n == 25 and m == 0:
                        k.wait(lg="cw")
                        k("s_barrier")
                        for j in range(3):
                            k(f"ds_read_b128 {vr(CX + 4 * j, 4)}, v{T + 3} offset:{1024 * j}", tag="cx")
                    cnt = len(tail) if m == 2 else 7
                    for t in tail[:cnt]:
                        k(t)
                    tail = tail[cnt:]
            assert not extra
        self.stamp("A7")
        for m in range(3):
            k(f"v_mfma_f32_32x32x8bf16_1k {vr(ACC + 16 * m, 16)}, {vr(CA + 2 * m, 2)}, {vr(VB, 2)}, {vr(ACC + 16 * m, 16)}")
        qs = math.log2(math.e) / math.sqrt(28.0)
        k(f"""v_readfirstlane_b32 {sTAG}, v126
        s_mul_i32 s50, {sB2}, 3
        s_lshl_b32 s51, {sA2}, 2
        s_add_u32 s51, s51, {sW}
        s_lshl_b32 s51, s51, 11
        s_add_u32 {sTAG}, {sTAG}, 0x9e3779b9""")
        for m in range(3):
            a, p = ACC + 16 * m, FR + 8 * m
            Lq = k.newlabel("nv")
            k(f"""s_add_u32 s52, s50, {m}
            s_lshl_b32 s55, s52, 17
            s_add_u32 s55, s55, s51
            s_cmp_lt_u32 s52, 16
            s_cselect_b32 s56, {f32(qs)}, 1.0
            s_cselect_b32 s57, 0, {sONE}
            s_cselect_b32 s58, 0, 0x3f80
            s_cmp_ge_u32 s52, 32
            s_cselect_b32 s57, 0x3f80, s57
            s_cselect_b32 s58, 0, s58
            v_mul_f32 v{SQ}, s56, v{VR_}""")
            for i in range(8):
                k(f"v_pk_mul_f32 {vr(a + 2 * i, 2)}, {vr(a + 2 * i, 2)}, {vr(SQ, 2)} op_sel_hi:[1,0]")
            for i in range(8):
                k(f"v_cvt_pk_bf16_f32 v{p + i}, v{a + 2 * i}, v{a + 2 * i + 1}")
            k(f"""s_mov_b32 exec_lo, 0
            v_mov_b32 v{p + 6}, s57
            v_mov_b32 v{p + 7}, s58
            s_mov_b32 exec_lo, -1
            s_cbranch_scc0 {Lq}""")
            for q in range(4):
                k(f"ds_write_b64 v{T}, {vr(p + 2 * q, 2)} offset:{4096 + 2560 * m + 16 * q}")
            for s in range(2):
                for q in range(2):
                    k(f"ds_read_b64_tr_b16 {vr(p + 4 * s + 2 * q, 2)}, v{T + 1} offset:{4096 + 2560 * m + (16 * s + 8 * q) * 80}")
            k.wait(lg="all")
            k.label(Lq)
            for s in range(2):
                k(f"buffer_store_dwordx4 {vr(p + 4 * s, 4)}, v1, {WS}, s55 offen offset:{1024 * s} sc1")
        self.stamp("A8")
        self.prelayout()
        k(f"s_lshl_b32 s50, {sA2}, 4\ns_add_u32 s50, s50, {sB2}")
        self.publish(WS_FA, "s50", vTAG, 211)
        self.stamp("A9")

    def prelayout(self):
        k = self.k
        F = 216
        k(f"""v_bfe_u32 v20, v0, 2, 2
        v_lshrrev_b32 v21, 5, v0
        v_bfe_u32 v22, v0, 4, 1
        v_and_b32 v23, 3, v0""")
        for q in range(4):
            k(f"v_mov_b32 v{F + 32 + q}, 0")
        k.wait(vm="P")
        k(f"s_cmp_ge_u32 {sU}, {U_D}\ns_cbranch_scc1 L_p1")
        k(f"""v_lshl_add_u32 v20, v21, 4, v20
        v_lshlrev_b32 v20, 7, v20
        v_lshl_add_u32 v20, v23, 3, v20
        v_xor_b32 v22, 1, v22
        v_mul_u32_u24 v22, 12288, v22
        v_add3_u32 v20, v20, v22, {sXL}""")
        for q in range(4):
            for e in range(2):
                for h in range(2):
                    k(f"ds_read_b64_tr_b16 {vr(F + 8 * q + 4 * e + 2 * h, 2)}, v20 offset:{32 * q + (8 * e + 4 * h) * 128}", tag=("p", q))
        for q in range(4):
            k.wait(lg=("p", q))
            for j in range(8):
                k(f"v_dot2c_f32_bf16 v{F + 32 + q}, {sONE}, v{F + 8 * q + j}")
        k("s_branch L_p2")
        k.label("L_p1")
        k(f"""v_lshl_add_u32 v20, v21, 2, v20
        v_lshlrev_b32 v20, 7, v20
        v_lshl_add_u32 v20, v22, 4, v20
        v_and_b32 v21, 1, v23
        v_lshl_add_u32 v20, v21, 5, v20
        v_lshrrev_b32 v21, 1, v23
        v_lshl_add_u32 v20, v21, 3, v20
        v_add_u32 v20, {sXL}, v20""")
        for e in range(4):
            for ct in range(2):
                for h in range(2):
                    off = (12288 if e < 2 else 0) + 64 * ct + (16 * (e & 1) + 8 * h) * 128
                    k(f"ds_read_b64_tr_b16 {vr(F + 8 * e + 4 * ct + 2 * h, 2)}, v20 offset:{off}")
        k.wait(lg="all")
        k.label("L_p2")

    def phase_b(self):
        k = self.k
        Q, O, S, P, KV = 8, 40, 104, 136, 144
        DEP = 4
        sK, sV, sWD, sGU, sGL = "s50", "s51", "s32", "s53", "s54"
        k(f"""s_add_u32 s55, {sA}, 16
        s_mul_i32 s55, s55, 43
        s_lshr_b32 s55, s55, 7
        s_add_u32 s56, {sA}, 32
        s_mul_i32 s56, s56, 43
        s_lshr_b32 s56, s56, 7
        s_mul_i32 s57, {sA}, 43
        s_lshr_b32 s57, s57, 7
        s_lshl_b32 s58, {sB}, 4
        s_add_u32 s57, s57, s58
        s_lshl_b32 s58, {sW}, 6
        s_add_u32 s55, s55, s58
        s_add_u32 s56, s56, s58
        v_and_b32 v2, 3, v0
        v_lshlrev_b32 v2, 4, v2
        v_add_u32 v4, s55, v2
        v_add_u32 v5, s56, v2
        v_mov_b32 v2, s57
        v_cmp_gt_u32 vcc, 8, v0
        v_cndmask_b32 v2, v2, v5, vcc
        v_cmp_gt_u32 vcc, 4, v0
        v_cndmask_b32 v2, v2, v4, vcc
        v_lshlrev_b32 v2, 7, v2""")
        k(f"""s_mul_i32 s55, {sB2}, 7
        s_lshr_b32 s55, s55, 2
        s_mul_i32 s55, s55, 14
        s_lshr_b32 s56, {sB}, 1
        s_min_u32 s56, s56, 6
        s_mul_i32 s57, s56, 28
        s_mul_i32 s58, {sW}, 7
        s_add_u32 s57, s57, s58
        s_lshl_b32 {sWD}, s57, 13
        s_add_u32 {sWD}, {sWD}, {WS_WD}
        s_add_u32 s57, s57, {U_D - 42}
        s_lshl_b32 s56, s56, 3
        s_lshl_b32 s58, {sW}, 1
        s_add_u32 s56, s56, s58
        s_lshl_b32 s35, s56, 13
        s_add_u32 s35, s35, {WS_WO}
        s_add_u32 s56, s56, {U_O}
        v_add_u32 v4, s55, v0
        v_min_u32 v4, {U_D - 1}, v4
        v_add_u32 v5, s57, v0
        v_and_b32 v3, 1, v0
        v_add_u32 v3, s56, v3
        v_cmp_gt_u32 vcc, 49, v0
        v_cndmask_b32 v3, v3, v5, vcc
        v_cmp_gt_u32 vcc, 42, v0
        v_cndmask_b32 v3, v3, v4, vcc
        v_lshlrev_b32 v3, 7, v3""")
        for u in range(3):
            k(f"""s_add_u32 s55, {sW}, {u + 1}
            s_and_b32 s55, s55, 3
            s_mul_i32 s55, s55, 12288
            s_add_u32 s55, s55, {LR + 4096 * u}
            v_add_u32 v{4 + u}, s55, v1""")
        k(f"""s_mul_i32 s55, {sW}, 12288
        s_add_u32 s55, s55, {LR}
        v_add_u32 v7, s55, v1
        v_and_b32 v208, 3, v0
        v_mul_u32_u24 v208, 12288, v208
        v_add_u32 v208, {LR + 3072 + 516}, v208
        s_lshr_b32 s55, {sW}, 1
        s_lshl_b32 s55, s55, 10
        v_add_u32 v253, s55, v1
        v_xor_b32 v252, 1024, v253""")
        self.poll("v2", "v209", WS_FA)
        self.stamp("B0")
        k(f"s_lshl_b32 s55, {sA}, 6\ns_lshl_b32 s56, {sB}, 2\ns_add_u32 s55, s55, s56")
        for u in range(4):
            k(f"s_add_u32 s56, {sW}, {u + 1}\ns_and_b32 s56, s56, 3\ns_add_u32 s56, s56, s55\ns_lshl_b32 s56, s56, 11")
            for s in range(2):
                k(f"buffer_load_dwordx4 {vr(Q + 8 * u + 4 * s, 4)}, v1, {WS}, s56 offen offset:{1024 * s} sc1", tag="Q")
        k.label("L_attn")
        k(f"""s_lshl_b32 {sK}, {sA}, 6
        s_lshl_b32 s55, {sW}, 4
        s_add_u32 {sK}, {sK}, s55
        s_add_u32 {sK}, {sK}, 1024
        s_lshl_b32 {sK}, {sK}, 11
        s_add_u32 {sV}, {sK}, {1024 * 2048}
        s_mul_i32 {sGL}, {sW}, 28672
        s_mul_i32 {sGU}, {sB2}, {7 * 28672}
        s_add_u32 {sGU}, {sGU}, {sGL}
        s_add_u32 {sGU}, {sGU}, {WS_WGU}
        s_mov_b32 s33, {sWD}
        s_mov_b32 s59, s35""")

        def kload(kt):
            b = KV + 16 * (kt % DEP)
            g = []
            for s in range(2):
                t = f"buffer_load_dwordx4 {vr(b + 4 * s, 4)}, v1, {WS}, {sK} offen offset:{2048 * (kt & 1) + 1024 * s} sc1"
                g.append((t, ("K", kt)))
            if kt & 1:
                g.append((f"s_add_u32 {sK}, {sK}, 4096", None))
            return g

        def vload(kt):
            b = KV + 16 * (kt % DEP) + 8
            g = []
            for s in range(2):
                t = f"buffer_load_dwordx4 {vr(b + 4 * s, 4)}, v1, {WS}, {sV} offen offset:{2048 * (kt & 1) + 1024 * s} sc1"
                g.append((t, ("V", kt)))
            if kt & 1:
                g.append((f"s_add_u32 {sV}, {sV}, 4096", None))
            return g

        for kt in range(DEP - 1):
            for t, tg in kload(kt) + vload(kt):
                k(t, tag=tg)

        pre = []
        for i in range(28):
            if i % 4 == 0:
                pre.append((f"s_add_u32 m0, {sGL}, {i * 1024}", None))
            pre.append((f"buffer_load_dwordx4 v1, {WS}, {sGU} offen offset:{(i % 4) * 1024} sc1 lds", "GU"))
            if i % 4 == 3:
                pre.append((f"s_add_u32 {sGU}, {sGU}, 4096", None))
        for i in range(16):
            pre.append((f"buffer_load_dwordx4 {ar(160 + 4 * i, 4)}, v{252 + (i & 1)}, {WS}, s59 offen offset:{(i & 2) * 1024} sc1", "WO"))
            if i % 4 == 3:
                pre.append(("s_add_u32 s59, s59, 4096", None))
        NWD = self.opt.get("nwd", 24)
        pre += self.wd_loads(0, NWD)
        pst = []
        for p in range(4):
            for e in range(2):
                pst.append((f"buffer_store_dwordx4 {vr(216 + 8 * p + 4 * e, 4)}, v1, {WS}, {sPD} offen offset:{1024 * e} sc1", "PS"))
            pst.append((f"s_add_u32 {sPD}, {sPD}, {sPS}", None))
        pst.append((f"buffer_store_dwordx4 v[248:251], v1, {WS}, {sPCS} offen sc1", "PS"))

        def smf(n, s):
            kt, u = divmod(n, 4)
            b = KV + 16 * (kt % DEP)
            d = vr(S + 16 * (n & 1), 16)
            self.mfma(d, vr(b + 4 * s, 4), vr(Q + 8 * u + 4 * s, 4), "0" if s == 0 else None)

        def pv(n, s):
            kt, u = divmod(n, 4)
            b = KV + 16 * (kt % DEP) + 8
            self.mfma(vr(O + 16 * u, 16), vr(b + 4 * s, 4), vr(P + 4 * s, 4), "0" if (kt == 0 and s == 0) else None)

        k.wait(vm=["Q", ("K", 0)])
        smf(0, 0)
        smf(0, 1)
        PFL = self.opt.get("pfl", 9)
        PCHK = self.opt.get("pchk", 16)
        queue = list(pst)

        def slot(cnt=1):
            for _ in range(cnt):
                if queue:
                    t, tg = queue.pop(0)
                    if callable(t):
                        t()
                    else:
                        k(t, tag=tg)

        def pcheck():
            L1, L2 = k.newlabel("pw"), k.newlabel("pok")
            k.wait(vm="PF")
            k(f"v_cmp_ne_u32 vcc, {sTAG}, v209\ns_cbranch_vccnz {L1}")
            k.label(L2)
            self.late.append((L1, L2))

        self.late = []
        for n in range(64):
            kt, u = divmod(n, 4)
            sb = S + 16 * (n & 1)
            if self.opt.get("tsb") and n % self.opt["tsb"] == 0:
                self.stamp(f"b{n}")
            if u == (1 if kt else 3) and kt + DEP - 1 < 16:
                queue = kload(kt + DEP - 1) + vload(kt + DEP - 1) + queue
            if n == PFL:
                queue.append((lambda: k.wait(vm="PS"), None))
                queue.append((f"buffer_store_dwordx4 {vr(vTAG, 4)}, {vFLAG}, {WS}, {sPF} offen sc1", None))
            if n == PCHK:
                queue.append((f"s_mov_b32 s60, {WS_FP}", None))
                queue.append((f"buffer_load_dword v209, v3, {WS}, s60 offen sc1", "PF"))
            if n == PCHK + 5:
                queue.append((pcheck, None))
                queue += pre
            if n >= 62:
                t = n - 62
                queue += [(f"ds_write_b128 v{4 + t}, {vr(O + 16 * t + 4 * q, 4)} offset:{1024 * q}", None) for q in range(4)]

            def ex(i):
                k(f"v_exp_f32 v{sb + i}, v{sb + i}")

            def cv(i):
                k(f"v_cvt_pk_bf16_f32 v{P + i}, v{sb + 2 * i}, v{sb + 2 * i + 1}")

            ex(0), ex(1)
            if n > 0:
                pv(n - 1, 1)
                if u == 3 and n + 1 < 64:
                    if not k.wait(vm=("K", kt + 1)):
                        slot()
                else:
                    slot()
            ex(2), ex(3), cv(0), ex(4), ex(5), cv(1)
            if n + 1 < 64:
                smf(n + 1, 0)
            slot()
            ex(6), ex(7), cv(2), ex(8), ex(9), cv(3)
            if n + 1 < 64:
                smf(n + 1, 1)
            if u == 0:
                if not k.wait(vm=("V", kt)):
                    slot()
            else:
                slot()
            ex(10), ex(11), cv(4), ex(12), ex(13), cv(5)
            pv(n, 0)
            slot()
            ex(14), ex(15), cv(6), cv(7)
        assert not queue, len(queue)
        pv(63, 1)
        self.stamp("B1")
        for q in range(4):
            k(f"ds_write_b128 v6, {vr(O + 32 + 4 * q, 4)} offset:{1024 * q}")
        lo, hi = 2.0 ** -80, 2.0 ** 80
        k(f"""s_mov_b32 s55, {f32(lo)}
        s_mov_b32 s56, {f32(hi)}
        v_min_f32 v210, v{O + 12}, v{O + 28}
        v_add_f32 v209, v{O + 12}, v{O + 28}
        v_add_f32 v209, v209, v{O + 44}
        v_min3_f32 v210, v210, v{O + 44}, v{O + 60}
        v_add_f32 v209, v209, v{O + 60}
        v_cmp_nle_f32 s[56:57], v209, s56
        v_cmp_nge_f32 vcc, v210, s55
        s_or_b32 s57, s57, vcc_hi""")
        if self.force_fb:
            k("s_mov_b32 s57, 1")
        k(f"""v_mov_b32 v210, s57
        s_mov_b64 exec, 1
        ds_write_b32 v4, v210 offset:{3072 + 516}
        s_mov_b64 exec, -1""")
        k.wait(lg="all")
        k("s_barrier")
        R = 144
        k("ds_read_b32 v209, v208", tag="c")
        for j in range(3):
            for q in range(4):
                k(f"ds_read_b128 {vr(R + 16 * j + 4 * q, 4)}, v7 offset:{4096 * j + 1024 * q}", tag=("c", j))
        k(f"s_lshl_b32 s55, {sB}, 2\ns_add_u32 s55, s55, {sW}\ns_lshl_b32 s55, s55, 4\ns_add_u32 s55, s55, {sA}\ns_lshl_b32 s55, s55, 11\ns_add_u32 s55, s55, {WS_O}")
        k.wait(lg="c")
        k(f"""v_cmp_ne_u32 vcc, 0, v209
        s_andn2_b32 s56, vcc_lo, {sFB}
        s_cbranch_scc1 L_fb""")
        o = O + 48
        for j in range(3):
            k.wait(lg=("c", j))
            for i in range(8):
                k(f"v_pk_add_f32 {vr(o + 2 * i, 2)}, {vr(o + 2 * i, 2)}, {vr(R + 16 * j + 2 * i, 2)}")
        k(f"""v_mov_b32 v210, v{o + 12}
        v_mov_b32 v212, v{o + 12}
        v_permlane32_swap_b32 v210, v212
        v_rcp_f32 v212, v212""")
        for i in range(8):
            k(f"v_pk_mul_f32 {vr(o + 2 * i, 2)}, {vr(o + 2 * i, 2)}, v[212:213] op_sel_hi:[1,0]")
        for i in range(8):
            k(f"v_cvt_pk_bf16_f32 v{P + i}, v{o + 2 * i}, v{o + 2 * i + 1}")
        k(f"s_mov_b32 exec_lo, 0\nv_mov_b32 v{P + 6}, 0\nv_mov_b32 v{P + 7}, 0\ns_mov_b32 exec_lo, -1")
        for s in range(2):
            k(f"buffer_store_dwordx4 {vr(P + 4 * s, 4)}, v1, {WS}, s55 offen offset:{1024 * s} sc1")
        k(f"s_lshl_b32 s50, {sB}, 4\ns_add_u32 s50, s50, {sA}")
        self.stamp("B2")
        self.publish(WS_FB, "s50", 144, 148)
        self.stamp("B3")

    def wd_loads(self, lo, hi):
        g = []
        for i in range(lo, hi):
            g.append((f"buffer_load_dwordx4 {ar(4 * i, 4)}, v{252 + (i & 1)}, {WS}, s33 offen offset:{(i & 2) * 1024} sc1", "WD"))
            if i % 4 == 3:
                g.append(("s_add_u32 s33, s33, 4096", None))
        return g

    def late_code(self):
        k = self.k
        Q, S, KV = 8, 104, 144
        for L1, L2 in self.late:
            k.label(L1)
            self.poll("v3", "v209", WS_FP)
            k(f"s_branch {L2}")
        k.label("L_fb")
        k(f"""s_waitcnt vmcnt(0) lgkmcnt(0)
        s_barrier
        s_mov_b32 {sFB}, -1
        s_mov_b32 {sPD}, {OOB}
        s_mov_b32 {sPCS}, {OOB}
        s_mov_b32 {sPF}, {OOB}
        s_lshl_b32 s50, {sA}, 6
        s_lshl_b32 s55, {sW}, 4
        s_add_u32 s50, s50, s55
        s_add_u32 s50, s50, 1024
        s_lshl_b32 s50, s50, 11
        s_mov_b32 s51, 16""")
        for u in range(4):
            k(f"v_mov_b32 v{212 + u}, 0xff800000")
        k.label("L_fbl")
        for s in range(2):
            k(f"buffer_load_dwordx4 {vr(KV + 4 * s, 4)}, v1, {WS}, s50 offen offset:{1024 * s} sc1")
        k("s_add_u32 s50, s50, 2048\ns_waitcnt vmcnt(0)")
        for u in range(4):
            self.mfma(vr(S, 16), vr(KV, 4), vr(Q + 8 * u, 4), "0")
            self.mfma(vr(S, 16), vr(KV + 4, 4), vr(Q + 8 * u + 4, 4))
            for i in range(8):
                k(f"v_max3_f32 v{212 + u}, v{212 + u}, v{S + 2 * i}, v{S + 2 * i + 1}")
        k("s_sub_u32 s51, s51, 1\ns_cmp_lg_u32 s51, 0\ns_cbranch_scc1 L_fbl")
        k(f"v_lshlrev_b32 v216, 2, v0\ns_lshl_b32 s57, {sW}, 8")
        for u in range(4):
            k(f"""v_mov_b32 v210, v{212 + u}
            v_permlane32_swap_b32 v210, v{212 + u}
            v_max_f32 v{212 + u}, v210, v{212 + u}
            s_add_u32 s55, {sW}, {u + 1}
            s_and_b32 s55, s55, 3
            s_lshl_b32 s55, s55, 10
            s_add_u32 s55, s55, {LR}
            v_add_u32 v{220 + u}, s55, v216
            v_add_u32 v217, s57, v{220 + u}
            ds_write_b32 v217, v{212 + u}""")
        k("s_waitcnt lgkmcnt(0)\ns_barrier")
        for u in range(4):
            for j in range(4):
                k(f"ds_read_b32 v{224 + j}, v{220 + u} offset:{256 * j}")
            k(f"""s_waitcnt lgkmcnt(0)
            v_max3_f32 v224, v224, v225, v226
            v_max_f32 v224, v224, v227
            v_sub_f32 v224, 0, v224
            v_cvt_pk_bf16_f32 v225, v224, v224
            v_and_b32 v225, 0xffff0000, v225
            v_sub_f32 v225, v224, v225
            v_cvt_pk_bf16_f32 v226, v224, v225
            v_and_b32 v227, 0xffff0000, v226
            v_sub_f32 v227, v225, v227
            v_cvt_pk_bf16_f32 v227, v227, 0
            s_mov_b32 exec_lo, 0
            v_mov_b32 v{Q + 8 * u + 6}, v226
            v_mov_b32 v{Q + 8 * u + 7}, v227
            s_mov_b32 exec_lo, -1""")
        k("s_barrier\ns_branch L_attn")
        k.vm.clear()
        k.lg.clear()

    def reduce4(self, ACC, R):
        k = self.k
        for t in range(3):
            for q in range(4):
                k(f"ds_write_b128 v{4 + t}, {vr(ACC + 16 * t + 4 * q, 4)} offset:{1024 * q}")
        k.wait(lg="all")
        k("s_barrier")
        for j in range(3):
            for q in range(4):
                k(f"ds_read_b128 {vr(R + 16 * j + 4 * q, 4)}, v7 offset:{4096 * j + 1024 * q}", tag=("c", j))
        o = ACC + 48
        for j in range(3):
            k.wait(lg=("c", j))
            for i in range(8):
                k(f"v_pk_add_f32 {vr(o + 2 * i, 2)}, {vr(o + 2 * i, 2)}, {vr(R + 16 * j + 2 * i, 2)}")

    def tile_addrs(self):
        k = self.k
        for t in range(3):
            k(f"""s_xor_b32 s55, {sW}, {3 - t}
            s_mul_i32 s55, s55, 12288
            s_add_u32 s55, s55, {LR + 4096 * t}
            v_add_u32 v{4 + t}, s55, v1""")

    def phase_c(self):
        k = self.k
        ACC, WO, OF, R = 8, 72, 136, 136
        CS = 200
        k(f"""s_mul_i32 s55, {sB2}, 7
        s_lshr_b32 s55, s55, 2
        s_add_u32 s55, s55, {sW}
        s_min_u32 s55, s55, 27
        s_mul_i32 s55, s55, {14 * 1024}
        s_add_u32 s55, s55, {WS_CS}
        s_cmp_lt_u32 {sW}, 3
        s_cselect_b32 s55, s55, {OOB}""")
        for i in range(14):
            k(f"buffer_load_dwordx4 {vr(136 + 4 * i, 4)}, v1, {WS}, s55 offen offset:{(i % 4) * 1024} sc1", tag=("cs", i))
            if i % 4 == 3:
                k("s_add_u32 s55, s55, 4096")
        k(f"s_cmp_ge_u32 {sB}, 14\ns_cbranch_scc1 L_c0")
        k(f"""s_lshr_b32 s50, {sB}, 1
        s_and_b32 s51, {sB}, 1
        s_lshl_b32 s51, s51, 1
        s_lshl_b32 s52, {sA}, 2
        s_add_u32 s51, s51, s52
        s_and_b32 s52, {sW}, 1
        s_add_u32 s62, s51, s52
        s_lshr_b32 s53, {sW}, 1
        s_lshl_b32 s63, s50, 1
        s_add_u32 s63, s63, s53
        """)
        k(f"""v_and_b32 v254, 31, v0
        v_mul_u32_u24 v254, 896, v254
        v_lshrrev_b32 v2, 5, v0
        v_lshl_add_u32 v254, v2, 5, v254
        s_mul_i32 s55, s62, {32 * 896}
        s_lshl_b32 s56, s63, 6
        s_add_u32 s55, s55, s56
        v_add_u32 v254, s55, v254
        buffer_load_dwordx4 v[192:195], v254, {X}, 0 offen
        buffer_load_dwordx4 v[196:199], v254, {X}, 0 offen offset:16""")
        self.tile_addrs()
        k.label("L_c0")
        k.wait(vm="all")
        for i in range(1, 14):
            for h in range(2):
                k(f"v_pk_add_f32 {vr(136 + 2 * h, 2)}, {vr(136 + 2 * h, 2)}, {vr(136 + 4 * i + 2 * h, 2)}")
        for q in range(4):
            k("\n".join(self.split2(136 + q, CS + 2 * q)))
        k(f"s_cmp_ge_u32 {sB}, 14\ns_cbranch_scc1 L_c1")
        for i in range(8):
            k(f"v_lshlrev_b32 v{ACC + 48 + 2 * i}, 16, v{192 + i}\nv_and_b32 v{ACC + 49 + 2 * i}, 0xffff0000, v{192 + i}")
        k(f"""s_lshl_b32 s55, {sA}, 4
        s_lshl_b32 s56, {sW}, 2
        s_add_u32 s55, s55, s56
        v_and_b32 v2, 3, v0
        v_add_u32 v2, s55, v2
        v_lshlrev_b32 v2, 7, v2
        s_lshl_b32 s55, s62, 4
        s_add_u32 s55, s55, s56
        s_lshl_b32 s55, s55, 11
        s_add_u32 s51, s55, {WS_O}
        s_xor_b32 s50, s55, 0x8000
        s_add_u32 s50, s50, {WS_O}""")
        self.poll("v2", "v3", WS_FB)
        self.stamp("C0")
        for ks in range(8):
            for t in range(2):
                k(f"buffer_load_dwordx4 {vr(OF + 8 * ks + 4 * t, 4)}, v1, {WS}, s{50 + t} offen offset:{1024 * (ks & 3)} sc1", tag=("O", ks))
            if ks == 3:
                k("s_add_u32 s50, s50, 4096\ns_add_u32 s51, s51, 4096")
        for ks in range(8):
            k.wait(vm=("O", ks))
            for c in range(2):
                for t in range(2):
                    lt = 2 * c + t
                    self.mfma(vr(ACC + 16 * lt, 16), ar(160 + 8 * ks + 4 * c, 4), vr(OF + 8 * ks + 4 * t, 4), "0" if (ks == 0 and lt < 3) else None)
        self.stamp("C1")
        self.reduce4(ACC, R)
        o = ACC + 48
        for i in range(8):
            k(f"v_cvt_pk_bf16_f32 v{ACC + i}, v{o + 2 * i}, v{o + 2 * i + 1}")
        k(f"s_mul_i32 s55, s62, 14\ns_add_u32 s55, s55, s63\ns_lshl_b32 s56, s55, 8\ns_lshl_b32 s55, s55, 11\ns_add_u32 s55, s55, {WS_H}\ns_add_u32 s56, s56, {WS_ST}")
        for s in range(2):
            k(f"buffer_store_dwordx4 {vr(ACC + 4 * s, 4)}, v1, {WS}, s55 offen offset:{1024 * s} sc1")
        k(f"v_pk_add_f32 v[16:17], {vr(o, 2)}, {vr(o + 2, 2)}\nv_pk_mul_f32 v[18:19], {vr(o, 2)}, {vr(o, 2)}")
        for i in range(1, 8):
            if i > 1:
                k(f"v_pk_add_f32 v[16:17], v[16:17], {vr(o + 2 * i, 2)}")
            k(f"v_pk_fma_f32 v[18:19], {vr(o + 2 * i, 2)}, {vr(o + 2 * i, 2)}, v[18:19]")
        k(f"""v_add_f32 v16, v16, v17
        v_add_f32 v18, v18, v19
        v_lshlrev_b32 v2, 2, v0
        v_permlane32_swap_b32 v16, v18
        v_add_f32 v16, v16, v18
        buffer_store_dword v16, v2, {WS}, s56 offen sc1""")
        for i in range(16):
            k(f"v_accvgpr_write_b32 a{224 + i}, v{o + i}")
        k(f"s_lshl_b32 s50, {sA}, 4\ns_add_u32 s50, s50, {sB}")
        self.stamp("C2")
        self.publish(WS_FC, "s50", 136, 140)
        k.label("L_c1")
        self.stamp("C3")

    def phase_d(self):
        k = self.k
        H, ACC, AB, T = 8, 120, 184, 216
        CS = 200
        LCS = LR + 28672
        sGU = "s53"
        k(f"""v_lshlrev_b32 v2, 3, v0
        s_lshl_b32 s55, {sW}, 11
        s_add_u32 s55, s55, {LCS}
        v_add_u32 v3, s55, v2""")
        for q in range(4):
            k(f"ds_write_b64 v3, {vr(CS + 2 * q, 2)} offset:{512 * q}")
        k(f"""s_mul_i32 s55, {sB2}, 7
        s_and_b32 s55, s55, 3
        s_lshl_b32 s55, s55, 9
        s_add_u32 s55, s55, {LCS}
        v_add_u32 v3, s55, v2
        s_mul_i32 s52, {sW}, 7168
        s_mul_i32 {sGU}, {sB2}, {7 * 28672}
        s_add_u32 {sGU}, {sGU}, s52
        s_add_u32 {sGU}, {sGU}, {WS_WGU + 4 * 28672}""")

        def gdma(ct, lds):
            g = []
            for i in range(7):
                t = ""
                if i % 4 == 0:
                    t = f"s_add_u32 m0, s52, {lds + i * 1024}\ns_add_u32 s56, {sGU}, {(ct - 4) * 28672 + i * 1024}\n"
                g.append((t + f"buffer_load_dwordx4 v1, {WS}, s56 offen offset:{(i % 4) * 1024} sc1 lds", ("G", ct)))
            return g

        for t, tg in gdma(4, LR):
            k(t, tag=tg)
        k(f"""s_lshl_b32 s55, {sA2}, 4
        s_lshr_b32 s56, {sW}, 1
        s_add_u32 s55, s55, s56
        v_min_u32 v249, 6, v0
        v_lshlrev_b32 v249, 1, v249
        v_add_u32 v249, s55, v249
        v_lshlrev_b32 v249, 7, v249
        s_lshl_b32 s55, {sA2}, 2
        s_add_u32 s55, s55, {sW}
        s_mul_i32 s50, s55, 28672
        s_add_u32 s50, s50, {WS_H}
        s_mul_i32 s51, s55, 3584
        s_add_u32 s51, s51, {WS_ST}
        v_add_u32 v2, 57344, v1
        v_add_u32 v251, {LR}, v1
        v_lshlrev_b32 v250, 2, v0""")
        k.wait(lg="all")

        slot_of = {0: 0, 1: 1, 2: 2, 3: 3, 4: "R", 5: 0, 6: 1}
        seq = [(ct, ks) for ks in range(28) for ct in range(3)] + [(ct, ks) for ct in range(3, 7) for ks in range(28)]
        NB = 8
        AH = self.opt.get("dah", 5)

        def aread(i):
            ct, ks = seq[i]
            s = slot_of[ct]
            if s == "R":
                va, off = "v251", ks * 1024
            elif s < 2:
                va, off = "v1", s * 28672 + ks * 1024
            else:
                va, off = "v2", (s - 2) * 28672 + ks * 1024
            k(f"ds_read_b128 {vr(AB + 4 * (i % NB), 4)}, {va} offset:{off}", tag=("a", i))

        for i in range(AH):
            aread(i)
        self.poll("v249", "v248", WS_FC)
        self.stamp("D0")
        HA = self.opt.get("dha", 12)

        def hload(ks):
            t = f"buffer_load_dwordx4 {vr(H + 4 * ks, 4)}, v1, {WS}, s50 offen offset:{1024 * (ks & 3)} sc1"
            if ks & 3 == 3:
                t += "\ns_add_u32 s50, s50, 4096"
            return (t, ("H", ks))

        SL = ACC + 48
        queue = [hload(ks) for ks in range(28)]
        queue += [(f"buffer_load_dword v{SL + c}, v250, {WS}, s51 offen offset:{256 * c} sc1", "S") for c in range(14)]
        for _ in range(HA):
            t, tg = queue.pop(0)
            k(t, tag=tg)

        VB, VC, VS = T + 2, T + 4, T + 6
        CA = T + 8
        E = T + 16

        def epilogue(ct, packed):
            a = ACC + 16 * (ct % 4)
            e = []
            if packed:
                e += [f"v_pk_mul_f32 {vr(a + 2 * i, 2)}, {vr(a + 2 * i, 2)}, {vr(VC, 2)} op_sel_hi:[1,0]" for i in range(4)]
            else:
                e += [f"v_mul_f32 v{a + i}, v{VC}, v{a + i}" for i in range(8)]
            e += [f"v_exp_f32 v{a + i}, v{a + i}" for i in range(8)]
            if packed:
                e += [f"v_pk_fma_f32 {vr(a + 2 * i, 2)}, {vr(a + 2 * i, 2)}, {vr(VS, 2)}, {vr(VS, 2)} op_sel_hi:[1,0,0]" for i in range(4)]
            else:
                e += [f"v_fma_f32 v{a + i}, v{a + i}, v{VS}, v{VS}" for i in range(8)]
            e += [f"v_rcp_f32 v{a + i}, v{a + i}" for i in range(8)]
            if packed:
                e += [f"v_pk_mul_f32 {vr(a + 2 * i, 2)}, {vr(a + 2 * i, 2)}, {vr(a + 8 + 2 * i, 2)}" for i in range(4)]
            else:
                e += [f"v_mul_f32 v{a + i}, v{a + i}, v{a + 8 + i}" for i in range(8)]
            p = E + 4 * (ct & 1)
            e += [f"v_cvt_pk_bf16_f32 v{p + i}, v{a + 2 * i}, v{a + 2 * i + 1}" for i in range(4)]
            pre = f"s_add_u32 {sAC}, {sAC}, 4096\n" if ct == 4 else ""
            e.append(pre + f"buffer_store_dwordx4 {vr(p, 4)}, v1, {WS}, {sAC} offen offset:{1024 * (ct & 3)} sc1")
            return [(t, ("e", ct)) for t in e]

        def corr(ct):
            a = vr(ACC + 16 * (ct % 4), 16)
            k(f"v_mfma_f32_32x32x8bf16_1k {a}, {vr(CA + 2 * (ct % 4), 2)}, {vr(VB, 2)}, {a}")

        def csread(ct):
            k(f"ds_read_b64 {vr(CA + 2 * (ct % 4), 2)}, v3 offset:{512 * ct}", tag=("cs", ct))

        def cost(t):
            if callable(t):
                return 4
            return sum(8 if l.startswith(("v_exp", "v_rcp", "v_rsq", "v_sqrt", "buffer")) else 4 for l in t.split("\n"))

        BUD = self.opt.get("dbud", 18)
        mem = []
        hold = 0
        b = 0
        for i, (ct, ks) in enumerate(seq):
            nxt = i + AH
            if nxt < len(seq):
                nct, nks = seq[nxt]
                if nks == 0 and nct == 5:
                    assert not any(tg in (("G", 5), ("G", 6)) for _, tg in mem)
                    k.wait(vm=[("G", 5), ("G", 6)])
                    k("s_barrier")
            if ks == 0 and ct >= 4:
                assert not any(tg == ("e", ct - 4) for _, tg in queue), ct
            if i < 84 and ct == 0:
                assert not any(tg == ("H", ks) for _, tg in queue)
                k.wait(vm=("H", ks), lg=("a", i))
            else:
                k.wait(lg=("a", i))
            self.mfma(vr(ACC + 16 * (ct % 4), 16), vr(AB + 4 * (i % NB), 4), vr(H + 4 * ks, 4), "0" if ks == 0 else None)
            if nxt < len(seq):
                aread(nxt)
            if i == self.opt.get("dwd", 40):
                mem += self.wd_loads(self.opt.get("nwd", 24), 56)
            if i == 66:
                assert not queue
                queue.append((lambda: k.wait(vm="S"), None))
                queue += [(f"v_add_f32 v{SL}, v{SL}, v{SL + c}", None) for c in range(1, 14)]
                queue += [(t.strip(), None) for t in self.stats(SL, SL + 1, VC, VB, VS)]
                queue += [(f"v_rsq_f32 v{VC}, v{VS}", None), (f"v_sqrt_f32 v{VS}, v{VS}", None),
                          (f"v_mul_f32 v{VC}, {f32(-math.log2(math.e))}, v{VC}", None)]
            if i == 83:
                assert not queue
                k("s_barrier")
                for c in range(4):
                    csread(c)
                mem = gdma(5, 0) + gdma(6, 28672) + mem
                self.stamp("D1")
                continue
            if i == 86:
                k.wait(lg=("cs", 3))
                for c in range(3):
                    corr(c)
                    queue += epilogue(c, False)
                hold = 3
                continue
            if i > 83 and ks == 27:
                k.wait(lg=("cs", ct))
                corr(ct)
                if not queue:
                    hold = 4
                queue += epilogue(ct, ct == 6)
                continue
            if i > 83 and ks == 8 and ct < 6:
                csread(ct + 1)
            b = min(b, 4) + BUD
            if mem and (hold or i & 1):
                t, tg = mem.pop(0)
                k(t, tag=tg)
                b -= cost(t)
                if mem and mem[0][1] is None:
                    k(mem.pop(0)[0])
                    b -= 4
            if hold:
                hold -= 1
                continue
            while queue and b >= cost(queue[0][0]):
                t, tg = queue.pop(0)
                b -= cost(t)
                if callable(t):
                    t()
                else:
                    k(t, tag=tg)
                if i < 66:
                    break
        assert not mem, len(mem)
        self.stamp("D2")
        self.dleft = len(queue)
        for t, tg in queue:
            k(t, tag=tg)
        k(f"s_lshl_b32 s50, {sA2}, 4\ns_add_u32 s50, s50, {sB2}")
        self.stamp("D3")
        self.publish(WS_FD, "s50", 184, 188)
        self.stamp("D4")

    def phase_e(self):
        k = self.k
        ACC, BF, R = 8, 72, 72
        NB, AH = 20, 8
        k(f"s_cmp_ge_u32 {sB}, 14\ns_cbranch_scc1 L_tail")
        for i in range(16):
            k(f"v_accvgpr_read_b32 v{ACC + 48 + i}, a{224 + i}")
        k(f"""s_lshl_b32 s55, {sA}, 4
        s_lshl_b32 s56, {sW}, 2
        s_add_u32 s55, s55, s56
        v_and_b32 v2, 3, v0
        v_add_u32 v2, s55, v2
        v_lshlrev_b32 v2, 7, v2
        s_mul_i32 s56, {sW}, 28672
        s_add_u32 s56, s56, {WS_ACT}
        s_mul_i32 s51, s62, {112 * 1024}
        s_add_u32 s51, s51, s56
        s_xor_b32 s50, s62, 1
        s_mul_i32 s50, s50, {112 * 1024}
        s_add_u32 s50, s50, s56""")
        self.poll("v2", "v3", WS_FD)
        self.stamp("E0")

        def load(ks):
            for t in range(2):
                k(f"buffer_load_dwordx4 {vr(BF + 8 * (ks % NB) + 4 * t, 4)}, v1, {WS}, s{50 + t} offen offset:{1024 * (ks & 3)} sc1", tag=("B", ks))
            if ks & 3 == 3:
                k("s_add_u32 s50, s50, 4096\ns_add_u32 s51, s51, 4096")

        for ks in range(AH):
            load(ks)
        for ks in range(28):
            k.wait(vm=("B", ks))
            for c in range(2):
                for t in range(2):
                    lt = 2 * c + t
                    self.mfma(vr(ACC + 16 * lt, 16), ar(8 * ks + 4 * c, 4), vr(BF + 8 * (ks % NB) + 4 * t, 4), "0" if (ks == 0 and lt < 3) else None)
                    if lt == 0 and ks + AH < 28:
                        load(ks + AH)
        self.stamp("E1")
        self.reduce4(ACC, R)
        o = ACC + 48
        for i in range(8):
            k(f"v_cvt_pk_bf16_f32 v{ACC + i}, v{o + 2 * i}, v{o + 2 * i + 1}")
        for s in range(2):
            k(f"buffer_store_dwordx4 {vr(ACC + 4 * s, 4)}, v254, {OUT}, 0 offen offset:{16 * s}")
        self.stamp("E2")
        k("s_branch L_fin")
        k.label("L_tail")
        k(f"""s_cmp_lg_u32 s2, 255
        s_cbranch_scc1 L_fin
        s_lshl_b32 s55, {sW}, 6
        v_add_u32 v2, s55, v0
        v_lshlrev_b32 v2, 7, v2""")
        self.poll("v2", "v3", WS_FP)
        k("s_mov_b32 s50, 0")
        self.publish(WS_E, "s50", 8, 12)
        k.label("L_fin")
        if self.ts:
            k(f"""s_memrealtime s[96:97]
            s_memtime s[98:99]
            s_waitcnt lgkmcnt(0)
            v_writelane_b32 v255, s96, 62
            v_writelane_b32 v255, s98, 63
            s_lshl_b32 s55, s2, 2
            s_add_u32 s55, s55, {sW}
            s_lshl_b32 s55, s55, 8
            s_add_u32 s55, s55, {WS_TS}
            v_lshlrev_b32 v2, 2, v0
            buffer_store_dword v255, v2, {WS}, s55 offen""")
            if self.ts == 2:
                k(f"""s_load_dwordx2 s[20:21], s[0:1], 64
                s_mov_b32 s22, 256
                v_readlane_b32 s56, v255, 0
                v_readlane_b32 s57, v255, 1
                s_sub_u32 s56, s96, s56
                v_subrev_u32 v255, s57, v255
                v_writelane_b32 v255, s56, 0
                s_lshl_b32 s55, s2, 2
                s_add_u32 s55, s55, {sW}
                s_lshl_b32 s55, s55, 8
                s_waitcnt lgkmcnt(0)
                buffer_store_dword v255, v2, {PA}, s55 offen""")
        if "spa" in self.opt:
            k(f"""s_cmp_lg_u32 s2, {self.opt.get("spw", 0)}
            s_cbranch_scc1 L_nospin
            s_memrealtime s[90:91]
            s_waitcnt lgkmcnt(0)
            s_sub_u32 s94, s94, s92
            s_min_u32 s94, s94, 20000
            s_mul_i32 s94, s94, 4""")
            k.label("L_spin")
            k("""s_memrealtime s[88:89]
            s_waitcnt lgkmcnt(0)
            s_sub_u32 s88, s88, s90
            s_cmp_lt_u32 s88, s94
            s_cbranch_scc1 L_spin""")
            k.label("L_nospin")
        k("s_waitcnt vmcnt(0)")
        k.label("L_end")
        k("s_endpgm")

    def build(self):
        self.prologue()
        self.phase_a()
        self.phase_b()
        self.phase_c()
        self.phase_d()
        self.phase_e()
        self.late_code()
        self.k.lines = [l.replace("CODE_LAST", "0x8000") for l in self.k.lines]
        n = self.k.pad()
        self.misal = align8(self.k.lines)
        last = (sum(sizes(self.k.lines)) - 128) & ~3
        assert last >= 0x8000
        self.k.lines = [l.replace("v_min_u32 v127, 0x8000", f"v_min_u32 v127, {last}") for l in self.k.lines]
        ref = open(f"cdna_kernels/{NAME}.s.ref").read().split("\n")
        head = [l for l in ref if l.startswith(";") and "@launch" not in l]
        out = head + ["; @launch grid=(256,1,1) block=(256,1,1) lds=163840",
                      '.amdgcn_target "amdgcn-amd-amdhsa--gfx950"', ".text", f".globl {NAME}_kernel", ".p2align 8",
                      f".type {NAME}_kernel,@function", f"{NAME}_kernel:"]
        out += [l if l.endswith(":") else "    " + l for l in self.k.lines]
        out += ['.section .rodata,"a"', ".p2align 6", f".amdhsa_kernel {NAME}_kernel",
                "  .amdhsa_next_free_vgpr 512", "  .amdhsa_next_free_sgpr 102", "  .amdhsa_accum_offset 256",
                "  .amdhsa_group_segment_fixed_size 0", "  .amdhsa_kernarg_size 80", "  .amdhsa_user_sgpr_count 2",
                "  .amdhsa_user_sgpr_kernarg_segment_ptr 1", "  .amdhsa_system_sgpr_workgroup_id_x 1", ".end_amdhsa_kernel", ""]
        self.nbytes = sum(sizes(self.k.lines))
        self.nnop = n
        return "\n".join(out)


if __name__ == "__main__":
    args = dict(a.split("=") for a in sys.argv[2:])
    args = {a: int(b) if b.lstrip('-').isdigit() else b for a, b in args.items()}
    g = Gen(**args)
    text = g.build()
    open(sys.argv[1], "w").write(text)
    if g.ts:
        open(sys.argv[1] + ".ts", "w").write(" ".join([str(g.ts)] + g.tsn))
    print(f"{sys.argv[1]}: {g.nbytes} bytes of code, {g.nnop} pads, {g.misal} misaligned, D tail {g.dleft}")
```

```python
import math
import struct
import sys

from asmlib import K, sizes, align8

NAME = "sequential_preLN__softmax_full_mha__glu_gated_glu__prompt"

WS_QKV, WS_O, WS_H, WS_ACT = 0, 0x600000, 0x800000, 0xA00000
WS_WGU, WS_WD, WS_WO, WS_CS = 0x1100000, 0x1500000, 0x1700000, 0x1780000
WS_FA, WS_FB, WS_FC, WS_FD, WS_E, WS_FP = 0x1800000, 0x1808000, 0x1810000, 0x1818000, 0x1820000, 0x1828000
WS_ST = 0x1880000
OOB = 0x40000000
WS_TS = 0x1900000
WS_FQ = 0x1A00000
WS_SIZE = 0x1A80000

X, WQ, WS, OUT, PA, PB = "s[4:7]", "s[8:11]", "s[12:15]", "s[16:19]", "s[20:23]", "s[24:27]"
sW, sA, sB, sTAG, sCNT, sONE, sFB = "s36", "s37", "s38", "s39", "s40", "s41", "s42"
sU, sPD, sPCS, sP0, sP1, sPST = "s43", "s44", "s45", "s46", "s47", "s48"
sXL = "s49"
sTB, sCB = "s88", "s89"
sO, sH, sST, sAC = "s3", "s34", "s100", "s101"
sA2, sB2, sPS, sPF = "s28", "s29", "s30", "s31"
vFLAG, vTAG = "v211", 212
LR = 114688
ONES = 0x3F803F80
U_D, U_O, U_END = 392, 588, 644


def f32(x):
    return hex(struct.unpack("<I", struct.pack("<f", x))[0])


def vr(b, n):
    return f"v[{b}:{b + n - 1}]"


def ar(b, n):
    return f"a[{b}:{b + n - 1}]"


class Gen:
    def __init__(self, ts=False, force_fb=False, **opt):
        self.k = K()
        self.ts = ts
        self.nts = 0
        self.tsn = []
        self.force_fb = force_fb
        self.opt = opt

    def stamp(self, name):
        if self.opt.get("spa") == name:
            self.k("s_memrealtime s[92:93]")
        if self.opt.get("spb") == name:
            self.k("s_memrealtime s[94:95]")
        if self.ts == 2 and name not in ("A0", "A3", "A7", "A9", "B0", "B1", "B3", "C0", "C3", "D0", "D4", "E0", "E2"):
            return
        if self.ts:
            op = "s_memrealtime" if self.ts == 3 else "s_memtime"
            self.k(f"{op} s[98:99]\ns_waitcnt lgkmcnt(0)\nv_writelane_b32 v255, s98, {self.nts + 2}")
            self.k.lg.clear()
            self.nts += 1
            self.tsn.append(name)

    def mfma(self, d, a, b, c=None):
        c = d if c is None else c
        self.k(f"v_mfma_f32_32x32x16_bf16 {d}, {a}, {b}, {c}")

    def poll(self, vaddr, vtmp, base):
        k = self.k
        L, Dn = k.newlabel("poll"), k.newlabel("seen")
        k(f"s_mov_b32 s60, {base}")
        k.label(L)
        k(f"buffer_load_dword {vtmp}, {vaddr}, {WS}, s60 offen sc1")
        k.wait(vm="all")
        k(f"""v_cmp_ne_u32 vcc, {sTAG}, {vtmp}
        s_cbranch_vccz {Dn}
        s_sub_u32 {sCNT}, {sCNT}, 1
        s_cselect_b32 {sCNT}, 0, {sCNT}
        s_cbranch_scc0 {L}""")
        k.label(Dn)

    def publish(self, base, sidx, vt, vo):
        k = self.k
        for i in range(4):
            k(f"v_mov_b32 v{vt + i}, {sTAG}")
        k(f"""s_lshl_b32 s60, {sidx}, 7
        s_add_u32 s60, s60, {base}
        s_cmp_eq_u32 {sW}, 0
        s_cselect_b32 s60, s60, {OOB}
        v_lshrrev_b32 v{vo}, 3, v0
        v_lshl_add_u32 v{vo}, v{vo}, 26, v1""")
        k.wait(vm="all")
        k(f"s_barrier\nbuffer_store_dwordx4 {vr(vt, 4)}, v{vo}, {WS}, s60 offen sc1")

    def stats(self, vs, vq, t0, vb, vrs):
        return f"""v_mov_b32 v{vq}, v{vs}
        v_permlane32_swap_b32 v{vs}, v{vq}
        v_mul_f32 v{vs}, {f32(-1.0 / 448)}, v{vs}
        v_mul_f32 v{vq}, {f32(1.0 / 448)}, v{vq}
        v_cvt_pk_bf16_f32 v{t0}, v{vs}, v{vs}
        v_fma_f32 v{vq}, -v{vs}, v{vs}, v{vq}
        v_and_b32 v{t0}, 0xffff0000, v{t0}
        v_max_f32 v{vq}, 0, v{vq}
        v_sub_f32 v{t0}, v{vs}, v{t0}
        v_add_f32 v{vrs}, {f32(1e-5)}, v{vq}
        v_cvt_pk_bf16_f32 v{vb}, v{vs}, v{t0}
        v_cvt_pk_bf16_f32 v{vb + 1}, v{vs}, v{t0}""".split("\n")

    def split2(self, vc, vd):
        return f"""v_cvt_pk_bf16_f32 v{vd}, v{vc}, v{vc}
        v_and_b32 v{vd + 1}, 0xffff0000, v{vd}
        v_sub_f32 v{vd + 1}, v{vc}, v{vd + 1}
        v_cvt_pk_bf16_f32 v{vd + 1}, v{vd + 1}, v{vd + 1}""".split("\n")

    def prologue(self):
        k = self.k
        k(f"""s_cmp_ge_u32 s2, 0x100
        s_cbranch_scc1 L_end
        s_load_dwordx16 s[64:79], s[0:1], 0
        s_load_dwordx2 s[12:13], s[0:1], 72""")
        if self.ts:
            k("s_memrealtime s[96:97]\ns_memtime s[98:99]")
        if "spa" in self.opt:
            k("s_memrealtime s[92:93]\ns_memrealtime s[94:95]")
        if self.opt.get("touch", 1):
            k.note("pull the whole code object into this die's L2 ahead of instruction fetch")
            k("""s_getpc_b64 s[86:87]
            v_lshlrev_b32 v127, 7, v0
            global_load_dword v200, v127, s[86:87]
            v_add_u32 v127, 0x8000, v127
            v_min_u32 v127, CODE_LAST, v127
            global_load_dword v201, v127, s[86:87]""")
        k(f"""v_lshrrev_b32 v2, 6, v0
        v_and_b32 v0, 63, v0
        s_and_b32 {sA}, s2, 7
        v_readfirstlane_b32 {sW}, v2
        s_lshl_b32 {sA}, {sA}, 1
        s_bfe_u32 s50, s2, 0x10003
        s_add_u32 {sA}, {sA}, s50
        s_lshr_b32 {sB}, s2, 4
        s_bfe_u32 {sA2}, s2, 0x20001
        s_lshl_b32 {sA2}, {sA2}, 2
        s_bfe_u32 s50, s2, 0x20003
        s_add_u32 {sA2}, {sA2}, s50
        s_and_b32 {sB2}, s2, 1
        s_lshl_b32 {sB2}, {sB2}, 3
        s_lshr_b32 s50, s2, 5
        s_add_u32 {sB2}, {sB2}, s50
        v_lshlrev_b32 v1, 4, v0
        s_mov_b32 {sCNT}, 0x40000
        s_mov_b32 {sONE}, {ONES}
        s_mov_b32 {sFB}, 0
        v_mov_b32 v254, 0""")
        mp = self.opt.get("map", 2)
        if mp == 0:
            k(f"s_mov_b32 {sTB}, {sA}\ns_mov_b32 {sCB}, {sB}")
        else:
            k(f"s_mov_b32 {sTB}, {sA2}\ns_and_b32 {sCB}, s2, 1\ns_lshl_b32 s50, s50, 1\ns_add_u32 {sCB}, {sCB}, s50")
        if mp == 2:
            k(f"s_mov_b32 {sA}, {sB2}\ns_mov_b32 {sB}, {sA2}")
        k(f"""s_mul_i32 s50, {sB2}, 168
        s_and_b32 s51, s50, 15
        s_sub_u32 s50, s50, s51
        s_mul_i32 s52, {sW}, {16 * 2688}
        s_add_u32 s50, s50, s52""")
        for t in range(3):
            k(f"""v_add_u32 v14, {64 * t}, v0
            v_mul_u32_u24 v15, 171, v14
            v_lshrrev_b32 v15, 11, v15
            v_mul_u32_u24 v16, 12, v15
            v_sub_u32 v16, v14, v16
            v_min_u32 v16, 10, v16
            v_mul_u32_u24 v15, 2688, v15
            v_lshlrev_b32 v16, 4, v16
            v_add3_u32 v{3 + t}, v15, v16, s50""")
        k(f"""v_lshrrev_b32 v14, 3, v0
        v_and_b32 v15, 7, v0
        v_lshrrev_b32 v16, 4, v0
        v_xor_b32 v16, v15, v16
        v_mul_u32_u24 v17, 896, v14
        s_lshl_b32 s52, {sA2}, 2
        s_add_u32 s52, s52, {sW}
        s_mul_i32 s52, s52, {32 * 896}
        v_lshlrev_b32 v18, 4, v16
        v_add3_u32 v6, v17, v18, s52
        v_xor_b32 v7, 64, v6""")
        k(f"""s_lshl_b32 {sXL}, {sW}, 14
        s_add_u32 {sXL}, {sXL}, 86016""")
        k(f"""s_lshr_b32 s53, s2, 3
        s_mul_i32 s54, s53, 37
        s_lshr_b32 s54, s54, 8
        s_mul_i32 s54, s54, 7
        s_sub_u32 s53, s53, s54
        s_mul_i32 s54, {sW}, 3072
        s_mov_b32 s6, {2048 * 896}
        s_mov_b32 s7, 0x20000
        s_mov_b32 s10, {448 * 2688}
        s_mov_b32 s11, 0x20000
        s_mov_b32 s14, {WS_SIZE}
        s_mov_b32 s15, 0x20000
        s_mov_b32 s18, {2048 * 896}
        s_mov_b32 s19, 0x20000
        s_mov_b32 s23, 0x20000
        s_mov_b32 s27, 0x20000
        s_mov_b32 s60, {WS_E}
        v_mov_b32 v16, 0
        s_waitcnt lgkmcnt(0)
        s_mov_b32 s4, s64
        s_mov_b32 s5, s65
        s_mov_b32 s8, s66
        s_mov_b32 s9, s67""")
        if self.ts:
            k("v_writelane_b32 v255, s96, 0\nv_writelane_b32 v255, s98, 1")

    def a_dma(self, c):
        g = []
        pre = f"s_mul_i32 s55, s53, {64 * 2688}\ns_lshl_b32 s56, s53, 7\n"
        for t in range(3):
            g.append(pre + f"s_add_u32 m0, s54, {c * 12288 + t * 1024}\ns_nop 0\nbuffer_load_dwordx4 v{3 + t}, {WQ}, s55 offen lds")
            pre = ""
        for t in range(4):
            post = "\ns_add_u32 s53, s53, 1\ns_cmp_eq_u32 s53, 7\ns_cselect_b32 s53, 0, s53" if t == 3 else ""
            g.append(f"s_add_u32 m0, {sXL}, {(c % 4) * 4096 + t * 1024}\ns_add_u32 s57, s56, {t * 8 * 896}\n"
                     f"buffer_load_dwordx4 v{6 + (t & 1)}, {X}, s57 offen lds" + post)
        return g

    def p_dma(self, h):
        slot = 3 if h == 0 else 0
        srd, sb = (PA, sP0) if h == 0 else (PB, sP1)
        g = []
        for t in range(4):
            g.append(f"s_add_u32 m0, {sXL}, {slot * 4096 + t * 1024}\ns_nop 0\nbuffer_load_dwordx4 v2, {srd}, {sb} offen lds\n"
                     f"s_add_u32 {sb}, {sb}, {sPST}")
        return g

    def unit_setup(self):
        k = self.k
        k(f"""s_mov_b32 s16, s78
        s_mov_b32 s17, s79
        s_lshl_b32 {sU}, {sW}, 8
        s_add_u32 {sU}, {sU}, s2
        s_cmp_ge_u32 {sU}, {U_D}
        s_cbranch_scc1 L_u1
        s_mov_b32 s20, s72
        s_mov_b32 s21, s73
        s_mov_b32 s24, s74
        s_mov_b32 s25, s75
        s_mov_b32 s22, {448 * 3584}
        s_mul_i32 s58, {sU}, 4682
        s_lshr_b32 s58, s58, 16
        s_mul_i32 s59, s58, 14
        s_sub_u32 s59, {sU}, s59
        s_mul_i32 {sP0}, s59, {32 * 3584}
        s_lshl_b32 s61, s58, 7
        s_add_u32 {sP0}, {sP0}, s61
        s_mov_b32 {sP1}, {sP0}
        s_mov_b32 {sPST}, 3584
        s_mul_i32 {sPD}, s58, {4 * 28 * 1024}
        s_lshl_b32 s61, s59, 11
        s_add_u32 {sPD}, {sPD}, s61
        s_add_u32 {sPD}, {sPD}, {WS_WGU}
        s_mov_b32 {sPS}, 28672
        s_lshl_b32 {sPCS}, {sU}, 10
        s_add_u32 {sPCS}, {sPCS}, {WS_CS}
        s_branch L_u3""")
        k.label("L_u1")
        k(f"""s_mov_b32 {sPST}, 896
        s_mov_b32 {sPS}, 2048
        s_mov_b32 {sPCS}, {OOB}
        s_cmp_ge_u32 {sU}, {U_O}
        s_cbranch_scc1 L_u2
        s_mov_b32 s20, s76
        s_mov_b32 s21, s77
        s_mov_b32 s24, s76
        s_mov_b32 s25, s77
        s_mov_b32 s22, {1792 * 896}
        s_sub_u32 s61, {sU}, {U_D}
        s_mul_i32 s58, s61, 2341
        s_lshr_b32 s58, s58, 16
        s_mul_i32 s59, s58, 28
        s_sub_u32 s59, s61, s59
        s_mul_i32 {sP0}, s59, {64 * 896}
        s_lshl_b32 s58, s58, 7
        s_add_u32 {sP0}, {sP0}, s58
        s_add_u32 {sP1}, {sP0}, {32 * 896}
        s_lshl_b32 {sPD}, s61, 13
        s_add_u32 {sPD}, {sPD}, {WS_WD}
        s_branch L_u3""")
        k.label("L_u2")
        k(f"""s_mov_b32 s20, s68
        s_mov_b32 s21, s69
        s_mov_b32 s24, s68
        s_mov_b32 s25, s69
        s_cmp_lt_u32 {sU}, {U_END}
        s_cselect_b32 s22, {448 * 896}, 0
        s_sub_u32 s61, {sU}, {U_O}
        s_lshr_b32 s58, s61, 3
        s_and_b32 s59, s61, 7
        s_mul_i32 {sP0}, s59, {56 * 896}
        s_lshl_b32 s58, s58, 7
        s_add_u32 {sP0}, {sP0}, s58
        s_add_u32 {sP1}, {sP0}, {28 * 896}
        s_lshl_b32 {sPD}, s61, 13
        s_add_u32 {sPD}, {sPD}, {WS_WO}
        s_cmp_lt_u32 {sU}, {U_END}
        s_cselect_b32 {sPD}, {sPD}, {OOB}""")
        k.label("L_u3")
        k(f"""s_mov_b32 s26, s22
        s_lshl_b32 {sPF}, {sU}, 7
        s_add_u32 {sPF}, {sPF}, {WS_FP}
        s_cmp_lt_u32 {sU}, {U_END}
        s_cselect_b32 {sPF}, {sPF}, {OOB}
        v_lshrrev_b32 v16, 3, v0
        v_and_b32 v17, 7, v0
        v_mul_lo_u32 v16, v16, {sPST}
        v_lshl_add_u32 v2, v17, 4, v16
        s_lshl_b32 {sPST}, {sPST}, 3""")

    def out_addrs(self):
        k = self.k
        k(f"""s_lshl_b32 s58, {sB}, 2
        s_add_u32 s58, s58, {sW}
        s_lshl_b32 s58, s58, 4
        s_add_u32 s58, s58, {sA}
        s_lshl_b32 s58, s58, 11
        s_add_u32 {sO}, s58, {WS_O}
        s_and_b32 s58, {sCB}, 1
        s_lshl_b32 s58, s58, 1
        s_lshl_b32 s59, {sTB}, 2
        s_add_u32 s58, s58, s59
        s_and_b32 s59, {sW}, 1
        s_add_u32 s62, s58, s59
        s_lshr_b32 s59, {sW}, 1
        s_and_b32 s63, {sCB}, 14
        s_add_u32 s63, s63, s59
        s_mul_i32 s58, s62, 14
        s_add_u32 s58, s58, s63
        s_lshl_b32 {sST}, s58, 8
        s_lshl_b32 {sH}, s58, 11
        s_add_u32 {sH}, {sH}, {WS_H}
        s_add_u32 {sST}, {sST}, {WS_ST}
        s_cmp_ge_u32 {sCB}, 14
        s_cselect_b32 {sH}, {OOB}, {sH}
        s_cselect_b32 {sST}, {OOB}, {sST}
        s_lshl_b32 s58, {sA2}, 2
        s_add_u32 s58, s58, {sW}
        s_mul_i32 {sAC}, s58, {112 * 1024}
        s_mul_i32 s59, {sB2}, 7168
        s_add_u32 {sAC}, {sAC}, s59
        s_add_u32 {sAC}, {sAC}, {WS_ACT}""")

    def clears(self, vd):
        g = [f"buffer_store_dwordx4 {vr(vd, 4)}, v1, {WS}, {b} offen offset:{1024 * s} sc1" for b in ("s64", "s65") for s in range(2)]
        g += [f"buffer_store_dwordx4 {vr(vd, 4)}, {vFLAG}, {WS}, s66 offen offset:{128 * s} sc1" for s in range(2)]
        g += [f"buffer_store_dwordx4 {vr(vd, 4)}, v1, {WS}, s67 offen offset:{1024 * s} sc1" for s in range(4)]
        g += [f"buffer_store_dwordx4 {vr(vd, 4)}, v1, {WS}, s68 offen offset:{1024 * s} sc1" for s in range(3)]
        return g

    def wo(self, i):
        return ar(224 + 4 * i, 4) if i < 8 else vr(216 + 4 * (i - 8), 4)

    def respin(self, back, loads, regs, vt):
        L = self.k.newlabel("rs")
        self.late.append(("respin", L, back, loads, regs, vt))
        return L

    @staticmethod
    def maxchain(regs, vt):
        g = []
        regs = list(regs)
        acc = regs.pop(0)
        while regs:
            if len(regs) >= 2:
                g.append(f"v_max3_u32 v{vt}, v{acc}, v{regs.pop(0)}, v{regs.pop(0)}")
            else:
                g.append(f"v_max_u32 v{vt}, v{acc}, v{regs.pop(0)}")
            acc = vt
        return g

    def phase_a(self):
        k = self.k
        DEP = self.opt.get("adep", 3)
        ACC, FR, SQ, SM, CS, ON, T = 16, 64, 96, 104, 112, 124, 128
        LX = 151552
        k(f"buffer_load_dword v126, v16, {WS}, s60 offen sc1", tag="E")
        for c in range(DEP):
            for g in self.a_dma(c):
                k(g, tag=("A", c))
            if c == 0:
                k.note("LDS read addresses: v8..v11 W (transposed), v12..v15 x; k-step order rotated by the wave index")
                k(f"""v_bfe_u32 v16, v0, 2, 2
                v_lshrrev_b32 v17, 5, v0
                v_lshl_add_u32 v16, v17, 3, v16
                v_mul_u32_u24 v16, 192, v16
                v_bfe_u32 v18, v0, 4, 1
                v_lshlrev_b32 v18, 5, v18
                v_and_b32 v19, 3, v0
                v_lshl_add_u32 v18, v19, 3, v18
                v_add3_u32 v19, v16, v18, s51
                v_and_b32 v16, 31, v0
                v_bfe_u32 v18, v0, 1, 3
                v_xor_b32 v18, v18, v17
                v_lshlrev_b32 v18, 4, v18
                v_lshl_add_u32 v16, v16, 7, v18
                v_add_u32 v16, {sXL}, v16
                v_mov_b32 v{ON}, {sONE}
                v_mov_b32 v{ON + 1}, {sONE}""")
                for p in range(4):
                    k(f"""s_add_u32 s58, {sW}, {p}
                    s_and_b32 s58, s58, 3
                    s_mul_i32 s59, s58, 3072
                    s_lshl_b32 s58, s58, 5
                    v_add_u32 v{8 + p}, s59, v19
                    v_xor_b32 v{12 + p}, s58, v16""")
            if c == 0:
                self.out_addrs()
            if c == 1:
                self.unit_setup()
        k(f"""v_and_b32 v{T}, 31, v0
        v_mul_u32_u24 v{T}, 80, v{T}
        v_lshrrev_b32 v{T + 1}, 5, v0
        v_lshl_add_u32 v{T}, v{T + 1}, 3, v{T}
        v_bfe_u32 v16, v0, 2, 2
        v_lshl_add_u32 v{T + 1}, v{T + 1}, 2, v16
        v_mul_u32_u24 v{T + 1}, 80, v{T + 1}
        v_bfe_u32 v16, v0, 4, 1
        v_lshl_add_u32 v{T + 1}, v16, 5, v{T + 1}
        v_and_b32 v16, 3, v0
        v_lshl_add_u32 v{T + 1}, v16, 3, v{T + 1}
        v_add_u32 v{T}, {sXL}, v{T}
        v_add_u32 v{T + 1}, {sXL}, v{T + 1}
        v_add_u32 v{T + 3}, {LX}, v1
        s_lshl_b32 s58, {sW}, 2
        v_add_u32 v{T + 2}, s58, v{T + 3}
        v_cmp_eq_u32 s[80:81], 1, v16
        v_cmp_eq_u32 s[82:83], 2, v16
        v_cmp_eq_u32 s[84:85], 3, v16""")

        def reads(c, ks):
            n = 4 * c + ks
            f = FR + 16 * (n & 1)
            if c == 4:
                k(f"v_add_u32 v{8 + ks}, 49152, v{8 + ks}")
            k(f"ds_read_b128 {vr(f, 4)}, v{12 + ks} offset:{(c % 4) * 4096}", tag=("r", n))
            for m in range(3):
                for q in range(2):
                    off = (c % 4) * 12288 + 4 * q * 192 + 56 * m
                    k(f"ds_read_b64_tr_b16 {vr(f + 4 + 4 * m + 2 * q, 2)}, v{8 + ks} offset:{off}", tag=("r", n))

        def small(d, a, b, first):
            k(f"v_mfma_f32_4x4x4bf16_1k {vr(d, 4)}, {vr(a, 2)}, {vr(b, 2)}, {'0' if first else vr(d, 4)}")

        CX = 136
        VB, VR_, CA = 150, 149, 152
        for c in range(7):
            k.wait(vm=("A", c))
            k("s_barrier")
            self.stamp(f"A{c}")
            reads(c, 0)
            extra = []
            nx = c + DEP
            if nx < 7:
                extra = [(g, ("A", nx)) for g in self.a_dma(nx)]
            if c == 4:
                extra += [(g, "P") for g in self.p_dma(0)]
            if c == 5:
                extra += [(g, "P") for g in self.p_dma(1)]
            for ks in range(4):
                n = 4 * c + ks
                f = FR + 16 * (n & 1)
                if ks < 3:
                    reads(c, ks + 1)
                k.wait(lg=("r", n))
                for h in range(2):
                    small(SQ + 4 * h, f + 2 * h, f + 2 * h, n == 0)
                    small(SM + 4 * h, ON, f + 2 * h, n == 0)
                if ks == 0:
                    for h in range(2):
                        for m in range(3):
                            small(CS + 4 * m, ON, f + 4 + 4 * m + 2 * h, n == 0 and h == 0)
                tail = []
                if n == 27:
                    tail = [f"v_add_f32 v{SQ + i}, v{SQ + i}, v{SQ + 4 + i}" for i in range(4)]
                    tail += [f"v_add_f32 v{SM}, v{SM}, v{SM + 4}"]
                    tail += [f"v_cndmask_b32 v{SQ}, v{SQ}, v{SQ + i}, s[{78 + 2 * i}:{79 + 2 * i}]" for i in range(1, 4)]
                    tail += [f"v_permlane32_swap_b32 v{SM}, v{SQ}", f"v_add_f32 v{SM}, v{SM}, v{SQ}"]
                    tail += self.stats(SM, SQ, 148, VB, VR_) + [f"v_rsq_f32 v{VR_}, v{VR_}"]
                if n == 26:
                    k.wait(lg="cx")
                    for m in range(3):
                        tail += [f"v_add_f32 v{CX + 4 * m}, v{CX + 4 * m}, v{CX + 4 * m + i}" for i in range(1, 4)]
                        tail += self.split2(CX + 4 * m, CA + 2 * m)
                for m in range(3):
                    self.mfma(vr(ACC + 16 * m, 16), vr(f + 4 + 4 * m, 4), vr(f, 4), "0" if n == 0 else None)
                    if extra:
                        g, tg = extra.pop(0)
                        k(g, tag=tg)
                    if n == 24 and m == 2:
                        for j in range(3):
                            k(f"ds_write_b32 v{T + 2}, v{CS + 4 * j} offset:{1024 * j}", tag="cw")
                    if n == 25 and m == 0:
                        k.wait(lg="cw")
                        k("s_barrier")
                        for j in range(3):
                            k(f"ds_read_b128 {vr(CX + 4 * j, 4)}, v{T + 3} offset:{1024 * j}", tag="cx")
                    cnt = len(tail) if m == 2 else 7
                    for t in tail[:cnt]:
                        k(t)
                    tail = tail[cnt:]
            assert not extra
        self.stamp("A7")
        for m in range(3):
            k(f"v_mfma_f32_32x32x8bf16_1k {vr(ACC + 16 * m, 16)}, {vr(CA + 2 * m, 2)}, {vr(VB, 2)}, {vr(ACC + 16 * m, 16)}")
        qs = math.log2(math.e) / math.sqrt(28.0)
        k(f"""v_readfirstlane_b32 {sTAG}, v126
        s_mul_i32 s50, {sB2}, 3
        s_lshl_b32 s51, {sA2}, 2
        s_add_u32 s51, s51, {sW}
        s_lshl_b32 s51, s51, 11
        s_add_u32 {sTAG}, {sTAG}, 0x9e3779b9""")
        for m in range(3):
            a, p = ACC + 16 * m, FR + 8 * m
            Lq = k.newlabel("nv")
            k(f"""s_add_u32 s52, s50, {m}
            s_lshl_b32 s55, s52, 17
            s_add_u32 s55, s55, s51
            s_cmp_lt_u32 s52, 16
            s_cselect_b32 s56, {f32(qs)}, 1.0
            s_cselect_b32 s57, 0, {sONE}
            s_cselect_b32 s58, 0, 0x3f80
            s_cmp_ge_u32 s52, 32
            s_cselect_b32 s57, 0x3f80, s57
            s_cselect_b32 s58, 0, s58
            v_mul_f32 v{SQ}, s56, v{VR_}""")
            for i in range(8):
                k(f"v_pk_mul_f32 {vr(a + 2 * i, 2)}, {vr(a + 2 * i, 2)}, {vr(SQ, 2)} op_sel_hi:[1,0]")
            for i in range(8):
                k(f"v_cvt_pk_bf16_f32 v{p + i}, v{a + 2 * i}, v{a + 2 * i + 1}")
            k(f"""s_mov_b32 exec_lo, 0
            v_mov_b32 v{p + 6}, s57
            v_mov_b32 v{p + 7}, s58
            s_mov_b32 exec_lo, -1
            s_cbranch_scc0 {Lq}""")
            for q in range(4):
                k(f"ds_write_b64 v{T}, {vr(p + 2 * q, 2)} offset:{4096 + 2560 * m + 16 * q}")
            for s in range(2):
                for q in range(2):
                    k(f"ds_read_b64_tr_b16 {vr(p + 4 * s + 2 * q, 2)}, v{T + 1} offset:{4096 + 2560 * m + (16 * s + 8 * q) * 80}")
            k.wait(lg="all")
            k.label(Lq)
            for s in range(2):
                k(f"buffer_store_dwordx4 {vr(p + 4 * s, 4)}, v1, {WS}, s55 offen offset:{1024 * s} sc1")
        self.stamp("A8")
        self.prelayout()
        k(f"s_lshl_b32 s50, {sA2}, 4\ns_add_u32 s50, s50, {sB2}")
        self.publish(WS_FA, "s50", vTAG, 211)
        self.stamp("A9")

    def prelayout(self):
        k = self.k
        F = 216
        k(f"""v_bfe_u32 v20, v0, 2, 2
        v_lshrrev_b32 v21, 5, v0
        v_bfe_u32 v22, v0, 4, 1
        v_and_b32 v23, 3, v0""")
        for q in range(4):
            k(f"v_mov_b32 v{F + 32 + q}, 0")
        k.wait(vm="P")
        k(f"s_cmp_ge_u32 {sU}, {U_D}\ns_cbranch_scc1 L_p1")
        k(f"""v_lshl_add_u32 v20, v21, 4, v20
        v_lshlrev_b32 v20, 7, v20
        v_lshl_add_u32 v20, v23, 3, v20
        v_xor_b32 v22, 1, v22
        v_mul_u32_u24 v22, 12288, v22
        v_add3_u32 v20, v20, v22, {sXL}""")
        for q in range(4):
            for e in range(2):
                for h in range(2):
                    k(f"ds_read_b64_tr_b16 {vr(F + 8 * q + 4 * e + 2 * h, 2)}, v20 offset:{32 * q + (8 * e + 4 * h) * 128}", tag=("p", q))
        for q in range(4):
            k.wait(lg=("p", q))
            for j in range(8):
                k(f"v_dot2c_f32_bf16 v{F + 32 + q}, {sONE}, v{F + 8 * q + j}")
        k("s_branch L_p2")
        k.label("L_p1")
        k(f"""v_lshl_add_u32 v20, v21, 2, v20
        v_lshlrev_b32 v20, 7, v20
        v_lshl_add_u32 v20, v22, 4, v20
        v_and_b32 v21, 1, v23
        v_lshl_add_u32 v20, v21, 5, v20
        v_lshrrev_b32 v21, 1, v23
        v_lshl_add_u32 v20, v21, 3, v20
        v_add_u32 v20, {sXL}, v20""")
        for e in range(4):
            for ct in range(2):
                for h in range(2):
                    off = (12288 if e < 2 else 0) + 64 * ct + (16 * (e & 1) + 8 * h) * 128
                    k(f"ds_read_b64_tr_b16 {vr(F + 8 * e + 4 * ct + 2 * h, 2)}, v20 offset:{off}")
        k.wait(lg="all")
        k.label("L_p2")

    def phase_b(self):
        k = self.k
        Q, O, S, P, KV = 8, 40, 104, 136, 144
        DEP = 4
        sK, sV, sWD, sGU, sGL = "s50", "s51", "s32", "s53", "s54"
        k(f"""s_add_u32 s55, {sA}, 16
        s_mul_i32 s55, s55, 43
        s_lshr_b32 s55, s55, 7
        s_add_u32 s56, {sA}, 32
        s_mul_i32 s56, s56, 43
        s_lshr_b32 s56, s56, 7
        s_mul_i32 s57, {sA}, 43
        s_lshr_b32 s57, s57, 7
        s_lshl_b32 s58, {sB}, 4
        s_add_u32 s57, s57, s58
        s_lshl_b32 s58, {sW}, 6
        s_add_u32 s55, s55, s58
        s_add_u32 s56, s56, s58
        v_and_b32 v2, 3, v0
        v_lshlrev_b32 v2, 4, v2
        v_add_u32 v4, s55, v2
        v_add_u32 v5, s56, v2
        v_mov_b32 v2, s57
        v_cmp_gt_u32 vcc, 8, v0
        v_cndmask_b32 v2, v2, v5, vcc
        v_cmp_gt_u32 vcc, 4, v0
        v_cndmask_b32 v2, v2, v4, vcc
        v_lshlrev_b32 v2, 7, v2""")
        k(f"""s_mul_i32 s55, {sB2}, 7
        s_lshr_b32 s55, s55, 2
        s_mul_i32 s55, s55, 14
        s_lshr_b32 s56, {sCB}, 1
        s_min_u32 s56, s56, 6
        s_mul_i32 s57, s56, 28
        s_mul_i32 s58, {sW}, 7
        s_add_u32 s57, s57, s58
        s_lshl_b32 {sWD}, s57, 13
        s_add_u32 {sWD}, {sWD}, {WS_WD}
        s_add_u32 s57, s57, {U_D - 42}
        s_lshl_b32 s56, s56, 3
        s_lshl_b32 s58, {sW}, 1
        s_add_u32 s56, s56, s58
        s_lshl_b32 s35, s56, 13
        s_add_u32 s35, s35, {WS_WO}
        s_add_u32 s56, s56, {U_O}
        v_add_u32 v4, s55, v0
        v_min_u32 v4, {U_D - 1}, v4
        v_add_u32 v5, s57, v0
        v_and_b32 v3, 1, v0
        v_add_u32 v3, s56, v3
        v_cmp_gt_u32 vcc, 49, v0
        v_cndmask_b32 v3, v3, v5, vcc
        v_cmp_gt_u32 vcc, 42, v0
        v_cndmask_b32 v3, v3, v4, vcc
        v_lshlrev_b32 v3, 7, v3""")
        for u in range(3):
            k(f"""s_add_u32 s55, {sW}, {u + 1}
            s_and_b32 s55, s55, 3
            s_mul_i32 s55, s55, 12288
            s_add_u32 s55, s55, {LR + 4096 * u}
            v_add_u32 v{4 + u}, s55, v1""")
        k(f"""s_mul_i32 s55, {sW}, 12288
        s_add_u32 s55, s55, {LR}
        v_add_u32 v7, s55, v1
        v_and_b32 v208, 3, v0
        v_mul_u32_u24 v208, 12288, v208
        v_add_u32 v208, {LR + 3072 + 516}, v208
        s_lshr_b32 s55, {sW}, 1
        s_lshl_b32 s55, s55, 10
        v_add_u32 v253, s55, v1
        v_xor_b32 v252, 1024, v253""")
        self.poll("v2", "v209", WS_FA)
        self.stamp("B0")
        k(f"s_lshl_b32 s55, {sA}, 6\ns_lshl_b32 s56, {sB}, 2\ns_add_u32 s55, s55, s56")
        for u in range(4):
            k(f"s_add_u32 s56, {sW}, {u + 1}\ns_and_b32 s56, s56, 3\ns_add_u32 s56, s56, s55\ns_lshl_b32 s56, s56, 11")
            for s in range(2):
                k(f"buffer_load_dwordx4 {vr(Q + 8 * u + 4 * s, 4)}, v1, {WS}, s56 offen offset:{1024 * s} sc1", tag="Q")
        k.label("L_attn")
        k(f"""s_lshl_b32 {sK}, {sA}, 6
        s_lshl_b32 s55, {sW}, 4
        s_add_u32 {sK}, {sK}, s55
        s_add_u32 {sK}, {sK}, 1024
        s_lshl_b32 {sK}, {sK}, 11
        s_add_u32 {sV}, {sK}, {1024 * 2048}
        s_mul_i32 {sGL}, {sW}, 28672
        s_mul_i32 {sGU}, {sB2}, {7 * 28672}
        s_add_u32 {sGU}, {sGU}, {sGL}
        s_add_u32 {sGU}, {sGU}, {WS_WGU}
        s_mov_b32 s33, {sWD}
        s_mov_b32 s59, s35""")

        def kload(kt):
            b = KV + 16 * (kt % DEP)
            g = []
            for s in range(2):
                t = f"buffer_load_dwordx4 {vr(b + 4 * s, 4)}, v1, {WS}, {sK} offen offset:{2048 * (kt & 1) + 1024 * s} sc1"
                g.append((t, ("K", kt)))
            if kt & 1:
                g.append((f"s_add_u32 {sK}, {sK}, 4096", None))
            return g

        def vload(kt):
            b = KV + 16 * (kt % DEP) + 8
            g = []
            for s in range(2):
                t = f"buffer_load_dwordx4 {vr(b + 4 * s, 4)}, v1, {WS}, {sV} offen offset:{2048 * (kt & 1) + 1024 * s} sc1"
                g.append((t, ("V", kt)))
            if kt & 1:
                g.append((f"s_add_u32 {sV}, {sV}, 4096", None))
            return g

        for kt in range(DEP - 1):
            for t, tg in kload(kt) + vload(kt):
                k(t, tag=tg)

        pre = []
        for i in range(28):
            if i % 4 == 0:
                pre.append((f"s_add_u32 m0, {sGL}, {i * 1024}", None))
            pre.append((f"buffer_load_dwordx4 v1, {WS}, {sGU} offen offset:{(i % 4) * 1024} sc1 lds", "GU"))
            if i % 4 == 3:
                pre.append((f"s_add_u32 {sGU}, {sGU}, 4096", None))
        for i in range(16):
            pre.append((f"buffer_load_dwordx4 {ar(160 + 4 * i, 4)}, v{252 + (i & 1)}, {WS}, s59 offen offset:{(i & 2) * 1024} sc1", "WO"))
            if i % 4 == 3:
                pre.append(("s_add_u32 s59, s59, 4096", None))
        NWD = self.opt.get("nwd", 24)
        pre += self.wd_loads(0, NWD)
        pst = []
        for p in range(4):
            for e in range(2):
                pst.append((f"buffer_store_dwordx4 {vr(216 + 8 * p + 4 * e, 4)}, v1, {WS}, {sPD} offen offset:{1024 * e} sc1", "PS"))
            pst.append((f"s_add_u32 {sPD}, {sPD}, {sPS}", None))
        pst.append((f"buffer_store_dwordx4 v[248:251], v1, {WS}, {sPCS} offen sc1", "PS"))

        def smf(n, s):
            kt, u = divmod(n, 4)
            b = KV + 16 * (kt % DEP)
            d = vr(S + 16 * (n & 1), 16)
            self.mfma(d, vr(b + 4 * s, 4), vr(Q + 8 * u + 4 * s, 4), "0" if s == 0 else None)

        def pv(n, s):
            kt, u = divmod(n, 4)
            b = KV + 16 * (kt % DEP) + 8
            self.mfma(vr(O + 16 * u, 16), vr(b + 4 * s, 4), vr(P + 4 * s, 4), "0" if (kt == 0 and s == 0) else None)

        k.wait(vm=["Q", ("K", 0)])
        smf(0, 0)
        smf(0, 1)
        PFL = self.opt.get("pfl", 9)
        PCHK = self.opt.get("pchk", 16)
        queue = list(pst)

        def slot(cnt=1):
            for _ in range(cnt):
                if queue:
                    t, tg = queue.pop(0)
                    if callable(t):
                        t()
                    else:
                        k(t, tag=tg)

        def pcheck():
            L1, L2 = k.newlabel("pw"), k.newlabel("pok")
            k.wait(vm="PF")
            k(f"v_cmp_ne_u32 vcc, {sTAG}, v209\ns_cbranch_vccnz {L1}")
            k.label(L2)
            self.late.append((L1, L2))

        self.late = []
        for n in range(64):
            kt, u = divmod(n, 4)
            sb = S + 16 * (n & 1)
            if self.opt.get("tsb") and n % self.opt["tsb"] == 0:
                self.stamp(f"b{n}")
            if u == (1 if kt else 3) and kt + DEP - 1 < 16:
                queue = kload(kt + DEP - 1) + vload(kt + DEP - 1) + queue
            if n == PFL:
                queue.append((lambda: k.wait(vm="PS"), None))
                queue.append((f"buffer_store_dwordx4 {vr(vTAG, 4)}, {vFLAG}, {WS}, {sPF} offen sc1", None))
            if n == PCHK:
                queue.append((f"s_mov_b32 s60, {WS_FP}", None))
                queue.append((f"buffer_load_dword v209, v3, {WS}, s60 offen sc1", "PF"))
            if n == PCHK + 5:
                queue.append((pcheck, None))
                queue += pre
            if n >= 62:
                t = n - 62
                queue += [(f"ds_write_b128 v{4 + t}, {vr(O + 16 * t + 4 * q, 4)} offset:{1024 * q}", None) for q in range(4)]

            def ex(i):
                k(f"v_exp_f32 v{sb + i}, v{sb + i}")

            def cv(i):
                k(f"v_cvt_pk_bf16_f32 v{P + i}, v{sb + 2 * i}, v{sb + 2 * i + 1}")

            ex(0), ex(1)
            if n > 0:
                pv(n - 1, 1)
                if u == 3 and n + 1 < 64:
                    if not k.wait(vm=("K", kt + 1)):
                        slot()
                else:
                    slot()
            ex(2), ex(3), cv(0), ex(4), ex(5), cv(1)
            if n + 1 < 64:
                smf(n + 1, 0)
            slot()
            ex(6), ex(7), cv(2), ex(8), ex(9), cv(3)
            if n + 1 < 64:
                smf(n + 1, 1)
            if u == 0:
                if not k.wait(vm=("V", kt)):
                    slot()
            else:
                slot()
            ex(10), ex(11), cv(4), ex(12), ex(13), cv(5)
            pv(n, 0)
            slot()
            ex(14), ex(15), cv(6), cv(7)
        assert not queue, len(queue)
        pv(63, 1)
        self.stamp("B1")
        for q in range(4):
            k(f"ds_write_b128 v6, {vr(O + 32 + 4 * q, 4)} offset:{1024 * q}")
        lo, hi = 2.0 ** -80, 2.0 ** 80
        k(f"""s_mov_b32 s55, {f32(lo)}
        s_mov_b32 s56, {f32(hi)}
        v_min_f32 v210, v{O + 12}, v{O + 28}
        v_add_f32 v209, v{O + 12}, v{O + 28}
        v_add_f32 v209, v209, v{O + 44}
        v_min3_f32 v210, v210, v{O + 44}, v{O + 60}
        v_add_f32 v209, v209, v{O + 60}
        v_cmp_nle_f32 s[56:57], v209, s56
        v_cmp_nge_f32 vcc, v210, s55
        s_or_b32 s57, s57, vcc_hi""")
        if self.force_fb:
            k("s_mov_b32 s57, 1")
        k(f"""v_mov_b32 v210, s57
        s_mov_b64 exec, 1
        ds_write_b32 v4, v210 offset:{3072 + 516}
        s_mov_b64 exec, -1""")
        k.wait(lg="all")
        k("s_barrier")
        R = 144
        k("ds_read_b32 v209, v208", tag="c")
        for j in range(3):
            for q in range(4):
                k(f"ds_read_b128 {vr(R + 16 * j + 4 * q, 4)}, v7 offset:{4096 * j + 1024 * q}", tag=("c", j))
        k(f"s_lshl_b32 s55, {sB}, 2\ns_add_u32 s55, s55, {sW}\ns_lshl_b32 s55, s55, 4\ns_add_u32 s55, s55, {sA}\ns_lshl_b32 s55, s55, 11\ns_add_u32 s55, s55, {WS_O}")
        k.wait(lg="c")
        k(f"""v_cmp_ne_u32 vcc, 0, v209
        s_andn2_b32 s56, vcc_lo, {sFB}
        s_cbranch_scc1 L_fb""")
        o = O + 48
        for j in range(3):
            k.wait(lg=("c", j))
            for i in range(8):
                k(f"v_pk_add_f32 {vr(o + 2 * i, 2)}, {vr(o + 2 * i, 2)}, {vr(R + 16 * j + 2 * i, 2)}")
        k(f"""v_mov_b32 v210, v{o + 12}
        v_mov_b32 v212, v{o + 12}
        v_permlane32_swap_b32 v210, v212
        v_rcp_f32 v212, v212""")
        for i in range(8):
            k(f"v_pk_mul_f32 {vr(o + 2 * i, 2)}, {vr(o + 2 * i, 2)}, v[212:213] op_sel_hi:[1,0]")
        for i in range(8):
            k(f"v_cvt_pk_bf16_f32 v{P + i}, v{o + 2 * i}, v{o + 2 * i + 1}")
        k(f"s_mov_b32 exec_lo, 0\nv_mov_b32 v{P + 6}, 0\nv_mov_b32 v{P + 7}, 0\ns_mov_b32 exec_lo, -1")
        for s in range(2):
            k(f"buffer_store_dwordx4 {vr(P + 4 * s, 4)}, v1, {WS}, s55 offen offset:{1024 * s} sc1")
        k(f"s_lshl_b32 s50, {sB}, 4\ns_add_u32 s50, s50, {sA}")
        self.stamp("B2")
        self.publish(WS_FB, "s50", 144, 148)
        self.stamp("B3")

    def wd_loads(self, lo, hi):
        g = []
        for i in range(lo, hi):
            g.append((f"buffer_load_dwordx4 {ar(4 * i, 4)}, v{252 + (i & 1)}, {WS}, s33 offen offset:{(i & 2) * 1024} sc1", "WD"))
            if i % 4 == 3:
                g.append(("s_add_u32 s33, s33, 4096", None))
        return g

    def late_code(self):
        k = self.k
        Q, S, KV = 8, 104, 144
        for L1, L2 in self.late:
            k.label(L1)
            self.poll("v3", "v209", WS_FP)
            k(f"s_branch {L2}")
        k.label("L_fb")
        k(f"""s_waitcnt vmcnt(0) lgkmcnt(0)
        s_barrier
        s_mov_b32 {sFB}, -1
        s_mov_b32 {sPD}, {OOB}
        s_mov_b32 {sPCS}, {OOB}
        s_mov_b32 {sPF}, {OOB}
        s_lshl_b32 s50, {sA}, 6
        s_lshl_b32 s55, {sW}, 4
        s_add_u32 s50, s50, s55
        s_add_u32 s50, s50, 1024
        s_lshl_b32 s50, s50, 11
        s_mov_b32 s51, 16""")
        for u in range(4):
            k(f"v_mov_b32 v{212 + u}, 0xff800000")
        k.label("L_fbl")
        for s in range(2):
            k(f"buffer_load_dwordx4 {vr(KV + 4 * s, 4)}, v1, {WS}, s50 offen offset:{1024 * s} sc1")
        k("s_add_u32 s50, s50, 2048\ns_waitcnt vmcnt(0)")
        for u in range(4):
            self.mfma(vr(S, 16), vr(KV, 4), vr(Q + 8 * u, 4), "0")
            self.mfma(vr(S, 16), vr(KV + 4, 4), vr(Q + 8 * u + 4, 4))
            for i in range(8):
                k(f"v_max3_f32 v{212 + u}, v{212 + u}, v{S + 2 * i}, v{S + 2 * i + 1}")
        k("s_sub_u32 s51, s51, 1\ns_cmp_lg_u32 s51, 0\ns_cbranch_scc1 L_fbl")
        k(f"v_lshlrev_b32 v216, 2, v0\ns_lshl_b32 s57, {sW}, 8")
        for u in range(4):
            k(f"""v_mov_b32 v210, v{212 + u}
            v_permlane32_swap_b32 v210, v{212 + u}
            v_max_f32 v{212 + u}, v210, v{212 + u}
            s_add_u32 s55, {sW}, {u + 1}
            s_and_b32 s55, s55, 3
            s_lshl_b32 s55, s55, 10
            s_add_u32 s55, s55, {LR}
            v_add_u32 v{220 + u}, s55, v216
            v_add_u32 v217, s57, v{220 + u}
            ds_write_b32 v217, v{212 + u}""")
        k("s_waitcnt lgkmcnt(0)\ns_barrier")
        for u in range(4):
            for j in range(4):
                k(f"ds_read_b32 v{224 + j}, v{220 + u} offset:{256 * j}")
            k(f"""s_waitcnt lgkmcnt(0)
            v_max3_f32 v224, v224, v225, v226
            v_max_f32 v224, v224, v227
            v_sub_f32 v224, 0, v224
            v_cvt_pk_bf16_f32 v225, v224, v224
            v_and_b32 v225, 0xffff0000, v225
            v_sub_f32 v225, v224, v225
            v_cvt_pk_bf16_f32 v226, v224, v225
            v_and_b32 v227, 0xffff0000, v226
            v_sub_f32 v227, v225, v227
            v_cvt_pk_bf16_f32 v227, v227, 0
            s_mov_b32 exec_lo, 0
            v_mov_b32 v{Q + 8 * u + 6}, v226
            v_mov_b32 v{Q + 8 * u + 7}, v227
            s_mov_b32 exec_lo, -1""")
        k("s_barrier\ns_branch L_attn")
        k.vm.clear()
        k.lg.clear()

    def reduce4(self, ACC, R):
        k = self.k
        for t in range(3):
            for q in range(4):
                k(f"ds_write_b128 v{4 + t}, {vr(ACC + 16 * t + 4 * q, 4)} offset:{1024 * q}")
        k.wait(lg="all")
        k("s_barrier")
        for j in range(3):
            for q in range(4):
                k(f"ds_read_b128 {vr(R + 16 * j + 4 * q, 4)}, v7 offset:{4096 * j + 1024 * q}", tag=("c", j))
        o = ACC + 48
        for j in range(3):
            k.wait(lg=("c", j))
            for i in range(8):
                k(f"v_pk_add_f32 {vr(o + 2 * i, 2)}, {vr(o + 2 * i, 2)}, {vr(R + 16 * j + 2 * i, 2)}")

    def tile_addrs(self):
        k = self.k
        for t in range(3):
            k(f"""s_xor_b32 s55, {sW}, {3 - t}
            s_mul_i32 s55, s55, 12288
            s_add_u32 s55, s55, {LR + 4096 * t}
            v_add_u32 v{4 + t}, s55, v1""")

    def phase_c(self):
        k = self.k
        ACC, WO, OF, R = 8, 72, 136, 136
        CS = 200
        k(f"""s_mul_i32 s55, {sB2}, 7
        s_lshr_b32 s55, s55, 2
        s_add_u32 s55, s55, {sW}
        s_min_u32 s55, s55, 27
        s_mul_i32 s55, s55, {14 * 1024}
        s_add_u32 s55, s55, {WS_CS}
        s_cmp_lt_u32 {sW}, 3
        s_cselect_b32 s55, s55, {OOB}""")
        for i in range(14):
            k(f"buffer_load_dwordx4 {vr(136 + 4 * i, 4)}, v1, {WS}, s55 offen offset:{(i % 4) * 1024} sc1", tag=("cs", i))
            if i % 4 == 3:
                k("s_add_u32 s55, s55, 4096")
        k(f"s_cmp_ge_u32 {sCB}, 14\ns_cbranch_scc1 L_c0")
        k(f"""s_lshr_b32 s50, {sCB}, 1
        s_and_b32 s51, {sCB}, 1
        s_lshl_b32 s51, s51, 1
        s_lshl_b32 s52, {sTB}, 2
        s_add_u32 s51, s51, s52
        s_and_b32 s52, {sW}, 1
        s_add_u32 s62, s51, s52
        s_lshr_b32 s53, {sW}, 1
        s_lshl_b32 s63, s50, 1
        s_add_u32 s63, s63, s53
        """)
        k(f"""v_and_b32 v254, 31, v0
        v_mul_u32_u24 v254, 896, v254
        v_lshrrev_b32 v2, 5, v0
        v_lshl_add_u32 v254, v2, 5, v254
        s_mul_i32 s55, s62, {32 * 896}
        s_lshl_b32 s56, s63, 6
        s_add_u32 s55, s55, s56
        v_add_u32 v254, s55, v254
        buffer_load_dwordx4 v[192:195], v254, {X}, 0 offen
        buffer_load_dwordx4 v[196:199], v254, {X}, 0 offen offset:16""")
        self.tile_addrs()
        k.label("L_c0")
        k.wait(vm="all")
        for i in range(1, 14):
            for h in range(2):
                k(f"v_pk_add_f32 {vr(136 + 2 * h, 2)}, {vr(136 + 2 * h, 2)}, {vr(136 + 4 * i + 2 * h, 2)}")
        for q in range(4):
            k("\n".join(self.split2(136 + q, CS + 2 * q)))
        k(f"s_cmp_ge_u32 {sCB}, 14\ns_cbranch_scc1 L_c1")
        for i in range(8):
            k(f"v_lshlrev_b32 v{ACC + 48 + 2 * i}, 16, v{192 + i}\nv_and_b32 v{ACC + 49 + 2 * i}, 0xffff0000, v{192 + i}")
        k(f"""s_lshl_b32 s55, {sTB}, 4
        s_lshl_b32 s56, {sW}, 2
        s_add_u32 s55, s55, s56
        v_and_b32 v2, 3, v0
        v_add_u32 v2, s55, v2
        v_lshlrev_b32 v2, 7, v2
        s_lshl_b32 s55, s62, 4
        s_add_u32 s55, s55, s56
        s_lshl_b32 s55, s55, 11
        s_add_u32 s51, s55, {WS_O}
        s_xor_b32 s50, s55, 0x8000
        s_add_u32 s50, s50, {WS_O}""")
        self.poll("v2", "v3", WS_FB)
        self.stamp("C0")
        for ks in range(8):
            for t in range(2):
                k(f"buffer_load_dwordx4 {vr(OF + 8 * ks + 4 * t, 4)}, v1, {WS}, s{50 + t} offen offset:{1024 * (ks & 3)} sc1", tag=("O", ks))
            if ks == 3:
                k("s_add_u32 s50, s50, 4096\ns_add_u32 s51, s51, 4096")
        for ks in range(8):
            k.wait(vm=("O", ks))
            for c in range(2):
                for t in range(2):
                    lt = 2 * c + t
                    self.mfma(vr(ACC + 16 * lt, 16), ar(160 + 8 * ks + 4 * c, 4), vr(OF + 8 * ks + 4 * t, 4), "0" if (ks == 0 and lt < 3) else None)
        self.stamp("C1")
        self.reduce4(ACC, R)
        o = ACC + 48
        for i in range(8):
            k(f"v_cvt_pk_bf16_f32 v{ACC + i}, v{o + 2 * i}, v{o + 2 * i + 1}")
        k(f"s_mul_i32 s55, s62, 14\ns_add_u32 s55, s55, s63\ns_lshl_b32 s56, s55, 8\ns_lshl_b32 s55, s55, 11\ns_add_u32 s55, s55, {WS_H}\ns_add_u32 s56, s56, {WS_ST}")
        for s in range(2):
            k(f"buffer_store_dwordx4 {vr(ACC + 4 * s, 4)}, v1, {WS}, s55 offen offset:{1024 * s} sc1")
        k(f"v_pk_add_f32 v[16:17], {vr(o, 2)}, {vr(o + 2, 2)}\nv_pk_mul_f32 v[18:19], {vr(o, 2)}, {vr(o, 2)}")
        for i in range(1, 8):
            if i > 1:
                k(f"v_pk_add_f32 v[16:17], v[16:17], {vr(o + 2 * i, 2)}")
            k(f"v_pk_fma_f32 v[18:19], {vr(o + 2 * i, 2)}, {vr(o + 2 * i, 2)}, v[18:19]")
        k(f"""v_add_f32 v16, v16, v17
        v_add_f32 v18, v18, v19
        v_lshlrev_b32 v2, 2, v0
        v_permlane32_swap_b32 v16, v18
        v_add_f32 v16, v16, v18
        buffer_store_dword v16, v2, {WS}, s56 offen sc1""")
        for i in range(16):
            k(f"v_accvgpr_write_b32 a{224 + i}, v{o + i}")
        k(f"s_lshl_b32 s50, {sTB}, 4\ns_add_u32 s50, s50, {sCB}")
        self.stamp("C2")
        self.publish(WS_FC, "s50", 136, 140)
        k.label("L_c1")
        self.stamp("C3")

    def phase_d(self):
        k = self.k
        H, ACC, AB, T = 8, 120, 184, 216
        CS = 200
        LCS = LR + 28672
        sGU = "s53"
        k(f"""v_lshlrev_b32 v2, 3, v0
        s_lshl_b32 s55, {sW}, 11
        s_add_u32 s55, s55, {LCS}
        v_add_u32 v3, s55, v2""")
        for q in range(4):
            k(f"ds_write_b64 v3, {vr(CS + 2 * q, 2)} offset:{512 * q}")
        k(f"""s_mul_i32 s55, {sB2}, 7
        s_and_b32 s55, s55, 3
        s_lshl_b32 s55, s55, 9
        s_add_u32 s55, s55, {LCS}
        v_add_u32 v3, s55, v2
        s_mul_i32 s52, {sW}, 7168
        s_mul_i32 {sGU}, {sB2}, {7 * 28672}
        s_add_u32 {sGU}, {sGU}, s52
        s_add_u32 {sGU}, {sGU}, {WS_WGU + 4 * 28672}""")

        def gdma(ct, lds):
            g = []
            for i in range(7):
                t = ""
                if i % 4 == 0:
                    t = f"s_add_u32 m0, s52, {lds + i * 1024}\ns_add_u32 s56, {sGU}, {(ct - 4) * 28672 + i * 1024}\n"
                g.append((t + f"buffer_load_dwordx4 v1, {WS}, s56 offen offset:{(i % 4) * 1024} sc1 lds", ("G", ct)))
            return g

        for t, tg in gdma(4, LR):
            k(t, tag=tg)
        k(f"""s_lshl_b32 s55, {sA2}, 4
        s_lshr_b32 s56, {sW}, 1
        s_add_u32 s55, s55, s56
        v_min_u32 v249, 6, v0
        v_lshlrev_b32 v249, 1, v249
        v_add_u32 v249, s55, v249
        v_lshlrev_b32 v249, 7, v249
        s_lshl_b32 s55, {sA2}, 2
        s_add_u32 s55, s55, {sW}
        s_mul_i32 s50, s55, 28672
        s_add_u32 s50, s50, {WS_H}
        s_mul_i32 s51, s55, 3584
        s_add_u32 s51, s51, {WS_ST}
        v_add_u32 v2, 57344, v1
        v_add_u32 v251, {LR}, v1
        v_lshlrev_b32 v250, 2, v0""")
        k.wait(lg="all")

        slot_of = {0: 0, 1: 1, 2: 2, 3: 3, 4: "R", 5: 0, 6: 1}
        seq = [(ct, ks) for ks in range(28) for ct in range(3)] + [(ct, ks) for ct in range(3, 7) for ks in range(28)]
        NB = 8
        AH = self.opt.get("dah", 5)

        def aread(i):
            ct, ks = seq[i]
            s = slot_of[ct]
            if s == "R":
                va, off = "v251", ks * 1024
            elif s < 2:
                va, off = "v1", s * 28672 + ks * 1024
            else:
                va, off = "v2", (s - 2) * 28672 + ks * 1024
            k(f"ds_read_b128 {vr(AB + 4 * (i % NB), 4)}, {va} offset:{off}", tag=("a", i))

        for i in range(AH):
            aread(i)
        self.poll("v249", "v248", WS_FC)
        self.stamp("D0")
        HA = self.opt.get("dha", 12)

        def hload(ks):
            t = f"buffer_load_dwordx4 {vr(H + 4 * ks, 4)}, v1, {WS}, s50 offen offset:{1024 * (ks & 3)} sc1"
            if ks & 3 == 3:
                t += "\ns_add_u32 s50, s50, 4096"
            return (t, ("H", ks))

        SL = ACC + 48
        queue = [hload(ks) for ks in range(28)]
        queue += [(f"buffer_load_dword v{SL + c}, v250, {WS}, s51 offen offset:{256 * c} sc1", "S") for c in range(14)]
        for _ in range(HA):
            t, tg = queue.pop(0)
            k(t, tag=tg)

        VB, VC, VS = T + 2, T + 4, T + 6
        CA = T + 8
        E = T + 16

        def epilogue(ct, packed):
            a = ACC + 16 * (ct % 4)
            e = []
            if packed:
                e += [f"v_pk_mul_f32 {vr(a + 2 * i, 2)}, {vr(a + 2 * i, 2)}, {vr(VC, 2)} op_sel_hi:[1,0]" for i in range(4)]
            else:
                e += [f"v_mul_f32 v{a + i}, v{VC}, v{a + i}" for i in range(8)]
            e += [f"v_exp_f32 v{a + i}, v{a + i}" for i in range(8)]
            if packed:
                e += [f"v_pk_fma_f32 {vr(a + 2 * i, 2)}, {vr(a + 2 * i, 2)}, {vr(VS, 2)}, {vr(VS, 2)} op_sel_hi:[1,0,0]" for i in range(4)]
            else:
                e += [f"v_fma_f32 v{a + i}, v{a + i}, v{VS}, v{VS}" for i in range(8)]
            e += [f"v_rcp_f32 v{a + i}, v{a + i}" for i in range(8)]
            if packed:
                e += [f"v_pk_mul_f32 {vr(a + 2 * i, 2)}, {vr(a + 2 * i, 2)}, {vr(a + 8 + 2 * i, 2)}" for i in range(4)]
            else:
                e += [f"v_mul_f32 v{a + i}, v{a + i}, v{a + 8 + i}" for i in range(8)]
            p = E + 4 * (ct & 1)
            e += [f"v_cvt_pk_bf16_f32 v{p + i}, v{a + 2 * i}, v{a + 2 * i + 1}" for i in range(4)]
            pre = f"s_add_u32 {sAC}, {sAC}, 4096\n" if ct == 4 else ""
            e.append(pre + f"buffer_store_dwordx4 {vr(p, 4)}, v1, {WS}, {sAC} offen offset:{1024 * (ct & 3)} sc1")
            return [(t, ("e", ct)) for t in e]

        def corr(ct):
            a = vr(ACC + 16 * (ct % 4), 16)
            k(f"v_mfma_f32_32x32x8bf16_1k {a}, {vr(CA + 2 * (ct % 4), 2)}, {vr(VB, 2)}, {a}")

        def csread(ct):
            k(f"ds_read_b64 {vr(CA + 2 * (ct % 4), 2)}, v3 offset:{512 * ct}", tag=("cs", ct))

        def cost(t):
            if callable(t):
                return 4
            return sum(8 if l.startswith(("v_exp", "v_rcp", "v_rsq", "v_sqrt", "buffer")) else 4 for l in t.split("\n"))

        BUD = self.opt.get("dbud", 18)
        mem = []
        hold = 0
        b = 0
        for i, (ct, ks) in enumerate(seq):
            nxt = i + AH
            if nxt < len(seq):
                nct, nks = seq[nxt]
                if nks == 0 and nct == 5:
                    assert not any(tg in (("G", 5), ("G", 6)) for _, tg in mem)
                    k.wait(vm=[("G", 5), ("G", 6)])
                    k("s_barrier")
            if ks == 0 and ct >= 4:
                assert not any(tg == ("e", ct - 4) for _, tg in queue), ct
            if i < 84 and ct == 0:
                assert not any(tg == ("H", ks) for _, tg in queue)
                k.wait(vm=("H", ks), lg=("a", i))
            else:
                k.wait(lg=("a", i))
            self.mfma(vr(ACC + 16 * (ct % 4), 16), vr(AB + 4 * (i % NB), 4), vr(H + 4 * ks, 4), "0" if ks == 0 else None)
            if nxt < len(seq):
                aread(nxt)
            if i == self.opt.get("dwd", 40):
                mem += self.wd_loads(self.opt.get("nwd", 24), 56)
            if i == 66:
                assert not queue
                queue.append((lambda: k.wait(vm="S"), None))
                queue += [(f"v_add_f32 v{SL}, v{SL}, v{SL + c}", None) for c in range(1, 14)]
                queue += [(t.strip(), None) for t in self.stats(SL, SL + 1, VC, VB, VS)]
                queue += [(f"v_rsq_f32 v{VC}, v{VS}", None), (f"v_sqrt_f32 v{VS}, v{VS}", None),
                          (f"v_mul_f32 v{VC}, {f32(-math.log2(math.e))}, v{VC}", None)]
            if i == 83:
                assert not queue
                k("s_barrier")
                for c in range(4):
                    csread(c)
                mem = gdma(5, 0) + gdma(6, 28672) + mem
                self.stamp("D1")
                continue
            if i == 86:
                k.wait(lg=("cs", 3))
                for c in range(3):
                    corr(c)
                    queue += epilogue(c, False)
                hold = 3
                continue
            if i > 83 and ks == 27:
                k.wait(lg=("cs", ct))
                corr(ct)
                if not queue:
                    hold = 4
                queue += epilogue(ct, ct == 6)
                continue
            if i > 83 and ks == 8 and ct < 6:
                csread(ct + 1)
            b = min(b, 4) + BUD
            if mem and (hold or i & 1):
                t, tg = mem.pop(0)
                k(t, tag=tg)
                b -= cost(t)
                if mem and mem[0][1] is None:
                    k(mem.pop(0)[0])
                    b -= 4
            if hold:
                hold -= 1
                continue
            while queue and b >= cost(queue[0][0]):
                t, tg = queue.pop(0)
                b -= cost(t)
                if callable(t):
                    t()
                else:
                    k(t, tag=tg)
                if i < 66:
                    break
        assert not mem, len(mem)
        self.stamp("D2")
        self.dleft = len(queue)
        for t, tg in queue:
            k(t, tag=tg)
        k(f"s_lshl_b32 s50, {sA2}, 4\ns_add_u32 s50, s50, {sB2}")
        self.stamp("D3")
        self.publish(WS_FD, "s50", 184, 188)
        self.stamp("D4")

    def phase_e(self):
        k = self.k
        ACC, BF, R = 8, 72, 72
        NB, AH = 20, 8
        k(f"s_cmp_ge_u32 {sCB}, 14\ns_cbranch_scc1 L_tail")
        for i in range(16):
            k(f"v_accvgpr_read_b32 v{ACC + 48 + i}, a{224 + i}")
        k(f"""s_lshl_b32 s55, {sTB}, 4
        s_lshl_b32 s56, {sW}, 2
        s_add_u32 s55, s55, s56
        v_and_b32 v2, 3, v0
        v_add_u32 v2, s55, v2
        v_lshlrev_b32 v2, 7, v2
        s_mul_i32 s56, {sW}, 28672
        s_add_u32 s56, s56, {WS_ACT}
        s_mul_i32 s51, s62, {112 * 1024}
        s_add_u32 s51, s51, s56
        s_xor_b32 s50, s62, 1
        s_mul_i32 s50, s50, {112 * 1024}
        s_add_u32 s50, s50, s56""")
        self.poll("v2", "v3", WS_FD)
        self.stamp("E0")

        def load(ks):
            for t in range(2):
                k(f"buffer_load_dwordx4 {vr(BF + 8 * (ks % NB) + 4 * t, 4)}, v1, {WS}, s{50 + t} offen offset:{1024 * (ks & 3)} sc1", tag=("B", ks))
            if ks & 3 == 3:
                k("s_add_u32 s50, s50, 4096\ns_add_u32 s51, s51, 4096")

        for ks in range(AH):
            load(ks)
        for ks in range(28):
            k.wait(vm=("B", ks))
            for c in range(2):
                for t in range(2):
                    lt = 2 * c + t
                    self.mfma(vr(ACC + 16 * lt, 16), ar(8 * ks + 4 * c, 4), vr(BF + 8 * (ks % NB) + 4 * t, 4), "0" if (ks == 0 and lt < 3) else None)
                    if lt == 0 and ks + AH < 28:
                        load(ks + AH)
        self.stamp("E1")
        self.reduce4(ACC, R)
        o = ACC + 48
        for i in range(8):
            k(f"v_cvt_pk_bf16_f32 v{ACC + i}, v{o + 2 * i}, v{o + 2 * i + 1}")
        for s in range(2):
            k(f"buffer_store_dwordx4 {vr(ACC + 4 * s, 4)}, v254, {OUT}, 0 offen offset:{16 * s}")
        self.stamp("E2")
        k("s_branch L_fin")
        k.label("L_tail")
        k(f"""s_cmp_lg_u32 s2, 255
        s_cbranch_scc1 L_fin
        s_lshl_b32 s55, {sW}, 6
        v_add_u32 v2, s55, v0
        v_lshlrev_b32 v2, 7, v2""")
        self.poll("v2", "v3", WS_FP)
        k("s_mov_b32 s50, 0")
        self.publish(WS_E, "s50", 8, 12)
        k.label("L_fin")
        if self.ts:
            k(f"""s_memrealtime s[96:97]
            s_memtime s[98:99]
            s_waitcnt lgkmcnt(0)
            v_writelane_b32 v255, s96, 62
            v_writelane_b32 v255, s98, 63
            s_lshl_b32 s55, s2, 2
            s_add_u32 s55, s55, {sW}
            s_lshl_b32 s55, s55, 8
            s_add_u32 s55, s55, {WS_TS}
            v_lshlrev_b32 v2, 2, v0
            buffer_store_dword v255, v2, {WS}, s55 offen""")
            if self.ts == 2:
                k(f"""s_load_dwordx2 s[20:21], s[0:1], 64
                s_mov_b32 s22, 256
                v_readlane_b32 s56, v255, 0
                v_readlane_b32 s57, v255, 1
                s_sub_u32 s56, s96, s56
                v_subrev_u32 v255, s57, v255
                v_writelane_b32 v255, s56, 0
                s_lshl_b32 s55, s2, 2
                s_add_u32 s55, s55, {sW}
                s_lshl_b32 s55, s55, 8
                s_waitcnt lgkmcnt(0)
                buffer_store_dword v255, v2, {PA}, s55 offen""")
        if "spa" in self.opt:
            k(f"""s_cmp_lg_u32 s2, {self.opt.get("spw", 0)}
            s_cbranch_scc1 L_nospin
            s_memrealtime s[90:91]
            s_waitcnt lgkmcnt(0)
            s_sub_u32 s94, s94, s92
            s_min_u32 s94, s94, 20000
            s_mul_i32 s94, s94, 4""")
            k.label("L_spin")
            k("""s_memrealtime s[88:89]
            s_waitcnt lgkmcnt(0)
            s_sub_u32 s88, s88, s90
            s_cmp_lt_u32 s88, s94
            s_cbranch_scc1 L_spin""")
            k.label("L_nospin")
        k("s_waitcnt vmcnt(0)")
        k.label("L_end")
        k("s_endpgm")

    def build(self):
        self.prologue()
        self.phase_a()
        self.phase_b()
        self.phase_c()
        self.phase_d()
        self.phase_e()
        self.late_code()
        self.k.lines = [l.replace("CODE_LAST", "0x8000") for l in self.k.lines]
        n = self.k.pad()
        self.misal = align8(self.k.lines)
        last = (sum(sizes(self.k.lines)) - 128) & ~3
        assert last >= 0x8000
        self.k.lines = [l.replace("v_min_u32 v127, 0x8000", f"v_min_u32 v127, {last}") for l in self.k.lines]
        ref = open(f"cdna_kernels/{NAME}.s.ref").read().split("\n")
        head = [l for l in ref if l.startswith(";") and "@launch" not in l]
        out = head + ["; @launch grid=(256,1,1) block=(256,1,1) lds=163840",
                      '.amdgcn_target "amdgcn-amd-amdhsa--gfx950"', ".text", f".globl {NAME}_kernel", ".p2align 8",
                      f".type {NAME}_kernel,@function", f"{NAME}_kernel:"]
        out += [l if l.endswith(":") else "    " + l for l in self.k.lines]
        out += ['.section .rodata,"a"', ".p2align 6", f".amdhsa_kernel {NAME}_kernel",
                "  .amdhsa_next_free_vgpr 512", "  .amdhsa_next_free_sgpr 102", "  .amdhsa_accum_offset 256",
                "  .amdhsa_group_segment_fixed_size 0", "  .amdhsa_kernarg_size 80", "  .amdhsa_user_sgpr_count 2",
                "  .amdhsa_user_sgpr_kernarg_segment_ptr 1", "  .amdhsa_system_sgpr_workgroup_id_x 1", ".end_amdhsa_kernel", ""]
        self.nbytes = sum(sizes(self.k.lines))
        self.nnop = n
        return "\n".join(out)


if __name__ == "__main__":
    args = dict(a.split("=") for a in sys.argv[2:])
    args = {a: int(b) if b.lstrip('-').isdigit() else b for a, b in args.items()}
    g = Gen(**args)
    text = g.build()
    open(sys.argv[1], "w").write(text)
    if g.ts:
        open(sys.argv[1] + ".ts", "w").write(" ".join([str(g.ts)] + g.tsn))
    print(f"{sys.argv[1]}: {g.nbytes} bytes of code, {g.nnop} pads, {g.misal} misaligned, D tail {g.dleft}")
```

```python
import math
import struct
import sys

from asmlib import K, sizes, align8

NAME = "sequential_preLN__softmax_full_mha__glu_gated_glu__prompt"

WS_QKV, WS_O, WS_H, WS_ACT = 0, 0x600000, 0x800000, 0xA00000
WS_WGU, WS_WD, WS_WO, WS_CS = 0x1100000, 0x1500000, 0x1700000, 0x1780000
WS_FA, WS_FB, WS_FC, WS_FD, WS_E, WS_FP = 0x1800000, 0x1808000, 0x1810000, 0x1818000, 0x1820000, 0x1828000
WS_ST = 0x1880000
OOB = 0x40000000
WS_TS = 0x1900000
WS_FQ = 0x1A00000
WS_SIZE = 0x1B00000

X, WQ, WS, OUT, PA, PB = "s[4:7]", "s[8:11]", "s[12:15]", "s[16:19]", "s[20:23]", "s[24:27]"
sW, sA, sB, sTAG, sCNT, sONE, sFB = "s36", "s37", "s38", "s39", "s40", "s41", "s42"
sU, sPD, sPCS, sP0, sP1, sPST = "s43", "s44", "s45", "s46", "s47", "s48"
sXL = "s49"
sTB, sCB = "s88", "s89"
sO, sH, sST, sAC = "s3", "s34", "s100", "s101"
sA2, sB2, sPS, sPF = "s28", "s29", "s30", "s31"
vFLAG, vTAG = "v211", 212
LR = 114688
ONES = 0x3F803F80
U_D, U_O, U_END = 392, 588, 644


def f32(x):
    return hex(struct.unpack("<I", struct.pack("<f", x))[0])


def vr(b, n):
    return f"v[{b}:{b + n - 1}]"


def ar(b, n):
    return f"a[{b}:{b + n - 1}]"


class Gen:
    def __init__(self, ts=False, force_fb=False, **opt):
        self.k = K()
        self.ts = ts
        self.nts = 0
        self.tsn = []
        self.pend = []
        self.late = []
        self.force_fb = force_fb
        self.opt = opt

    def stamp(self, name, nw=False):
        if self.opt.get("spa") == name:
            self.k("s_memrealtime s[92:93]")
        if self.opt.get("spb") == name:
            self.k("s_memrealtime s[94:95]")
        if self.ts == 2 and name not in ("A0", "A3", "A7", "A9", "B0", "B1", "B3", "C0", "C3", "D0", "D4", "E0", "E2"):
            return
        if self.ts == 4 and not name.startswith(tuple(self.opt.get("tsp", "d"))):
            return
        if self.ts:
            ops = {3: ["s_memrealtime"], 4: ["s_memrealtime", "s_memtime"]}.get(self.ts, ["s_memtime"])
            if not nw and self.pend:
                self.k("s_waitcnt lgkmcnt(0)")
            for r, l in self.pend:
                self.k(f"v_writelane_b32 v255, s{r}, {l}")
            self.pend = []
            for j, op in enumerate(ops):
                self.k(f"{op} s[{98 - 2 * j}:{99 - 2 * j}]")
                self.pend.append((98 - 2 * j, self.nts + 2))
                self.nts += 1
                self.tsn.append(name)
            assert self.nts <= 54
            if not nw:
                self.k("s_waitcnt lgkmcnt(0)")
                for r, l in self.pend:
                    self.k(f"v_writelane_b32 v255, s{r}, {l}")
                self.pend = []
                self.k.lg.clear()

    def mfma(self, d, a, b, c=None):
        c = d if c is None else c
        self.k(f"v_mfma_f32_32x32x16_bf16 {d}, {a}, {b}, {c}")

    def poll(self, vaddr, vtmp, base, cnt=None):
        k = self.k
        L, Dn = k.newlabel("poll"), k.newlabel("seen")
        if not isinstance(base, str):
            k(f"s_mov_b32 s60, {base}")
            base = "s60"
        k.label(L)
        if self.ts and cnt:
            k(f"s_add_u32 {cnt}, {cnt}, 1")
        k(f"buffer_load_dword {vtmp}, {vaddr}, {WS}, {base} offen sc1")
        k.wait(vm="all")
        k(f"""v_cmp_ne_u32 vcc, {sTAG}, {vtmp}
        s_cbranch_vccz {Dn}
        s_sub_u32 {sCNT}, {sCNT}, 1
        s_cselect_b32 {sCNT}, 0, {sCNT}
        s_cbranch_scc0 {L}""")
        k.label(Dn)

    def publish(self, base, sidx, vt, vo):
        k = self.k
        for i in range(4):
            k(f"v_mov_b32 v{vt + i}, {sTAG}")
        k(f"""s_lshl_b32 s60, {sidx}, 7
        s_add_u32 s60, s60, {base}
        s_cmp_eq_u32 {sW}, 0
        s_cselect_b32 s60, s60, {OOB}
        v_lshrrev_b32 v{vo}, 3, v0
        v_lshl_add_u32 v{vo}, v{vo}, 26, v1""")
        k.wait(vm="all")
        k(f"s_barrier\nbuffer_store_dwordx4 {vr(vt, 4)}, v{vo}, {WS}, s60 offen sc1")

    def stats(self, vs, vq, t0, vb, vrs):
        return f"""v_mov_b32 v{vq}, v{vs}
        v_permlane32_swap_b32 v{vs}, v{vq}
        v_mul_f32 v{vs}, {f32(-1.0 / 448)}, v{vs}
        v_mul_f32 v{vq}, {f32(1.0 / 448)}, v{vq}
        v_cvt_pk_bf16_f32 v{t0}, v{vs}, v{vs}
        v_fma_f32 v{vq}, -v{vs}, v{vs}, v{vq}
        v_and_b32 v{t0}, 0xffff0000, v{t0}
        v_max_f32 v{vq}, 0, v{vq}
        v_sub_f32 v{t0}, v{vs}, v{t0}
        v_add_f32 v{vrs}, {f32(1e-5)}, v{vq}
        v_cvt_pk_bf16_f32 v{vb}, v{vs}, v{t0}
        v_cvt_pk_bf16_f32 v{vb + 1}, v{vs}, v{t0}""".split("\n")

    def split2(self, vc, vd):
        return f"""v_cvt_pk_bf16_f32 v{vd}, v{vc}, v{vc}
        v_and_b32 v{vd + 1}, 0xffff0000, v{vd}
        v_sub_f32 v{vd + 1}, v{vc}, v{vd + 1}
        v_cvt_pk_bf16_f32 v{vd + 1}, v{vd + 1}, v{vd + 1}""".split("\n")

    def prologue(self):
        k = self.k
        k(f"""s_cmp_ge_u32 s2, 0x100
        s_cbranch_scc1 L_end
        s_load_dwordx16 s[64:79], s[0:1], 0
        s_load_dwordx2 s[12:13], s[0:1], 72""")
        if self.ts:
            k("s_memrealtime s[96:97]\ns_memtime s[98:99]")
        if "spa" in self.opt:
            k("s_memrealtime s[92:93]\ns_memrealtime s[94:95]")
        if self.opt.get("touch", 1):
            k.note("pull the whole code object into this die's L2 ahead of instruction fetch")
            k("""s_getpc_b64 s[86:87]
            v_lshlrev_b32 v127, 7, v0
            global_load_dword v200, v127, s[86:87]
            v_add_u32 v127, 0x8000, v127
            v_min_u32 v127, CODE_LAST, v127
            global_load_dword v201, v127, s[86:87]""")
        k(f"""v_lshrrev_b32 v2, 6, v0
        v_and_b32 v0, 63, v0
        s_and_b32 {sA}, s2, 7
        v_readfirstlane_b32 {sW}, v2
        s_lshl_b32 {sA}, {sA}, 1
        s_bfe_u32 s50, s2, 0x10003
        s_add_u32 {sA}, {sA}, s50
        s_lshr_b32 {sB}, s2, 4
        s_bfe_u32 {sA2}, s2, 0x20001
        s_lshl_b32 {sA2}, {sA2}, 2
        s_bfe_u32 s50, s2, 0x20003
        s_add_u32 {sA2}, {sA2}, s50
        s_and_b32 {sB2}, s2, 1
        s_lshl_b32 {sB2}, {sB2}, 3
        s_lshr_b32 s50, s2, 5
        s_add_u32 {sB2}, {sB2}, s50
        v_lshlrev_b32 v1, 4, v0
        s_mov_b32 {sCNT}, 0x40000
        s_mov_b32 {sONE}, {ONES}
        s_mov_b32 {sFB}, 0
        v_mov_b32 v254, 0""")
        mp = self.opt.get("map", 2)
        if mp == 0:
            k(f"s_mov_b32 {sTB}, {sA}\ns_mov_b32 {sCB}, {sB}")
        else:
            k(f"s_mov_b32 {sTB}, {sA2}\ns_and_b32 {sCB}, s2, 1\ns_lshl_b32 s50, s50, 1\ns_add_u32 {sCB}, {sCB}, s50")
        if mp == 2:
            k(f"s_mov_b32 {sA}, {sB2}\ns_mov_b32 {sB}, {sA2}")
        k(f"""s_mul_i32 s50, {sB2}, 168
        s_and_b32 s51, s50, 15
        s_sub_u32 s50, s50, s51
        s_mul_i32 s52, {sW}, {16 * 2688}
        s_add_u32 s50, s50, s52""")
        for t in range(3):
            k(f"""v_add_u32 v14, {64 * t}, v0
            v_mul_u32_u24 v15, 171, v14
            v_lshrrev_b32 v15, 11, v15
            v_mul_u32_u24 v16, 12, v15
            v_sub_u32 v16, v14, v16
            v_min_u32 v16, 10, v16
            v_mul_u32_u24 v15, 2688, v15
            v_lshlrev_b32 v16, 4, v16
            v_add3_u32 v{3 + t}, v15, v16, s50""")
        k(f"""v_lshrrev_b32 v14, 3, v0
        v_and_b32 v15, 7, v0
        v_lshrrev_b32 v16, 4, v0
        v_xor_b32 v16, v15, v16
        v_mul_u32_u24 v17, 896, v14
        s_lshl_b32 s52, {sA2}, 2
        s_add_u32 s52, s52, {sW}
        s_mul_i32 s52, s52, {32 * 896}
        v_lshlrev_b32 v18, 4, v16
        v_add3_u32 v6, v17, v18, s52
        v_xor_b32 v7, 64, v6""")
        k(f"""s_lshl_b32 {sXL}, {sW}, 14
        s_add_u32 {sXL}, {sXL}, 86016""")
        k(f"""s_lshr_b32 s53, s2, 3
        s_mul_i32 s54, s53, 37
        s_lshr_b32 s54, s54, 8
        s_mul_i32 s54, s54, 7
        s_sub_u32 s53, s53, s54
        s_mul_i32 s54, {sW}, 3072
        s_mov_b32 s6, {2048 * 896}
        s_mov_b32 s7, 0x20000
        s_mov_b32 s10, {448 * 2688}
        s_mov_b32 s11, 0x20000
        s_mov_b32 s14, {WS_SIZE}
        s_mov_b32 s15, 0x20000
        s_mov_b32 s18, {2048 * 896}
        s_mov_b32 s19, 0x20000
        s_mov_b32 s23, 0x20000
        s_mov_b32 s27, 0x20000
        s_mov_b32 s60, {WS_E}
        v_mov_b32 v16, 0
        s_waitcnt lgkmcnt(0)
        s_mov_b32 s4, s64
        s_mov_b32 s5, s65
        s_mov_b32 s8, s66
        s_mov_b32 s9, s67""")
        if self.ts:
            k("v_writelane_b32 v255, s96, 0\nv_writelane_b32 v255, s98, 1")
            for i in range(6):
                k(f"s_mov_b32 s{90 + i}, 0")

    def a_dma(self, c):
        g = []
        pre = f"s_mul_i32 s55, s53, {64 * 2688}\ns_lshl_b32 s56, s53, 7\n"
        for t in range(3):
            g.append(pre + f"s_add_u32 m0, s54, {c * 12288 + t * 1024}\ns_nop 0\nbuffer_load_dwordx4 v{3 + t}, {WQ}, s55 offen lds")
            pre = ""
        for t in range(4):
            post = "\ns_add_u32 s53, s53, 1\ns_cmp_eq_u32 s53, 7\ns_cselect_b32 s53, 0, s53" if t == 3 else ""
            g.append(f"s_add_u32 m0, {sXL}, {(c % 4) * 4096 + t * 1024}\ns_add_u32 s57, s56, {t * 8 * 896}\n"
                     f"buffer_load_dwordx4 v{6 + (t & 1)}, {X}, s57 offen lds" + post)
        return g

    def p_dma(self, h):
        slot = 3 if h == 0 else 0
        srd, sb = (PA, sP0) if h == 0 else (PB, sP1)
        g = []
        for t in range(4):
            g.append(f"s_add_u32 m0, {sXL}, {slot * 4096 + t * 1024}\ns_nop 0\nbuffer_load_dwordx4 v2, {srd}, {sb} offen lds\n"
                     f"s_add_u32 {sb}, {sb}, {sPST}")
        return g

    def unit_setup(self):
        k = self.k
        k(f"""s_mov_b32 s16, s78
        s_mov_b32 s17, s79
        s_lshl_b32 {sU}, {sW}, 8
        s_add_u32 {sU}, {sU}, s2
        s_cmp_ge_u32 {sU}, {U_D}
        s_cbranch_scc1 L_u1
        s_mov_b32 s20, s72
        s_mov_b32 s21, s73
        s_mov_b32 s24, s74
        s_mov_b32 s25, s75
        s_mov_b32 s22, {448 * 3584}
        s_mul_i32 s58, {sU}, 4682
        s_lshr_b32 s58, s58, 16
        s_mul_i32 s59, s58, 14
        s_sub_u32 s59, {sU}, s59
        s_mul_i32 {sP0}, s59, {32 * 3584}
        s_lshl_b32 s61, s58, 7
        s_add_u32 {sP0}, {sP0}, s61
        s_mov_b32 {sP1}, {sP0}
        s_mov_b32 {sPST}, 3584
        s_mul_i32 {sPD}, s58, {4 * 28 * 1024}
        s_lshl_b32 s61, s59, 11
        s_add_u32 {sPD}, {sPD}, s61
        s_add_u32 {sPD}, {sPD}, {WS_WGU}
        s_mov_b32 {sPS}, 28672
        s_lshl_b32 {sPCS}, {sU}, 9
        s_add_u32 {sPCS}, {sPCS}, {WS_CS}
        s_branch L_u3""")
        k.label("L_u1")
        k(f"""s_mov_b32 {sPST}, 896
        s_mov_b32 {sPS}, 2048
        s_mov_b32 {sPCS}, {OOB}
        s_cmp_ge_u32 {sU}, {U_O}
        s_cbranch_scc1 L_u2
        s_mov_b32 s20, s76
        s_mov_b32 s21, s77
        s_mov_b32 s24, s76
        s_mov_b32 s25, s77
        s_mov_b32 s22, {1792 * 896}
        s_sub_u32 s61, {sU}, {U_D}
        s_mul_i32 s58, s61, 2341
        s_lshr_b32 s58, s58, 16
        s_mul_i32 s59, s58, 28
        s_sub_u32 s59, s61, s59
        s_mul_i32 {sP0}, s59, {64 * 896}
        s_lshl_b32 s58, s58, 7
        s_add_u32 {sP0}, {sP0}, s58
        s_add_u32 {sP1}, {sP0}, {32 * 896}
        s_lshl_b32 {sPD}, s61, 13
        s_add_u32 {sPD}, {sPD}, {WS_WD}
        s_branch L_u3""")
        k.label("L_u2")
        k(f"""s_mov_b32 s20, s68
        s_mov_b32 s21, s69
        s_mov_b32 s24, s68
        s_mov_b32 s25, s69
        s_cmp_lt_u32 {sU}, {U_END}
        s_cselect_b32 s22, {448 * 896}, 0
        s_sub_u32 s61, {sU}, {U_O}
        s_lshr_b32 s58, s61, 3
        s_and_b32 s59, s61, 7
        s_mul_i32 {sP0}, s59, {56 * 896}
        s_lshl_b32 s58, s58, 7
        s_add_u32 {sP0}, {sP0}, s58
        s_add_u32 {sP1}, {sP0}, {28 * 896}
        s_lshl_b32 {sPD}, s61, 13
        s_add_u32 {sPD}, {sPD}, {WS_WO}
        s_cmp_lt_u32 {sU}, {U_END}
        s_cselect_b32 {sPD}, {sPD}, {OOB}""")
        k.label("L_u3")
        k(f"""s_mov_b32 s26, s22
        s_lshl_b32 {sPF}, {sU}, 7
        s_add_u32 {sPF}, {sPF}, {WS_FP}
        s_cmp_lt_u32 {sU}, {U_END}
        s_cselect_b32 {sPF}, {sPF}, {OOB}
        v_lshrrev_b32 v16, 3, v0
        v_and_b32 v17, 7, v0
        v_mul_lo_u32 v16, v16, {sPST}
        v_lshl_add_u32 v2, v17, 4, v16
        s_lshl_b32 {sPST}, {sPST}, 3""")

    def out_addrs(self):
        k = self.k
        k(f"""s_lshl_b32 s58, {sB}, 2
        s_add_u32 s58, s58, {sW}
        s_lshl_b32 s58, s58, 4
        s_add_u32 s58, s58, {sA}
        s_lshl_b32 s58, s58, 11
        s_add_u32 {sO}, s58, {WS_O}
        s_and_b32 s58, {sCB}, 1
        s_lshl_b32 s58, s58, 1
        s_lshl_b32 s59, {sTB}, 2
        s_add_u32 s58, s58, s59
        s_and_b32 s59, {sW}, 1
        s_add_u32 s62, s58, s59
        s_lshr_b32 s59, {sW}, 1
        s_and_b32 s63, {sCB}, 14
        s_add_u32 s63, s63, s59
        s_mul_i32 s58, s62, 14
        s_add_u32 s58, s58, s63
        s_lshl_b32 {sST}, s58, 8
        s_lshl_b32 {sH}, s58, 11
        s_add_u32 {sH}, {sH}, {WS_H}
        s_add_u32 {sST}, {sST}, {WS_ST}
        s_cmp_ge_u32 {sCB}, 14
        s_cselect_b32 {sH}, {OOB}, {sH}
        s_cselect_b32 {sST}, {OOB}, {sST}
        s_lshl_b32 s58, {sA2}, 2
        s_add_u32 s58, s58, {sW}
        s_mul_i32 {sAC}, s58, {112 * 1024}
        s_mul_i32 s59, {sB2}, 7168
        s_add_u32 {sAC}, {sAC}, s59
        s_add_u32 {sAC}, {sAC}, {WS_ACT}""")

    def clears(self):
        g = [f"buffer_store_dwordx4 a[220:223], v1, {WS}, {b} offen offset:{1024 * s} sc1" for b in ("s64", "s65") for s in range(2)]
        g.append(f"buffer_store_dword a220, v210, {WS}, s66 offen sc1")
        return g

    def flagcheck(self, tag, vaddr, vtmp, base):
        k = self.k
        L1, L2 = k.newlabel("fw"), k.newlabel("fok")
        k.wait(vm=tag)
        k(f"v_cmp_ne_u32 vcc, {sTAG}, {vtmp}\ns_cbranch_vccnz {L1}")
        k.label(L2)
        self.late.append(("poll", L1, L2, vaddr, vtmp, base))

    def datacheck(self, regs, vt, loads):
        k = self.k
        L1, L2 = k.newlabel("rs"), k.newlabel("rok")
        k("\n".join(self.maxchain(regs, vt)))
        k(f"v_cmp_eq_u32 vcc, -1, v{vt}\ns_cbranch_vccnz {L1}")
        k.label(L2)
        self.late.append(("respin", L1, L2, loads, regs, vt))

    def wo(self, i):
        return ar(224 + 4 * i, 4) if i < 8 else vr(216 + 4 * (i - 8), 4)

    @staticmethod
    def maxchain(regs, vt):
        g = []
        regs = list(regs)
        acc = regs.pop(0)
        while regs:
            if len(regs) >= 2:
                g.append(f"v_max3_u32 v{vt}, v{acc}, v{regs.pop(0)}, v{regs.pop(0)}")
            else:
                g.append(f"v_max_u32 v{vt}, v{acc}, v{regs.pop(0)}")
            acc = vt
        return g

    def phase_a(self):
        k = self.k
        DEP = self.opt.get("adep", 3)
        ACC, FR, SQ, SM, CS, ON, T = 16, 64, 96, 104, 112, 124, 128
        LX = 151552
        k(f"buffer_load_dword v126, v16, {WS}, s60 offen sc1", tag="E")
        for c in range(DEP):
            for g in self.a_dma(c):
                k(g, tag=("A", c))
            if c == 0:
                k.note("LDS read addresses: v8..v11 W (transposed), v12..v15 x; k-step order rotated by the wave index")
                k(f"""v_bfe_u32 v16, v0, 2, 2
                v_lshrrev_b32 v17, 5, v0
                v_lshl_add_u32 v16, v17, 3, v16
                v_mul_u32_u24 v16, 192, v16
                v_bfe_u32 v18, v0, 4, 1
                v_lshlrev_b32 v18, 5, v18
                v_and_b32 v19, 3, v0
                v_lshl_add_u32 v18, v19, 3, v18
                v_add3_u32 v19, v16, v18, s51
                v_and_b32 v16, 31, v0
                v_bfe_u32 v18, v0, 1, 3
                v_xor_b32 v18, v18, v17
                v_lshlrev_b32 v18, 4, v18
                v_lshl_add_u32 v16, v16, 7, v18
                v_add_u32 v16, {sXL}, v16
                v_mov_b32 v{ON}, {sONE}
                v_mov_b32 v{ON + 1}, {sONE}""")
                for p in range(4):
                    k(f"""s_add_u32 s58, {sW}, {p}
                    s_and_b32 s58, s58, 3
                    s_mul_i32 s59, s58, 3072
                    s_lshl_b32 s58, s58, 5
                    v_add_u32 v{8 + p}, s59, v19
                    v_xor_b32 v{12 + p}, s58, v16""")
            if c == 0:
                self.out_addrs()
            if c == 1:
                self.unit_setup()
        k(f"""v_and_b32 v{T}, 31, v0
        v_mul_u32_u24 v{T}, 80, v{T}
        v_lshrrev_b32 v{T + 1}, 5, v0
        v_lshl_add_u32 v{T}, v{T + 1}, 3, v{T}
        v_bfe_u32 v16, v0, 2, 2
        v_lshl_add_u32 v{T + 1}, v{T + 1}, 2, v16
        v_mul_u32_u24 v{T + 1}, 80, v{T + 1}
        v_bfe_u32 v16, v0, 4, 1
        v_lshl_add_u32 v{T + 1}, v16, 5, v{T + 1}
        v_and_b32 v16, 3, v0
        v_lshl_add_u32 v{T + 1}, v16, 3, v{T + 1}
        v_add_u32 v{T}, {sXL}, v{T}
        v_add_u32 v{T + 1}, {sXL}, v{T + 1}
        v_add_u32 v{T + 3}, {LX}, v1
        s_lshl_b32 s58, {sW}, 2
        v_add_u32 v{T + 2}, s58, v{T + 3}
        v_cmp_eq_u32 s[80:81], 1, v16
        v_cmp_eq_u32 s[82:83], 2, v16
        v_cmp_eq_u32 s[84:85], 3, v16""")

        def reads(c, ks):
            n = 4 * c + ks
            f = FR + 16 * (n & 1)
            if c == 4:
                k(f"v_add_u32 v{8 + ks}, 49152, v{8 + ks}")
            k(f"ds_read_b128 {vr(f, 4)}, v{12 + ks} offset:{(c % 4) * 4096}", tag=("r", n))
            for m in range(3):
                for q in range(2):
                    off = (c % 4) * 12288 + 4 * q * 192 + 56 * m
                    k(f"ds_read_b64_tr_b16 {vr(f + 4 + 4 * m + 2 * q, 2)}, v{8 + ks} offset:{off}", tag=("r", n))

        def small(d, a, b, first):
            k(f"v_mfma_f32_4x4x4bf16_1k {vr(d, 4)}, {vr(a, 2)}, {vr(b, 2)}, {'0' if first else vr(d, 4)}")

        CX = 136
        VB, VR_, CA = 150, 149, 152
        for c in range(7):
            k.wait(vm=("A", c))
            k("s_barrier")
            self.stamp(f"A{c}")
            reads(c, 0)
            extra = []
            nx = c + DEP
            if nx < 7:
                extra = [(g, ("A", nx)) for g in self.a_dma(nx)]
            if c == 4:
                extra += [(g, "P") for g in self.p_dma(0)]
            if c == 5:
                extra += [(g, "P") for g in self.p_dma(1)]
            for ks in range(4):
                n = 4 * c + ks
                f = FR + 16 * (n & 1)
                if ks < 3:
                    reads(c, ks + 1)
                k.wait(lg=("r", n))
                for h in range(2):
                    small(SQ + 4 * h, f + 2 * h, f + 2 * h, n == 0)
                    small(SM + 4 * h, ON, f + 2 * h, n == 0)
                if ks == 0:
                    for h in range(2):
                        for m in range(3):
                            small(CS + 4 * m, ON, f + 4 + 4 * m + 2 * h, n == 0 and h == 0)
                tail = []
                if n == 27:
                    tail = [f"v_add_f32 v{SQ + i}, v{SQ + i}, v{SQ + 4 + i}" for i in range(4)]
                    tail += [f"v_add_f32 v{SM}, v{SM}, v{SM + 4}"]
                    tail += [f"v_cndmask_b32 v{SQ}, v{SQ}, v{SQ + i}, s[{78 + 2 * i}:{79 + 2 * i}]" for i in range(1, 4)]
                    tail += [f"v_permlane32_swap_b32 v{SM}, v{SQ}", f"v_add_f32 v{SM}, v{SM}, v{SQ}"]
                    tail += self.stats(SM, SQ, 148, VB, VR_) + [f"v_rsq_f32 v{VR_}, v{VR_}"]
                if n == 26:
                    k.wait(lg="cx")
                    for m in range(3):
                        tail += [f"v_add_f32 v{CX + 4 * m}, v{CX + 4 * m}, v{CX + 4 * m + i}" for i in range(1, 4)]
                        tail += self.split2(CX + 4 * m, CA + 2 * m)
                for m in range(3):
                    self.mfma(vr(ACC + 16 * m, 16), vr(f + 4 + 4 * m, 4), vr(f, 4), "0" if n == 0 else None)
                    if extra:
                        g, tg = extra.pop(0)
                        k(g, tag=tg)
                    if n == 24 and m == 2:
                        for j in range(3):
                            k(f"ds_write_b32 v{T + 2}, v{CS + 4 * j} offset:{1024 * j}", tag="cw")
                    if n == 25 and m == 0:
                        k.wait(lg="cw")
                        k("s_barrier")
                        for j in range(3):
                            k(f"ds_read_b128 {vr(CX + 4 * j, 4)}, v{T + 3} offset:{1024 * j}", tag="cx")
                    cnt = len(tail) if m == 2 else 7
                    for t in tail[:cnt]:
                        k(t)
                    tail = tail[cnt:]
            assert not extra
        self.stamp("A7")
        for m in range(3):
            k(f"v_mfma_f32_32x32x8bf16_1k {vr(ACC + 16 * m, 16)}, {vr(CA + 2 * m, 2)}, {vr(VB, 2)}, {vr(ACC + 16 * m, 16)}")
        qs = math.log2(math.e) / math.sqrt(28.0)
        k(f"""v_readfirstlane_b32 {sTAG}, v126
        s_mul_i32 s50, {sB2}, 3
        s_lshl_b32 s51, {sA2}, 2
        s_add_u32 s51, s51, {sW}
        s_lshl_b32 s51, s51, 11
        s_add_u32 {sTAG}, {sTAG}, 0x9e3779b9""")
        for m in range(3):
            a, p = ACC + 16 * m, FR + 8 * m
            Lq = k.newlabel("nv")
            k(f"""s_add_u32 s52, s50, {m}
            s_lshl_b32 s55, s52, 17
            s_add_u32 s55, s55, s51
            s_cmp_lt_u32 s52, 16
            s_cselect_b32 s56, {f32(qs)}, 1.0
            s_cselect_b32 s57, 0, {sONE}
            s_cselect_b32 s58, 0, 0x3f80
            s_cmp_ge_u32 s52, 32
            s_cselect_b32 s57, 0x3f80, s57
            s_cselect_b32 s58, 0, s58
            v_mul_f32 v{SQ}, s56, v{VR_}""")
            for i in range(8):
                k(f"v_pk_mul_f32 {vr(a + 2 * i, 2)}, {vr(a + 2 * i, 2)}, {vr(SQ, 2)} op_sel_hi:[1,0]")
            for i in range(8):
                k(f"v_cvt_pk_bf16_f32 v{p + i}, v{a + 2 * i}, v{a + 2 * i + 1}")
            k(f"""s_mov_b32 exec_lo, 0
            v_mov_b32 v{p + 6}, s57
            v_mov_b32 v{p + 7}, s58
            s_mov_b32 exec_lo, -1
            s_cbranch_scc0 {Lq}""")
            for q in range(4):
                k(f"ds_write_b64 v{T}, {vr(p + 2 * q, 2)} offset:{4096 + 2560 * m + 16 * q}")
            for s in range(2):
                for q in range(2):
                    k(f"ds_read_b64_tr_b16 {vr(p + 4 * s + 2 * q, 2)}, v{T + 1} offset:{4096 + 2560 * m + (16 * s + 8 * q) * 80}")
            k.wait(lg="all")
            k.label(Lq)
            for s in range(2):
                k(f"buffer_store_dwordx4 {vr(p + 4 * s, 4)}, v1, {WS}, s55 offen offset:{1024 * s} sc1")
        self.stamp("A8")
        self.prelayout()
        k(f"s_lshl_b32 s50, {sA2}, 4\ns_add_u32 s50, s50, {sB2}")
        self.publish(WS_FA, "s50", vTAG, 211)
        self.stamp("A9")

    def prelayout(self):
        k = self.k
        F = 216
        k(f"""v_bfe_u32 v20, v0, 2, 2
        v_lshrrev_b32 v21, 5, v0
        v_bfe_u32 v22, v0, 4, 1
        v_and_b32 v23, 3, v0""")
        for q in range(4):
            k(f"v_mov_b32 v{F + 32 + q}, 0")
        k.wait(vm="P")
        k(f"s_cmp_ge_u32 {sU}, {U_D}\ns_cbranch_scc1 L_p1")
        k(f"""v_lshl_add_u32 v20, v21, 4, v20
        v_lshlrev_b32 v20, 7, v20
        v_lshl_add_u32 v20, v23, 3, v20
        v_xor_b32 v22, 1, v22
        v_mul_u32_u24 v22, 12288, v22
        v_add3_u32 v20, v20, v22, {sXL}""")
        for q in range(4):
            for e in range(2):
                for h in range(2):
                    k(f"ds_read_b64_tr_b16 {vr(F + 8 * q + 4 * e + 2 * h, 2)}, v20 offset:{32 * q + (8 * e + 4 * h) * 128}", tag=("p", q))
        for q in range(4):
            k.wait(lg=("p", q))
            for j in range(8):
                k(f"v_dot2c_f32_bf16 v{F + 32 + q}, {sONE}, v{F + 8 * q + j}")
        k(f"""v_permlane32_swap_b32 v{F + 32}, v{F + 34}
        v_permlane32_swap_b32 v{F + 33}, v{F + 35}
        v_add_f32 v{F + 32}, v{F + 32}, v{F + 34}
        v_add_f32 v{F + 33}, v{F + 33}, v{F + 35}""")
        k("s_branch L_p2")
        k.label("L_p1")
        k(f"""v_lshl_add_u32 v20, v21, 2, v20
        v_lshlrev_b32 v20, 7, v20
        v_lshl_add_u32 v20, v22, 4, v20
        v_and_b32 v21, 1, v23
        v_lshl_add_u32 v20, v21, 5, v20
        v_lshrrev_b32 v21, 1, v23
        v_lshl_add_u32 v20, v21, 3, v20
        v_add_u32 v20, {sXL}, v20""")
        for e in range(4):
            for ct in range(2):
                for h in range(2):
                    off = (12288 if e < 2 else 0) + 64 * ct + (16 * (e & 1) + 8 * h) * 128
                    k(f"ds_read_b64_tr_b16 {vr(F + 8 * e + 4 * ct + 2 * h, 2)}, v20 offset:{off}")
        k.wait(lg="all")
        k.label("L_p2")

    def phase_b(self):
        k = self.k
        Q, O, S, P, KV = 8, 40, 104, 136, 144
        DEP = 4
        sK, sWD, sGL = "s50", "s32", "s54"
        k(f"""s_add_u32 s55, {sA}, 16
        s_mul_i32 s55, s55, 43
        s_lshr_b32 s55, s55, 7
        s_add_u32 s56, {sA}, 32
        s_mul_i32 s56, s56, 43
        s_lshr_b32 s56, s56, 7
        s_mul_i32 s57, {sA}, 43
        s_lshr_b32 s57, s57, 7
        s_lshl_b32 s58, {sB}, 4
        s_add_u32 s57, s57, s58
        s_lshl_b32 s58, {sW}, 6
        s_add_u32 s55, s55, s58
        s_add_u32 s56, s56, s58
        v_and_b32 v2, 3, v0
        v_lshlrev_b32 v3, 4, v2
        v_add_u32 v4, s55, v3
        v_add_u32 v5, s56, v3
        v_mov_b32 v136, s57
        v_cmp_gt_u32 vcc, 8, v0
        v_cndmask_b32 v136, v136, v5, vcc
        v_cmp_gt_u32 vcc, 4, v0
        v_cndmask_b32 v136, v136, v4, vcc
        v_lshlrev_b32 v136, 7, v136
        s_lshl_b32 s55, {sTB}, 4
        s_lshl_b32 s56, {sW}, 2
        s_add_u32 s55, s55, s56
        v_add_u32 v2, s55, v2
        v_lshlrev_b32 v2, 7, v2""")
        k(f"""s_mul_i32 s55, {sB2}, 7
        s_lshr_b32 s55, s55, 2
        s_add_u32 s71, s55, {sW}
        s_mul_i32 s55, s55, 14
        s_lshr_b32 s56, {sCB}, 1
        s_min_u32 s56, s56, 6
        s_mul_i32 s57, s56, 28
        s_mul_i32 s58, {sW}, 7
        s_add_u32 s57, s57, s58
        s_lshl_b32 {sWD}, s57, 13
        s_add_u32 {sWD}, {sWD}, {WS_WD}
        s_add_u32 s57, s57, {U_D - 42}
        s_lshl_b32 s56, s56, 3
        s_lshl_b32 s58, {sW}, 1
        s_add_u32 s56, s56, s58
        s_lshl_b32 s35, s56, 13
        s_add_u32 s35, s35, {WS_WO}
        s_add_u32 s56, s56, {U_O}
        s_cmp_ge_u32 {sCB}, 14
        s_cselect_b32 {sWD}, {OOB}, {sWD}
        s_cselect_b32 s35, {OOB}, s35
        v_add_u32 v4, s55, v0
        v_min_u32 v4, {U_D - 1}, v4
        v_add_u32 v5, s57, v0
        v_and_b32 v3, 1, v0
        v_add_u32 v3, s56, v3
        v_cmp_gt_u32 vcc, 49, v0
        v_cndmask_b32 v3, v3, v5, vcc
        v_cmp_gt_u32 vcc, 42, v0
        v_cndmask_b32 v3, v3, v4, vcc
        v_lshlrev_b32 v3, 7, v3""")
        for t in range(3):
            k(f"""s_xor_b32 s55, {sW}, {3 - t}
            s_mul_i32 s55, s55, 12288
            s_add_u32 s55, s55, {LR + 4096 * t}
            v_add_u32 v{4 + t}, s55, v1""")
        k(f"""s_mul_i32 s55, {sW}, 12288
        s_add_u32 s55, s55, {LR}
        v_add_u32 v7, s55, v1
        v_add_u32 v208, {1024 * 2048}, v1
        v_lshlrev_b32 v210, 2, v0
        s_lshr_b32 s55, {sW}, 1
        s_lshl_b32 s55, s55, 10
        v_add_u32 v253, s55, v1
        v_xor_b32 v252, 1024, v253
        v_and_b32 v254, 31, v0
        v_lshrrev_b32 v251, 5, v0
        v_lshlrev_b32 v250, 4, v254
        v_lshl_add_u32 v250, v251, 3, v250
        v_mul_u32_u24 v254, 896, v254
        v_lshl_add_u32 v254, v251, 5, v254
        s_mul_i32 s55, s62, {32 * 896}
        s_lshl_b32 s56, s63, 6
        s_add_u32 s55, s55, s56
        s_cmp_ge_u32 {sCB}, 14
        s_cselect_b32 s55, {OOB}, s55
        v_add_u32 v254, s55, v254
        s_mul_i32 s55, {sB2}, {7 * 28672}
        s_add_u32 s55, s55, {WS_WGU}
        v_add_u32 v251, s55, v1
        s_mul_i32 {sGL}, {sW}, 28672""")
        for i in range(4):
            k(f"v_accvgpr_write_b32 a{220 + i}, -1")
        k(f"""s_mov_b32 s64, {sO}
        s_mov_b32 s65, {sH}
        s_mov_b32 s66, {sST}
        s_lshl_b32 s67, {sB}, 4
        s_add_u32 s67, s67, {sA}
        s_lshl_b32 s67, s67, 7
        s_add_u32 s67, s67, {WS_FB}
        s_lshl_b32 s68, {sTB}, 4
        s_add_u32 s68, s68, {sCB}
        s_lshl_b32 s68, s68, 7
        s_add_u32 s68, s68, {WS_FC}
        s_cmp_eq_u32 {sW}, 0
        s_cselect_b32 s67, s67, {OOB}
        s_cselect_b32 s68, s68, {OOB}
        s_lshl_b32 s55, s62, 4
        s_lshl_b32 s56, {sW}, 2
        s_add_u32 s55, s55, s56
        s_lshl_b32 s55, s55, 11
        s_add_u32 s70, s55, {WS_O}
        s_xor_b32 s69, s55, 0x8000
        s_add_u32 s69, s69, {WS_O}
        s_min_u32 s71, s71, 27
        s_mul_i32 s71, s71, 7168
        s_add_u32 s71, s71, {WS_CS}
        s_cmp_lt_u32 {sW}, 3
        s_cselect_b32 s71, s71, {OOB}
        s_lshl_b32 s55, {sA2}, 2
        s_add_u32 s55, s55, {sW}
        s_mul_i32 s72, s55, 28672
        s_add_u32 s72, s72, {WS_H}
        s_mul_i32 s73, s55, 3584
        s_add_u32 s73, s73, {WS_ST}
        s_lshl_b32 s76, s55, 4
        s_add_u32 s76, s76, {sB2}
        s_lshl_b32 s76, s76, 7
        s_add_u32 s76, s76, {WS_FQ}
        s_add_u32 s56, {sGL}, {WS_ACT}
        s_mul_i32 s75, s62, {112 * 1024}
        s_add_u32 s75, s75, s56
        s_xor_b32 s74, s62, 1
        s_mul_i32 s74, s74, {112 * 1024}
        s_add_u32 s74, s74, s56
        s_cmp_ge_u32 {sCB}, 14
        s_cselect_b32 s74, {OOB}, s74
        s_cselect_b32 s75, {OOB}, s75""")
        for t in range(2):
            for j in range(4):
                k(f"s_add_u32 s{78 + 4 * t + j}, s{74 + t}, {7168 * j}")
        self.poll("v136", "v209", WS_FA)
        self.stamp("B0")
        k(f"s_lshl_b32 s55, {sA}, 6\ns_lshl_b32 s56, {sB}, 2\ns_add_u32 s55, s55, s56")
        for u in range(4):
            k(f"s_xor_b32 s56, {sW}, {3 - u}\ns_add_u32 s56, s56, s55\ns_lshl_b32 s56, s56, 11")
            for s in range(2):
                k(f"buffer_load_dwordx4 {vr(Q + 8 * u + 4 * s, 4)}, v1, {WS}, s56 offen offset:{1024 * s} sc1", tag="Q")
        k.label("L_attn")
        k(f"""s_lshl_b32 {sK}, {sA}, 6
        s_lshl_b32 s55, {sW}, 4
        s_add_u32 {sK}, {sK}, s55
        s_add_u32 {sK}, {sK}, 1024
        s_lshl_b32 {sK}, {sK}, 11
        s_mov_b32 s33, {sWD}
        s_mov_b32 s59, s35""")

        def kvload(kt):
            b = KV + 16 * (kt % DEP)
            g = []
            for i in range(4):
                t = f"buffer_load_dwordx4 {vr(b + 4 * i, 4)}, v{208 if i & 2 else 1}, {WS}, {sK} offen offset:{2048 * (kt & 1) + 1024 * (i & 1)} sc1"
                g.append((t, ("V" if i & 2 else "K", kt)))
            if kt & 1:
                g.append((f"s_add_u32 {sK}, {sK}, 4096", None))
            return g

        for kt in range(DEP - 1):
            for t, tg in kvload(kt):
                k(t, tag=tg)

        pre = []
        for i in range(16):
            pre.append((f"buffer_load_dwordx4 {self.wo(i)}, v{252 + (i & 1)}, {WS}, s59 offen offset:{(i & 2) * 1024} sc1", "WO"))
            if i % 4 == 3:
                pre.append(("s_add_u32 s59, s59, 4096", None))
        for i in range(28):
            if i % 4 == 0:
                pre.append((f"s_add_u32 m0, {sGL}, {i * 1024}", None))
            pre.append((f"buffer_load_dwordx4 v251, {WS}, m0 offen offset:{(i % 4) * 1024} sc1 lds", "GU"))
        NWD = self.opt.get("nwd", 24)
        pre += self.wd_loads(0, NWD)
        self.wdn = NWD
        pst = []
        for p in range(4):
            for e in range(2):
                pst.append((f"buffer_store_dwordx4 {vr(216 + 8 * p + 4 * e, 4)}, v1, {WS}, {sPD} offen offset:{1024 * e} sc1", "PS"))
            if p < 3:
                pst.append((f"s_add_u32 {sPD}, {sPD}, {sPS}", None))
        pst.append((f"buffer_store_dwordx2 v[248:249], v250, {WS}, {sPCS} offen sc1", "PS"))

        TD = self.opt.get("td", 3)
        order = [(kt, u) for kt in range(16 - TD) for u in range(4)]
        order += [(kt, u) for kt in range(16 - TD, 16) for u in range(3)] + [(kt, 3) for kt in range(16 - TD, 16)]

        def smf(n, s):
            kt, u = order[n]
            b = KV + 16 * (kt % DEP)
            d = vr(S + 16 * (n & 1), 16)
            self.mfma(d, vr(b + 4 * s, 4), vr(Q + 8 * u + 4 * s, 4), "0" if s == 0 else None)

        def pv(n, s):
            kt, u = order[n]
            b = KV + 16 * (kt % DEP) + 8
            self.mfma(vr(O + 16 * u, 16), vr(b + 4 * s, 4), vr(P + 4 * s, 4), "0" if (kt == 0 and s == 0) else None)

        k.wait(vm=["Q", ("K", 0)])
        smf(0, 0)
        smf(0, 1)
        PFL = self.opt.get("pfl", 9)
        PCHK = self.opt.get("pchk", 16)
        CLR = self.opt.get("clr", 11)
        queue = list(pst)
        clr = self.clears()
        fixed = {}
        for t in range(3):
            m = 4 * (order.index((15, t)) + 1) + 2
            for q in range(4):
                fixed.setdefault(m + q, []).append(f"ds_write_b128 v{4 + t}, {vr(O + 16 * t + 4 * q, 4)} offset:{1024 * q}")
        bar = m + 4 + self.opt.get("bbar", 1)
        hint = f"buffer_store_dwordx4 {vr(vTAG, 4)}, {vFLAG}, {WS}, s67 offen sc1"
        rds = [(f"ds_read_b128 {vr(O + 16 * j + 4 * q, 4)}, v7 offset:{4096 * j + 1024 * q}", ("c", j, q)) for q in range(4) for j in range(3)]
        HB = bar + self.opt.get("hb", 1)

        def join():
            assert "CL" not in k.vm
            k.wait(lg="all")
            k("s_barrier")

        def slot(g):
            if g in fixed:
                for t in fixed[g]:
                    k(t)
            elif g == bar:
                join()
            elif g > bar:
                if g == HB:
                    k(hint)
                for _ in range(self.opt.get("brd", 3)):
                    if rds:
                        t, tg = rds.pop(0)
                        k(t, tag=tg)
            elif queue:
                if tg_of(queue[0]) in ("WO", "GU", "WD") and credit[0] < 10:
                    return
                t, tg = queue.pop(0)
                if callable(t):
                    t()
                else:
                    k(t, tag=tg)
                    if t.startswith("buffer"):
                        credit[0] -= 10

        tg_of = lambda q: q[1]
        credit = [0]
        for n in range(64):
            credit[0] = min(credit[0], 10) + self.opt.get("vpu", 27)
            kt, u = order[n]
            sb = S + 16 * (n & 1)
            if self.opt.get("tsb") and n % self.opt["tsb"] == 0:
                self.stamp(f"b{n}", True)
            if u == (1 if kt else 3) and kt + DEP - 1 < 16:
                queue = kvload(kt + DEP - 1) + queue
            if n == PFL:
                queue.append((lambda: k.wait(vm="PS"), None))
                queue.append((f"buffer_store_dwordx4 {vr(vTAG, 4)}, {vFLAG}, {WS}, {sPF} offen sc1", None))
            if n >= CLR and clr and (n - CLR) % 2 == 0:
                queue.append((clr.pop(0), "CL"))
            if n == PCHK:
                queue.append((f"s_mov_b32 s60, {WS_FP}", None))
                queue.append((f"buffer_load_dword v209, v3, {WS}, s60 offen sc1", "PF"))
            if n == PCHK + 5:
                assert not clr
                queue.append((lambda: self.flagcheck("PF", "v3", "v209", WS_FP), None))
                queue += pre
            if n == 53:
                queue = [(f"buffer_load_dwordx4 {vr(KV + 4 * s, 4)}, v254, {X}, 0 offen offset:{16 * s}", "X") for s in range(2)] + queue

            def ex(i):
                k(f"v_exp_f32 v{sb + i}, v{sb + i}")

            def cv(i):
                k(f"v_cvt_pk_bf16_f32 v{P + i}, v{sb + 2 * i}, v{sb + 2 * i + 1}")

            ex(0), ex(1)
            if n > 0:
                pv(n - 1, 1)
                if not (n + 1 < 64 and k.wait(vm=("V", order[n + 1][0]))):
                    slot(4 * n)
                else:
                    assert 4 * n not in fixed
            ex(2), ex(3), cv(0), ex(4), ex(5), cv(1)
            if n + 1 < 64:
                smf(n + 1, 0)
            slot(4 * n + 1)
            ex(6), ex(7), cv(2), ex(8), ex(9), cv(3)
            if n + 1 < 64:
                smf(n + 1, 1)
            if not (n == 0 and k.wait(vm=("V", 0))):
                slot(4 * n + 2)
            ex(10), ex(11), cv(4), ex(12), ex(13), cv(5)
            pv(n, 0)
            slot(4 * n + 3)
            ex(14), ex(15), cv(6), cv(7)
        assert not queue, len(queue)
        pv(63, 1)
        g = 256
        while g <= max(bar, HB) or rds:
            slot(g)
            g += 1
        self.stamp("B1", True)
        o = O + 48
        for q in range(4):
            k.wait(lg=("c", 2, q))
            for j in (1, 2):
                for i in range(2):
                    r = O + 4 * q + 2 * i
                    k(f"v_pk_add_f32 {vr(r, 2)}, {vr(r, 2)}, {vr(r + 16 * j, 2)}")
        lo, hi = struct.unpack("<II", struct.pack("<ff", 2.0 ** -80, 2.0 ** 80))
        k(f"""v_add_f32 v248, v{o + 12}, v{O + 12}
        v_add_f32 v249, v{o + 12}, v{O + 12}""")
        adds = [f"v_pk_add_f32 {vr(o + 2 * i, 2)}, {vr(o + 2 * i, 2)}, {vr(O + 2 * i, 2)}" for i in range(8)]
        k("\n".join(adds[:2]))
        k(f"""v_permlane32_swap_b32 v249, v248
        s_mov_b32 s56, {hi - lo}""")
        k("\n".join(adds[2:4]))
        k(f"""v_subrev_u32 v249, {lo}, v248
        v_rcp_f32 v248, v248
        v_cmp_lt_u32 vcc, s56, v249""")
        k("\n".join(adds[4:]))
        if self.force_fb:
            k(f"s_and_b32 vcc_lo, {sW}, {self.force_fb - 1}" if self.force_fb > 1 else "s_mov_b32 vcc_lo, 1")
        k(f"""s_andn2_b32 s57, vcc_lo, {sFB}
        s_cselect_b32 s55, {OOB}, {sO}
        s_cselect_b32 {sO}, {sO}, {OOB}""")
        for s in range(2):
            for i in range(4 * s, 4 * s + 4):
                k(f"v_pk_mul_f32 {vr(o + 2 * i, 2)}, {vr(o + 2 * i, 2)}, v[248:249] op_sel_hi:[1,0]")
            for i in range(4 * s, 4 * s + 4):
                k(f"v_cvt_pk_bf16_f32 v{P + i}, v{o + 2 * i}, v{o + 2 * i + 1}")
            if s:
                k(f"s_mov_b32 exec_lo, 0\nv_mov_b32 v{P + 6}, 0\nv_mov_b32 v{P + 7}, 0\ns_mov_b32 exec_lo, -1")
            k(f"buffer_store_dwordx4 {vr(P + 4 * s, 4)}, v1, {WS}, s55 offen offset:{1024 * s} sc1")
        self.stamp("B2", True)
        k(f"s_mov_b32 s60, {WS_FB}")
        k(f"buffer_load_dword v209, v2, {WS}, s60 offen sc1", tag="PF")
        k(f"""v_mov_b32 v248, s57
        v_and_b32 v249, 3, v0
        ds_write_b32 v7, v248
        v_mul_u32_u24 v249, 12288, v249
        v_add_u32 v249, {LR}, v249""")
        k.wait(lg="all")
        k("s_barrier\nds_read_b32 v248, v249")
        k.wait(vm=["X", "GU"])
        for i in range(8):
            k(f"v_lshlrev_b32 v{S + 2 * i}, 16, v{KV + i}\nv_and_b32 v{S + 1 + 2 * i}, 0xffff0000, v{KV + i}")
        k.wait(lg="all")
        k("s_barrier\nv_cmp_ne_u32 vcc, 0, v248\ns_cbranch_vccnz L_fb")
        n = self.opt.get("nwb", 0)
        for t, tg in self.wd_loads(self.wdn, self.wdn + n):
            k(t, tag=tg)
        self.wdn += n

    def wd_loads(self, lo, hi):
        g = []
        for i in range(lo, hi):
            g.append((f"buffer_load_dwordx4 {ar(4 * i, 4)}, v{252 + (i & 1)}, {WS}, s33 offen offset:{(i & 2) * 1024} sc1", "WD"))
            if i % 4 == 3:
                g.append(("s_add_u32 s33, s33, 4096", None))
        return g

    def late_code(self):
        k = self.k
        Q, S, KV = 8, 104, 144
        for kind, L1, L2, x, y, z in self.late:
            k.label(L1)
            if kind == "poll":
                self.poll(x, y, z, {WS_FB: "s90", WS_FC: "s92", "s77": "s95"}.get(z))
            elif kind == "call":
                x()
                k.wait(vm="all")
            else:
                if self.ts:
                    c = "s91" if z == 209 else "s94" if len(y) == 14 else "s93"
                    k(f"s_add_u32 {c}, {c}, 1")
                k("\n".join(x))
                k.wait(vm="all")
                k("\n".join(self.maxchain(y, z)))
                k(f"""v_cmp_eq_u32 vcc, -1, v{z}
                s_cbranch_vccz {L2}
                s_sub_u32 {sCNT}, {sCNT}, 1
                s_cselect_b32 {sCNT}, 0, {sCNT}
                s_cbranch_scc0 {L1}""")
            k(f"s_branch {L2}")
        k.label("L_fb")
        k(f"""s_waitcnt vmcnt(0) lgkmcnt(0)
        s_barrier
        s_mov_b32 {sFB}, -1
        s_mov_b32 {sPD}, {OOB}
        s_mov_b32 {sPCS}, {OOB}
        s_mov_b32 {sPF}, {OOB}
        s_mov_b32 s64, {OOB}
        s_mov_b32 s65, {OOB}
        s_mov_b32 s66, {OOB}
        s_lshl_b32 s50, {sA}, 6
        s_lshl_b32 s55, {sW}, 4
        s_add_u32 s50, s50, s55
        s_add_u32 s50, s50, 1024
        s_lshl_b32 s50, s50, 11
        s_mov_b32 s51, 16""")
        for u in range(4):
            k(f"v_mov_b32 v{228 + u}, 0xff800000")
        k.label("L_fbl")
        for s in range(2):
            k(f"buffer_load_dwordx4 {vr(KV + 4 * s, 4)}, v1, {WS}, s50 offen offset:{1024 * s} sc1")
        k("s_add_u32 s50, s50, 2048\ns_waitcnt vmcnt(0)")
        for u in range(4):
            self.mfma(vr(S, 16), vr(KV, 4), vr(Q + 8 * u, 4), "0")
            self.mfma(vr(S, 16), vr(KV + 4, 4), vr(Q + 8 * u + 4, 4))
            for i in range(8):
                k(f"v_max3_f32 v{228 + u}, v{228 + u}, v{S + 2 * i}, v{S + 2 * i + 1}")
        k("s_sub_u32 s51, s51, 1\ns_cmp_lg_u32 s51, 0\ns_cbranch_scc1 L_fbl")
        k(f"v_lshlrev_b32 v216, 2, v0\ns_lshl_b32 s57, {sW}, 8")
        for u in range(4):
            k(f"""v_mov_b32 v218, v{228 + u}
            v_permlane32_swap_b32 v218, v{228 + u}
            v_max_f32 v{228 + u}, v218, v{228 + u}
            s_xor_b32 s55, {sW}, {3 - u}
            s_lshl_b32 s55, s55, 10
            s_add_u32 s55, s55, {LR}
            v_add_u32 v{220 + u}, s55, v216
            v_add_u32 v217, s57, v{220 + u}
            ds_write_b32 v217, v{228 + u}""")
        k("s_waitcnt lgkmcnt(0)\ns_barrier")
        for u in range(4):
            for j in range(4):
                k(f"ds_read_b32 v{224 + j}, v{220 + u} offset:{256 * j}")
            k(f"""s_waitcnt lgkmcnt(0)
            v_max3_f32 v224, v224, v225, v226
            v_max_f32 v224, v224, v227
            v_sub_f32 v224, 0, v224
            v_cvt_pk_bf16_f32 v225, v224, v224
            v_and_b32 v225, 0xffff0000, v225
            v_sub_f32 v225, v224, v225
            v_cvt_pk_bf16_f32 v226, v224, v225
            v_and_b32 v227, 0xffff0000, v226
            v_sub_f32 v227, v225, v227
            v_cvt_pk_bf16_f32 v227, v227, 0
            s_mov_b32 exec_lo, 0
            v_mov_b32 v{Q + 8 * u + 6}, v226
            v_mov_b32 v{Q + 8 * u + 7}, v227
            s_mov_b32 exec_lo, -1""")
        k("s_barrier\ns_branch L_attn")
        k.vm.clear()
        k.lg.clear()

    def phase_c(self):
        k = self.k
        ACC, OF, XR, CL = 8, 136, 104, 72

        def csl():
            k("s_add_u32 s55, s71, 4096")
            for i in range(7):
                k(f"buffer_load_dwordx4 {vr(CL + 4 * i, 4)}, v1, {WS}, {'s71' if i < 4 else 's55'} offen offset:{(i % 4) * 1024} sc1", tag="cs")

        k(f"s_cmp_ge_u32 {sCB}, 14\ns_cbranch_scc1 L_cidle")
        self.late.append(("call", "L_cidle", "L_c1", csl, None, None))
        k("s_add_u32 s50, s69, 4096\ns_add_u32 s51, s70, 4096")
        self.flagcheck("PF", "v2", "v209", WS_FB)
        self.stamp("C0", True)
        loads = []
        for t in range(2):
            for ks in range(8):
                sb = f"s{69 + t}" if ks < 4 else f"s{50 + t}"
                loads.append(f"buffer_load_dwordx4 {vr(OF + 32 * t + 4 * ks, 4)}, v1, {WS}, {sb} offen offset:{1024 * (ks & 3)} sc1")
                k(loads[-1], tag=("O", 8 * t + ks))
        csl()

        def arrive(f):
            k.wait(vm=("O", f + 1))
            self.datacheck([OF + 4 * f, OF + 4 * f + 4], 209, loads[f:])

        def mm(lt, ks):
            c, t = divmod(lt, 2)
            self.mfma(vr(ACC + 16 * lt, 16), self.wo(2 * ks + c), vr(OF + 32 * t + 4 * ks, 4), None if ks else vr(XR, 16) if lt == 3 else "0")

        def wr(lt):
            return [f"ds_write_b128 v{4 + lt}, {vr(ACC + 16 * lt + 4 * q, 4)} offset:{1024 * q}" for q in range(4)]

        for p in range(4):
            arrive(2 * p)
            for lt, ks in ((0, 0), (0, 1), (2, 0), (2, 1)):
                mm(lt, 2 * p + ks)
        w = wr(0) + wr(2)
        for ks in range(8):
            if ks % 2 == 0:
                arrive(8 + ks)
            mm(1, ks)
            if ks >= 1:
                k(w.pop(0))
        w += [None] + wr(1)
        for ks in range(8):
            mm(3, ks)
            if w:
                t = w.pop(0)
                if t:
                    k(t)
        self.stamp("C1", True)
        k.wait(lg="all")
        k(f"s_barrier\nbuffer_store_dwordx4 {vr(vTAG, 4)}, {vFLAG}, {WS}, s68 offen sc1")
        for q in range(4):
            for j in range(3):
                k(f"ds_read_b128 {vr(ACC + 16 * j + 4 * q, 4)}, v7 offset:{4096 * j + 1024 * q}", tag=("c", j, q))
        o = ACC + 48
        for q in range(4):
            for j in range(3):
                k.wait(lg=("c", j, q))
                for i in range(2):
                    r = o + 4 * q + 2 * i
                    k(f"v_pk_add_f32 {vr(r, 2)}, {vr(r, 2)}, {vr(ACC + 16 * j + 4 * q + 2 * i, 2)}")
            for i in range(2):
                k(f"v_cvt_pk_bf16_f32 v{OF + 2 * q + i}, v{o + 4 * q + 2 * i}, v{o + 4 * q + 2 * i + 1}")
            if q & 1:
                k(f"buffer_store_dwordx4 {vr(OF + 2 * q - 2, 4)}, v1, {WS}, {sH} offen offset:{512 * (q - 1)} sc1")
        k(f"v_pk_add_f32 v[16:17], {vr(o, 2)}, {vr(o + 2, 2)}\nv_pk_mul_f32 v[18:19], {vr(o, 2)}, {vr(o, 2)}")
        for i in range(1, 8):
            if i > 1:
                k(f"v_pk_add_f32 v[16:17], v[16:17], {vr(o + 2 * i, 2)}")
            k(f"v_pk_fma_f32 v[18:19], {vr(o + 2 * i, 2)}, {vr(o + 2 * i, 2)}, v[18:19]")
        k(f"""v_add_f32 v16, v16, v17
        v_add_f32 v18, v18, v19
        v_permlane32_swap_b32 v16, v18
        v_add_f32 v16, v16, v18
        buffer_store_dword v16, v210, {WS}, {sST} offen sc1
        s_barrier""")
        k.label("L_c1")
        self.stamp("C3", True)

    def phase_de(self):
        k = self.k
        opt = self.opt.get
        H, ACC, AB, T = 8, 120, 184, 216
        CL, CS = 72, 100
        LCS = LR + 28672
        sGU = "s53"
        k(f"""s_lshl_b32 s55, {sA2}, 4
        s_lshr_b32 s56, {sW}, 1
        s_add_u32 s55, s55, s56
        v_min_u32 v249, 6, v0
        v_lshlrev_b32 v249, 1, v249
        v_add_u32 v249, s55, v249
        v_lshlrev_b32 v249, 7, v249
        s_mov_b32 s60, {WS_FC}""")
        k(f"buffer_load_dword v248, v249, {WS}, s60 offen sc1", tag="PF")
        k(f"""s_mul_i32 s52, {sW}, 7168
        s_mul_i32 {sGU}, {sB2}, {7 * 28672}
        s_add_u32 {sGU}, {sGU}, s52
        s_add_u32 {sGU}, {sGU}, {WS_WGU + 4 * 28672}""")

        def gdma(ct, lds):
            g = []
            for i in range(7):
                t = ""
                if i % 4 == 0:
                    t = f"s_add_u32 m0, s52, {lds + i * 1024}\ns_add_u32 s56, {sGU}, {(ct - 4) * 28672 + i * 1024}\n"
                g.append((t + f"buffer_load_dwordx4 v1, {WS}, s56 offen offset:{(i % 4) * 1024} sc1 lds", ("G", ct)))
            return g

        mem = []
        if opt("g4", 1):
            for t, tg in gdma(4, LR):
                k(t, tag=tg)
        n = opt("nwc", 0)
        for t, tg in self.wd_loads(self.wdn, self.wdn + n):
            k(t, tag=tg)
        self.wdn += n
        for i in range(16):
            k(f"v_accvgpr_write_b32 a{224 + i}, v{56 + i}")
        for i in range(4):
            k(f"v_mov_b32 v{240 + i}, {sTAG}")
        k(f"""v_mov_b32 v244, {vFLAG}
        v_mov_b32 v250, v210
        v_lshlrev_b32 v2, 3, v0
        s_lshl_b32 s55, {sW}, 11
        s_add_u32 s55, s55, {LCS}
        v_add_u32 v3, s55, v2
        v_bfe_u32 v245, v0, 2, 1
        v_xor_b32 v245, s62, v245
        v_lshlrev_b32 v245, 4, v245
        v_and_b32 v246, 3, v0
        s_lshl_b32 s55, {sW}, 2
        v_add3_u32 v245, v245, v246, s55
        v_lshlrev_b32 v245, 7, v245""")
        for i in range(4):
            k(f"v_subrev_u32 v{4 + i}, {LR - 57344}, v{4 + i}")
        k.wait(vm="cs")
        for i in range(1, 7):
            for h in range(2):
                k(f"v_pk_add_f32 {vr(CL + 2 * h, 2)}, {vr(CL + 2 * h, 2)}, {vr(CL + 4 * i + 2 * h, 2)}")
        for q in range(4):
            k("\n".join(self.split2(CL + q, CS + 2 * q)))
            k(f"ds_write_b64 v3, {vr(CS + 2 * q, 2)} offset:{512 * q}")
        k(f"""s_mul_i32 s55, {sB2}, 7
        s_and_b32 s55, s55, 3
        s_lshl_b32 s55, s55, 9
        s_add_u32 s55, s55, {LCS}
        v_add_u32 v3, s55, v2
        v_add_u32 v2, 57344, v1
        v_add_u32 v251, {LR}, v1
        s_mov_b32 s50, s72""")
        k.wait(lg="all")

        slot_of = {0: 0, 1: 1, 2: 2, 3: 3, 4: "R", 5: 0, 6: 1}
        seq = [(ct, ks) for ks in range(28) for ct in range(3)] + [(ct, ks) for ct in range(3, 7) for ks in range(28)]
        ND = len(seq)
        NB = 8
        AH = opt("dah", 5)

        def aread(i):
            ct, ks = seq[i]
            s = slot_of[ct]
            if s == "R":
                va, off = "v251", ks * 1024
            elif s < 2:
                va, off = "v1", s * 28672 + ks * 1024
            else:
                va, off = "v2", (s - 2) * 28672 + ks * 1024
            k(f"ds_read_b128 {vr(AB + 4 * (i % NB), 4)}, {va} offset:{off}", tag=("a", i))

        for i in range(AH):
            aread(i)
        self.flagcheck("PF", "v249", "v248", WS_FC)
        self.stamp("D0", True)
        HA = opt("dha", 12)

        def hload(ks, sb="s50"):
            return f"buffer_load_dwordx4 {vr(H + 4 * ks, 4)}, v1, {WS}, {sb} offen offset:{1024 * (ks & 3)} sc1"

        def hagain(lo, hi):
            g = []
            for ks in range(lo, hi):
                if ks == lo or ks & 3 == 0:
                    g.append(f"s_add_u32 s60, s72, {4096 * (ks >> 2)}")
                g.append(hload(ks, "s60"))
            return g

        SL = ACC + 48
        queue = [(hload(ks) + ("\ns_add_u32 s50, s50, 4096" if ks & 3 == 3 else ""), ("H", ks)) for ks in range(28)]
        sts = [f"buffer_load_dword v{SL + c}, v250, {WS}, s73 offen offset:{256 * c} sc1" for c in range(14)]
        queue += [(t, "S") for t in sts]
        for _ in range(HA):
            t, tg = queue.pop(0)
            k(t, tag=tg)
        hgrp = {0: 2, 2: 4, 4: 8, 8: 12, 12: 16, 16: 20, 20: 24, 24: 28} if opt("hg", 4) == 4 else {i: i + 2 for i in range(0, 28, 2)}

        VB, VC, VS = T + 2, T + 4, T + 6
        CA = T + 8
        E = T + 16

        def epilogue(ct, packed):
            a = ACC + 16 * (ct % 4)
            e = []
            if packed:
                e += [f"v_pk_mul_f32 {vr(a + 2 * i, 2)}, {vr(a + 2 * i, 2)}, {vr(VC, 2)} op_sel_hi:[1,0]" for i in range(4)]
            else:
                e += [f"v_mul_f32 v{a + i}, v{VC}, v{a + i}" for i in range(8)]
            e += [f"v_exp_f32 v{a + i}, v{a + i}" for i in range(8)]
            if packed:
                e += [f"v_pk_fma_f32 {vr(a + 2 * i, 2)}, {vr(a + 2 * i, 2)}, {vr(VS, 2)}, {vr(VS, 2)} op_sel_hi:[1,0,0]" for i in range(4)]
            else:
                e += [f"v_fma_f32 v{a + i}, v{a + i}, v{VS}, v{VS}" for i in range(8)]
            e += [f"v_rcp_f32 v{a + i}, v{a + i}" for i in range(8)]
            if packed:
                e += [f"v_pk_mul_f32 {vr(a + 2 * i, 2)}, {vr(a + 2 * i, 2)}, {vr(a + 8 + 2 * i, 2)}" for i in range(4)]
            else:
                e += [f"v_mul_f32 v{a + i}, v{a + i}, v{a + 8 + i}" for i in range(8)]
            p = E + 4 * (ct & 1)
            e += [f"v_cvt_pk_bf16_f32 v{p + i}, v{a + 2 * i}, v{a + 2 * i + 1}" for i in range(4)]
            pre = f"s_add_u32 {sAC}, {sAC}, 4096\n" if ct == 4 else ""
            e.append(pre + f"buffer_store_dwordx4 {vr(p, 4)}, v1, {WS}, {sAC} offen offset:{1024 * (ct & 3)} sc1")
            return [(t, ("e", ct)) for t in e]

        def corr(ct):
            a = vr(ACC + 16 * (ct % 4), 16)
            k(f"v_mfma_f32_32x32x8bf16_1k {a}, {vr(CA + 2 * (ct % 4), 2)}, {vr(VB, 2)}, {a}")

        def csread(ct):
            k(f"ds_read_b64 {vr(CA + 2 * (ct % 4), 2)}, v3 offset:{512 * ct}", tag=("cs", ct))

        def cost(t):
            if callable(t):
                return 8
            return sum(8 if l.startswith(("v_exp", "v_rcp", "v_rsq", "v_sqrt", "buffer")) else 4 for l in t.split("\n"))

        EA = [184, 136, 120, 168]
        DF = opt("edf", 3)
        units = [(g, t) for g in range(7 - DF) for t in range(2)] + [(g, 0) for g in range(7 - DF, 7)] + [(g, 1) for g in range(7 - DF, 7)]
        eseq = []
        for u, (g, t) in enumerate(units[:14 - DF]):
            if u == 13 - DF:
                eseq += [(u, j, c) for c in range(2) for j in range(4)]
            else:
                eseq += [(u, j, c) for j in range(4) for c in range(2)]
        eseq += [(u, j, c) for c in range(2) for u in range(14 - DF, 14) for j in range(4)]
        lastuse = {u: ND + i for i, (u, j, c) in enumerate(eseq)}
        lastacc = {2 * c + units[u][1]: ND + i for i, (u, j, c) in enumerate(eseq)}
        free = [(H + 16 * b, 171 + 4 * b) for b in range(7)] + [(200, 191)]
        stages = [[int(c) for c in s] for s in str(opt("stg", "01.23.45.6")).split(".")]
        stage_of = {g: s for s, gs in enumerate(stages) for g in gs}
        L0, LS = opt("el0", 172), opt("els", 2)
        FDL, CDL, CHK = opt("fdl", 13), opt("cdl", 12), opt("chk", 12)
        first = {}
        for u, (g, t) in enumerate(units):
            first.setdefault(stage_of[g], L0 + 4 * LS * u)
        ubuf, eload, enext = {}, [(u, j) for u in range(14) for j in range(4)], L0
        stored, sent, asked, passed = {}, {}, {}, set()
        seen = set()

        def flagstore():
            return f"buffer_store_dwordx4 v[240:243], v244, {WS}, s76 offen sc1\ns_add_u32 s76, s76, 0x20000"

        def events(i):
            nonlocal enext
            spent = 0
            s = len(sent)
            if s < len(stages) and stages[s][-1] in stored and i >= stored[stages[s][-1]] + FDL:
                k.wait(vm=("e", stages[s][-1]))
                k(flagstore())
                sent[s] = i
                spent += 16
            s = len(asked)
            if s < len(stages) and s in sent and len(passed) == s and i >= max(sent[s] + CDL, first[s] - CHK - 1):
                k(f"s_mov_b32 s77, {WS_FQ + 0x20000 * s}")
                k(f"buffer_load_dword v248, v245, {WS}, s77 offen sc1", tag="PF")
                asked[s] = i
                spent += 12
            s = len(passed)
            if s in asked and i >= asked[s] + CHK:
                self.flagcheck("PF", "v245", "v248", "s77")
                passed.add(s)
                spent += 12
            if eload and i >= enext:
                u, j = eload[0]
                g, t = units[u]
                if stage_of[g] in passed:
                    if u not in ubuf:
                        ok = [f for f in free if f[1] <= i]
                        if ok:
                            free.remove(ok[0])
                            ubuf[u] = ok[0][0]
                            free.append((ok[0][0], lastuse[u]))
                    if u in ubuf:
                        sb = f"s{78 + 4 * t + j}"
                        k(f"buffer_load_dwordx4 {vr(ubuf[u] + 4 * j, 4)}, v1, {WS}, {sb} offen offset:{(g & 3) * 1024} sc1", tag=("B", u, j))
                        if g == 3:
                            k(f"s_add_u32 {sb}, {sb}, 4096")
                            spent += 4
                        eload.pop(0)
                        due = L0 + LS * (56 - len(eload))
                        enext = max(i + 1, due)
                        self.log.append(("ld", u, j, i))
                        spent += 8
            return spent

        self.log = []
        BUD, EBUD = opt("dbud", 18), opt("ebud", 24)
        hold = 0
        b = 0
        xch = {}
        for lt in range(3):
            for q in range(4):
                xch.setdefault(lastacc[lt] + 2 + q, []).append(f"ds_write_b128 v{4 + lt}, {vr(EA[lt] + 4 * q, 4)} offset:{1024 * q}")
        B1, B2 = lastacc[1] + opt("eb1", 0), lastacc[1] + opt("eb2", 9)

        def xread(lt):
            return [(f"ds_read_b128 {vr(EA[lt] + 4 * q, 4)}, v7 offset:{4096 * lt + 1024 * q}", ("c", lt, q)) for q in range(4)]

        def xadd(lt):
            g = []
            for q in range(4):
                g.append((lambda q=q: k.wait(lg=("c", lt, q)), None))
                g += [(f"v_add_f32 v{EA[0] + r}, v{EA[0] + r}, v{EA[lt] + r}", None) for r in range(4 * q, 4 * q + 4)]
            return g

        for i in range(ND + 112):
            if i < ND:
                ct, ks = seq[i]
                nxt = i + AH
                if nxt < ND and seq[nxt] == (5, 0):
                    assert not any(tg in (("G", 5), ("G", 6)) for _, tg in mem)
                    k.wait(vm=[("G", 5), ("G", 6)])
                    k("s_barrier")
                if ks == 0 and ct >= 4:
                    assert not any(tg == ("e", ct - 4) for _, tg in queue), ct
                if ct == 0 and ks in hgrp:
                    assert not any(tg == ("H", hgrp[ks] - 1) for _, tg in queue)
                    k.wait(vm=("H", hgrp[ks] - 1))
                    out = 28 - sum(1 for _, tg in queue if tg and tg[0] == "H")
                    self.datacheck([H + 4 * x for x in range(ks, hgrp[ks])], 248, hagain(ks, out))
                k.wait(lg=("a", i))
                self.mfma(vr(ACC + 16 * (ct % 4), 16), vr(AB + 4 * (i % NB), 4), vr(H + 4 * ks, 4), "0" if ks == 0 else None)
                if nxt < ND:
                    aread(nxt)
                if i % opt("tsd", 28) == 0:
                    self.stamp(f"d{i}", True)
                if i == opt("dwd", 40):
                    if not opt("g4", 1):
                        mem += gdma(4, LR)
                    mem += self.wd_loads(self.wdn, 56)
                if i == 64:
                    assert not queue

                    def stcheck():
                        k.wait(vm="S")
                        self.datacheck(list(range(SL, SL + 14)), 248, sts)
                    queue.append((stcheck, None))
                    queue += [(f"v_add_f32 v{SL}, v{SL}, v{SL + c}", None) for c in range(1, 14)]
                    queue += [(t.strip(), None) for t in self.stats(SL, SL + 1, VC, VB, VS)]
                    queue += [(f"v_rsq_f32 v{VC}, v{VS}", None), (f"v_sqrt_f32 v{VS}, v{VS}", None),
                              (f"v_mul_f32 v{VC}, {f32(-math.log2(math.e))}, v{VC}", None)]
                if i == 83:
                    assert not queue and not any(tg == ("G", 4) for _, tg in mem)
                    k.wait(vm=("G", 4))
                    k("s_barrier")
                    for c in range(4):
                        csread(c)
                    mem = gdma(5, 0) + gdma(6, 28672) + mem
                    continue
                if i == 86:
                    k.wait(lg=("cs", 3))
                    for c in range(3):
                        corr(c)
                        queue += epilogue(c, False)
                    hold = 3
                    continue
                if i > 83 and ks == 27:
                    k.wait(lg=("cs", ct))
                    corr(ct)
                    if ct == 6:
                        assert not mem
                        self.stamp("D2", True)
                        k(f"s_cmp_ge_u32 {sCB}, 14\ns_cbranch_scc1 L_tail")
                        rest = list(queue) + epilogue(6, True)
                        nflag = len(stages) - len(sent)
                        queue += [(f"v_accvgpr_read_b32 v{EA[3] + r}, a{224 + r}", "res") for r in range(16)]
                    elif not queue:
                        hold = 4
                    queue += epilogue(ct, False)
                    continue
                if i > 83 and ks == 8 and ct < 6:
                    csread(ct + 1)
                b = min(b, 4) + BUD
            else:
                u, j, c = eseq[i - ND]
                g, t = units[u]
                lt = 2 * c + t
                assert (u, j) not in eload, (i, u, j)
                if lt not in seen:
                    assert 4 in stored
                    assert not any(tg in ("res", ("e", 5)) for _, tg in queue) or t == 0, (i, stored, len(queue))
                k.wait(vm=("B", u, j))
                self.mfma(vr(EA[lt], 16), ar(8 * (7 * j + g) + 4 * c, 4), vr(ubuf[u] + 4 * j, 4), "0" if (lt not in seen and lt < 3) else None)
                seen.add(lt)
                if i > ND and (i - ND) % opt("tsd", 28) == 0:
                    self.stamp(f"Ee{i - ND}", True)
                b = min(b, 4) + EBUD
                if i == B1 and B1 < B2:
                    k.wait(lg="all")
                    k("s_barrier")
                    queue += [x for p in zip(xread(0), xread(2)) for x in p] + xadd(2)
                for t in xch.get(i, []):
                    k(t)
                    b -= 8
                if i == B2:
                    k.wait(lg="all")
                    k("s_barrier")
                    if B1 >= B2:
                        queue += [x for p in zip(xread(0), xread(2)) for x in p] + xread(1) + xadd(2)
                    else:
                        queue = xread(1) + queue
                    queue += xadd(1)
            b -= events(i)
            if mem and (hold or i & 1):
                t, tg = mem.pop(0)
                k(t, tag=tg)
                b -= cost(t)
                if mem and mem[0][1] is None:
                    k(mem.pop(0)[0])
                    b -= 4
            if hold:
                hold -= 1
                continue
            while queue and b >= cost(queue[0][0]):
                t, tg = queue.pop(0)
                b -= cost(t)
                if callable(t):
                    t()
                else:
                    k(t, tag=tg)
                    if "buffer_store" in t:
                        stored[tg[1]] = i
                if i < 64:
                    break
        self.log += [("stored", stored), ("sent", sent), ("asked", asked), ("left", len(queue))]
        for t, tg in queue:
            if callable(t):
                t()
            else:
                k(t, tag=tg)
        self.stamp("E1", True)
        o = EA[3]
        for s in range(2):
            for i in range(4 * s, 4 * s + 4):
                k(f"v_pk_add_f32 {vr(o + 2 * i, 2)}, {vr(o + 2 * i, 2)}, {vr(EA[0] + 2 * i, 2)}")
            for i in range(4 * s, 4 * s + 4):
                k(f"v_cvt_pk_bf16_f32 v{H + i}, v{o + 2 * i}, v{o + 2 * i + 1}")
            k(f"buffer_store_dwordx4 {vr(H + 4 * s, 4)}, v254, {OUT}, 0 offen offset:{16 * s}")
        self.stamp("E2")
        k("s_branch L_fin")
        k.label("L_tail")
        for t, tg in rest:
            k(t)
        k.wait(vm="all")
        for _ in range(nflag):
            k(flagstore())
        k(f"""s_cmp_lg_u32 s2, 255
        s_cbranch_scc1 L_fin
        s_lshl_b32 s55, {sW}, 6
        v_add_u32 v2, s55, v0
        v_lshlrev_b32 v2, 7, v2""")
        self.poll("v2", "v3", WS_FP)
        k("s_mov_b32 s50, 0")
        self.publish(WS_E, "s50", 8, 12)
        k.label("L_fin")
        if self.ts:
            assert not self.pend
            for i in range(6):
                k(f"v_writelane_b32 v255, s{90 + i}, {56 + i}")
            k(f"""s_memrealtime s[96:97]
            s_memtime s[98:99]
            s_waitcnt lgkmcnt(0)
            v_writelane_b32 v255, s96, 62
            v_writelane_b32 v255, s98, 63
            s_lshl_b32 s55, s2, 2
            s_add_u32 s55, s55, {sW}
            s_lshl_b32 s55, s55, 8
            s_add_u32 s55, s55, {WS_TS}
            v_lshlrev_b32 v2, 2, v0
            buffer_store_dword v255, v2, {WS}, s55 offen""")
            if self.ts == 2:
                k(f"""s_load_dwordx2 s[20:21], s[0:1], 64
                s_mov_b32 s22, 256
                v_readlane_b32 s56, v255, 0
                v_readlane_b32 s57, v255, 1
                s_sub_u32 s56, s96, s56
                v_subrev_u32 v255, s57, v255
                v_writelane_b32 v255, s56, 0
                s_lshl_b32 s55, s2, 2
                s_add_u32 s55, s55, {sW}
                s_lshl_b32 s55, s55, 8
                s_waitcnt lgkmcnt(0)
                buffer_store_dword v255, v2, {PA}, s55 offen""")
        if "spa" in self.opt:
            k(f"""s_cmp_lg_u32 s2, {self.opt.get("spw", 0)}
            s_cbranch_scc1 L_nospin
            s_memrealtime s[90:91]
            s_waitcnt lgkmcnt(0)
            s_sub_u32 s94, s94, s92
            s_min_u32 s94, s94, 20000
            s_mul_i32 s94, s94, 4""")
            k.label("L_spin")
            k("""s_memrealtime s[88:89]
            s_waitcnt lgkmcnt(0)
            s_sub_u32 s88, s88, s90
            s_cmp_lt_u32 s88, s94
            s_cbranch_scc1 L_spin""")
            k.label("L_nospin")
        k("s_waitcnt vmcnt(0)")
        k.label("L_end")
        k("s_endpgm")

    def build(self):
        self.prologue()
        self.phase_a()
        self.phase_b()
        self.phase_c()
        self.phase_de()
        self.late_code()
        self.k.lines = [l.replace("CODE_LAST", "0x8000") for l in self.k.lines]
        n = self.k.pad()
        self.misal = align8(self.k.lines)
        last = (sum(sizes(self.k.lines)) - 128) & ~3
        assert last >= 0x8000
        self.k.lines = [l.replace("v_min_u32 v127, 0x8000", f"v_min_u32 v127, {last}") for l in self.k.lines]
        ref = open(f"cdna_kernels/{NAME}.s.ref").read().split("\n")
        head = [l for l in ref if l.startswith(";") and "@launch" not in l]
        out = head + ["; @launch grid=(256,1,1) block=(256,1,1) lds=163840",
                      '.amdgcn_target "amdgcn-amd-amdhsa--gfx950"', ".text", f".globl {NAME}_kernel", ".p2align 8",
                      f".type {NAME}_kernel,@function", f"{NAME}_kernel:"]
        out += [l if l.endswith(":") else "    " + l for l in self.k.lines]
        out += ['.section .rodata,"a"', ".p2align 6", f".amdhsa_kernel {NAME}_kernel",
                "  .amdhsa_next_free_vgpr 512", "  .amdhsa_next_free_sgpr 102", "  .amdhsa_accum_offset 256",
                "  .amdhsa_group_segment_fixed_size 0", "  .amdhsa_kernarg_size 80", "  .amdhsa_user_sgpr_count 2",
                "  .amdhsa_user_sgpr_kernarg_segment_ptr 1", "  .amdhsa_system_sgpr_workgroup_id_x 1", ".end_amdhsa_kernel", ""]
        self.nbytes = sum(sizes(self.k.lines))
        self.nnop = n
        return "\n".join(out)


if __name__ == "__main__":
    args = dict(a.split("=") for a in sys.argv[2:])
    args = {a: int(b) if b.lstrip('-').isdigit() else b for a, b in args.items()}
    g = Gen(**args)
    text = g.build()
    open(sys.argv[1], "w").write(text)
    if g.ts:
        open(sys.argv[1] + ".ts", "w").write(" ".join([str(g.ts)] + g.tsn))
    print(f"{sys.argv[1]}: {g.nbytes} bytes of code, {g.nnop} pads, {g.misal} misaligned")
    if args.get("log"):
        print(g.log)
```

```python
import math
import struct
import sys

from asmlib import K, sizes, align8

NAME = "sequential_preLN__softmax_full_mha__glu_gated_glu__prompt"

WS_QKV, WS_O, WS_H, WS_ACT = 0, 0x600000, 0x800000, 0xA00000
WS_WGU, WS_WD, WS_WO, WS_CS = 0x1100000, 0x1500000, 0x1700000, 0x1780000
WS_FX, WS_FB, WS_FC, WS_FD, WS_E, WS_FP = 0x1800000, 0x1808000, 0x1810000, 0x1818000, 0x1820000, 0x1828000
WS_ST = 0x1880000
OOB = 0x40000000
WS_TS = 0x1900000
WS_FQ = 0x1A00000
WS_FA = 0x1A80000
WS_SIZE = 0x1B00000

X, WQ, WS, OUT, PA, PB = "s[4:7]", "s[8:11]", "s[12:15]", "s[16:19]", "s[20:23]", "s[24:27]"
sW, sA, sB, sTAG, sCNT, sONE, sFB = "s36", "s37", "s38", "s39", "s40", "s41", "s42"
sU, sPD, sPCS, sP0, sP1, sPST = "s43", "s44", "s45", "s46", "s47", "s48"
sXL = "s49"
sTB, sCB = "s88", "s89"
sO, sH, sST, sAC = "s3", "s34", "s100", "s101"
sA2, sB2, sPS, sPF = "s28", "s29", "s30", "s31"
vFLAG, vTAG = "v211", 212
LR = 114688
ONES = 0x3F803F80
U_D, U_O, U_END = 392, 588, 644
LQ, LX, LP = 57344, 147456, 151552
QA, ACC, RING, CS, CX, CA, VB, RS, ON, T0, RA, RB, C1 = 8, 40, 72, 104, 116, 124, 130, 132, 134, 136, 138, 140, 142
PK, SQ, SM, WKA, XA, VX, VWK, VP = 144, 160, 168, 176, 184, 188, 26, 28
WQA, CSW, CSR, QW, VWQ, VE, JUNK = 192, 196, 197, 198, 202, 203, 204


def f32(x):
    return hex(struct.unpack("<I", struct.pack("<f", x))[0])


def vr(b, n):
    return f"v[{b}:{b + n - 1}]"


def ar(b, n):
    return f"a[{b}:{b + n - 1}]"


class Gen:
    def __init__(self, ts=False, force_fb=False, **opt):
        self.k = K()
        self.ts = ts
        self.nts = 0
        self.tsn = []
        self.pend = []
        self.late = []
        self.force_fb = force_fb
        self.opt = opt

    def stamp(self, name, nw=False):
        if self.opt.get("spa") == name:
            self.k("s_memrealtime s[92:93]")
        if self.opt.get("spb") == name:
            self.k("s_memrealtime s[94:95]")
        if self.ts == 2 and name not in ("A0", "A3", "A7", "A9", "B0", "B1", "B3", "C0", "C3", "D0", "D4", "E0", "E2"):
            return
        if self.ts == 4 and not name.startswith(tuple(self.opt.get("tsp", "d"))):
            return
        if self.ts:
            ops = {3: ["s_memrealtime"], 4: ["s_memrealtime", "s_memtime"]}.get(self.ts, ["s_memtime"])
            if not nw and self.pend:
                self.k("s_waitcnt lgkmcnt(0)")
            for r, l in self.pend:
                self.k(f"v_writelane_b32 v255, s{r}, {l}")
            self.pend = []
            for j, op in enumerate(ops):
                self.k(f"{op} s[{98 - 2 * j}:{99 - 2 * j}]")
                self.pend.append((98 - 2 * j, self.nts + 2))
                self.nts += 1
                self.tsn.append(name)
            assert self.nts <= 54
            if not nw:
                self.k("s_waitcnt lgkmcnt(0)")
                for r, l in self.pend:
                    self.k(f"v_writelane_b32 v255, s{r}, {l}")
                self.pend = []
                self.k.lg.clear()

    def mfma(self, d, a, b, c=None):
        c = d if c is None else c
        self.k(f"v_mfma_f32_32x32x16_bf16 {d}, {a}, {b}, {c}")

    def poll(self, vaddr, vtmp, base, cnt=None):
        k = self.k
        L, Dn = k.newlabel("poll"), k.newlabel("seen")
        if not isinstance(base, str):
            k(f"s_mov_b32 s60, {base}")
            base = "s60"
        k.label(L)
        if self.ts and cnt:
            k(f"s_add_u32 {cnt}, {cnt}, 1")
        k(f"buffer_load_dword {vtmp}, {vaddr}, {WS}, {base} offen sc1")
        k.wait(vm="all")
        k(f"""v_cmp_ne_u32 vcc, {sTAG}, {vtmp}
        s_cbranch_vccz {Dn}
        s_sub_u32 {sCNT}, {sCNT}, 1
        s_cselect_b32 {sCNT}, 0, {sCNT}
        s_cbranch_scc0 {L}""")
        k.label(Dn)

    def publish(self, base, sidx, vt, vo):
        k = self.k
        for i in range(4):
            k(f"v_mov_b32 v{vt + i}, {sTAG}")
        k(f"""s_lshl_b32 s60, {sidx}, 7
        s_add_u32 s60, s60, {base}
        s_cmp_eq_u32 {sW}, 0
        s_cselect_b32 s60, s60, {OOB}
        v_lshrrev_b32 v{vo}, 3, v0
        v_lshl_add_u32 v{vo}, v{vo}, 26, v1""")
        k.wait(vm="all")
        k(f"s_barrier\nbuffer_store_dwordx4 {vr(vt, 4)}, v{vo}, {WS}, s60 offen sc1")

    def stats(self, vs, vq, t0, vb, vrs):
        return f"""v_mov_b32 v{vq}, v{vs}
        v_permlane32_swap_b32 v{vs}, v{vq}
        v_mul_f32 v{vs}, {f32(-1.0 / 448)}, v{vs}
        v_mul_f32 v{vq}, {f32(1.0 / 448)}, v{vq}
        v_cvt_pk_bf16_f32 v{t0}, v{vs}, v{vs}
        v_fma_f32 v{vq}, -v{vs}, v{vs}, v{vq}
        v_and_b32 v{t0}, 0xffff0000, v{t0}
        v_max_f32 v{vq}, 0, v{vq}
        v_sub_f32 v{t0}, v{vs}, v{t0}
        v_add_f32 v{vrs}, {f32(1e-5)}, v{vq}
        v_cvt_pk_bf16_f32 v{vb}, v{vs}, v{t0}
        v_cvt_pk_bf16_f32 v{vb + 1}, v{vs}, v{t0}""".split("\n")

    def split2(self, vc, vd):
        return f"""v_cvt_pk_bf16_f32 v{vd}, v{vc}, v{vc}
        v_and_b32 v{vd + 1}, 0xffff0000, v{vd}
        v_sub_f32 v{vd + 1}, v{vc}, v{vd + 1}
        v_cvt_pk_bf16_f32 v{vd + 1}, v{vd + 1}, v{vd + 1}""".split("\n")

    def prologue(self):
        k = self.k
        k(f"""s_cmp_ge_u32 s2, 0x100
        s_cbranch_scc1 L_end
        s_load_dwordx16 s[64:79], s[0:1], 0
        s_load_dwordx2 s[12:13], s[0:1], 72""")
        if self.ts:
            k("s_memrealtime s[96:97]\ns_memtime s[98:99]")
        if "spa" in self.opt:
            k("s_memrealtime s[92:93]\ns_memrealtime s[94:95]")
        if self.opt.get("touch", 1):
            k.note("pull the whole code object into this die's L2 ahead of instruction fetch")
            if self.opt.get("touch", 1) == 2:
                k(f"""s_getpc_b64 s[86:87]
                v_lshlrev_b32 v127, 7, v0
                global_load_dword v{JUNK}, v127, s[86:87]
                v_add_u32 v127, 0x8000, v127
                v_min_u32 v127, CODE_LAST, v127
                global_load_dword v{JUNK}, v127, s[86:87]""")
            else:
                k(f"""s_getpc_b64 s[86:87]
                v_lshrrev_b32 v127, 4, v0
                s_lshr_b32 s50, s2, 3
                v_lshlrev_b32 v127, 5, v127
                v_add_u32 v127, s50, v127
                v_lshlrev_b32 v127, 7, v127
                v_min_u32 v127, CODE_LAST, v127
                global_load_dword v{JUNK}, v127, s[86:87]""")
        k(f"""v_lshrrev_b32 v2, 6, v0
        v_and_b32 v0, 63, v0
        s_and_b32 {sA}, s2, 7
        v_readfirstlane_b32 {sW}, v2
        s_lshl_b32 {sA}, {sA}, 1
        s_bfe_u32 s50, s2, 0x10003
        s_add_u32 {sA}, {sA}, s50
        s_lshr_b32 {sB}, s2, 4
        s_bfe_u32 {sA2}, s2, 0x20001
        s_lshl_b32 {sA2}, {sA2}, 2
        s_bfe_u32 s50, s2, 0x20003
        s_add_u32 {sA2}, {sA2}, s50
        s_and_b32 {sB2}, s2, 1
        s_lshl_b32 {sB2}, {sB2}, 3
        s_lshr_b32 s50, s2, 5
        s_add_u32 {sB2}, {sB2}, s50
        v_lshlrev_b32 v1, 4, v0
        s_mov_b32 {sCNT}, 0x40000
        s_mov_b32 {sONE}, {ONES}
        s_mov_b32 {sFB}, 0
        v_mov_b32 v254, 0""")
        mp = self.opt.get("map", 2)
        if mp == 0:
            k(f"s_mov_b32 {sTB}, {sA}\ns_mov_b32 {sCB}, {sB}")
        else:
            k(f"s_mov_b32 {sTB}, {sA2}\ns_and_b32 {sCB}, s2, 1\ns_lshl_b32 s50, s50, 1\ns_add_u32 {sCB}, {sCB}, s50")
        if mp == 2:
            k(f"s_mov_b32 {sA}, {sB2}\ns_mov_b32 {sB}, {sA2}")
        k(f"""s_mul_i32 s50, {sB2}, 112
        s_mul_i32 s52, {sW}, {16 * 2688}
        s_add_u32 s50, s50, s52
        s_add_u32 s50, s50, 896
        v_lshrrev_b32 v14, 3, v0
        v_and_b32 v15, 7, v0
        v_bfe_u32 v16, v0, 4, 1
        v_lshlrev_b32 v16, 2, v16
        v_xor_b32 v16, v15, v16
        v_min_u32 v16, 6, v16
        v_mul_u32_u24 v17, 2688, v14
        v_lshlrev_b32 v16, 4, v16
        v_add3_u32 v{VWK}, v17, v16, s50
        v_add_u32 v{VWK + 1}, {8 * 2688}, v{VWK}""")
        k(f"""v_lshrrev_b32 v16, 4, v0
        v_xor_b32 v16, v15, v16
        v_mul_u32_u24 v17, 896, v14
        s_lshl_b32 s52, {sA2}, 2
        s_add_u32 s52, s52, {sW}
        s_mul_i32 s52, s52, {32 * 896}
        v_lshlrev_b32 v18, 4, v16
        v_add3_u32 v{VX}, v17, v18, s52
        v_xor_b32 v{VX + 1}, 64, v{VX}
        v_add_u32 v{VX + 1}, {8 * 896}, v{VX + 1}
        v_add_u32 v{VX + 2}, {16 * 896}, v{VX}
        v_add_u32 v{VX + 3}, {16 * 896}, v{VX + 1}""")
        k(f"""s_lshl_b32 {sXL}, {sW}, 14
        s_add_u32 {sXL}, {sXL}, 86016""")
        k(f"""s_lshr_b32 s53, s2, 3
        s_mul_i32 s54, s53, 37
        s_lshr_b32 s54, s54, 8
        s_mul_i32 s54, s54, 7
        s_sub_u32 s53, s53, {'s54' if self.opt.get('rot', 1) else 's53'}
        s_lshl_b32 s51, {sW}, 11
        s_mul_i32 s33, s53, {64 * 2688}
        s_lshl_b32 s60, s53, 7
        s_mov_b32 s6, {2048 * 896}
        s_mov_b32 s7, 0x20000
        s_mov_b32 s10, {448 * 2688}
        s_mov_b32 s11, 0x20000
        s_mov_b32 s14, {WS_SIZE}
        s_mov_b32 s15, 0x20000
        s_mov_b32 s18, {2048 * 896}
        s_mov_b32 s19, 0x20000
        s_mov_b32 s23, 0x20000
        s_mov_b32 s27, 0x20000
        s_mov_b32 s58, {WS_E}
        v_mov_b32 v16, 0
        s_waitcnt lgkmcnt(0)
        s_mov_b32 s4, s64
        s_mov_b32 s5, s65
        s_mov_b32 s8, s66
        s_mov_b32 s9, s67""")
        if self.ts:
            k("v_writelane_b32 v255, s96, 0\nv_writelane_b32 v255, s98, 1")
            for i in range(6):
                k(f"s_mov_b32 s{90 + i}, 0")

    NEXT = f"s_add_u32 s53, s53, 1\ns_cmp_eq_u32 s53, 7\ns_cselect_b32 s53, 0, s53\ns_mul_i32 s33, s53, {64 * 2688}\ns_lshl_b32 s60, s53, 7"

    def a_dma(self, c):
        g = [(f"s_add_u32 m0, s51, {c * 8192 + t * 1024}", f"buffer_load_dwordx4 v{VWK + t}, {WQ}, s33 offen lds", ("W", c)) for t in range(2)]
        g += [(f"s_add_u32 m0, {sXL}, {(c % 3) * 4096 + t * 1024}",
               f"buffer_load_dwordx4 v{VX + t}, {X}, s60 offen lds" + ("\n" + self.NEXT if t == 3 else ""), ("X", c)) for t in range(4)]
        return g

    def q_dma(self, c):
        return (f"s_add_u32 m0, s52, {c * 4096}", f"buffer_load_dwordx4 v{VWQ}, {WQ}, s33 offen lds\n" + self.NEXT.rsplit("\n", 1)[0], ("Q", c))

    def p_dma(self):
        return [(f"s_add_u32 m0, s{56 + h}, {t * 1024}", f"buffer_load_dwordx4 v{VP}, {srd}, {sb} offen lds\ns_add_u32 {sb}, {sb}, {sPST}", "P")
                for h, (srd, sb) in enumerate(((PA, sP0), (PB, sP1))) for t in range(4)]

    def dma(self, g):
        for a, b, tg in g:
            self.k(a)
            self.k(b, tag=tg)

    def unit_setup(self):
        k = self.k
        k(f"""s_mov_b32 s16, s78
        s_mov_b32 s17, s79
        s_lshl_b32 {sU}, {sW}, 8
        s_add_u32 {sU}, {sU}, s2
        s_cmp_ge_u32 {sU}, {U_D}
        s_cbranch_scc1 L_u1
        s_mov_b32 s20, s72
        s_mov_b32 s21, s73
        s_mov_b32 s24, s74
        s_mov_b32 s25, s75
        s_mov_b32 s22, {448 * 3584}
        s_mul_i32 s58, {sU}, 4682
        s_lshr_b32 s58, s58, 16
        s_mul_i32 s59, s58, 14
        s_sub_u32 s59, {sU}, s59
        s_mul_i32 {sP0}, s59, {32 * 3584}
        s_lshl_b32 s61, s58, 7
        s_add_u32 {sP0}, {sP0}, s61
        s_mov_b32 {sP1}, {sP0}
        s_mov_b32 {sPST}, 3584
        s_mul_i32 {sPD}, s58, {4 * 28 * 1024}
        s_lshl_b32 s61, s59, 11
        s_add_u32 {sPD}, {sPD}, s61
        s_add_u32 {sPD}, {sPD}, {WS_WGU}
        s_mov_b32 {sPS}, 28672
        s_lshl_b32 {sPCS}, {sU}, 9
        s_add_u32 {sPCS}, {sPCS}, {WS_CS}
        s_branch L_u3""")
        k.label("L_u1")
        k(f"""s_mov_b32 {sPST}, 896
        s_mov_b32 {sPS}, 2048
        s_mov_b32 {sPCS}, {OOB}
        s_cmp_ge_u32 {sU}, {U_O}
        s_cbranch_scc1 L_u2
        s_mov_b32 s20, s76
        s_mov_b32 s21, s77
        s_mov_b32 s24, s76
        s_mov_b32 s25, s77
        s_mov_b32 s22, {1792 * 896}
        s_sub_u32 s61, {sU}, {U_D}
        s_mul_i32 s58, s61, 2341
        s_lshr_b32 s58, s58, 16
        s_mul_i32 s59, s58, 28
        s_sub_u32 s59, s61, s59
        s_mul_i32 {sP0}, s59, {64 * 896}
        s_lshl_b32 s58, s58, 7
        s_add_u32 {sP0}, {sP0}, s58
        s_add_u32 {sP1}, {sP0}, {32 * 896}
        s_lshl_b32 {sPD}, s61, 13
        s_add_u32 {sPD}, {sPD}, {WS_WD}
        s_branch L_u3""")
        k.label("L_u2")
        k(f"""s_mov_b32 s20, s68
        s_mov_b32 s21, s69
        s_mov_b32 s24, s68
        s_mov_b32 s25, s69
        s_cmp_lt_u32 {sU}, {U_END}
        s_cselect_b32 s22, {448 * 896}, 0
        s_sub_u32 s61, {sU}, {U_O}
        s_lshr_b32 s58, s61, 3
        s_and_b32 s59, s61, 7
        s_mul_i32 {sP0}, s59, {56 * 896}
        s_lshl_b32 s58, s58, 7
        s_add_u32 {sP0}, {sP0}, s58
        s_add_u32 {sP1}, {sP0}, {28 * 896}
        s_lshl_b32 {sPD}, s61, 13
        s_add_u32 {sPD}, {sPD}, {WS_WO}
        s_cmp_lt_u32 {sU}, {U_END}
        s_cselect_b32 {sPD}, {sPD}, {OOB}""")
        k.label("L_u3")
        k(f"""s_mov_b32 s26, s22
        s_lshl_b32 {sPF}, {sU}, 7
        s_add_u32 {sPF}, {sPF}, {WS_FP}
        s_cmp_lt_u32 {sU}, {U_END}
        s_cselect_b32 {sPF}, {sPF}, {OOB}
        v_lshrrev_b32 v16, 3, v0
        v_and_b32 v17, 7, v0
        v_mul_lo_u32 v16, v16, {sPST}
        v_lshl_add_u32 v{VP}, v17, 4, v16
        s_lshl_b32 {sPST}, {sPST}, 3""")

    def out_addrs(self):
        k = self.k
        k(f"""s_lshl_b32 s58, {sB}, 2
        s_add_u32 s58, s58, {sW}
        s_lshl_b32 s58, s58, 4
        s_add_u32 s58, s58, {sA}
        s_lshl_b32 s58, s58, 11
        s_add_u32 {sO}, s58, {WS_O}
        s_and_b32 s58, {sCB}, 1
        s_lshl_b32 s58, s58, 1
        s_lshl_b32 s59, {sTB}, 2
        s_add_u32 s58, s58, s59
        s_and_b32 s59, {sW}, 1
        s_add_u32 s62, s58, s59
        s_lshr_b32 s59, {sW}, 1
        s_and_b32 s63, {sCB}, 14
        s_add_u32 s63, s63, s59
        s_mul_i32 s58, s62, 14
        s_add_u32 s58, s58, s63
        s_lshl_b32 {sST}, s58, 8
        s_lshl_b32 {sH}, s58, 11
        s_add_u32 {sH}, {sH}, {WS_H}
        s_add_u32 {sST}, {sST}, {WS_ST}
        s_cmp_ge_u32 {sCB}, 14
        s_cselect_b32 {sH}, {OOB}, {sH}
        s_cselect_b32 {sST}, {OOB}, {sST}
        s_lshl_b32 s58, {sA2}, 2
        s_add_u32 s58, s58, {sW}
        s_mul_i32 {sAC}, s58, {112 * 1024}
        s_mul_i32 s59, {sB2}, 7168
        s_add_u32 {sAC}, {sAC}, s59
        s_add_u32 {sAC}, {sAC}, {WS_ACT}""")

    def clears(self):
        g = [f"buffer_store_dwordx4 a[220:223], v1, {WS}, {b} offen offset:{1024 * s} sc1" for b in ("s64", "s65") for s in range(2)]
        g.append(f"buffer_store_dword a220, v210, {WS}, s66 offen sc1")
        return g

    def flagcheck(self, tag, vaddr, vtmp, base):
        k = self.k
        L1, L2 = k.newlabel("fw"), k.newlabel("fok")
        k.wait(vm=tag)
        k(f"v_cmp_ne_u32 vcc, {sTAG}, {vtmp}\ns_cbranch_vccnz {L1}")
        k.label(L2)
        self.late.append(("poll", L1, L2, vaddr, vtmp, base))

    def datacheck(self, regs, vt, loads):
        k = self.k
        L1, L2 = k.newlabel("rs"), k.newlabel("rok")
        k("\n".join(self.maxchain(regs, vt)))
        k(f"v_cmp_eq_u32 vcc, -1, v{vt}\ns_cbranch_vccnz {L1}")
        k.label(L2)
        self.late.append(("respin", L1, L2, loads, regs, vt))

    def wo(self, i):
        return ar(224 + 4 * i, 4) if i < 8 else vr(216 + 4 * (i - 8), 4)

    @staticmethod
    def maxchain(regs, vt):
        g = []
        regs = list(regs)
        acc = regs.pop(0)
        while regs:
            if len(regs) >= 2:
                g.append(f"v_max3_u32 v{vt}, v{acc}, v{regs.pop(0)}, v{regs.pop(0)}")
            else:
                g.append(f"v_max_u32 v{vt}, v{acc}, v{regs.pop(0)}")
            acc = vt
        return g

    def a_setup(self):
        k = self.k
        k(f"""v_bfe_u32 v16, v0, 2, 2
        v_lshrrev_b32 v17, 5, v0
        v_lshl_add_u32 v18, v17, 3, v16
        v_bfe_u32 v19, v0, 4, 1
        v_lshlrev_b32 v19, 5, v19
        v_and_b32 v20, 3, v0
        v_lshl_add_u32 v19, v20, 3, v19
        v_bfe_u32 v21, v0, 3, 1
        v_lshlrev_b32 v21, 6, v21
        v_xor_b32 v22, v19, v21
        v_add_u32 v23, 56, v19
        v_xor_b32 v23, v23, v21
        v_lshl_add_u32 v22, v18, 7, v22
        v_lshl_add_u32 v23, v18, 7, v23
        v_lshl_add_u32 v24, v18, 6, v19
        s_and_b32 s58, {sB2}, 1
        s_lshl_b32 s58, s58, 3
        s_add_u32 s58, s58, {LQ}
        v_add_u32 v24, s58, v24
        v_and_b32 v25, 31, v0
        v_bfe_u32 v15, v0, 1, 3
        v_xor_b32 v15, v15, v17
        v_lshlrev_b32 v15, 4, v15
        v_lshl_add_u32 v15, v25, 7, v15
        v_add_u32 v15, {sXL}, v15""")
        for p in range(4):
            k(f"""s_add_u32 s58, {sW}, {p}
            s_and_b32 s58, s58, 3
            s_lshl_b32 s59, s58, 11
            v_add_u32 v{WKA + p}, s59, v22
            v_add_u32 v{WKA + 4 + p}, s59, v23
            s_lshl_b32 s59, s58, 10
            v_add_u32 v{WQA + p}, s59, v24
            s_lshl_b32 s58, s58, 5
            v_xor_b32 v{XA + p}, s58, v15""")
        k(f"""v_mov_b32 v{ON}, {sONE}
        v_mov_b32 v{ON + 1}, {sONE}
        v_mov_b32 v{RA + 1}, 0
        v_mov_b32 v{RB + 1}, 0
        v_cmp_gt_u32 vcc, 28, v0
        v_cndmask_b32 v{RB}, 0, v{ON}, vcc
        v_cmp_eq_u32 vcc, 28, v25
        v_cndmask_b32 v{C1}, 0, 1.0, vcc
        v_add_u32 v{CSR}, {LX}, v1
        s_lshl_b32 s58, {sW}, 2
        v_add_u32 v{CSW}, s58, v{CSR}
        s_lshl_b32 s58, {sW}, 11
        s_add_u32 s58, s58, {LP + 4096}
        v_add_u32 v{QW}, s58, v1""")
        for u in range(3):
            k(f"v_xor_b32 v{QW + 1 + u}, {(3 - u) * 2048}, v{QW}")
        k(f"""v_lshrrev_b32 v16, 2, v0
        v_mul_u32_u24 v16, 2688, v16
        v_lshl_add_u32 v16, v20, 4, v16
        s_mul_i32 s58, {sB2}, 56
        s_andn2_b32 s58, s58, 15
        s_mul_i32 s59, {sW}, {16 * 2688}
        s_add_u32 s58, s58, s59
        v_add_u32 v{VWQ}, s58, v16
        s_lshl_b32 s52, {sW}, 10
        s_add_u32 s52, s52, {LQ}
        s_lshl_b32 s58, {sA2}, 2
        s_add_u32 s58, s58, {sW}
        s_lshl_b32 s50, s58, 11
        s_lshl_b32 s59, {sB2}, 18
        s_add_u32 s50, s50, s59
        s_add_u32 s50, s50, {16 << 17}
        s_lshl_b32 s61, s58, 4
        s_add_u32 s61, s61, {sB2}
        s_lshl_b32 s61, s61, 7
        s_add_u32 s61, s61, {WS_FA}
        v_lshrrev_b32 {vFLAG}, 3, v0
        v_lshl_add_u32 {vFLAG}, {vFLAG}, 26, v1""")

    def p_bases(self):
        self.k(f"""s_add_u32 s56, {sXL}, 12288
        s_lshl_b32 s57, {sW}, 12
        s_add_u32 s57, s57, {LP}
        s_cmp_eq_u32 {sW}, 3
        s_cselect_b32 s57, s56, s57""")

    def p_setup(self):
        k = self.k
        F = 216
        k(f"""v_bfe_u32 v20, v0, 2, 2
        v_lshrrev_b32 v21, 5, v0
        v_bfe_u32 v22, v0, 4, 1
        v_and_b32 v23, 3, v0
        s_cmp_ge_u32 {sU}, {U_D}
        s_cbranch_scc1 L_p1""")
        k(f"""v_lshl_add_u32 v20, v21, 4, v20
        v_lshlrev_b32 v20, 7, v20
        v_lshl_add_u32 v20, v23, 3, v20
        s_sub_u32 s58, s57, s56
        v_mul_u32_u24 v22, s58, v22
        v_add3_u32 v20, v20, v22, s56""")
        for q in range(4):
            for e in range(2):
                for h in range(2):
                    k(f"v_add_u32 v{F + 8 * q + 4 * e + 2 * h}, {32 * q + (8 * e + 4 * h) * 128}, v20")
        k("s_branch L_p2")
        k.label("L_p1")
        k(f"""v_lshl_add_u32 v20, v21, 2, v20
        v_lshlrev_b32 v20, 7, v20
        v_lshl_add_u32 v20, v22, 4, v20
        v_and_b32 v21, 1, v23
        v_lshl_add_u32 v20, v21, 5, v20
        v_lshrrev_b32 v21, 1, v23
        v_lshl_add_u32 v20, v21, 3, v20
        v_add_u32 v21, s57, v20
        v_add_u32 v20, s56, v20""")
        for e in range(4):
            for ct in range(2):
                for h in range(2):
                    k(f"v_add_u32 v{F + 8 * e + 4 * ct + 2 * h}, {64 * ct + (16 * (e & 1) + 8 * h) * 128}, v{20 + (e >> 1)}")
        k.label("L_p2")

    def small(self, d, a, b, first):
        self.k(f"v_mfma_f32_4x4x4bf16_1k {vr(d, 4)}, {a}, {b}, {'0' if first else vr(d, 4)}")

    def pass1(self, isv):
        k = self.k
        opt = self.opt.get
        NQ0, DEP, PAT = opt("nq0", 4), opt("adep", 2), opt("pat", 0)

        def xr(c, p):
            return [(f"ds_read_b128 {ar(16 * c + 4 * p, 4)}, v{XA + p} offset:{(c % 3) * 4096}", ("x", c, p))]

        def wr(c, p):
            return [(f"ds_read_b64_tr_b16 {vr(RING + 8 * p + 4 * m + 2 * q, 2)}, v{WKA + 4 * m + p} offset:{c * 8192 + q * 512}", ("w", c, p))
                    for m in range(2) for q in range(2)]

        def emit(g, n=99):
            for _ in range(min(n, len(g))):
                k(*g.pop(0))

        def big(c, p, m):
            w, x = vr(RING + 8 * p + 4 * m, 4), ar(16 * c + 4 * p, 4)
            self.mfma(vr(ACC + 16 * m, 16), *((x, w) if isv else (w, x)), "0" if c + p == 0 else None)

        def xsm(c, p):
            for h in range(2):
                x = ar(16 * c + 4 * p + 2 * h, 2)
                self.small(SQ + 4 * h, x, x, c + p == 0)
                self.small(SM + 4 * h, vr(ON, 2), x, c + p == 0)

        def csm(c):
            for h in range(2):
                for m in range(2):
                    self.small(CS + 4 * m, vr(ON, 2), vr(RING + 4 * m + 2 * h, 2), c + h == 0)

        def arrive(c):
            k.wait(vm=("W" if c == 6 else "X", c))
            k("s_barrier")
            self.stamp(f"A{c}", True)
            return (xr(c, 0) + xr(c, 1) if c < 6 else []) + wr(c, 0) + wr(c, 1)

        emit(arrive(0))
        k(f"v_readfirstlane_b32 {sTAG}, v{VE}\ns_add_u32 {sTAG}, {sTAG}, 0x9e3779b9")
        for i in range(4):
            k(f"v_mov_b32 v{vTAG + i}, {sTAG}")
        dq = []
        for c in range(6):
            if c == PAT - 2:
                dq += self.p_dma()
            dq += self.a_dma(c + DEP) if c + DEP < 7 else []
            if c == 5:
                dq += [self.q_dma(i) for i in range(NQ0)]
            per = (len(dq) + 5) // 6
            for half in range(2):
                k.wait(lg=[("x", c, 2 * half + 1), ("w", c, 0)])
                xsm(c, 2 * half), xsm(c, 2 * half + 1)
                if half == 0:
                    csm(c)
                for g in range(4):
                    p, m = 2 * half + g // 2, g & 1
                    k.wait(lg=("w", c, p))
                    if g and dq:
                        k(dq[0][0])
                    big(c, p, m)
                    if g and dq:
                        if DEP == 3 and dq[0][2] == ("X", c + 3):
                            k.wait(lg=("x", c, 3))
                        k(dq[0][1], tag=dq[0][2])
                        self.dma(dq[1:per])
                        dq = dq[per:]
                    if g == 0:
                        rd = arrive(c + 1) if half else xr(c, 2) + xr(c, 3) + wr(c, 2) + wr(c, 3)
                    emit(rd, 3 if g else 4)
                assert not rd
            assert not dq
        emit(wr(6, 2))
        k.wait(lg=("w", 6, 0))
        csm(6)
        emit(wr(6, 3))
        for m in range(2):
            k(f"ds_write_b32 v{CSW}, v{CS + 4 * m} offset:{1024 * m}", tag="cw")
        k.wait(lg="cw")
        k("s_barrier")
        for m in range(2):
            k(f"ds_read_b128 {vr(CX + 4 * m, 4)}, v{CSR} offset:{1024 * m}", tag="cx")
        k.wait(vm=("X", 6))
        for p in range(4):
            emit(xr(6, p))
        k.wait(lg="cx")
        for m in range(2):
            k("\n".join([f"v_add_f32 v{CX + 4 * m}, v{CX + 4 * m}, v{CX + 4 * m + i}" for i in range(1, 4)] + self.split2(CX + 4 * m, CA + 2 * m)))
        for p in range(4):
            k.wait(lg=("x", 6, p))
            xsm(6, p)
        tail = [f"v_add_f32 v{SQ + i}, v{SQ + i}, v{SQ + 4 + i}" for i in range(4)]
        tail += [f"v_add_f32 v{SM}, v{SM}, v{SM + 4}"]
        tail += [f"v_cndmask_b32 v{SQ}, v{SQ}, v{SQ + i}, {m}" for i, m in ((1, "s[0:1]"), (2, "s[86:87]"), (3, "vcc"))]
        tail += [f"v_permlane32_swap_b32 v{SM}, v{SQ}", f"v_add_f32 v{SM}, v{SM}, v{SQ}"]
        tail += self.stats(SM, SQ, T0, VB, RS) + [f"v_rsq_f32 v{RS}, v{RS}"]
        if isv:
            tail += [f"v_and_b32 v{T0}, 0xffff0000, v{RS}", f"v_sub_f32 v{T0 + 1}, v{RS}, v{T0}", f"v_cvt_pk_bf16_f32 v{RA}, v{T0}, v{T0 + 1}"]
        for m in range(2):
            for p in range(4):
                big(6, p, m)
                if m or p:
                    k("\n".join(tail[:4]))
                    tail = tail[4:]
        k("\n".join(tail))
        self.stamp("A7", True)
        if isv:
            k(f"v_mfma_f32_32x32x8bf16_1k {vr(QA, 16)}, {vr(RA, 2)}, {vr(RB, 2)}, 0")
        for m in range(2):
            a, b = vr(CA + 2 * m, 2), vr(VB, 2)
            k(f"v_mfma_f32_32x32x8bf16_1k {vr(ACC + 16 * m, 16)}, {b if isv else a}, {a if isv else b}, {vr(ACC + 16 * m, 16)}")
        k(f"s_add_u32 s57, s50, {1 << 17}")
        for m in range(2):
            a, p = ACC + 16 * m, PK + 8 * m
            for s in range(2):
                for i in range(4 * s, 4 * s + 4):
                    if isv:
                        k(f"v_pk_fma_f32 {vr(a + 2 * i, 2)}, {vr(a + 2 * i, 2)}, {vr(QA + 2 * i, 2)}, {vr(C1, 2)} op_sel_hi:[1,1,0]")
                    else:
                        k(f"v_pk_mul_f32 {vr(a + 2 * i, 2)}, {vr(a + 2 * i, 2)}, {vr(RS, 2)} op_sel_hi:[1,0]")
                for i in range(4 * s, 4 * s + 4):
                    k(f"v_cvt_pk_bf16_f32 v{p + i}, v{a + 2 * i}, v{a + 2 * i + 1}")
                if s and not isv:
                    k(f"s_mov_b32 exec_lo, 0\nv_mov_b32 v{p + 6}, {sONE}\nv_mov_b32 v{p + 7}, 0x3f80\ns_mov_b32 exec_lo, -1")
                k(f"buffer_store_dwordx4 {vr(p + 4 * s, 4)}, v1, {WS}, {'s57' if m else 's50'} offen offset:{1024 * s} sc1", tag="KV")
        self.stamp("A8", True)

    def p_stores(self):
        g = []
        for p in range(4):
            for e in range(2):
                g.append((f"buffer_store_dwordx4 {vr(216 + 8 * p + 4 * e, 4)}, v1, {WS}, {sPD} offen offset:{1024 * e} sc1", "PS"))
            if p < 3:
                g.append((f"s_add_u32 {sPD}, {sPD}, {sPS}", None))
        g.append((f"buffer_store_dwordx2 v[248:249], v250, {WS}, {sPCS} offen sc1", "PS"))
        return g

    def phase_a(self):
        k = self.k
        opt = self.opt.get
        k(f"buffer_load_dword v{VE}, v16, {WS}, s58 offen sc1", tag="E")
        PAT = opt("pat", 0)
        self.stamp("S0")
        self.dma(self.a_dma(0))
        self.stamp("S1")
        self.unit_setup()
        if opt("nop", 0):
            k("s_mov_b32 s22, 0\ns_mov_b32 s26, 0")
        if PAT == 0:
            self.p_bases()
            self.dma(self.p_dma())
        self.stamp("Sp")
        self.out_addrs()
        self.b_setup()
        self.a_setup()
        self.p_bases()
        self.p_setup()
        self.stamp("S2")
        for c in range(1, opt("adep", 2)):
            self.dma(self.a_dma(c))
        if PAT == 1:
            self.dma(self.p_dma())
        if opt("warm", 1):
            k.note("pull this die's share of the query weights into its L2")
            k(f"""s_lshr_b32 s58, s2, 3
            s_mul_i32 s58, s58, {14 * 2688}
            s_and_b32 s59, s2, 1
            s_mul_i32 s59, s59, 3
            s_add_u32 s59, s59, {sW}
            s_lshl_b32 s59, s59, 7
            s_add_u32 s58, s58, s59
            v_min_u32 v16, 13, v0
            v_mul_u32_u24 v16, 2688, v16
            buffer_load_dword v{JUNK}, v16, {WQ}, s58 offen""")
        self.stamp("S3")
        k(f"""v_and_b32 v16, 3, v0
        v_cmp_eq_u32 s[0:1], 1, v16
        v_cmp_eq_u32 s[86:87], 2, v16
        v_cmp_eq_u32 vcc, 3, v16
        s_cmp_ge_u32 {sB2}, 8
        s_cbranch_scc1 L_v""")
        state = (list(k.vm), list(k.lg), self.nts, list(self.tsn), list(self.pend))
        self.pass1(False)
        k("s_branch L_q")
        k.label("L_v")
        k.vm, k.lg, self.nts, self.tsn, self.pend = state
        self.pass1(True)
        k.label("L_q")
        NQ0, NQ1 = opt("nq0", 4), opt("nq1", 3)
        self.dma([self.q_dma(c) for c in range(NQ0, NQ0 + NQ1)])
        F = 216
        D = [248, 249, 24, 25]
        k("\n".join(f"v_mov_b32 v{d}, 0" for d in D))
        k(f"v_mul_f32 v{RS}, {f32(math.log2(math.e) / math.sqrt(28.0))}, v{RS}")
        k.wait(vm="P")
        for q in range(4):
            for j in range(4):
                k(f"ds_read_b64_tr_b16 {vr(F + 8 * q + 2 * j, 2)}, v{F + 8 * q + 2 * j}", tag=("p", q))
            if q:
                k.wait(lg=("p", q - 1))
                k("\n".join(f"v_dot2c_f32_bf16 v{D[q - 1]}, {sONE}, v{F + 8 * q - 8 + j}" for j in range(8)))
        k.wait(lg=("p", 3))
        k("\n".join(f"v_dot2c_f32_bf16 v{D[3]}, {sONE}, v{F + 24 + j}" for j in range(8)))
        k(f"""v_permlane32_swap_b32 v{D[0]}, v{D[2]}
        v_permlane32_swap_b32 v{D[1]}, v{D[3]}
        v_add_f32 v{D[0]}, v{D[0]}, v{D[2]}
        v_add_f32 v{D[1]}, v{D[1]}, v{D[3]}""")
        self.stamp("Ap", True)
        LA = opt("qla", 5)
        QPL = opt("qpl", 24)
        nrd = [0]
        extra = []

        def qrd(lim):
            if nrd[0] < lim:
                n = nrd[0]
                for q in range(2):
                    k(f"ds_read_b64_tr_b16 {vr(RING + 4 * (n % 8) + 2 * q, 2)}, v{WQA + n % 4} offset:{(n // 4) * 4096 + q * 256}", tag=("q", n))
                nrd[0] += 1

        def ask():
            k(f"s_mov_b32 s60, {WS_FA}")
            k(f"buffer_load_dword v209, v207, {WS}, s60 offen sc1", tag="PF")

        def steps(lo, hi):
            if lo == hi:
                return
            k.wait(vm=("Q", hi - 1))
            k("s_barrier")
            for _ in range(LA):
                qrd(4 * hi)
            for n in range(4 * lo, 4 * hi):
                k.wait(lg=("q", n))
                w = RING + 4 * (n % 8)
                if n % 4 == 0:
                    self.small(CS + 8, vr(ON, 2), vr(w, 2), n == 0)
                self.mfma(vr(QA, 16), vr(w, 4), ar(4 * n, 4), "0" if n == 0 else None)
                if n % 4 == 0:
                    self.small(CS + 8, vr(ON, 2), vr(w + 2, 2), False)
                qrd(4 * hi)
                if n == 25:
                    k(f"ds_write_b32 v{CSW}, v{CS + 8} offset:2048", tag="cw")
                if n == 26:
                    k.wait(lg="cw")
                    k("s_barrier")
                    k(f"ds_read_b128 {vr(CX, 4)}, v{CSR} offset:2048", tag="cx")
                if extra:
                    k(*extra.pop(0))
                    if extra and extra[0][1] is None:
                        k(extra.pop(0)[0])
                if n == QPL:
                    assert not extra
                    ask()

        steps(0, NQ0)
        k.wait(vm="KV")
        k(f"buffer_store_dwordx4 {vr(vTAG, 4)}, {vFLAG}, {WS}, s61 offen sc1")
        self.stamp("A9", True)
        self.dma([self.q_dma(c) for c in range(NQ0 + NQ1, 7)])
        if opt("pse", 1):
            extra = self.p_stores()
        steps(NQ0, NQ0 + NQ1)
        steps(NQ0 + NQ1, 7)
        assert not extra
        k.wait(lg="cx")
        k("\n".join([f"v_add_f32 v{CX}, v{CX}, v{CX + i}" for i in range(1, 4)] + self.split2(CX, CA)))
        k(f"v_mfma_f32_32x32x8bf16_1k {vr(QA, 16)}, {vr(CA, 2)}, {vr(VB, 2)}, {vr(QA, 16)}")
        if QPL == 28:
            ask()
        for s in range(2):
            for i in range(4 * s, 4 * s + 4):
                k(f"v_pk_mul_f32 {vr(QA + 2 * i, 2)}, {vr(QA + 2 * i, 2)}, {vr(RS, 2)} op_sel_hi:[1,0]")
            for i in range(4 * s, 4 * s + 4):
                k(f"v_cvt_pk_bf16_f32 v{32 + i}, v{QA + 2 * i}, v{QA + 2 * i + 1}")
            if s:
                k("s_mov_b32 exec_lo, 0\nv_mov_b32 v38, 0\nv_mov_b32 v39, 0\ns_mov_b32 exec_lo, -1")
            k(f"ds_write_b128 v{QW}, {vr(32 + 4 * s, 4)} offset:{1024 * s}")
        if QPL > 28:
            ask()
        k.wait(lg="all")
        k("s_barrier")
        for u in range(3):
            for s in range(2):
                k(f"ds_read_b128 {vr(8 + 8 * u + 4 * s, 4)}, v{QW + 1 + u} offset:{1024 * s}", tag="Q")
        self.stamp("Aq", True)
        self.flagcheck("PF", "v207", "v209", WS_FA)

    def b_setup(self):
        k = self.k
        sWD, sGL = "s32", "s54"
        k(f"""s_lshl_b32 s55, {sW}, 8
        s_lshr_b32 s56, {sA}, 1
        s_add_u32 s55, s55, s56
        v_and_b32 v2, 15, v0
        v_lshlrev_b32 v2, 4, v2
        v_bfe_u32 v3, v0, 4, 1
        v_lshl_add_u32 v2, v3, 3, v2
        v_add_u32 v2, s55, v2
        v_lshlrev_b32 v207, 7, v2
        v_and_b32 v2, 3, v0
        s_lshl_b32 s55, {sTB}, 4
        s_lshl_b32 s56, {sW}, 2
        s_add_u32 s55, s55, s56
        v_add_u32 v2, s55, v2
        v_lshlrev_b32 v2, 7, v2""")
        k(f"""s_mul_i32 s55, {sB2}, 7
        s_lshr_b32 s55, s55, 2
        s_add_u32 s71, s55, {sW}
        s_mul_i32 s55, s55, 14
        s_lshr_b32 s56, {sCB}, 1
        s_min_u32 s56, s56, 6
        s_mul_i32 s57, s56, 28
        s_mul_i32 s58, {sW}, 7
        s_add_u32 s57, s57, s58
        s_lshl_b32 {sWD}, s57, 13
        s_add_u32 {sWD}, {sWD}, {WS_WD}
        s_add_u32 s57, s57, {U_D - 42}
        s_lshl_b32 s56, s56, 3
        s_lshl_b32 s58, {sW}, 1
        s_add_u32 s56, s56, s58
        s_lshl_b32 s35, s56, 13
        s_add_u32 s35, s35, {WS_WO}
        s_add_u32 s56, s56, {U_O}
        s_cmp_ge_u32 {sCB}, 14
        s_cselect_b32 {sWD}, {OOB}, {sWD}
        s_cselect_b32 s35, {OOB}, s35
        v_add_u32 v4, s55, v0
        v_min_u32 v4, {U_D - 1}, v4
        v_add_u32 v5, s57, v0
        v_and_b32 v3, 1, v0
        v_add_u32 v3, s56, v3
        v_cmp_gt_u32 vcc, 49, v0
        v_cndmask_b32 v3, v3, v5, vcc
        v_cmp_gt_u32 vcc, 42, v0
        v_cndmask_b32 v3, v3, v4, vcc
        v_lshlrev_b32 v3, 7, v3""")
        for t in range(3):
            k(f"""s_xor_b32 s55, {sW}, {3 - t}
            s_mul_i32 s55, s55, 12288
            s_add_u32 s55, s55, {LR + 4096 * t}
            v_add_u32 v{4 + t}, s55, v1""")
        k(f"""s_mul_i32 s55, {sW}, 12288
        s_add_u32 s55, s55, {LR}
        v_add_u32 v7, s55, v1
        v_add_u32 v208, {1024 * 2048}, v1
        v_lshlrev_b32 v210, 2, v0
        s_lshr_b32 s55, {sW}, 1
        s_lshl_b32 s55, s55, 10
        v_add_u32 v253, s55, v1
        v_xor_b32 v252, 1024, v253
        v_and_b32 v254, 31, v0
        v_lshrrev_b32 v251, 5, v0
        v_lshlrev_b32 v250, 4, v254
        v_lshl_add_u32 v250, v251, 3, v250
        v_mul_u32_u24 v254, 896, v254
        v_lshl_add_u32 v254, v251, 5, v254
        s_mul_i32 s55, s62, {32 * 896}
        s_lshl_b32 s56, s63, 6
        s_add_u32 s55, s55, s56
        s_cmp_ge_u32 {sCB}, 14
        s_cselect_b32 s55, {OOB}, s55
        v_add_u32 v254, s55, v254
        s_mul_i32 s55, {sB2}, {7 * 28672}
        s_add_u32 s55, s55, {WS_WGU}
        v_add_u32 v251, s55, v1
        s_mul_i32 {sGL}, {sW}, 28672""")
        for i in range(4):
            k(f"v_accvgpr_write_b32 a{220 + i}, -1")
        k(f"""s_mov_b32 s64, {sO}
        s_mov_b32 s65, {sH}
        s_mov_b32 s66, {sST}
        s_lshl_b32 s67, {sB}, 4
        s_add_u32 s67, s67, {sA}
        s_lshl_b32 s67, s67, 7
        s_add_u32 s67, s67, {WS_FB}
        s_lshl_b32 s68, {sTB}, 4
        s_add_u32 s68, s68, {sCB}
        s_lshl_b32 s68, s68, 7
        s_add_u32 s68, s68, {WS_FC}
        s_cmp_eq_u32 {sW}, 0
        s_cselect_b32 s67, s67, {OOB}
        s_cselect_b32 s68, s68, {OOB}
        s_lshl_b32 s55, s62, 4
        s_lshl_b32 s56, {sW}, 2
        s_add_u32 s55, s55, s56
        s_lshl_b32 s55, s55, 11
        s_add_u32 s70, s55, {WS_O}
        s_xor_b32 s69, s55, 0x8000
        s_add_u32 s69, s69, {WS_O}
        s_min_u32 s71, s71, 27
        s_mul_i32 s71, s71, 7168
        s_add_u32 s71, s71, {WS_CS}
        s_cmp_lt_u32 {sW}, 3
        s_cselect_b32 s71, s71, {OOB}
        s_lshl_b32 s55, {sA2}, 2
        s_add_u32 s55, s55, {sW}
        s_mul_i32 s72, s55, 28672
        s_add_u32 s72, s72, {WS_H}
        s_mul_i32 s73, s55, 3584
        s_add_u32 s73, s73, {WS_ST}
        s_lshl_b32 s76, s55, 4
        s_add_u32 s76, s76, {sB2}
        s_lshl_b32 s76, s76, 7
        s_add_u32 s76, s76, {WS_FQ}
        s_add_u32 s56, {sGL}, {WS_ACT}
        s_mul_i32 s75, s62, {112 * 1024}
        s_add_u32 s75, s75, s56
        s_xor_b32 s74, s62, 1
        s_mul_i32 s74, s74, {112 * 1024}
        s_add_u32 s74, s74, s56
        s_cmp_ge_u32 {sCB}, 14
        s_cselect_b32 s74, {OOB}, s74
        s_cselect_b32 s75, {OOB}, s75""")
        for t in range(2):
            for j in range(4):
                k(f"s_add_u32 s{78 + 4 * t + j}, s{74 + t}, {7168 * j}")

    def phase_b(self):
        k = self.k
        Q, O, S, P, KV = 8, 40, 104, 136, 144
        DEP = 4
        sK, sWD, sGL = "s50", "s32", "s54"
        self.stamp("B0", True)
        k.label("L_attn")
        k(f"""s_lshl_b32 {sK}, {sA}, 6
        s_lshl_b32 s55, {sW}, 4
        s_add_u32 {sK}, {sK}, s55
        s_add_u32 {sK}, {sK}, 1024
        s_lshl_b32 {sK}, {sK}, 11
        s_mov_b32 s33, {sWD}
        s_mov_b32 s59, s35""")

        def kvload(kt):
            b = KV + 16 * (kt % DEP)
            g = []
            for i in range(4):
                t = f"buffer_load_dwordx4 {vr(b + 4 * i, 4)}, v{208 if i & 2 else 1}, {WS}, {sK} offen offset:{2048 * (kt & 1) + 1024 * (i & 1)} sc1"
                g.append((t, ("V" if i & 2 else "K", kt)))
            if kt & 1:
                g.append((f"s_add_u32 {sK}, {sK}, 4096", None))
            return g

        for kt in range(DEP - 1):
            for t, tg in kvload(kt):
                k(t, tag=tg)

        pre = []
        for i in range(16):
            pre.append((f"buffer_load_dwordx4 {self.wo(i)}, v{252 + (i & 1)}, {WS}, s59 offen offset:{(i & 2) * 1024} sc1", "WO"))
            if i % 4 == 3:
                pre.append(("s_add_u32 s59, s59, 4096", None))
        for i in range(28):
            if i % 4 == 0:
                pre.append((f"s_add_u32 m0, {sGL}, {i * 1024}", None))
            pre.append((f"buffer_load_dwordx4 v251, {WS}, m0 offen offset:{(i % 4) * 1024} sc1 lds", "GU"))
        NWD = self.opt.get("nwd", 24)
        pre += self.wd_loads(0, NWD)
        self.wdn = NWD
        pst = [] if self.opt.get("pse", 1) else self.p_stores()

        TD = self.opt.get("td", 3)
        order = [(kt, u) for kt in range(16 - TD) for u in range(4)]
        order += [(kt, u) for kt in range(16 - TD, 16) for u in range(3)] + [(kt, 3) for kt in range(16 - TD, 16)]

        def smf(n, s):
            kt, u = order[n]
            b = KV + 16 * (kt % DEP)
            d = vr(S + 16 * (n & 1), 16)
            self.mfma(d, vr(b + 4 * s, 4), vr(Q + 8 * u + 4 * s, 4), "0" if s == 0 else None)

        def pv(n, s):
            kt, u = order[n]
            b = KV + 16 * (kt % DEP) + 8
            self.mfma(vr(O + 16 * u, 16), vr(b + 4 * s, 4), vr(P + 4 * s, 4), "0" if (kt == 0 and s == 0) else None)

        k.wait(vm=("K", 0), lg="Q")
        smf(0, 0)
        smf(0, 1)
        PFL = self.opt.get("pfl", 9)
        PCHK = self.opt.get("pchk", 16)
        CLR = self.opt.get("clr", 11)
        queue = list(pst)
        clr = self.clears()
        fixed = {}
        for t in range(3):
            m = 4 * (order.index((15, t)) + 1) + 2
            for q in range(4):
                fixed.setdefault(m + q, []).append(f"ds_write_b128 v{4 + t}, {vr(O + 16 * t + 4 * q, 4)} offset:{1024 * q}")
        bar = m + 4 + self.opt.get("bbar", 1)
        hint = f"buffer_store_dwordx4 {vr(vTAG, 4)}, {vFLAG}, {WS}, s67 offen sc1"
        rds = [(f"ds_read_b128 {vr(O + 16 * j + 4 * q, 4)}, v7 offset:{4096 * j + 1024 * q}", ("c", j, q)) for q in range(4) for j in range(3)]
        HB = bar + self.opt.get("hb", 1)

        def join():
            assert "CL" not in k.vm
            k.wait(lg="all")
            k("s_barrier")

        def slot(g):
            if g in fixed:
                for t in fixed[g]:
                    k(t)
            elif g == bar:
                join()
            elif g > bar:
                if g == HB:
                    k(hint)
                for _ in range(self.opt.get("brd", 3)):
                    if rds:
                        t, tg = rds.pop(0)
                        k(t, tag=tg)
            elif queue:
                if tg_of(queue[0]) in ("WO", "GU", "WD") and credit[0] < 10:
                    return
                t, tg = queue.pop(0)
                if callable(t):
                    t()
                else:
                    k(t, tag=tg)
                    if t.startswith("buffer"):
                        credit[0] -= 10

        tg_of = lambda q: q[1]
        credit = [0]
        for n in range(64):
            credit[0] = min(credit[0], 10) + self.opt.get("vpu", 27)
            kt, u = order[n]
            sb = S + 16 * (n & 1)
            if self.opt.get("tsb") and n % self.opt["tsb"] == 0:
                self.stamp(f"b{n}", True)
            if u == (1 if kt else 3) and kt + DEP - 1 < 16:
                queue = kvload(kt + DEP - 1) + queue
            if n == PFL:
                queue.append((lambda: k.wait(vm="PS"), None))
                queue.append((f"buffer_store_dwordx4 {vr(vTAG, 4)}, {vFLAG}, {WS}, {sPF} offen sc1", None))
            if n >= CLR and clr and (n - CLR) % 2 == 0:
                queue.append((clr.pop(0), "CL"))
            if n == PCHK:
                queue.append((f"s_mov_b32 s60, {WS_FP}", None))
                queue.append((f"buffer_load_dword v209, v3, {WS}, s60 offen sc1", "PF"))
            if n == PCHK + 5:
                assert not clr
                queue.append((lambda: self.flagcheck("PF", "v3", "v209", WS_FP), None))
                queue += pre
            if n == 53:
                queue = [(f"buffer_load_dwordx4 {vr(KV + 4 * s, 4)}, v254, {X}, 0 offen offset:{16 * s}", "X") for s in range(2)] + queue

            def ex(i):
                k(f"v_exp_f32 v{sb + i}, v{sb + i}")

            def cv(i):
                k(f"v_cvt_pk_bf16_f32 v{P + i}, v{sb + 2 * i}, v{sb + 2 * i + 1}")

            ex(0), ex(1)
            if n > 0:
                pv(n - 1, 1)
                if not (n + 1 < 64 and k.wait(vm=("V", order[n + 1][0]))):
                    slot(4 * n)
                else:
                    assert 4 * n not in fixed
            ex(2), ex(3), cv(0), ex(4), ex(5), cv(1)
            if n + 1 < 64:
                smf(n + 1, 0)
            slot(4 * n + 1)
            ex(6), ex(7), cv(2), ex(8), ex(9), cv(3)
            if n + 1 < 64:
                smf(n + 1, 1)
            if not (n == 0 and k.wait(vm=("V", 0))):
                slot(4 * n + 2)
            ex(10), ex(11), cv(4), ex(12), ex(13), cv(5)
            pv(n, 0)
            slot(4 * n + 3)
            ex(14), ex(15), cv(6), cv(7)
        assert not queue, len(queue)
        pv(63, 1)
        g = 256
        while g <= max(bar, HB) or rds:
            slot(g)
            g += 1
        self.stamp("B1", True)
        o = O + 48
        for q in range(4):
            k.wait(lg=("c", 2, q))
            for j in (1, 2):
                for i in range(2):
                    r = O + 4 * q + 2 * i
                    k(f"v_pk_add_f32 {vr(r, 2)}, {vr(r, 2)}, {vr(r + 16 * j, 2)}")
        lo, hi = struct.unpack("<II", struct.pack("<ff", 2.0 ** -80, 2.0 ** 80))
        k(f"""v_add_f32 v248, v{o + 12}, v{O + 12}
        v_add_f32 v249, v{o + 12}, v{O + 12}""")
        adds = [f"v_pk_add_f32 {vr(o + 2 * i, 2)}, {vr(o + 2 * i, 2)}, {vr(O + 2 * i, 2)}" for i in range(8)]
        k("\n".join(adds[:2]))
        k(f"""v_permlane32_swap_b32 v249, v248
        s_mov_b32 s56, {hi - lo}""")
        k("\n".join(adds[2:4]))
        k(f"""v_subrev_u32 v249, {lo}, v248
        v_rcp_f32 v248, v248
        v_cmp_lt_u32 vcc, s56, v249""")
        k("\n".join(adds[4:]))
        if self.force_fb:
            k(f"s_and_b32 vcc_lo, {sW}, {self.force_fb - 1}" if self.force_fb > 1 else "s_mov_b32 vcc_lo, 1")
        k(f"""s_andn2_b32 s57, vcc_lo, {sFB}
        s_cselect_b32 s55, {OOB}, {sO}
        s_cselect_b32 {sO}, {sO}, {OOB}""")
        for s in range(2):
            for i in range(4 * s, 4 * s + 4):
                k(f"v_pk_mul_f32 {vr(o + 2 * i, 2)}, {vr(o + 2 * i, 2)}, v[248:249] op_sel_hi:[1,0]")
            for i in range(4 * s, 4 * s + 4):
                k(f"v_cvt_pk_bf16_f32 v{P + i}, v{o + 2 * i}, v{o + 2 * i + 1}")
            if s:
                k(f"s_mov_b32 exec_lo, 0\nv_mov_b32 v{P + 6}, 0\nv_mov_b32 v{P + 7}, 0\ns_mov_b32 exec_lo, -1")
            k(f"buffer_store_dwordx4 {vr(P + 4 * s, 4)}, v1, {WS}, s55 offen offset:{1024 * s} sc1")
        self.stamp("B2", True)
        k(f"s_mov_b32 s60, {WS_FB}")
        k(f"buffer_load_dword v209, v2, {WS}, s60 offen sc1", tag="PF")
        k(f"""v_mov_b32 v248, s57
        v_and_b32 v249, 3, v0
        ds_write_b32 v7, v248
        v_mul_u32_u24 v249, 12288, v249
        v_add_u32 v249, {LR}, v249""")
        k.wait(lg="all")
        k("s_barrier\nds_read_b32 v248, v249")
        k.wait(vm=["X", "GU"])
        for i in range(8):
            k(f"v_lshlrev_b32 v{S + 2 * i}, 16, v{KV + i}\nv_and_b32 v{S + 1 + 2 * i}, 0xffff0000, v{KV + i}")
        k.wait(lg="all")
        k("s_barrier\nv_cmp_ne_u32 vcc, 0, v248\ns_cbranch_vccnz L_fb")
        n = self.opt.get("nwb", 0)
        for t, tg in self.wd_loads(self.wdn, self.wdn + n):
            k(t, tag=tg)
        self.wdn += n

    def wd_loads(self, lo, hi):
        g = []
        for i in range(lo, hi):
            g.append((f"buffer_load_dwordx4 {ar(4 * i, 4)}, v{252 + (i & 1)}, {WS}, s33 offen offset:{(i & 2) * 1024} sc1", "WD"))
            if i % 4 == 3:
                g.append(("s_add_u32 s33, s33, 4096", None))
        return g

    def late_code(self):
        k = self.k
        Q, S, KV = 8, 104, 144
        for kind, L1, L2, x, y, z in self.late:
            k.label(L1)
            if kind == "poll":
                self.poll(x, y, z, {WS_FB: "s90", WS_FC: "s92", "s77": "s95"}.get(z))
            elif kind == "call":
                x()
                k.wait(vm="all")
            else:
                if self.ts:
                    c = "s91" if z == 209 else "s94" if len(y) == 14 else "s93"
                    k(f"s_add_u32 {c}, {c}, 1")
                k("\n".join(x))
                k.wait(vm="all")
                k("\n".join(self.maxchain(y, z)))
                k(f"""v_cmp_eq_u32 vcc, -1, v{z}
                s_cbranch_vccz {L2}
                s_sub_u32 {sCNT}, {sCNT}, 1
                s_cselect_b32 {sCNT}, 0, {sCNT}
                s_cbranch_scc0 {L1}""")
            k(f"s_branch {L2}")
        k.label("L_fb")
        k(f"""s_waitcnt vmcnt(0) lgkmcnt(0)
        s_barrier
        s_mov_b32 {sFB}, -1
        s_mov_b32 {sPD}, {OOB}
        s_mov_b32 {sPCS}, {OOB}
        s_mov_b32 {sPF}, {OOB}
        s_mov_b32 s64, {OOB}
        s_mov_b32 s65, {OOB}
        s_mov_b32 s66, {OOB}
        s_lshl_b32 s50, {sA}, 6
        s_lshl_b32 s55, {sW}, 4
        s_add_u32 s50, s50, s55
        s_add_u32 s50, s50, 1024
        s_lshl_b32 s50, s50, 11
        s_mov_b32 s51, 16""")
        for u in range(4):
            k(f"v_mov_b32 v{228 + u}, 0xff800000")
        k.label("L_fbl")
        for s in range(2):
            k(f"buffer_load_dwordx4 {vr(KV + 4 * s, 4)}, v1, {WS}, s50 offen offset:{1024 * s} sc1")
        k("s_add_u32 s50, s50, 2048\ns_waitcnt vmcnt(0)")
        for u in range(4):
            self.mfma(vr(S, 16), vr(KV, 4), vr(Q + 8 * u, 4), "0")
            self.mfma(vr(S, 16), vr(KV + 4, 4), vr(Q + 8 * u + 4, 4))
            for i in range(8):
                k(f"v_max3_f32 v{228 + u}, v{228 + u}, v{S + 2 * i}, v{S + 2 * i + 1}")
        k("s_sub_u32 s51, s51, 1\ns_cmp_lg_u32 s51, 0\ns_cbranch_scc1 L_fbl")
        k(f"v_lshlrev_b32 v216, 2, v0\ns_lshl_b32 s57, {sW}, 8")
        for u in range(4):
            k(f"""v_mov_b32 v218, v{228 + u}
            v_permlane32_swap_b32 v218, v{228 + u}
            v_max_f32 v{228 + u}, v218, v{228 + u}
            s_xor_b32 s55, {sW}, {3 - u}
            s_lshl_b32 s55, s55, 10
            s_add_u32 s55, s55, {LR}
            v_add_u32 v{220 + u}, s55, v216
            v_add_u32 v217, s57, v{220 + u}
            ds_write_b32 v217, v{228 + u}""")
        k("s_waitcnt lgkmcnt(0)\ns_barrier")
        for u in range(4):
            for j in range(4):
                k(f"ds_read_b32 v{224 + j}, v{220 + u} offset:{256 * j}")
            k(f"""s_waitcnt lgkmcnt(0)
            v_max3_f32 v224, v224, v225, v226
            v_max_f32 v224, v224, v227
            v_sub_f32 v224, 0, v224
            v_cvt_pk_bf16_f32 v225, v224, v224
            v_and_b32 v225, 0xffff0000, v225
            v_sub_f32 v225, v224, v225
            v_cvt_pk_bf16_f32 v226, v224, v225
            v_and_b32 v227, 0xffff0000, v226
            v_sub_f32 v227, v225, v227
            v_cvt_pk_bf16_f32 v227, v227, 0
            s_mov_b32 exec_lo, 0
            v_mov_b32 v{Q + 8 * u + 6}, v226
            v_mov_b32 v{Q + 8 * u + 7}, v227
            s_mov_b32 exec_lo, -1""")
        k("s_barrier\ns_branch L_attn")
        k.vm.clear()
        k.lg.clear()

    def phase_c(self):
        k = self.k
        ACC, OF, XR, CL = 8, 136, 104, 72

        def csl():
            k("s_add_u32 s55, s71, 4096")
            for i in range(7):
                k(f"buffer_load_dwordx4 {vr(CL + 4 * i, 4)}, v1, {WS}, {'s71' if i < 4 else 's55'} offen offset:{(i % 4) * 1024} sc1", tag="cs")

        k(f"s_cmp_ge_u32 {sCB}, 14\ns_cbranch_scc1 L_cidle")
        self.late.append(("call", "L_cidle", "L_c1", csl, None, None))
        k("s_add_u32 s50, s69, 4096\ns_add_u32 s51, s70, 4096")
        self.flagcheck("PF", "v2", "v209", WS_FB)
        self.stamp("C0", True)
        loads = []
        for t in range(2):
            for ks in range(8):
                sb = f"s{69 + t}" if ks < 4 else f"s{50 + t}"
                loads.append(f"buffer_load_dwordx4 {vr(OF + 32 * t + 4 * ks, 4)}, v1, {WS}, {sb} offen offset:{1024 * (ks & 3)} sc1")
                k(loads[-1], tag=("O", 8 * t + ks))
        csl()

        def arrive(f):
            k.wait(vm=("O", f + 1))
            self.datacheck([OF + 4 * f, OF + 4 * f + 4], 209, loads[f:])

        def mm(lt, ks):
            c, t = divmod(lt, 2)
            self.mfma(vr(ACC + 16 * lt, 16), self.wo(2 * ks + c), vr(OF + 32 * t + 4 * ks, 4), None if ks else vr(XR, 16) if lt == 3 else "0")

        def wr(lt):
            return [f"ds_write_b128 v{4 + lt}, {vr(ACC + 16 * lt + 4 * q, 4)} offset:{1024 * q}" for q in range(4)]

        for p in range(4):
            arrive(2 * p)
            for lt, ks in ((0, 0), (0, 1), (2, 0), (2, 1)):
                mm(lt, 2 * p + ks)
        w = wr(0) + wr(2)
        for ks in range(8):
            if ks % 2 == 0:
                arrive(8 + ks)
            mm(1, ks)
            if ks >= 1:
                k(w.pop(0))
        w += [None] + wr(1)
        for ks in range(8):
            mm(3, ks)
            if w:
                t = w.pop(0)
                if t:
                    k(t)
        self.stamp("C1", True)
        k.wait(lg="all")
        k(f"s_barrier\nbuffer_store_dwordx4 {vr(vTAG, 4)}, {vFLAG}, {WS}, s68 offen sc1")
        for q in range(4):
            for j in range(3):
                k(f"ds_read_b128 {vr(ACC + 16 * j + 4 * q, 4)}, v7 offset:{4096 * j + 1024 * q}", tag=("c", j, q))
        o = ACC + 48
        for q in range(4):
            for j in range(3):
                k.wait(lg=("c", j, q))
                for i in range(2):
                    r = o + 4 * q + 2 * i
                    k(f"v_pk_add_f32 {vr(r, 2)}, {vr(r, 2)}, {vr(ACC + 16 * j + 4 * q + 2 * i, 2)}")
            for i in range(2):
                k(f"v_cvt_pk_bf16_f32 v{OF + 2 * q + i}, v{o + 4 * q + 2 * i}, v{o + 4 * q + 2 * i + 1}")
            if q & 1:
                k(f"buffer_store_dwordx4 {vr(OF + 2 * q - 2, 4)}, v1, {WS}, {sH} offen offset:{512 * (q - 1)} sc1")
        k(f"v_pk_add_f32 v[16:17], {vr(o, 2)}, {vr(o + 2, 2)}\nv_pk_mul_f32 v[18:19], {vr(o, 2)}, {vr(o, 2)}")
        for i in range(1, 8):
            if i > 1:
                k(f"v_pk_add_f32 v[16:17], v[16:17], {vr(o + 2 * i, 2)}")
            k(f"v_pk_fma_f32 v[18:19], {vr(o + 2 * i, 2)}, {vr(o + 2 * i, 2)}, v[18:19]")
        k(f"""v_add_f32 v16, v16, v17
        v_add_f32 v18, v18, v19
        v_permlane32_swap_b32 v16, v18
        v_add_f32 v16, v16, v18
        buffer_store_dword v16, v210, {WS}, {sST} offen sc1
        s_barrier""")
        k.label("L_c1")
        self.stamp("C3", True)

    def phase_de(self):
        k = self.k
        opt = self.opt.get
        H, ACC, AB, T = 8, 120, 184, 216
        CL, CS = 72, 100
        LCS = LR + 28672
        sGU = "s53"
        k(f"""s_lshl_b32 s55, {sA2}, 4
        s_lshr_b32 s56, {sW}, 1
        s_add_u32 s55, s55, s56
        v_min_u32 v249, 6, v0
        v_lshlrev_b32 v249, 1, v249
        v_add_u32 v249, s55, v249
        v_lshlrev_b32 v249, 7, v249
        s_mov_b32 s60, {WS_FC}""")
        k(f"buffer_load_dword v248, v249, {WS}, s60 offen sc1", tag="PF")
        k(f"""s_mul_i32 s52, {sW}, 7168
        s_mul_i32 {sGU}, {sB2}, {7 * 28672}
        s_add_u32 {sGU}, {sGU}, s52
        s_add_u32 {sGU}, {sGU}, {WS_WGU + 4 * 28672}""")

        def gdma(ct, lds):
            g = []
            for i in range(7):
                t = ""
                if i % 4 == 0:
                    t = f"s_add_u32 m0, s52, {lds + i * 1024}\ns_add_u32 s56, {sGU}, {(ct - 4) * 28672 + i * 1024}\n"
                g.append((t + f"buffer_load_dwordx4 v1, {WS}, s56 offen offset:{(i % 4) * 1024} sc1 lds", ("G", ct)))
            return g

        mem = []
        if opt("g4", 1):
            for t, tg in gdma(4, LR):
                k(t, tag=tg)
        n = opt("nwc", 0)
        for t, tg in self.wd_loads(self.wdn, self.wdn + n):
            k(t, tag=tg)
        self.wdn += n
        for i in range(16):
            k(f"v_accvgpr_write_b32 a{224 + i}, v{56 + i}")
        for i in range(4):
            k(f"v_mov_b32 v{240 + i}, {sTAG}")
        k(f"""v_mov_b32 v244, {vFLAG}
        v_mov_b32 v250, v210
        v_lshlrev_b32 v2, 3, v0
        s_lshl_b32 s55, {sW}, 11
        s_add_u32 s55, s55, {LCS}
        v_add_u32 v3, s55, v2
        v_bfe_u32 v245, v0, 2, 1
        v_xor_b32 v245, s62, v245
        v_lshlrev_b32 v245, 4, v245
        v_and_b32 v246, 3, v0
        s_lshl_b32 s55, {sW}, 2
        v_add3_u32 v245, v245, v246, s55
        v_lshlrev_b32 v245, 7, v245""")
        for i in range(4):
            k(f"v_subrev_u32 v{4 + i}, {LR - 57344}, v{4 + i}")
        k.wait(vm="cs")
        for i in range(1, 7):
            for h in range(2):
                k(f"v_pk_add_f32 {vr(CL + 2 * h, 2)}, {vr(CL + 2 * h, 2)}, {vr(CL + 4 * i + 2 * h, 2)}")
        for q in range(4):
            k("\n".join(self.split2(CL + q, CS + 2 * q)))
            k(f"ds_write_b64 v3, {vr(CS + 2 * q, 2)} offset:{512 * q}")
        k(f"""s_mul_i32 s55, {sB2}, 7
        s_and_b32 s55, s55, 3
        s_lshl_b32 s55, s55, 9
        s_add_u32 s55, s55, {LCS}
        v_add_u32 v3, s55, v2
        v_add_u32 v2, 57344, v1
        v_add_u32 v251, {LR}, v1
        s_mov_b32 s50, s72""")
        k.wait(lg="all")

        slot_of = {0: 0, 1: 1, 2: 2, 3: 3, 4: "R", 5: 0, 6: 1}
        seq = [(ct, ks) for ks in range(28) for ct in range(3)] + [(ct, ks) for ct in range(3, 7) for ks in range(28)]
        ND = len(seq)
        NB = 8
        AH = opt("dah", 5)

        def aread(i):
            ct, ks = seq[i]
            s = slot_of[ct]
            if s == "R":
                va, off = "v251", ks * 1024
            elif s < 2:
                va, off = "v1", s * 28672 + ks * 1024
            else:
                va, off = "v2", (s - 2) * 28672 + ks * 1024
            k(f"ds_read_b128 {vr(AB + 4 * (i % NB), 4)}, {va} offset:{off}", tag=("a", i))

        for i in range(AH):
            aread(i)
        self.flagcheck("PF", "v249", "v248", WS_FC)
        self.stamp("D0", True)
        HA = opt("dha", 12)

        def hload(ks, sb="s50"):
            return f"buffer_load_dwordx4 {vr(H + 4 * ks, 4)}, v1, {WS}, {sb} offen offset:{1024 * (ks & 3)} sc1"

        def hagain(lo, hi):
            g = []
            for ks in range(lo, hi):
                if ks == lo or ks & 3 == 0:
                    g.append(f"s_add_u32 s60, s72, {4096 * (ks >> 2)}")
                g.append(hload(ks, "s60"))
            return g

        SL = ACC + 48
        queue = [(hload(ks) + ("\ns_add_u32 s50, s50, 4096" if ks & 3 == 3 else ""), ("H", ks)) for ks in range(28)]
        sts = [f"buffer_load_dword v{SL + c}, v250, {WS}, s73 offen offset:{256 * c} sc1" for c in range(14)]
        queue += [(t, "S") for t in sts]
        for _ in range(HA):
            t, tg = queue.pop(0)
            k(t, tag=tg)
        hgrp = {0: 2, 2: 4, 4: 8, 8: 12, 12: 16, 16: 20, 20: 24, 24: 28} if opt("hg", 4) == 4 else {i: i + 2 for i in range(0, 28, 2)}

        VB, VC, VS = T + 2, T + 4, T + 6
        CA = T + 8
        E = T + 16

        def epilogue(ct, packed):
            a = ACC + 16 * (ct % 4)
            e = []
            if packed:
                e += [f"v_pk_mul_f32 {vr(a + 2 * i, 2)}, {vr(a + 2 * i, 2)}, {vr(VC, 2)} op_sel_hi:[1,0]" for i in range(4)]
            else:
                e += [f"v_mul_f32 v{a + i}, v{VC}, v{a + i}" for i in range(8)]
            e += [f"v_exp_f32 v{a + i}, v{a + i}" for i in range(8)]
            if packed:
                e += [f"v_pk_fma_f32 {vr(a + 2 * i, 2)}, {vr(a + 2 * i, 2)}, {vr(VS, 2)}, {vr(VS, 2)} op_sel_hi:[1,0,0]" for i in range(4)]
            else:
                e += [f"v_fma_f32 v{a + i}, v{a + i}, v{VS}, v{VS}" for i in range(8)]
            e += [f"v_rcp_f32 v{a + i}, v{a + i}" for i in range(8)]
            if packed:
                e += [f"v_pk_mul_f32 {vr(a + 2 * i, 2)}, {vr(a + 2 * i, 2)}, {vr(a + 8 + 2 * i, 2)}" for i in range(4)]
            else:
                e += [f"v_mul_f32 v{a + i}, v{a + i}, v{a + 8 + i}" for i in range(8)]
            p = E + 4 * (ct & 1)
            e += [f"v_cvt_pk_bf16_f32 v{p + i}, v{a + 2 * i}, v{a + 2 * i + 1}" for i in range(4)]
            pre = f"s_add_u32 {sAC}, {sAC}, 4096\n" if ct == 4 else ""
            e.append(pre + f"buffer_store_dwordx4 {vr(p, 4)}, v1, {WS}, {sAC} offen offset:{1024 * (ct & 3)} sc1")
            return [(t, ("e", ct)) for t in e]

        def corr(ct):
            a = vr(ACC + 16 * (ct % 4), 16)
            k(f"v_mfma_f32_32x32x8bf16_1k {a}, {vr(CA + 2 * (ct % 4), 2)}, {vr(VB, 2)}, {a}")

        def csread(ct):
            k(f"ds_read_b64 {vr(CA + 2 * (ct % 4), 2)}, v3 offset:{512 * ct}", tag=("cs", ct))

        def cost(t):
            if callable(t):
                return 8
            return sum(8 if l.startswith(("v_exp", "v_rcp", "v_rsq", "v_sqrt", "buffer")) else 4 for l in t.split("\n"))

        EA = [184, 136, 120, 168]
        DF = opt("edf", 3)
        units = [(g, t) for g in range(7 - DF) for t in range(2)] + [(g, 0) for g in range(7 - DF, 7)] + [(g, 1) for g in range(7 - DF, 7)]
        eseq = []
        for u, (g, t) in enumerate(units[:14 - DF]):
            if u == 13 - DF:
                eseq += [(u, j, c) for c in range(2) for j in range(4)]
            else:
                eseq += [(u, j, c) for j in range(4) for c in range(2)]
        eseq += [(u, j, c) for c in range(2) for u in range(14 - DF, 14) for j in range(4)]
        lastuse = {u: ND + i for i, (u, j, c) in enumerate(eseq)}
        lastacc = {2 * c + units[u][1]: ND + i for i, (u, j, c) in enumerate(eseq)}
        free = [(H + 16 * b, 171 + 4 * b) for b in range(7)] + [(200, 191)]
        stages = [[int(c) for c in s] for s in str(opt("stg", "01.23.45.6")).split(".")]
        stage_of = {g: s for s, gs in enumerate(stages) for g in gs}
        L0, LS = opt("el0", 172), opt("els", 2)
        FDL, CDL, CHK = opt("fdl", 13), opt("cdl", 28), opt("chk", 16)
        first = {}
        for u, (g, t) in enumerate(units):
            first.setdefault(stage_of[g], L0 + 4 * LS * u)
        ubuf, eload, enext = {}, [(u, j) for u in range(14) for j in range(4)], L0
        stored, sent, asked, passed = {}, {}, {}, set()
        seen = set()

        def flagstore():
            return f"buffer_store_dwordx4 v[240:243], v244, {WS}, s76 offen sc1\ns_add_u32 s76, s76, 0x20000"

        def events(i):
            nonlocal enext
            spent = 0
            s = len(sent)
            if s < len(stages) and stages[s][-1] in stored and i >= stored[stages[s][-1]] + FDL:
                k.wait(vm=("e", stages[s][-1]))
                k(flagstore())
                sent[s] = i
                spent += 16
            s = len(asked)
            if s < len(stages) and s in sent and len(passed) == s and i >= max(sent[s] + CDL, first[s] - CHK - 1):
                k(f"s_mov_b32 s77, {WS_FQ + 0x20000 * s}")
                k(f"buffer_load_dword v248, v245, {WS}, s77 offen sc1", tag="PF")
                asked[s] = i
                spent += 12
            s = len(passed)
            if s in asked and i >= asked[s] + CHK:
                self.flagcheck("PF", "v245", "v248", "s77")
                passed.add(s)
                spent += 12
            if eload and i >= enext:
                u, j = eload[0]
                g, t = units[u]
                if stage_of[g] in passed:
                    if u not in ubuf:
                        ok = [f for f in free if f[1] <= i]
                        if ok:
                            free.remove(ok[0])
                            ubuf[u] = ok[0][0]
                            free.append((ok[0][0], lastuse[u]))
                    if u in ubuf:
                        sb = f"s{78 + 4 * t + j}"
                        k(f"buffer_load_dwordx4 {vr(ubuf[u] + 4 * j, 4)}, v1, {WS}, {sb} offen offset:{(g & 3) * 1024} sc1", tag=("B", u, j))
                        if g == 3:
                            k(f"s_add_u32 {sb}, {sb}, 4096")
                            spent += 4
                        eload.pop(0)
                        due = L0 + LS * (56 - len(eload))
                        enext = max(i + 1, due)
                        self.log.append(("ld", u, j, i))
                        spent += 8
            return spent

        self.log = []
        BUD, EBUD = opt("dbud", 18), opt("ebud", 24)
        hold = 0
        b = 0
        xch = {}
        for lt in range(3):
            for q in range(4):
                xch.setdefault(lastacc[lt] + 2 + q, []).append(f"ds_write_b128 v{4 + lt}, {vr(EA[lt] + 4 * q, 4)} offset:{1024 * q}")
        B1, B2 = lastacc[1] + opt("eb1", 0), lastacc[1] + opt("eb2", 9)

        def xread(lt):
            return [(f"ds_read_b128 {vr(EA[lt] + 4 * q, 4)}, v7 offset:{4096 * lt + 1024 * q}", ("c", lt, q)) for q in range(4)]

        def xadd(lt):
            g = []
            for q in range(4):
                g.append((lambda q=q: k.wait(lg=("c", lt, q)), None))
                g += [(f"v_add_f32 v{EA[0] + r}, v{EA[0] + r}, v{EA[lt] + r}", None) for r in range(4 * q, 4 * q + 4)]
            return g

        for i in range(ND + 112):
            if i < ND:
                ct, ks = seq[i]
                nxt = i + AH
                if nxt < ND and seq[nxt] == (5, 0):
                    assert not any(tg in (("G", 5), ("G", 6)) for _, tg in mem)
                    k.wait(vm=[("G", 5), ("G", 6)])
                    k("s_barrier")
                if ks == 0 and ct >= 4:
                    assert not any(tg == ("e", ct - 4) for _, tg in queue), ct
                if ct == 0 and ks in hgrp:
                    assert not any(tg == ("H", hgrp[ks] - 1) for _, tg in queue)
                    k.wait(vm=("H", hgrp[ks] - 1))
                    out = 28 - sum(1 for _, tg in queue if tg and tg[0] == "H")
                    self.datacheck([H + 4 * x for x in range(ks, hgrp[ks])], 248, hagain(ks, out))
                k.wait(lg=("a", i))
                self.mfma(vr(ACC + 16 * (ct % 4), 16), vr(AB + 4 * (i % NB), 4), vr(H + 4 * ks, 4), "0" if ks == 0 else None)
                if nxt < ND:
                    aread(nxt)
                if i % opt("tsd", 28) == 0:
                    self.stamp(f"d{i}", True)
                if i == opt("dwd", 40):
                    if not opt("g4", 1):
                        mem += gdma(4, LR)
                    mem += self.wd_loads(self.wdn, 56)
                if i == 64:
                    assert not queue

                    def stcheck():
                        k.wait(vm="S")
                        self.datacheck(list(range(SL, SL + 14)), 248, sts)
                    queue.append((stcheck, None))
                    queue += [(f"v_add_f32 v{SL}, v{SL}, v{SL + c}", None) for c in range(1, 14)]
                    queue += [(t.strip(), None) for t in self.stats(SL, SL + 1, VC, VB, VS)]
                    queue += [(f"v_rsq_f32 v{VC}, v{VS}", None), (f"v_sqrt_f32 v{VS}, v{VS}", None),
                              (f"v_mul_f32 v{VC}, {f32(-math.log2(math.e))}, v{VC}", None)]
                if i == 83:
                    assert not queue and not any(tg == ("G", 4) for _, tg in mem)
                    k.wait(vm=("G", 4))
                    k("s_barrier")
                    for c in range(4):
                        csread(c)
                    mem = gdma(5, 0) + gdma(6, 28672) + mem
                    continue
                if i == 86:
                    k.wait(lg=("cs", 3))
                    for c in range(3):
                        corr(c)
                        queue += epilogue(c, False)
                    hold = 3
                    continue
                if i > 83 and ks == 27:
                    k.wait(lg=("cs", ct))
                    corr(ct)
                    if ct == 6:
                        assert not mem
                        self.stamp("D2", True)
                        k(f"s_cmp_ge_u32 {sCB}, 14\ns_cbranch_scc1 L_tail")
                        rest = list(queue) + epilogue(6, True)
                        nflag = len(stages) - len(sent)
                        queue += [(f"v_accvgpr_read_b32 v{EA[3] + r}, a{224 + r}", "res") for r in range(16)]
                    elif not queue:
                        hold = 4
                    queue += epilogue(ct, False)
                    continue
                if i > 83 and ks == 8 and ct < 6:
                    csread(ct + 1)
                b = min(b, 4) + BUD
            else:
                u, j, c = eseq[i - ND]
                g, t = units[u]
                lt = 2 * c + t
                assert (u, j) not in eload, (i, u, j)
                if lt not in seen:
                    assert 4 in stored
                    assert not any(tg in ("res", ("e", 5)) for _, tg in queue) or t == 0, (i, stored, len(queue))
                k.wait(vm=("B", u, j))
                self.mfma(vr(EA[lt], 16), ar(8 * (7 * j + g) + 4 * c, 4), vr(ubuf[u] + 4 * j, 4), "0" if (lt not in seen and lt < 3) else None)
                seen.add(lt)
                if i > ND and (i - ND) % opt("tsd", 28) == 0:
                    self.stamp(f"Ee{i - ND}", True)
                b = min(b, 4) + EBUD
                if i == B1 and B1 < B2:
                    k.wait(lg="all")
                    k("s_barrier")
                    queue += [x for p in zip(xread(0), xread(2)) for x in p] + xadd(2)
                for t in xch.get(i, []):
                    k(t)
                    b -= 8
                if i == B2:
                    k.wait(lg="all")
                    k("s_barrier")
                    if B1 >= B2:
                        queue += [x for p in zip(xread(0), xread(2)) for x in p] + xread(1) + xadd(2)
                    else:
                        queue = xread(1) + queue
                    queue += xadd(1)
            b -= events(i)
            if mem and (hold or i & 1):
                t, tg = mem.pop(0)
                k(t, tag=tg)
                b -= cost(t)
                if mem and mem[0][1] is None:
                    k(mem.pop(0)[0])
                    b -= 4
            if hold:
                hold -= 1
                continue
            while queue and b >= cost(queue[0][0]):
                t, tg = queue.pop(0)
                b -= cost(t)
                if callable(t):
                    t()
                else:
                    k(t, tag=tg)
                    if "buffer_store" in t:
                        stored[tg[1]] = i
                if i < 64:
                    break
        self.log += [("stored", stored), ("sent", sent), ("asked", asked), ("left", len(queue))]
        for t, tg in queue:
            if callable(t):
                t()
            else:
                k(t, tag=tg)
        self.stamp("E1", True)
        o = EA[3]
        for s in range(2):
            for i in range(4 * s, 4 * s + 4):
                k(f"v_pk_add_f32 {vr(o + 2 * i, 2)}, {vr(o + 2 * i, 2)}, {vr(EA[0] + 2 * i, 2)}")
            for i in range(4 * s, 4 * s + 4):
                k(f"v_cvt_pk_bf16_f32 v{H + i}, v{o + 2 * i}, v{o + 2 * i + 1}")
            k(f"buffer_store_dwordx4 {vr(H + 4 * s, 4)}, v254, {OUT}, 0 offen offset:{16 * s}")
        self.stamp("E2")
        k("s_branch L_fin")
        k.label("L_tail")
        for t, tg in rest:
            k(t)
        k.wait(vm="all")
        for _ in range(nflag):
            k(flagstore())
        k(f"""s_cmp_lg_u32 s2, 255
        s_cbranch_scc1 L_fin
        s_lshl_b32 s55, {sW}, 6
        v_add_u32 v2, s55, v0
        v_lshlrev_b32 v2, 7, v2""")
        self.poll("v2", "v3", WS_FP)
        k("s_mov_b32 s50, 0")
        self.publish(WS_E, "s50", 8, 12)
        k.label("L_fin")
        if self.ts:
            assert not self.pend
            for i in range(6):
                k(f"v_writelane_b32 v255, s{90 + i}, {56 + i}")
            k(f"""s_memrealtime s[96:97]
            s_memtime s[98:99]
            s_waitcnt lgkmcnt(0)
            v_writelane_b32 v255, s96, 62
            v_writelane_b32 v255, s98, 63
            s_lshl_b32 s55, s2, 2
            s_add_u32 s55, s55, {sW}
            s_lshl_b32 s55, s55, 8
            s_add_u32 s55, s55, {WS_TS}
            v_lshlrev_b32 v2, 2, v0
            buffer_store_dword v255, v2, {WS}, s55 offen""")
            if self.ts == 2:
                k(f"""s_load_dwordx2 s[20:21], s[0:1], 64
                s_mov_b32 s22, 256
                v_readlane_b32 s56, v255, 0
                v_readlane_b32 s57, v255, 1
                s_sub_u32 s56, s96, s56
                v_subrev_u32 v255, s57, v255
                v_writelane_b32 v255, s56, 0
                s_lshl_b32 s55, s2, 2
                s_add_u32 s55, s55, {sW}
                s_lshl_b32 s55, s55, 8
                s_waitcnt lgkmcnt(0)
                buffer_store_dword v255, v2, {PA}, s55 offen""")
        if "spa" in self.opt:
            k(f"""s_cmp_lg_u32 s2, {self.opt.get("spw", 0)}
            s_cbranch_scc1 L_nospin
            s_memrealtime s[90:91]
            s_waitcnt lgkmcnt(0)
            s_sub_u32 s94, s94, s92
            s_min_u32 s94, s94, 20000
            s_mul_i32 s94, s94, 4""")
            k.label("L_spin")
            k("""s_memrealtime s[88:89]
            s_waitcnt lgkmcnt(0)
            s_sub_u32 s88, s88, s90
            s_cmp_lt_u32 s88, s94
            s_cbranch_scc1 L_spin""")
            k.label("L_nospin")
        k("s_waitcnt vmcnt(0)")
        k.label("L_end")
        k("s_endpgm")

    def build(self):
        self.prologue()
        self.phase_a()
        self.phase_b()
        self.phase_c()
        self.phase_de()
        self.late_code()
        self.k.lines = [l.replace("CODE_LAST", "0x8000") for l in self.k.lines]
        n = self.k.pad()
        self.misal = align8(self.k.lines)
        last = (sum(sizes(self.k.lines)) - 128) & ~3
        assert last >= 0x8000
        self.k.lines = [l.replace("v_min_u32 v127, 0x8000", f"v_min_u32 v127, {last}") for l in self.k.lines]
        ref = open(f"cdna_kernels/{NAME}.s.ref").read().split("\n")
        head = [l for l in ref if l.startswith(";") and "@launch" not in l]
        out = head + ["; @launch grid=(256,1,1) block=(256,1,1) lds=163840",
                      '.amdgcn_target "amdgcn-amd-amdhsa--gfx950"', ".text", f".globl {NAME}_kernel", ".p2align 8",
                      f".type {NAME}_kernel,@function", f"{NAME}_kernel:"]
        out += [l if l.endswith(":") else "    " + l for l in self.k.lines]
        out += ['.section .rodata,"a"', ".p2align 6", f".amdhsa_kernel {NAME}_kernel",
                "  .amdhsa_next_free_vgpr 512", "  .amdhsa_next_free_sgpr 102", "  .amdhsa_accum_offset 256",
                "  .amdhsa_group_segment_fixed_size 0", "  .amdhsa_kernarg_size 80", "  .amdhsa_user_sgpr_count 2",
                "  .amdhsa_user_sgpr_kernarg_segment_ptr 1", "  .amdhsa_system_sgpr_workgroup_id_x 1", ".end_amdhsa_kernel", ""]
        self.nbytes = sum(sizes(self.k.lines))
        self.nnop = n
        return "\n".join(out)


if __name__ == "__main__":
    args = dict(a.split("=") for a in sys.argv[2:])
    args = {a: int(b) if b.lstrip('-').isdigit() else b for a, b in args.items()}
    g = Gen(**args)
    text = g.build()
    open(sys.argv[1], "w").write(text)
    if g.ts:
        open(sys.argv[1] + ".ts", "w").write(" ".join([str(g.ts)] + g.tsn))
    print(f"{sys.argv[1]}: {g.nbytes} bytes of code, {g.nnop} pads, {g.misal} misaligned")
    if args.get("log"):
        print(g.log)
```

```python
import math
import struct
import sys

from asmlib import K, sizes, align8

NAME = "sequential_preLN__softmax_full_mha__glu_gated_glu__prompt"

WS_QKV, WS_O, WS_H, WS_ACT = 0, 0x600000, 0x800000, 0xA00000
WS_WGU, WS_WD, WS_WO, WS_CS = 0x1100000, 0x1500000, 0x1700000, 0x1780000
WS_FX, WS_FB, WS_FC, WS_FD, WS_E, WS_FP = 0x1800000, 0x1808000, 0x1810000, 0x1818000, 0x1820000, 0x1828000
WS_ST = 0x1880000
OOB = 0x40000000
WS_TS = 0x1900000
WS_FQ = 0x1A00000
WS_FA = 0x1A80000
WS_SIZE = 0x1B00000

X, WQ, WS, OUT, PA, PB = "s[4:7]", "s[8:11]", "s[12:15]", "s[16:19]", "s[20:23]", "s[24:27]"
sW, sA, sB, sTAG, sCNT, sONE, sFB = "s36", "s37", "s38", "s39", "s40", "s41", "s42"
sU, sPD, sPCS, sP0, sP1, sPST = "s43", "s44", "s45", "s46", "s47", "s48"
sXL = "s49"
sTB, sCB = "s88", "s89"
sO, sH, sST, sAC = "s3", "s34", "s100", "s101"
sA2, sB2, sPS, sPF = "s28", "s29", "s30", "s31"
vFLAG, vTAG = "v211", 212
LR = 114688
ONES = 0x3F803F80
U_D, U_O, U_END = 392, 588, 644
LQ, LX, LP = 57344, 147456, 151552
QA, ACC, RING, CS, CX, CA, VB, RS, ON, T0, RA, RB, C1 = 8, 40, 72, 104, 116, 124, 130, 132, 134, 136, 138, 140, 142
PK, SQ, SM, WKA, XA, VX, VWK, VP = 144, 160, 168, 176, 184, 188, 26, 28
WQA, CSW, CSR, QW, VWQ, VE, JUNK = 192, 196, 197, 198, 202, 203, 204


def f32(x):
    return hex(struct.unpack("<I", struct.pack("<f", x))[0])


def vr(b, n):
    return f"v[{b}:{b + n - 1}]"


def ar(b, n):
    return f"a[{b}:{b + n - 1}]"


class Gen:
    def __init__(self, ts=False, force_fb=False, **opt):
        self.k = K()
        self.ts = ts
        self.nts = 0
        self.tsn = []
        self.pend = []
        self.late = []
        self.force_fb = force_fb
        self.opt = opt

    def stamp(self, name, nw=False):
        if self.opt.get("spa") == name:
            self.k("s_memrealtime s[92:93]")
        if self.opt.get("spb") == name:
            self.k("s_memrealtime s[94:95]")
        if self.ts == 2 and name not in ("A0", "A3", "A7", "A9", "B0", "B1", "B3", "C0", "C3", "D0", "D4", "E0", "E2"):
            return
        if "tso" in self.opt and not name.startswith(tuple(self.opt["tso"])):
            return
        if self.ts == 4 and not name.startswith(tuple(self.opt.get("tsp", "d"))):
            return
        if self.ts:
            ops = {3: ["s_memrealtime"], 4: ["s_memrealtime", "s_memtime"]}.get(self.ts, ["s_memtime"])
            if not nw and self.pend:
                self.k("s_waitcnt lgkmcnt(0)")
            for r, l in self.pend:
                self.k(f"v_writelane_b32 v255, s{r}, {l}")
            self.pend = []
            for j, op in enumerate(ops):
                self.k(f"{op} s[{98 - 2 * j}:{99 - 2 * j}]")
                self.pend.append((98 - 2 * j, self.nts + 2))
                self.nts += 1
                self.tsn.append(name)
            assert self.nts <= 54
            if not nw:
                self.k("s_waitcnt lgkmcnt(0)")
                for r, l in self.pend:
                    self.k(f"v_writelane_b32 v255, s{r}, {l}")
                self.pend = []
                self.k.lg.clear()

    def mfma(self, d, a, b, c=None):
        c = d if c is None else c
        self.k(f"v_mfma_f32_32x32x16_bf16 {d}, {a}, {b}, {c}")

    def poll(self, vaddr, vtmp, base, cnt=None):
        k = self.k
        L, Dn = k.newlabel("poll"), k.newlabel("seen")
        if not isinstance(base, str):
            k(f"s_mov_b32 s60, {base}")
            base = "s60"
        k.label(L)
        if self.ts and cnt:
            k(f"s_add_u32 {cnt}, {cnt}, 1")
        k(f"buffer_load_dword {vtmp}, {vaddr}, {WS}, {base} offen sc1")
        k.wait(vm="all")
        k(f"""v_cmp_ne_u32 vcc, {sTAG}, {vtmp}
        s_cbranch_vccz {Dn}
        s_sub_u32 {sCNT}, {sCNT}, 1
        s_cselect_b32 {sCNT}, 0, {sCNT}
        s_cbranch_scc0 {L}""")
        k.label(Dn)

    def publish(self, base, sidx, vt, vo):
        k = self.k
        for i in range(4):
            k(f"v_mov_b32 v{vt + i}, {sTAG}")
        k(f"""s_lshl_b32 s60, {sidx}, 7
        s_add_u32 s60, s60, {base}
        s_cmp_eq_u32 {sW}, 0
        s_cselect_b32 s60, s60, {OOB}
        v_lshrrev_b32 v{vo}, 3, v0
        v_lshl_add_u32 v{vo}, v{vo}, 26, v1""")
        k.wait(vm="all")
        k(f"s_barrier\nbuffer_store_dwordx4 {vr(vt, 4)}, v{vo}, {WS}, s60 offen sc1")

    def stats(self, vs, vq, t0, vb, vrs):
        return f"""v_mov_b32 v{vq}, v{vs}
        v_permlane32_swap_b32 v{vs}, v{vq}
        v_mul_f32 v{vs}, {f32(-1.0 / 448)}, v{vs}
        v_mul_f32 v{vq}, {f32(1.0 / 448)}, v{vq}
        v_cvt_pk_bf16_f32 v{t0}, v{vs}, v{vs}
        v_fma_f32 v{vq}, -v{vs}, v{vs}, v{vq}
        v_and_b32 v{t0}, 0xffff0000, v{t0}
        v_max_f32 v{vq}, 0, v{vq}
        v_sub_f32 v{t0}, v{vs}, v{t0}
        v_add_f32 v{vrs}, {f32(1e-5)}, v{vq}
        v_cvt_pk_bf16_f32 v{vb}, v{vs}, v{t0}
        v_cvt_pk_bf16_f32 v{vb + 1}, v{vs}, v{t0}""".split("\n")

    def split2(self, vc, vd):
        return f"""v_cvt_pk_bf16_f32 v{vd}, v{vc}, v{vc}
        v_and_b32 v{vd + 1}, 0xffff0000, v{vd}
        v_sub_f32 v{vd + 1}, v{vc}, v{vd + 1}
        v_cvt_pk_bf16_f32 v{vd + 1}, v{vd + 1}, v{vd + 1}""".split("\n")

    def prologue(self):
        k = self.k
        k(f"""s_cmp_ge_u32 s2, 0x100
        s_cbranch_scc1 L_end
        s_load_dwordx16 s[64:79], s[0:1], 0
        s_load_dwordx2 s[12:13], s[0:1], 72""")
        if self.ts:
            k("s_memrealtime s[96:97]\ns_memtime s[98:99]")
        if "spa" in self.opt:
            k("s_memrealtime s[92:93]\ns_memrealtime s[94:95]")
        if self.opt.get("touch", 1):
            k.note("pull the whole code object into this die's L2 ahead of instruction fetch")
            if self.opt.get("touch", 1) == 2:
                k(f"""s_getpc_b64 s[86:87]
                v_lshlrev_b32 v127, 7, v0
                global_load_dword v{JUNK}, v127, s[86:87]
                v_add_u32 v127, 0x8000, v127
                v_min_u32 v127, CODE_LAST, v127
                global_load_dword v{JUNK}, v127, s[86:87]""")
            else:
                k(f"""s_getpc_b64 s[86:87]
                v_lshrrev_b32 v127, 4, v0
                s_lshr_b32 s50, s2, 3
                v_lshlrev_b32 v127, 5, v127
                v_add_u32 v127, s50, v127
                v_lshlrev_b32 v127, 7, v127
                v_min_u32 v127, CODE_LAST, v127
                global_load_dword v{JUNK}, v127, s[86:87]""")
        k(f"""v_lshrrev_b32 v2, 6, v0
        v_and_b32 v0, 63, v0
        s_and_b32 {sA}, s2, 7
        v_readfirstlane_b32 {sW}, v2
        s_lshl_b32 {sA}, {sA}, 1
        s_bfe_u32 s50, s2, 0x10003
        s_add_u32 {sA}, {sA}, s50
        s_lshr_b32 {sB}, s2, 4
        s_bfe_u32 {sA2}, s2, 0x20001
        s_lshl_b32 {sA2}, {sA2}, 2
        s_bfe_u32 s50, s2, 0x20003
        s_add_u32 {sA2}, {sA2}, s50
        s_and_b32 {sB2}, s2, 1
        s_lshl_b32 {sB2}, {sB2}, 3
        s_lshr_b32 s50, s2, 5
        s_add_u32 {sB2}, {sB2}, s50
        v_lshlrev_b32 v1, 4, v0
        s_mov_b32 {sCNT}, 0x40000
        s_mov_b32 {sONE}, {ONES}
        s_mov_b32 {sFB}, 0
        v_mov_b32 v254, 0""")
        mp = self.opt.get("map", 2)
        if mp == 0:
            k(f"s_mov_b32 {sTB}, {sA}\ns_mov_b32 {sCB}, {sB}")
        else:
            k(f"s_mov_b32 {sTB}, {sA2}\ns_and_b32 {sCB}, s2, 1\ns_lshl_b32 s50, s50, 1\ns_add_u32 {sCB}, {sCB}, s50")
        if mp == 2:
            k(f"s_mov_b32 {sA}, {sB2}\ns_mov_b32 {sB}, {sA2}")
        k(f"""s_mul_i32 s50, {sB2}, 112
        s_mul_i32 s52, {sW}, {16 * 2688}
        s_add_u32 s50, s50, s52
        s_add_u32 s50, s50, 896
        v_lshrrev_b32 v14, 3, v0
        v_and_b32 v15, 7, v0
        v_bfe_u32 v16, v0, 4, 1
        v_lshlrev_b32 v16, 2, v16
        v_xor_b32 v16, v15, v16
        v_min_u32 v16, 6, v16
        v_mul_u32_u24 v17, 2688, v14
        v_lshlrev_b32 v16, 4, v16
        v_add3_u32 v{VWK}, v17, v16, s50
        v_add_u32 v{VWK + 1}, {8 * 2688}, v{VWK}""")
        k(f"""v_lshrrev_b32 v16, 4, v0
        v_xor_b32 v16, v15, v16
        v_mul_u32_u24 v17, 896, v14
        s_lshl_b32 s52, {sA2}, 2
        s_add_u32 s52, s52, {sW}
        s_mul_i32 s52, s52, {32 * 896}
        v_lshlrev_b32 v18, 4, v16
        v_add3_u32 v{VX}, v17, v18, s52
        v_xor_b32 v{VX + 1}, 64, v{VX}
        v_add_u32 v{VX + 1}, {8 * 896}, v{VX + 1}
        v_add_u32 v{VX + 2}, {16 * 896}, v{VX}
        v_add_u32 v{VX + 3}, {16 * 896}, v{VX + 1}""")
        k(f"""s_lshl_b32 {sXL}, {sW}, 14
        s_add_u32 {sXL}, {sXL}, 86016""")
        k(f"""s_lshr_b32 s53, s2, 3
        s_mul_i32 s54, s53, 37
        s_lshr_b32 s54, s54, 8
        s_mul_i32 s54, s54, 7
        s_sub_u32 s53, s53, {'s54' if self.opt.get('rot', 1) else 's53'}
        s_lshl_b32 s51, {sW}, 11
        s_mul_i32 s33, s53, {64 * 2688}
        s_lshl_b32 s60, s53, 7
        s_mov_b32 s6, {2048 * 896}
        s_mov_b32 s7, 0x20000
        s_mov_b32 s10, {448 * 2688}
        s_mov_b32 s11, 0x20000
        s_mov_b32 s14, {WS_SIZE}
        s_mov_b32 s15, 0x20000
        s_mov_b32 s18, {2048 * 896}
        s_mov_b32 s19, 0x20000
        s_mov_b32 s23, 0x20000
        s_mov_b32 s27, 0x20000
        s_mov_b32 s58, {WS_E}
        v_mov_b32 v16, 0
        s_waitcnt lgkmcnt(0)
        s_mov_b32 s4, s64
        s_mov_b32 s5, s65
        s_mov_b32 s8, s66
        s_mov_b32 s9, s67""")
        if self.ts:
            k("v_writelane_b32 v255, s96, 0\nv_writelane_b32 v255, s98, 1")
            for i in range(6):
                k(f"s_mov_b32 s{90 + i}, 0")

    NEXT = f"s_add_u32 s53, s53, 1\ns_cmp_eq_u32 s53, 7\ns_cselect_b32 s53, 0, s53\ns_mul_i32 s33, s53, {64 * 2688}\ns_lshl_b32 s60, s53, 7"

    def a_dma(self, c):
        g = [(f"s_add_u32 m0, s51, {c * 8192 + t * 1024}", f"buffer_load_dwordx4 v{VWK + t}, {WQ}, s33 offen {self.pol('wnt')}lds", ("W", c)) for t in range(2)]
        g += [(f"s_add_u32 m0, {sXL}, {(c % 3) * 4096 + t * 1024}",
               f"buffer_load_dwordx4 v{VX + t}, {X}, s60 offen {self.pol('xnt')}lds" + ("\n" + self.NEXT if t == 3 else ""), ("X", c)) for t in range(4)]
        return g

    def q_dma(self, c):
        return (f"s_add_u32 m0, s52, {c * 4096}", f"buffer_load_dwordx4 v{VWQ}, {WQ}, s33 offen lds\n" + self.NEXT.rsplit("\n", 1)[0], ("Q", c))

    def pol(self, o):
        return ["", "nt ", "sc1 nt ", "sc0 sc1 nt ", "sc0 sc1 "][self.opt.get(o, {"pnt": 1}.get(o, 0))]

    def p_dma(self):
        return [(f"s_add_u32 m0, s{56 + h}, {t * 1024}", f"buffer_load_dwordx4 v{VP}, {srd}, {sb} offen {self.pol('pnt')}lds\ns_add_u32 {sb}, {sb}, {sPST}", "P")
                for h, (srd, sb) in enumerate(((PA, sP0), (PB, sP1))) for t in range(4)]

    def dma(self, g):
        for a, b, tg in g:
            self.k(a)
            self.k(b, tag=tg)

    def unit_setup(self):
        k = self.k
        k(f"""s_mov_b32 s16, s78
        s_mov_b32 s17, s79
        s_lshl_b32 {sU}, {sW}, 8
        s_add_u32 {sU}, {sU}, s2
        s_cmp_ge_u32 {sU}, {U_D}
        s_cbranch_scc1 L_u1
        s_mov_b32 s20, s72
        s_mov_b32 s21, s73
        s_mov_b32 s24, s74
        s_mov_b32 s25, s75
        s_mov_b32 s22, {448 * 3584}
        s_mul_i32 s58, {sU}, 4682
        s_lshr_b32 s58, s58, 16
        s_mul_i32 s59, s58, 14
        s_sub_u32 s59, {sU}, s59
        s_mul_i32 {sP0}, s59, {32 * 3584}
        s_lshl_b32 s61, s58, 7
        s_add_u32 {sP0}, {sP0}, s61
        s_mov_b32 {sP1}, {sP0}
        s_mov_b32 {sPST}, 3584
        s_mul_i32 {sPD}, s58, {4 * 28 * 1024}
        s_lshl_b32 s61, s59, 11
        s_add_u32 {sPD}, {sPD}, s61
        s_add_u32 {sPD}, {sPD}, {WS_WGU}
        s_mov_b32 {sPS}, 28672
        s_lshl_b32 {sPCS}, {sU}, 9
        s_add_u32 {sPCS}, {sPCS}, {WS_CS}
        s_branch L_u3""")
        k.label("L_u1")
        k(f"""s_mov_b32 {sPST}, 896
        s_mov_b32 {sPS}, 2048
        s_mov_b32 {sPCS}, {OOB}
        s_cmp_ge_u32 {sU}, {U_O}
        s_cbranch_scc1 L_u2
        s_mov_b32 s20, s76
        s_mov_b32 s21, s77
        s_mov_b32 s24, s76
        s_mov_b32 s25, s77
        s_mov_b32 s22, {1792 * 896}
        s_sub_u32 s61, {sU}, {U_D}
        s_mul_i32 s58, s61, 2341
        s_lshr_b32 s58, s58, 16
        s_mul_i32 s59, s58, 28
        s_sub_u32 s59, s61, s59
        s_mul_i32 {sP0}, s59, {64 * 896}
        s_lshl_b32 s58, s58, 7
        s_add_u32 {sP0}, {sP0}, s58
        s_add_u32 {sP1}, {sP0}, {32 * 896}
        s_lshl_b32 {sPD}, s61, 13
        s_add_u32 {sPD}, {sPD}, {WS_WD}
        s_branch L_u3""")
        k.label("L_u2")
        k(f"""s_mov_b32 s20, s68
        s_mov_b32 s21, s69
        s_mov_b32 s24, s68
        s_mov_b32 s25, s69
        s_cmp_lt_u32 {sU}, {U_END}
        s_cselect_b32 s22, {448 * 896}, 0
        s_sub_u32 s61, {sU}, {U_O}
        s_lshr_b32 s58, s61, 3
        s_and_b32 s59, s61, 7
        s_mul_i32 {sP0}, s59, {56 * 896}
        s_lshl_b32 s58, s58, 7
        s_add_u32 {sP0}, {sP0}, s58
        s_add_u32 {sP1}, {sP0}, {28 * 896}
        s_lshl_b32 {sPD}, s61, 13
        s_add_u32 {sPD}, {sPD}, {WS_WO}
        s_cmp_lt_u32 {sU}, {U_END}
        s_cselect_b32 {sPD}, {sPD}, {OOB}""")
        k.label("L_u3")
        k(f"""s_mov_b32 s26, s22
        s_lshl_b32 {sPF}, {sU}, 7
        s_add_u32 {sPF}, {sPF}, {WS_FP}
        s_cmp_lt_u32 {sU}, {U_END}
        s_cselect_b32 {sPF}, {sPF}, {OOB}
        v_lshrrev_b32 v16, 3, v0
        v_and_b32 v17, 7, v0
        v_mul_lo_u32 v16, v16, {sPST}
        v_lshl_add_u32 v{VP}, v17, 4, v16
        s_lshl_b32 {sPST}, {sPST}, 3""")

    def out_addrs(self):
        k = self.k
        k(f"""s_lshl_b32 s58, {sB}, 2
        s_add_u32 s58, s58, {sW}
        s_lshl_b32 s58, s58, 4
        s_add_u32 s58, s58, {sA}
        s_lshl_b32 s58, s58, 11
        s_add_u32 {sO}, s58, {WS_O}
        s_and_b32 s58, {sCB}, 1
        s_lshl_b32 s58, s58, 1
        s_lshl_b32 s59, {sTB}, 2
        s_add_u32 s58, s58, s59
        s_and_b32 s59, {sW}, 1
        s_add_u32 s62, s58, s59
        s_lshr_b32 s59, {sW}, 1
        s_and_b32 s63, {sCB}, 14
        s_add_u32 s63, s63, s59
        s_mul_i32 s58, s62, 14
        s_add_u32 s58, s58, s63
        s_lshl_b32 {sST}, s58, 8
        s_lshl_b32 {sH}, s58, 11
        s_add_u32 {sH}, {sH}, {WS_H}
        s_add_u32 {sST}, {sST}, {WS_ST}
        s_cmp_ge_u32 {sCB}, 14
        s_cselect_b32 {sH}, {OOB}, {sH}
        s_cselect_b32 {sST}, {OOB}, {sST}
        s_lshl_b32 s58, {sA2}, 2
        s_add_u32 s58, s58, {sW}
        s_mul_i32 {sAC}, s58, {112 * 1024}
        s_mul_i32 s59, {sB2}, 7168
        s_add_u32 {sAC}, {sAC}, s59
        s_add_u32 {sAC}, {sAC}, {WS_ACT}""")

    def clears(self):
        g = [f"buffer_store_dwordx4 a[220:223], v1, {WS}, {b} offen offset:{1024 * s} sc1" for b in ("s64", "s65") for s in range(2)]
        g.append(f"buffer_store_dword a220, v210, {WS}, s66 offen sc1")
        return g

    def flagcheck(self, tag, vaddr, vtmp, base):
        k = self.k
        L1, L2 = k.newlabel("fw"), k.newlabel("fok")
        k.wait(vm=tag)
        k(f"v_cmp_ne_u32 vcc, {sTAG}, {vtmp}\ns_cbranch_vccnz {L1}")
        k.label(L2)
        self.late.append(("poll", L1, L2, vaddr, vtmp, base))

    def datacheck(self, regs, vt, loads):
        k = self.k
        L1, L2 = k.newlabel("rs"), k.newlabel("rok")
        k("\n".join(self.maxchain(regs, vt)))
        k(f"v_cmp_eq_u32 vcc, -1, v{vt}\ns_cbranch_vccnz {L1}")
        k.label(L2)
        self.late.append(("respin", L1, L2, loads, regs, vt))

    def wo(self, i):
        return ar(224 + 4 * i, 4) if i < 8 else vr(216 + 4 * (i - 8), 4)

    @staticmethod
    def maxchain(regs, vt):
        g = []
        regs = list(regs)
        acc = regs.pop(0)
        while regs:
            if len(regs) >= 2:
                g.append(f"v_max3_u32 v{vt}, v{acc}, v{regs.pop(0)}, v{regs.pop(0)}")
            else:
                g.append(f"v_max_u32 v{vt}, v{acc}, v{regs.pop(0)}")
            acc = vt
        return g

    def a_setup(self):
        k = self.k
        k(f"""v_bfe_u32 v16, v0, 2, 2
        v_lshrrev_b32 v17, 5, v0
        v_lshl_add_u32 v18, v17, 3, v16
        v_bfe_u32 v19, v0, 4, 1
        v_lshlrev_b32 v19, 5, v19
        v_and_b32 v20, 3, v0
        v_lshl_add_u32 v19, v20, 3, v19
        v_bfe_u32 v21, v0, 3, 1
        v_lshlrev_b32 v21, 6, v21
        v_xor_b32 v22, v19, v21
        v_add_u32 v23, 56, v19
        v_xor_b32 v23, v23, v21
        v_lshl_add_u32 v22, v18, 7, v22
        v_lshl_add_u32 v23, v18, 7, v23
        v_lshl_add_u32 v24, v18, 6, v19
        s_and_b32 s58, {sB2}, 1
        s_lshl_b32 s58, s58, 3
        s_add_u32 s58, s58, {LQ}
        v_add_u32 v24, s58, v24
        v_and_b32 v25, 31, v0
        v_bfe_u32 v15, v0, 1, 3
        v_xor_b32 v15, v15, v17
        v_lshlrev_b32 v15, 4, v15
        v_lshl_add_u32 v15, v25, 7, v15
        v_add_u32 v15, {sXL}, v15""")
        for p in range(4):
            k(f"""s_add_u32 s58, {sW}, {p}
            s_and_b32 s58, s58, 3
            s_lshl_b32 s59, s58, 11
            v_add_u32 v{WKA + p}, s59, v22
            v_add_u32 v{WKA + 4 + p}, s59, v23
            s_lshl_b32 s59, s58, 10
            v_add_u32 v{WQA + p}, s59, v24
            s_lshl_b32 s58, s58, 5
            v_xor_b32 v{XA + p}, s58, v15""")
        k(f"""v_mov_b32 v{ON}, {sONE}
        v_mov_b32 v{ON + 1}, {sONE}
        v_mov_b32 v{RA + 1}, 0
        v_mov_b32 v{RB + 1}, 0
        v_cmp_gt_u32 vcc, 28, v0
        v_cndmask_b32 v{RB}, 0, v{ON}, vcc
        v_cmp_eq_u32 vcc, 28, v25
        v_cndmask_b32 v{C1}, 0, 1.0, vcc
        v_add_u32 v{CSR}, {LX}, v1
        s_lshl_b32 s58, {sW}, 2
        v_add_u32 v{CSW}, s58, v{CSR}
        s_lshl_b32 s58, {sW}, 11
        s_add_u32 s58, s58, 122880
        v_add_u32 v{QW}, s58, v1""")
        for u in range(3):
            k(f"v_xor_b32 v{QW + 1 + u}, {(3 - u) * 2048}, v{QW}")
        k(f"""v_lshrrev_b32 v16, 2, v0
        v_mul_u32_u24 v16, 2688, v16
        v_lshl_add_u32 v16, v20, 4, v16
        s_mul_i32 s58, {sB2}, 56
        s_andn2_b32 s58, s58, 15
        s_mul_i32 s59, {sW}, {16 * 2688}
        s_add_u32 s58, s58, s59
        v_add_u32 v{VWQ}, s58, v16
        s_lshl_b32 s52, {sW}, 10
        s_add_u32 s52, s52, {LQ}
        s_lshl_b32 s58, {sA2}, 2
        s_add_u32 s58, s58, {sW}
        s_lshl_b32 s50, s58, 11
        s_lshl_b32 s59, {sB2}, 18
        s_add_u32 s50, s50, s59
        s_add_u32 s50, s50, {16 << 17}
        s_lshl_b32 s61, s58, 4
        s_add_u32 s61, s61, {sB2}
        s_lshl_b32 s61, s61, 7
        s_add_u32 s61, s61, {WS_FA}
        v_lshrrev_b32 {vFLAG}, 3, v0
        v_lshl_add_u32 {vFLAG}, {vFLAG}, 26, v1""")

    def p_bases(self):
        self.k(f"""s_add_u32 s56, {sXL}, 12288
        s_cmp_eq_u32 {sW}, 0
        s_cselect_b32 s56, {118784 if self.opt.get("pat", 9) == 9 else "s56"}, s56
        s_lshl_b32 s57, {sW}, 12
        s_add_u32 s57, s57, {LP}
        s_cmp_eq_u32 {sW}, 3
        s_cselect_b32 s56, {LX - 8192 if self.opt.get("pat", 9) >= 7 else LX}, s56
        s_cselect_b32 s57, s56, s57""")

    def p_setup(self):
        k = self.k
        F = 216
        k(f"""v_bfe_u32 v20, v0, 2, 2
        v_lshrrev_b32 v21, 5, v0
        v_bfe_u32 v22, v0, 4, 1
        v_and_b32 v23, 3, v0
        s_cmp_ge_u32 {sU}, {U_D}
        s_cbranch_scc1 L_p1""")
        k(f"""v_lshl_add_u32 v20, v21, 4, v20
        v_lshlrev_b32 v20, 7, v20
        v_lshl_add_u32 v20, v23, 3, v20
        s_sub_u32 s58, s57, s56
        v_mul_u32_u24 v22, s58, v22
        v_add3_u32 v20, v20, v22, s56""")
        for q in range(4):
            for e in range(2):
                for h in range(2):
                    k(f"v_add_u32 v{F + 8 * q + 4 * e + 2 * h}, {32 * q + (8 * e + 4 * h) * 128}, v20")
        k("s_branch L_p2")
        k.label("L_p1")
        k(f"""v_lshl_add_u32 v20, v21, 2, v20
        v_lshlrev_b32 v20, 7, v20
        v_lshl_add_u32 v20, v22, 4, v20
        v_and_b32 v21, 1, v23
        v_lshl_add_u32 v20, v21, 5, v20
        v_lshrrev_b32 v21, 1, v23
        v_lshl_add_u32 v20, v21, 3, v20
        v_add_u32 v21, s57, v20
        v_add_u32 v20, s56, v20""")
        for e in range(4):
            for ct in range(2):
                for h in range(2):
                    k(f"v_add_u32 v{F + 8 * e + 4 * ct + 2 * h}, {64 * ct + (16 * (e & 1) + 8 * h) * 128}, v{20 + (e >> 1)}")
        k.label("L_p2")

    def small(self, d, a, b, first):
        self.k(f"v_mfma_f32_4x4x4bf16_1k {vr(d, 4)}, {a}, {b}, {'0' if first else vr(d, 4)}")

    def pass1(self, isv):
        k = self.k
        opt = self.opt.get
        NQ0, DEP, PAT = opt("nq0", 7), opt("adep", 2), opt("pat", 9)

        def xr(c, p):
            return [(f"ds_read_b128 {ar(16 * c + 4 * p, 4)}, v{XA + p} offset:{(c % 3) * 4096}", ("x", c, p))]

        def wr(c, p):
            return [(f"ds_read_b64_tr_b16 {vr(RING + 8 * p + 4 * m + 2 * q, 2)}, v{WKA + 4 * m + p} offset:{c * 8192 + q * 512}", ("w", c, p))
                    for m in range(2) for q in range(2)]

        def emit(g, n=99):
            for _ in range(min(n, len(g))):
                k(*g.pop(0))

        def big(c, p, m):
            w, x = vr(RING + 8 * p + 4 * m, 4), ar(16 * c + 4 * p, 4)
            self.mfma(vr(ACC + 16 * m, 16), *((x, w) if isv else (w, x)), "0" if c + p == 0 else None)

        def xsm(c, p):
            for h in range(2):
                x = ar(16 * c + 4 * p + 2 * h, 2)
                self.small(SQ + 4 * h, x, x, c + p == 0)
                self.small(SM + 4 * h, vr(ON, 2), x, c + p == 0)

        def csm(c):
            for h in range(2):
                for m in range(2):
                    self.small(CS + 4 * m, vr(ON, 2), vr(RING + 4 * m + 2 * h, 2), c + h == 0)

        def arrive(c):
            k.wait(vm=("W" if c == 6 else "X", c))
            k("s_barrier")
            self.stamp(f"A{c}", True)
            return (xr(c, 0) + xr(c, 1) if c < 6 else []) + wr(c, 0) + wr(c, 1)

        emit(arrive(0))
        k(f"v_readfirstlane_b32 {sTAG}, v{VE}\ns_add_u32 {sTAG}, {sTAG}, 0x9e3779b9")
        for i in range(4):
            k(f"v_mov_b32 v{vTAG + i}, {sTAG}")
        dq = []
        for c in range(6):
            if c == PAT - 2 and c < 5:
                dq += self.p_dma()
            dq += self.a_dma(c + DEP) if c + DEP < 7 else []
            if c == 5:
                dq += [self.q_dma(i) for i in range(NQ0)] + (self.p_dma() if PAT == 7 else [])
            per = (len(dq) + 5) // 6
            for half in range(2):
                k.wait(lg=[("x", c, 2 * half + 1), ("w", c, 0)])
                xsm(c, 2 * half), xsm(c, 2 * half + 1)
                if half == 0:
                    csm(c)
                for g in range(4):
                    p, m = 2 * half + g // 2, g & 1
                    k.wait(lg=("w", c, p))
                    if g and dq:
                        k(dq[0][0])
                    big(c, p, m)
                    if g and dq:
                        if DEP == 3 and dq[0][2] == ("X", c + 3):
                            k.wait(lg=("x", c, 3))
                        k(dq[0][1], tag=dq[0][2])
                        self.dma(dq[1:per])
                        dq = dq[per:]
                    if g == 0:
                        rd = arrive(c + 1) if half else xr(c, 2) + xr(c, 3) + wr(c, 2) + wr(c, 3)
                    emit(rd, 3 if g else 4)
                assert not rd
            assert not dq
        emit(wr(6, 2))
        k.wait(lg=("w", 6, 0))
        csm(6)
        emit(wr(6, 3))
        for m in range(2):
            k(f"ds_write_b32 v{CSW}, v{CS + 4 * m} offset:{1024 * m}", tag="cw")
        k.wait(lg="cw")
        k("s_barrier")
        for m in range(2):
            k(f"ds_read_b128 {vr(CX + 4 * m, 4)}, v{CSR} offset:{1024 * m}", tag="cx")
        k.wait(vm=("X", 6))
        for p in range(4):
            emit(xr(6, p))
        k.wait(lg="cx")
        for m in range(2):
            k("\n".join([f"v_add_f32 v{CX + 4 * m}, v{CX + 4 * m}, v{CX + 4 * m + i}" for i in range(1, 4)] + self.split2(CX + 4 * m, CA + 2 * m)))
        for p in range(4):
            k.wait(lg=("x", 6, p))
            xsm(6, p)
        tail = [f"v_add_f32 v{SQ + i}, v{SQ + i}, v{SQ + 4 + i}" for i in range(4)]
        tail += [f"v_add_f32 v{SM}, v{SM}, v{SM + 4}"]
        tail += [f"v_cndmask_b32 v{SQ}, v{SQ}, v{SQ + i}, {m}" for i, m in ((1, "s[0:1]"), (2, "s[86:87]"), (3, "vcc"))]
        tail += [f"v_permlane32_swap_b32 v{SM}, v{SQ}", f"v_add_f32 v{SM}, v{SM}, v{SQ}"]
        tail += self.stats(SM, SQ, T0, VB, RS) + [f"v_rsq_f32 v{RS}, v{RS}"]
        if isv:
            tail += [f"v_and_b32 v{T0}, 0xffff0000, v{RS}", f"v_sub_f32 v{T0 + 1}, v{RS}, v{T0}", f"v_cvt_pk_bf16_f32 v{RA}, v{T0}, v{T0 + 1}"]
        for m in range(2):
            for p in range(4):
                big(6, p, m)
                if m or p:
                    k("\n".join(tail[:4]))
                    tail = tail[4:]
        k("\n".join(tail))
        self.stamp("A7", True)
        if isv:
            k(f"v_mfma_f32_32x32x8bf16_1k {vr(QA, 16)}, {vr(RA, 2)}, {vr(RB, 2)}, 0")
        for m in range(2):
            a, b = vr(CA + 2 * m, 2), vr(VB, 2)
            k(f"v_mfma_f32_32x32x8bf16_1k {vr(ACC + 16 * m, 16)}, {b if isv else a}, {a if isv else b}, {vr(ACC + 16 * m, 16)}")
        k(f"s_add_u32 s57, s50, {1 << 17}")
        for m in range(2):
            a, p = ACC + 16 * m, PK + 8 * m
            for s in range(2):
                for i in range(4 * s, 4 * s + 4):
                    if isv:
                        k(f"v_pk_fma_f32 {vr(a + 2 * i, 2)}, {vr(a + 2 * i, 2)}, {vr(QA + 2 * i, 2)}, {vr(C1, 2)} op_sel_hi:[1,1,0]")
                    else:
                        k(f"v_pk_mul_f32 {vr(a + 2 * i, 2)}, {vr(a + 2 * i, 2)}, {vr(RS, 2)} op_sel_hi:[1,0]")
                for i in range(4 * s, 4 * s + 4):
                    k(f"v_cvt_pk_bf16_f32 v{p + i}, v{a + 2 * i}, v{a + 2 * i + 1}")
                if s and not isv:
                    k(f"s_mov_b32 exec_lo, 0\nv_mov_b32 v{p + 6}, {sONE}\nv_mov_b32 v{p + 7}, 0x3f80\ns_mov_b32 exec_lo, -1")
                k(f"buffer_store_dwordx4 {vr(p + 4 * s, 4)}, v1, {WS}, {'s57' if m else 's50'} offen offset:{1024 * s} sc1 {self.pol('knt')}", tag="KV")
        self.stamp("A8", True)

    def p_stores(self):
        g = []
        for p in range(4):
            for e in range(2):
                g.append((f"buffer_store_dwordx4 {vr(216 + 8 * p + 4 * e, 4)}, v1, {WS}, {sPD} offen offset:{1024 * e} sc1 {self.pol('snt')}", "PS"))
            if p < 3:
                g.append((f"s_add_u32 {sPD}, {sPD}, {sPS}", None))
        g.append((f"buffer_store_dwordx2 v[248:249], v250, {WS}, {sPCS} offen sc1", "PS"))
        return g

    def phase_a(self):
        k = self.k
        opt = self.opt.get
        if opt("tlb", 0):
            k.note("first touch of every page this launch uses, one page per workgroup of a die")
            k(f"""v_and_b32 v18, 15, v0
            v_min_u32 v18, 13, v18
            v_lshlrev_b32 v18, 21, v18
            v_mov_b32 v19, s13
            v_add_co_u32 v18, vcc, s12, v18
            v_addc_co_u32 v19, vcc, 0, v19, vcc""")
            for i, p in enumerate((2, 4, 5, 6, 7, 0, 1)):
                k(f"v_writelane_b32 v18, s{64 + 2 * p}, {16 + i}\nv_writelane_b32 v19, s{65 + 2 * p}, {16 + i}")
            if opt("tlb") == 2:
                k("s_lshr_b32 s55, s2, 3\ns_lshl_b64 exec, 1, s55")
            else:
                k("s_mov_b64 exec, 0x7fffff")
            k(f"global_load_dword v{JUNK}, v[18:19], off\ns_mov_b64 exec, -1")
        k(f"buffer_load_dword v{VE}, v16, {WS}, s58 offen sc1", tag="E")
        PAT = opt("pat", 9)
        self.stamp("S0")
        self.dma(self.a_dma(0))
        self.stamp("S1")
        self.unit_setup()
        if opt("nop", 0):
            k("s_mov_b32 s22, 0\ns_mov_b32 s26, 0")
        if PAT == 0:
            self.p_bases()
            self.dma(self.p_dma())
        self.stamp("Sp")
        self.out_addrs()
        self.b_setup()
        self.a_setup()
        self.p_bases()
        self.p_setup()
        self.stamp("S2")
        for c in range(1, opt("adep", 2)):
            self.dma(self.a_dma(c))
        if PAT == 1:
            self.dma(self.p_dma())
        if opt("warm", 1):
            k.note("pull this die's share of the query weights into its L2")
            k(f"""s_lshr_b32 s58, s2, 3
            s_mul_i32 s58, s58, {14 * 2688}
            s_and_b32 s59, s2, 1
            s_mul_i32 s59, s59, 3
            s_add_u32 s59, s59, {sW}
            s_lshl_b32 s59, s59, 7
            s_add_u32 s58, s58, s59
            v_min_u32 v16, 13, v0
            v_mul_u32_u24 v16, 2688, v16
            buffer_load_dword v{JUNK}, v16, {WQ}, s58 offen""")
        if opt("ftw", 0):
            k.note("first touch of this wave's flag lines")
            k("v_mov_b32 v16, s67")
            for i, r in enumerate(("s68", sPF, "s61")[:opt("ftw")]):
                k(f"v_writelane_b32 v16, {r}, {i + 1}")
            k(f"buffer_load_dword v{JUNK}, v16, {WS}, 0 offen sc1")
        self.stamp("S3")
        k(f"""v_and_b32 v16, 3, v0
        v_cmp_eq_u32 s[0:1], 1, v16
        v_cmp_eq_u32 s[86:87], 2, v16
        v_cmp_eq_u32 vcc, 3, v16
        s_cmp_ge_u32 {sB2}, 8
        s_cbranch_scc1 L_v""")
        state = (list(k.vm), list(k.lg), self.nts, list(self.tsn), list(self.pend))
        self.pass1(False)
        k("s_branch L_q")
        k.label("L_v")
        k.vm, k.lg, self.nts, self.tsn, self.pend = state
        self.pass1(True)
        k.label("L_q")
        NQ0, NQ1 = opt("nq0", 7), opt("nq1", 0)
        self.dma([self.q_dma(c) for c in range(NQ0, NQ0 + NQ1)])
        if PAT == 8:
            self.p_bases()
            self.dma(self.p_dma())
        F = 216
        D = [248, 249, 140, 141]
        k(f"v_mul_f32 v{RS}, {f32(math.log2(math.e) / math.sqrt(28.0))}, v{RS}")

        def p_reads():
            k.wait(vm="P")
            for j in range(16):
                k(f"ds_read_b64_tr_b16 {vr(F + 2 * j, 2)}, v{F + 2 * j}", tag=("p", j // 4))

        def p_sums():
            k("\n".join(f"v_mov_b32 v{d}, 0" for d in D))
            for q in range(4):
                k.wait(lg=("p", q))
                k("\n".join(f"v_dot2c_f32_bf16 v{D[q]}, {sONE}, v{F + 8 * q + j}" for j in range(8)))
            k(f"""v_permlane32_swap_b32 v{D[0]}, v{D[2]}
            v_permlane32_swap_b32 v{D[1]}, v{D[3]}
            v_add_f32 v{D[0]}, v{D[0]}, v{D[2]}
            v_add_f32 v{D[1]}, v{D[1]}, v{D[3]}""")

        PPL = opt("ppl", 3)
        if PPL == 0:
            p_reads(), p_sums()
        self.stamp("Ap", True)
        QCK, QF = opt("qck", 30), opt("qf", 16)

        def flag():
            k.wait(vm="KV")
            k(f"buffer_store_dwordx4 {vr(vTAG, 4)}, {vFLAG}, {WS}, s61 offen sc1 {self.pol('fnt')}")
            self.stamp("A9", True)
            if PAT == 9:
                self.p_bases()
                self.dma(self.p_dma())

        def start():
            L1, L2 = k.newlabel("fw"), k.newlabel("fok")
            assert "KV" not in k.vm
            k(self.KBASE)
            PK_ = opt("pick", 1)
            if PK_:
                k(f"s_lshr_b32 s51, {sA2}, 2" if PK_ == 2 else f"s_lshr_b32 s51, {sA2}, 2\ns_and_b32 s51, s51, 1" if PK_ == 3 else "s_mov_b32 s51, 0")
                k("s_lshl_b32 s55, s51, 15\ns_or_b32 s50, s50, s55\ns_lshl_b32 s51, s51, 3\ns_or_b32 s51, s51, 0x80000")
                self.PICK = f"v_cmp_ne_u32 vcc, {sTAG}, v209\ns_bfe_u32 s55, vcc_lo, s51\ns_cmp_eq_u32 s55, 0"
            k.wait(vm="PF")
            k(f"{self.PICK}\ns_cbranch_scc0 {L1}")
            k.label(L2)
            self.late.append(("pick", L1, L2, None, None, None))
            if not PK_:
                k("s_ff1_i32_b32 s55, s55\ns_and_b32 s55, s55, 0x18\ns_lshl_b32 s55, s55, 12\ns_or_b32 s50, s50, s55")
            self.stamp("B0", True)
            for kt in range(opt("ns", 2)):
                for t, tg in self.kvload(kt):
                    k(t, tag=tg)
        LA = opt("qla", 5)
        QPL = opt("qpl", 28)
        nrd = [0]
        extra = []

        def qrd(lim):
            if nrd[0] < lim:
                n = nrd[0]
                for q in range(2):
                    k(f"ds_read_b64_tr_b16 {vr(RING + 4 * (n % 8) + 2 * q, 2)}, v{WQA + n % 4} offset:{(n // 4) * 4096 + q * 256}", tag=("q", n))
                nrd[0] += 1

        def ask():
            k(f"s_mov_b32 s60, {WS_FA}")
            k(self.ask0(), tag="PF")

        def steps(lo, hi):
            if lo == hi:
                return
            k.wait(vm=("Q", hi - 1))
            k("s_barrier")
            for _ in range(LA):
                qrd(4 * hi)
            for n in range(4 * lo, 4 * hi):
                k.wait(lg=("q", n))
                w = RING + 4 * (n % 8)
                if n % 4 == 0:
                    self.small(CS + 8, vr(ON, 2), vr(w, 2), n == 0)
                self.mfma(vr(QA, 16), vr(w, 4), ar(4 * n, 4), "0" if n == 0 else None)
                if n % 4 == 0:
                    self.small(CS + 8, vr(ON, 2), vr(w + 2, 2), False)
                qrd(4 * hi)
                if n == 25:
                    k(f"ds_write_b32 v{CSW}, v{CS + 8} offset:2048", tag="cw")
                if n == 26:
                    k.wait(lg="cw")
                    k("s_barrier")
                    k(f"ds_read_b128 {vr(CX, 4)}, v{CSR} offset:2048", tag="cx")
                if extra:
                    k(*extra.pop(0))
                    if extra and extra[0][1] is None:
                        k(extra.pop(0)[0])
                if n == QF:
                    flag()
                if n == QPL:
                    assert not extra
                    ask()
                if n == QCK:
                    start()

        steps(0, NQ0)
        self.dma([self.q_dma(c) for c in range(NQ0 + NQ1, 7)])
        if opt("pse", 0):
            extra = self.p_stores()
        steps(NQ0, NQ0 + NQ1)
        steps(NQ0 + NQ1, 7)
        assert not extra
        k.wait(lg="cx")
        k("\n".join([f"v_add_f32 v{CX}, v{CX}, v{CX + i}" for i in range(1, 4)] + self.split2(CX, CA)))
        k(f"v_mfma_f32_32x32x8bf16_1k {vr(QA, 16)}, {vr(CA, 2)}, {vr(VB, 2)}, {vr(QA, 16)}")
        if QPL == 28:
            ask()
        if QCK == 28:
            start()
        for s in range(2):
            for i in range(4 * s, 4 * s + 4):
                k(f"v_pk_mul_f32 {vr(QA + 2 * i, 2)}, {vr(QA + 2 * i, 2)}, {vr(RS, 2)} op_sel_hi:[1,0]")
            for i in range(4 * s, 4 * s + 4):
                k(f"v_cvt_pk_bf16_f32 v{32 + i}, v{QA + 2 * i}, v{QA + 2 * i + 1}")
            if s:
                k("s_mov_b32 exec_lo, 0\nv_mov_b32 v38, 0\nv_mov_b32 v39, 0\ns_mov_b32 exec_lo, -1")
            k(f"ds_write_b128 v{QW}, {vr(32 + 4 * s, 4)} offset:{1024 * s}")
        if QPL > 28:
            ask()
        self.stamp("Aq", True)
        if PPL == 1:
            p_reads(), p_sums()
        if QCK == 29:
            start()
        if PPL == 2:
            p_reads()
        k.wait(lg="all")
        k("s_barrier")
        for u in range(3):
            for s in range(2):
                k(f"ds_read_b128 {vr(8 + 8 * u + 4 * s, 4)}, v{QW + 1 + u} offset:{1024 * s}", tag="Q")
        if PPL == 2:
            p_sums()
        if PPL == 3:
            p_reads()
        if QCK > 29:
            start()
        if PPL == 3:
            p_sums()

    KBASE = f"s_lshl_b32 s50, {sA}, 4\ns_add_u32 s50, s50, {sW}\ns_add_u32 s50, s50, 256\ns_lshl_b32 s50, s50, 13"
    PICK = f"v_cmp_ne_u32 vcc, {sTAG}, v209\ns_sub_u32 s55, vcc_lo, 0x01010101\ns_andn2_b32 s55, s55, vcc_lo\ns_and_b32 s55, s55, 0x80808080"
    KVB = ["v144", "v160", "v176", "a192", "a0", "a16", "a32", "a48", "a64", "a80", "v192", "v144", "v160", "v176", "a192", "a176"]

    def ask0(self):
        t = f"buffer_load_dword v209, v207, {WS}, s60 offen sc1"
        return f"s_mov_b64 exec, 0xff\n{t}\ns_mov_b64 exec, -1" if self.opt.get("pick", 1) == 1 and self.opt.get("am", 1) else t

    def kvreg(self, kt, i):
        b = int(self.KVB[kt][1:]) + 4 * i
        return f"{self.KVB[kt][0]}[{b}:{b + 3}]"

    def kvload(self, kt):
        g = [(f"buffer_load_dwordx4 {self.kvreg(kt, i)}, v{208 if i & 2 else 1}, {WS}, s50 offen offset:{2048 * (kt & 1) + 1024 * (i & 1)} sc1",
              ("V" if i & 2 else "K", kt)) for i in range(4)]
        if kt & 1 and kt < 15:
            g.append((f"s_xor_b32 s50, s50, {4096 | ((kt >> 2) ^ ((kt + 1) >> 2)) << 15}", None))
        return g

    def b_setup(self):
        k = self.k
        sWD, sGL = "s32", "s54"
        k(f"""s_lshl_b32 s55, {sW}, 6
        s_lshr_b32 s56, {sA}, 1
        s_add_u32 s55, s55, s56
        v_and_b32 v2, 3, v0
        v_lshlrev_b32 v2, 4, v2
        v_bfe_u32 v3, v0, 2, 1
        v_lshl_add_u32 v2, v3, 3, v2
        v_bfe_u32 v3, v0, 3, 2
        v_lshl_add_u32 v2, v3, 8, v2
        v_add_u32 v2, s55, v2
        v_lshlrev_b32 v207, 7, v2
        v_and_b32 v2, 3, v0
        s_lshl_b32 s55, {sTB}, 4
        s_lshl_b32 s56, {sW}, 2
        s_add_u32 s55, s55, s56
        v_add_u32 v2, s55, v2
        v_lshlrev_b32 v2, 7, v2""")
        k(f"""s_mul_i32 s55, {sB2}, 7
        s_lshr_b32 s55, s55, 2
        s_add_u32 s71, s55, {sW}
        s_mul_i32 s55, s55, 14
        s_lshr_b32 s56, {sCB}, 1
        s_min_u32 s56, s56, 6
        s_mul_i32 s57, s56, 28
        s_mul_i32 s58, {sW}, 7
        s_add_u32 s57, s57, s58
        s_lshl_b32 {sWD}, s57, 13
        s_add_u32 {sWD}, {sWD}, {WS_WD}
        s_add_u32 s57, s57, {U_D - 42}
        s_lshl_b32 s56, s56, 3
        s_lshl_b32 s58, {sW}, 1
        s_add_u32 s56, s56, s58
        s_lshl_b32 s35, s56, 13
        s_add_u32 s35, s35, {WS_WO}
        s_add_u32 s56, s56, {U_O}
        s_cmp_ge_u32 {sCB}, 14
        s_cselect_b32 {sWD}, {OOB}, {sWD}
        s_cselect_b32 s35, {OOB}, s35
        v_add_u32 v4, s55, v0
        v_min_u32 v4, {U_D - 1}, v4
        v_add_u32 v5, s57, v0
        v_and_b32 v3, 1, v0
        v_add_u32 v3, s56, v3
        v_cmp_gt_u32 vcc, 49, v0
        v_cndmask_b32 v3, v3, v5, vcc
        v_cmp_gt_u32 vcc, 42, v0
        v_cndmask_b32 v3, v3, v4, vcc
        v_lshlrev_b32 v3, 7, v3""")
        for t in range(3):
            k(f"""s_xor_b32 s55, {sW}, {3 - t}
            s_mul_i32 s55, s55, 12288
            s_add_u32 s55, s55, {LR + 4096 * t}
            v_add_u32 v{4 + t}, s55, v1""")
        k(f"""s_mul_i32 s55, {sW}, 12288
        s_add_u32 s55, s55, {LR}
        v_add_u32 v7, s55, v1
        v_add_u32 v208, {1024 * 2048}, v1
        v_lshlrev_b32 v210, 2, v0
        s_lshr_b32 s55, {sW}, 1
        s_lshl_b32 s55, s55, 10
        v_add_u32 v253, s55, v1
        v_xor_b32 v252, 1024, v253
        v_and_b32 v254, 31, v0
        v_lshrrev_b32 v251, 5, v0
        v_lshlrev_b32 v250, 4, v254
        v_lshl_add_u32 v250, v251, 3, v250
        v_mul_u32_u24 v254, 896, v254
        v_lshl_add_u32 v254, v251, 5, v254
        s_mul_i32 s55, s62, {32 * 896}
        s_lshl_b32 s56, s63, 6
        s_add_u32 s55, s55, s56
        s_cmp_ge_u32 {sCB}, 14
        s_cselect_b32 s55, {OOB}, s55
        v_add_u32 v254, s55, v254
        s_mul_i32 s55, {sB2}, {7 * 28672}
        s_add_u32 s55, s55, {WS_WGU}
        v_add_u32 v251, s55, v1
        s_mul_i32 {sGL}, {sW}, 28672""")
        for i in range(4):
            k(f"v_accvgpr_write_b32 a{220 + i}, -1")
        k(f"""s_mov_b32 s64, {sO}
        s_mov_b32 s65, {sH}
        s_mov_b32 s66, {sST}
        s_lshl_b32 s67, {sB}, 4
        s_add_u32 s67, s67, {sA}
        s_lshl_b32 s67, s67, 7
        s_add_u32 s67, s67, {WS_FB}
        s_lshl_b32 s68, {sTB}, 4
        s_add_u32 s68, s68, {sCB}
        s_lshl_b32 s68, s68, 7
        s_add_u32 s68, s68, {WS_FC}
        s_cmp_eq_u32 {sW}, 0
        s_cselect_b32 s67, s67, {OOB}
        s_cselect_b32 s68, s68, {OOB}
        s_lshl_b32 s55, s62, 4
        s_lshl_b32 s56, {sW}, 2
        s_add_u32 s55, s55, s56
        s_lshl_b32 s55, s55, 11
        s_add_u32 s70, s55, {WS_O}
        s_xor_b32 s69, s55, 0x8000
        s_add_u32 s69, s69, {WS_O}
        s_min_u32 s71, s71, 27
        s_mul_i32 s71, s71, 7168
        s_add_u32 s71, s71, {WS_CS}
        s_cmp_lt_u32 {sW}, 3
        s_cselect_b32 s71, s71, {OOB}
        s_lshl_b32 s55, {sA2}, 2
        s_add_u32 s55, s55, {sW}
        s_mul_i32 s72, s55, 28672
        s_add_u32 s72, s72, {WS_H}
        s_mul_i32 s73, s55, 3584
        s_add_u32 s73, s73, {WS_ST}
        s_lshl_b32 s76, s55, 4
        s_add_u32 s76, s76, {sB2}
        s_lshl_b32 s76, s76, 7
        s_add_u32 s76, s76, {WS_FQ}
        s_add_u32 s56, {sGL}, {WS_ACT}
        s_mul_i32 s75, s62, {112 * 1024}
        s_add_u32 s75, s75, s56
        s_xor_b32 s74, s62, 1
        s_mul_i32 s74, s74, {112 * 1024}
        s_add_u32 s74, s74, s56
        s_cmp_ge_u32 {sCB}, 14
        s_cselect_b32 s74, {OOB}, s74
        s_cselect_b32 s75, {OOB}, s75""")
        for t in range(2):
            for j in range(4):
                k(f"s_add_u32 s{78 + 4 * t + j}, s{74 + t}, {7168 * j}")

    def phase_b(self):
        k = self.k
        Q, O, S, P, KV = 8, 40, 104, 136, 144
        sWD, sGL = "s32", "s54"
        k.label("L_attn")
        k(f"""s_mov_b32 s33, {sWD}
        s_mov_b32 s59, s35
        s_add_u32 s58, {sAC}, 4096""")
        pre = []
        for i in range(16):
            pre.append((f"buffer_load_dwordx4 {self.wo(i)}, v{252 + (i & 1)}, {WS}, s59 offen offset:{(i & 2) * 1024} sc1", "WO"))
            if i % 4 == 3:
                pre.append(("s_add_u32 s59, s59, 4096", None))
        for i in range(28):
            if i % 4 == 0:
                pre.append((f"s_add_u32 m0, {sGL}, {i * 1024}", None))
            pre.append((f"buffer_load_dwordx4 v251, {WS}, m0 offen offset:{(i % 4) * 1024} sc1 lds", "GU"))
        NWD = self.opt.get("nwd", 16)
        pre += self.wd_loads(0, NWD)
        self.wdn = NWD
        pst = [] if self.opt.get("pse", 0) else self.p_stores()

        TD = self.opt.get("td", 3)
        order = [(kt, u) for kt in range(16 - TD) for u in range(4)]
        order += [(kt, u) for kt in range(16 - TD, 16) for u in range(3)] + [(kt, 3) for kt in range(16 - TD, 16)]

        def smf(n, s):
            kt, u = order[n]
            d = vr(S + 16 * (n & 1), 16)
            self.mfma(d, self.kvreg(kt, s), vr(Q + 8 * u + 4 * s, 4), "0" if s == 0 else None)

        def pv(n, s):
            kt, u = order[n]
            self.mfma(vr(O + 16 * u, 16), self.kvreg(kt, 2 + s), vr(P + 4 * s, 4), "0" if (kt == 0 and s == 0) else None)

        k.wait(vm=("K", 0), lg="Q")
        smf(0, 0)
        smf(0, 1)
        PFL = self.opt.get("pfl", 11)
        PCHK = self.opt.get("pchk", 21)
        CLR = self.opt.get("clr", 99)
        FA2, FAD, CLW = self.opt.get("fa2", 3), self.opt.get("fad", 5), self.opt.get("clw", 56)
        queue = [x for t in range(self.opt.get("ns", 2), 4) for x in self.kvload(t)]
        queue = queue + pst if self.opt.get("psl", 1) else pst + queue
        clr = self.clears()
        SG = self.opt.get("sg", 0)
        acl = [f"buffer_store_dwordx4 a[220:223], v1, {WS}, {sAC if g < 4 else 's58'} offen offset:{1024 * (g & 3)} sc1" for g in range(SG, 7)]
        if self.opt.get("cld", 0):
            self.acl, acl = acl, []
        if CLR > PCHK:
            acl, clr = clr + acl, []
        ACL, ACS = self.opt.get("acl", 26), self.opt.get("acs", 2)
        fixed = {}
        for t in range(3):
            m = 4 * (order.index((15, t)) + 1) + 2
            for q in range(4):
                fixed.setdefault(m + q, []).append(f"ds_write_b128 v{4 + t}, {vr(O + 16 * t + 4 * q, 4)} offset:{1024 * q}")
        bar = m + 4 + self.opt.get("bbar", 1)
        hint = f"buffer_store_dwordx4 {vr(vTAG, 4)}, {vFLAG}, {WS}, s67 offen sc1"
        rds = [(f"ds_read_b128 {vr(O + 16 * j + 4 * q, 4)}, v7 offset:{4096 * j + 1024 * q}", ("c", j, q)) for q in range(4) for j in range(3)]
        HB = bar + self.opt.get("hb", 1)

        def join():
            assert "CL" not in k.vm
            k.wait(lg="all")
            k("s_barrier")

        def slot(g):
            if g in fixed:
                for t in fixed[g]:
                    k(t)
            elif g == bar:
                join()
            elif g > bar:
                if g == HB:
                    k(hint)
                for _ in range(self.opt.get("brd", 3)):
                    if rds:
                        t, tg = rds.pop(0)
                        k(t, tag=tg)
            elif queue:
                t, tg = queue[0]
                if not callable(t) and t.startswith("buffer_load_dwordx4"):
                    if credit[0] < 10:
                        return
                    dst = t.split()[1]
                    for x in range(16 if tg == "WD" else tg[1] if tg[0] in "KV" else 0):
                        if dst[:-1] in [self.kvreg(x, i) for i in range(4)] and g <= 4 * (order.index((x, 3)) + 1):
                            return
                queue.pop(0)
                if callable(t):
                    t()
                else:
                    k(t, tag=tg)
                    if t.startswith("buffer"):
                        credit[0] -= self.opt.get("clc", 20) if tg == "CL" else 10
                        self.blog.setdefault(str(tg and tg[0]) + str(tg == "WD"), [g // 4, 0])[1] = g // 4

        self.blog = {}
        credit = [0]
        for n in range(64):
            credit[0] = min(credit[0], 10) + self.opt.get("vpu", 27)
            kt, u = order[n]
            sb = S + 16 * (n & 1)
            if self.opt.get("tsb") and n % self.opt["tsb"] == 0:
                self.stamp(f"b{n}", True)
            if n == FA2:
                queue = [(f"buffer_load_dword v209, v207, {WS}, s60 offen sc1", "PF")] + queue
            if n == FA2 + FAD:
                queue.insert(0, (lambda: self.flagcheck("PF", "v207", "v209", WS_FA), None))
                queue += [x for t in range(4, 16) for x in self.kvload(t)]
            if n == PFL:
                assert not any(tg == "PS" for _, tg in queue)
                queue = [(lambda: k.wait(vm="PS"), None), (f"buffer_store_dwordx4 {vr(vTAG, 4)}, {vFLAG}, {WS}, {sPF} offen sc1", None)] + queue
            if n == CLW:
                assert not acl
                queue.insert(0, (lambda: k.wait(vm="CL"), None))
            if n >= CLR and clr and (n - CLR) % 2 == 0:
                queue.append((clr.pop(0), "CL"))
            if n >= ACL and acl and (n - ACL) % ACS == 0:
                queue.insert(0, (acl.pop(0), "CL"))
            if n == PCHK:
                assert n > FA2 + FAD
                queue = [(f"s_mov_b32 s60, {WS_FP}", None), (f"buffer_load_dword v209, v3, {WS}, s60 offen sc1", "PF")] + queue
            if n == PCHK + 5:
                assert not clr
                queue.append((lambda: self.flagcheck("PF", "v3", "v209", WS_FP), None))
                queue += pre
            if n == 53:
                queue = [(f"buffer_load_dwordx4 {vr(KV + 4 * s, 4)}, v254, {X}, 0 offen offset:{16 * s}", "X") for s in range(2)] + queue

            def ex(i):
                k(f"v_exp_f32 v{sb + i}, v{sb + i}")

            def cv(i):
                k(f"v_cvt_pk_bf16_f32 v{P + i}, v{sb + 2 * i}, v{sb + 2 * i + 1}")

            ex(0), ex(1)
            if n > 0:
                pv(n - 1, 1)
                assert n == 63 or not any(tg == ("V", order[n + 1][0]) for _, tg in queue)
                if not (n + 1 < 64 and k.wait(vm=("V", order[n + 1][0]))):
                    slot(4 * n)
                else:
                    assert 4 * n not in fixed
            ex(2), ex(3), cv(0), ex(4), ex(5), cv(1)
            if n + 1 < 64:
                smf(n + 1, 0)
            slot(4 * n + 1)
            ex(6), ex(7), cv(2), ex(8), ex(9), cv(3)
            if n + 1 < 64:
                smf(n + 1, 1)
            if not (n == 0 and k.wait(vm=("V", 0))):
                slot(4 * n + 2)
            ex(10), ex(11), cv(4), ex(12), ex(13), cv(5)
            pv(n, 0)
            slot(4 * n + 3)
            ex(14), ex(15), cv(6), cv(7)
        assert not queue, len(queue)
        pv(63, 1)
        g = 256
        while g <= max(bar, HB) or rds:
            slot(g)
            g += 1
        self.stamp("B1", True)
        o = O + 48
        for q in range(4):
            k.wait(lg=("c", 2, q))
            for j in (1, 2):
                for i in range(2):
                    r = O + 4 * q + 2 * i
                    k(f"v_pk_add_f32 {vr(r, 2)}, {vr(r, 2)}, {vr(r + 16 * j, 2)}")
        lo, hi = struct.unpack("<II", struct.pack("<ff", 2.0 ** -80, 2.0 ** 80))
        k(f"""v_add_f32 v248, v{o + 12}, v{O + 12}
        v_add_f32 v249, v{o + 12}, v{O + 12}""")
        adds = [f"v_pk_add_f32 {vr(o + 2 * i, 2)}, {vr(o + 2 * i, 2)}, {vr(O + 2 * i, 2)}" for i in range(8)]
        k("\n".join(adds[:2]))
        k(f"""v_permlane32_swap_b32 v249, v248
        s_mov_b32 s56, {hi - lo}""")
        k("\n".join(adds[2:4]))
        k(f"""v_subrev_u32 v249, {lo}, v248
        v_rcp_f32 v248, v248
        v_cmp_lt_u32 vcc, s56, v249""")
        k("\n".join(adds[4:]))
        if self.force_fb:
            k(f"s_and_b32 vcc_lo, {sW}, {self.force_fb - 1}" if self.force_fb > 1 else "s_mov_b32 vcc_lo, 1")
        k(f"""s_andn2_b32 s57, vcc_lo, {sFB}
        s_cselect_b32 s55, {OOB}, {sO}
        s_cselect_b32 {sO}, {sO}, {OOB}""")
        for s in range(2):
            for i in range(4 * s, 4 * s + 4):
                k(f"v_pk_mul_f32 {vr(o + 2 * i, 2)}, {vr(o + 2 * i, 2)}, v[248:249] op_sel_hi:[1,0]")
            for i in range(4 * s, 4 * s + 4):
                k(f"v_cvt_pk_bf16_f32 v{P + i}, v{o + 2 * i}, v{o + 2 * i + 1}")
            if s:
                k(f"s_mov_b32 exec_lo, 0\nv_mov_b32 v{P + 6}, 0\nv_mov_b32 v{P + 7}, 0\ns_mov_b32 exec_lo, -1")
            k(f"buffer_store_dwordx4 {vr(P + 4 * s, 4)}, v1, {WS}, s55 offen offset:{1024 * s} sc1")
        self.stamp("B2", True)
        k(f"s_mov_b32 s60, {WS_FB}")
        k(f"buffer_load_dword v209, v2, {WS}, s60 offen sc1", tag="PF")
        k(f"""v_mov_b32 v248, s57
        v_and_b32 v249, 3, v0
        ds_write_b32 v7, v248
        v_mul_u32_u24 v249, 12288, v249
        v_add_u32 v249, {LR}, v249""")
        k.wait(lg="all")
        k("s_barrier\nds_read_b32 v248, v249")
        k.wait(vm=["X", "GU"])
        for i in range(8):
            k(f"v_lshlrev_b32 v{S + 2 * i}, 16, v{KV + i}\nv_and_b32 v{S + 1 + 2 * i}, 0xffff0000, v{KV + i}")
        k.wait(lg="all")
        k("s_barrier\nv_cmp_ne_u32 vcc, 0, v248\ns_cbranch_vccnz L_fb")
        n = self.opt.get("nwb", 0)
        for t, tg in self.wd_loads(self.wdn, self.wdn + n):
            k(t, tag=tg)
        self.wdn += n

    def wd_loads(self, lo, hi):
        g = []
        for i in range(lo, hi):
            g.append((f"buffer_load_dwordx4 {ar(4 * i, 4)}, v{252 + (i & 1)}, {WS}, s33 offen offset:{(i & 2) * 1024} sc1", "WD"))
            if i % 4 == 3:
                g.append(("s_add_u32 s33, s33, 4096", None))
        return g

    def late_code(self):
        k = self.k
        Q, S, KV = 8, 104, 144
        for kind, L1, L2, x, y, z in self.late:
            k.label(L1)
            if kind == "poll":
                self.poll(x, y, z, {WS_FB: "s90", WS_FC: "s92", "s77": "s95", WS_FA: "s93"}.get(z))
            elif kind == "pick":
                if self.ts:
                    k("s_add_u32 s94, s94, 1")
                k(self.ask0())
                k.wait(vm="all")
                k(f"""{self.PICK}
                s_cbranch_scc1 {L2}
                s_sub_u32 {sCNT}, {sCNT}, 1
                s_cselect_b32 {sCNT}, 0, {sCNT}
                s_cbranch_scc0 {L1}""")
            elif kind == "call":
                x()
                k.wait(vm="all")
            else:
                if self.ts:
                    c = "s91" if z == 209 else "s95" if z == 247 else "s94" if len(y) == 14 else "s93"
                    k(f"s_add_u32 {c}, {c}, 1")
                k("\n".join(x))
                k.wait(vm="all")
                k("\n".join(self.maxchain(y, z)))
                k(f"""v_cmp_eq_u32 vcc, -1, v{z}
                s_cbranch_vccz {L2}
                s_sub_u32 {sCNT}, {sCNT}, 1
                s_cselect_b32 {sCNT}, 0, {sCNT}
                s_cbranch_scc0 {L1}""")
            k(f"s_branch {L2}")
        k.label("L_fb")
        k(f"""s_waitcnt vmcnt(0) lgkmcnt(0)
        s_barrier
        s_mov_b32 {sFB}, -1
        s_mov_b32 {sPD}, {OOB}
        s_mov_b32 {sPCS}, {OOB}
        s_mov_b32 {sPF}, {OOB}
        s_mov_b32 s64, {OOB}
        s_mov_b32 s65, {OOB}
        s_mov_b32 s66, {OOB}
        s_lshl_b32 s50, {sA}, 6
        s_lshl_b32 s55, {sW}, 4
        s_add_u32 s50, s50, s55
        s_add_u32 s50, s50, 1024
        s_lshl_b32 s50, s50, 11
        s_mov_b32 s51, 16""")
        for u in range(4):
            k(f"v_mov_b32 v{228 + u}, 0xff800000")
        k.label("L_fbl")
        for s in range(2):
            k(f"buffer_load_dwordx4 {vr(KV + 4 * s, 4)}, v1, {WS}, s50 offen offset:{1024 * s} sc1")
        k("s_add_u32 s50, s50, 2048\ns_waitcnt vmcnt(0)")
        for u in range(4):
            self.mfma(vr(S, 16), vr(KV, 4), vr(Q + 8 * u, 4), "0")
            self.mfma(vr(S, 16), vr(KV + 4, 4), vr(Q + 8 * u + 4, 4))
            for i in range(8):
                k(f"v_max3_f32 v{228 + u}, v{228 + u}, v{S + 2 * i}, v{S + 2 * i + 1}")
        k("s_sub_u32 s51, s51, 1\ns_cmp_lg_u32 s51, 0\ns_cbranch_scc1 L_fbl")
        k(f"v_lshlrev_b32 v216, 2, v0\ns_lshl_b32 s57, {sW}, 8")
        for u in range(4):
            k(f"""v_mov_b32 v218, v{228 + u}
            v_permlane32_swap_b32 v218, v{228 + u}
            v_max_f32 v{228 + u}, v218, v{228 + u}
            s_xor_b32 s55, {sW}, {3 - u}
            s_lshl_b32 s55, s55, 10
            s_add_u32 s55, s55, {LR}
            v_add_u32 v{220 + u}, s55, v216
            v_add_u32 v217, s57, v{220 + u}
            ds_write_b32 v217, v{228 + u}""")
        k("s_waitcnt lgkmcnt(0)\ns_barrier")
        for u in range(4):
            for j in range(4):
                k(f"ds_read_b32 v{224 + j}, v{220 + u} offset:{256 * j}")
            k(f"""s_waitcnt lgkmcnt(0)
            v_max3_f32 v224, v224, v225, v226
            v_max_f32 v224, v224, v227
            v_sub_f32 v224, 0, v224
            v_cvt_pk_bf16_f32 v225, v224, v224
            v_and_b32 v225, 0xffff0000, v225
            v_sub_f32 v225, v224, v225
            v_cvt_pk_bf16_f32 v226, v224, v225
            v_and_b32 v227, 0xffff0000, v226
            v_sub_f32 v227, v225, v227
            v_cvt_pk_bf16_f32 v227, v227, 0
            s_mov_b32 exec_lo, 0
            v_mov_b32 v{Q + 8 * u + 6}, v226
            v_mov_b32 v{Q + 8 * u + 7}, v227
            s_mov_b32 exec_lo, -1""")
        k(f"{self.KBASE}\ns_mov_b32 s60, {WS_FA}\nv_mov_b32 v207, 0")
        for kt in range(self.opt.get("ns", 2)):
            k("\n".join(t for t, _ in self.kvload(kt)))
        k("s_waitcnt vmcnt(0)\ns_barrier\ns_branch L_attn")
        k.vm.clear()
        k.lg.clear()

    def phase_c(self):
        k = self.k
        ACC, OF, XR, CL = 8, 136, 104, 72

        def csl():
            k("s_add_u32 s55, s71, 4096")
            for i in range(7):
                k(f"buffer_load_dwordx4 {vr(CL + 4 * i, 4)}, v1, {WS}, {'s71' if i < 4 else 's55'} offen offset:{(i % 4) * 1024} sc1", tag="cs")

        k(f"s_cmp_ge_u32 {sCB}, 14\ns_cbranch_scc1 L_cidle")
        self.late.append(("call", "L_cidle", "L_c1", csl, None, None))
        k("s_add_u32 s50, s69, 4096\ns_add_u32 s51, s70, 4096")
        self.flagcheck("PF", "v2", "v209", WS_FB)
        self.stamp("C0", True)
        loads = []
        for t in range(2):
            for ks in range(8):
                sb = f"s{69 + t}" if ks < 4 else f"s{50 + t}"
                loads.append(f"buffer_load_dwordx4 {vr(OF + 32 * t + 4 * ks, 4)}, v1, {WS}, {sb} offen offset:{1024 * (ks & 3)} sc1")
                k(loads[-1], tag=("O", 8 * t + ks))
        csl()

        def arrive(f):
            k.wait(vm=("O", f + 1))
            self.datacheck([OF + 4 * f, OF + 4 * f + 4], 209, loads[f:])

        def mm(lt, ks):
            c, t = divmod(lt, 2)
            self.mfma(vr(ACC + 16 * lt, 16), self.wo(2 * ks + c), vr(OF + 32 * t + 4 * ks, 4), None if ks else vr(XR, 16) if lt == 3 else "0")

        def wr(lt):
            return [f"ds_write_b128 v{4 + lt}, {vr(ACC + 16 * lt + 4 * q, 4)} offset:{1024 * q}" for q in range(4)]

        for p in range(4):
            arrive(2 * p)
            for lt, ks in ((0, 0), (0, 1), (2, 0), (2, 1)):
                mm(lt, 2 * p + ks)
        w = wr(0) + wr(2)
        for ks in range(8):
            if ks % 2 == 0:
                arrive(8 + ks)
            mm(1, ks)
            if ks >= 1:
                k(w.pop(0))
        w += [None] + wr(1)
        for ks in range(8):
            mm(3, ks)
            if w:
                t = w.pop(0)
                if t:
                    k(t)
        self.stamp("C1", True)
        k.wait(lg="all")
        k(f"s_barrier\nbuffer_store_dwordx4 {vr(vTAG, 4)}, {vFLAG}, {WS}, s68 offen sc1")
        for q in range(4):
            for j in range(3):
                k(f"ds_read_b128 {vr(ACC + 16 * j + 4 * q, 4)}, v7 offset:{4096 * j + 1024 * q}", tag=("c", j, q))
        o = ACC + 48
        for q in range(4):
            for j in range(3):
                k.wait(lg=("c", j, q))
                for i in range(2):
                    r = o + 4 * q + 2 * i
                    k(f"v_pk_add_f32 {vr(r, 2)}, {vr(r, 2)}, {vr(ACC + 16 * j + 4 * q + 2 * i, 2)}")
            for i in range(2):
                k(f"v_cvt_pk_bf16_f32 v{OF + 2 * q + i}, v{o + 4 * q + 2 * i}, v{o + 4 * q + 2 * i + 1}")
            if q & 1:
                k(f"buffer_store_dwordx4 {vr(OF + 2 * q - 2, 4)}, v1, {WS}, {sH} offen offset:{512 * (q - 1)} sc1")
        k(f"v_pk_add_f32 v[16:17], {vr(o, 2)}, {vr(o + 2, 2)}\nv_pk_mul_f32 v[18:19], {vr(o, 2)}, {vr(o, 2)}")
        for i in range(1, 8):
            if i > 1:
                k(f"v_pk_add_f32 v[16:17], v[16:17], {vr(o + 2 * i, 2)}")
            k(f"v_pk_fma_f32 v[18:19], {vr(o + 2 * i, 2)}, {vr(o + 2 * i, 2)}, v[18:19]")
        k(f"""v_add_f32 v16, v16, v17
        v_add_f32 v18, v18, v19
        v_permlane32_swap_b32 v16, v18
        v_add_f32 v16, v16, v18
        buffer_store_dword v16, v210, {WS}, {sST} offen sc1
        s_barrier""")
        k.label("L_c1")
        self.stamp("C3", True)

    def phase_de(self):
        k = self.k
        opt = self.opt.get
        H, ACC, AB, T = 8, 120, 184, 216
        CL, CS = 72, 100
        LCS = LR + 28672
        sGU = "s53"
        k(f"""s_lshl_b32 s55, {sA2}, 4
        s_lshr_b32 s56, {sW}, 1
        s_add_u32 s55, s55, s56
        v_min_u32 v249, 6, v0
        v_lshlrev_b32 v249, 1, v249
        v_add_u32 v249, s55, v249
        v_lshlrev_b32 v249, 7, v249
        s_mov_b32 s60, {WS_FC}""")
        k(f"buffer_load_dword v248, v249, {WS}, s60 offen sc1", tag="PF")
        k(f"""s_mul_i32 s52, {sW}, 7168
        s_mul_i32 {sGU}, {sB2}, {7 * 28672}
        s_add_u32 {sGU}, {sGU}, s52
        s_add_u32 {sGU}, {sGU}, {WS_WGU + 4 * 28672}""")

        def gdma(ct, lds):
            g = []
            for i in range(7):
                t = ""
                if i % 4 == 0:
                    t = f"s_add_u32 m0, s52, {lds + i * 1024}\ns_add_u32 s56, {sGU}, {(ct - 4) * 28672 + i * 1024}\n"
                g.append((t + f"buffer_load_dwordx4 v1, {WS}, s56 offen offset:{(i % 4) * 1024} sc1 lds", ("G", ct)))
            return g

        mem = []
        if opt("g4", 1):
            for t, tg in gdma(4, LR):
                k(t, tag=tg)
        n = opt("nwc", 0)
        for t, tg in self.wd_loads(self.wdn, self.wdn + n):
            k(t, tag=tg)
        self.wdn += n
        for i in range(16):
            k(f"v_accvgpr_write_b32 a{224 + i}, v{56 + i}")
        for i in range(4):
            k(f"v_mov_b32 v{240 + i}, {sTAG}")
        k(f"""v_mov_b32 v244, {vFLAG}
        v_mov_b32 v250, v210
        v_lshlrev_b32 v2, 3, v0
        s_lshl_b32 s55, {sW}, 11
        s_add_u32 s55, s55, {LCS}
        v_add_u32 v3, s55, v2
        v_bfe_u32 v245, v0, 2, 1
        v_xor_b32 v245, s62, v245
        v_lshlrev_b32 v245, 4, v245
        v_and_b32 v246, 3, v0
        s_lshl_b32 s55, {sW}, 2
        v_add3_u32 v245, v245, v246, s55
        v_lshlrev_b32 v245, 7, v245""")
        for i in range(4):
            k(f"v_subrev_u32 v{4 + i}, {LR - 57344}, v{4 + i}")
        k.wait(vm="cs")
        for i in range(1, 7):
            for h in range(2):
                k(f"v_pk_add_f32 {vr(CL + 2 * h, 2)}, {vr(CL + 2 * h, 2)}, {vr(CL + 4 * i + 2 * h, 2)}")
        for q in range(4):
            k("\n".join(self.split2(CL + q, CS + 2 * q)))
            k(f"ds_write_b64 v3, {vr(CS + 2 * q, 2)} offset:{512 * q}")
        k(f"""s_mul_i32 s55, {sB2}, 7
        s_and_b32 s55, s55, 3
        s_lshl_b32 s55, s55, 9
        s_add_u32 s55, s55, {LCS}
        v_add_u32 v3, s55, v2
        v_add_u32 v2, 57344, v1
        v_add_u32 v251, {LR}, v1
        s_mov_b32 s50, s72""")
        k.wait(lg="all")

        slot_of = {0: 0, 1: 1, 2: 2, 3: 3, 4: "R", 5: 0, 6: 1}
        seq = [(ct, ks) for ks in range(28) for ct in range(3)] + [(ct, ks) for ct in range(3, 7) for ks in range(28)]
        ND = len(seq)
        NB = 8
        AH = opt("dah", 5)

        def aread(i):
            ct, ks = seq[i]
            s = slot_of[ct]
            if s == "R":
                va, off = "v251", ks * 1024
            elif s < 2:
                va, off = "v1", s * 28672 + ks * 1024
            else:
                va, off = "v2", (s - 2) * 28672 + ks * 1024
            k(f"ds_read_b128 {vr(AB + 4 * (i % NB), 4)}, {va} offset:{off}", tag=("a", i))

        for i in range(AH):
            aread(i)
        self.flagcheck("PF", "v249", "v248", WS_FC)
        self.stamp("D0", True)
        HA = opt("dha", 12)

        def hload(ks, sb="s50"):
            return f"buffer_load_dwordx4 {vr(H + 4 * ks, 4)}, v1, {WS}, {sb} offen offset:{1024 * (ks & 3)} sc1"

        def hagain(lo, hi):
            g = []
            for ks in range(lo, hi):
                if ks == lo or ks & 3 == 0:
                    g.append(f"s_add_u32 s60, s72, {4096 * (ks >> 2)}")
                g.append(hload(ks, "s60"))
            return g

        SL = ACC + 48
        queue = [(hload(ks) + ("\ns_add_u32 s50, s50, 4096" if ks & 3 == 3 else ""), ("H", ks)) for ks in range(28)]
        sts = [f"buffer_load_dword v{SL + c}, v250, {WS}, s73 offen offset:{256 * c} sc1" for c in range(14)]
        queue += [(t, "S") for t in sts]
        for _ in range(HA):
            t, tg = queue.pop(0)
            k(t, tag=tg)
        hgrp = {0: 2, 2: 4, 4: 8, 8: 12, 12: 16, 16: 20, 20: 24, 24: 28} if opt("hg", 4) == 4 else {i: i + 2 for i in range(0, 28, 2)}

        VB, VC, VS = T + 2, T + 4, T + 6
        CA = T + 8
        E = T + 16

        def epilogue(ct, packed):
            a = ACC + 16 * (ct % 4)
            e = []
            if packed:
                e += [f"v_pk_mul_f32 {vr(a + 2 * i, 2)}, {vr(a + 2 * i, 2)}, {vr(VC, 2)} op_sel_hi:[1,0]" for i in range(4)]
            else:
                e += [f"v_mul_f32 v{a + i}, v{VC}, v{a + i}" for i in range(8)]
            e += [f"v_exp_f32 v{a + i}, v{a + i}" for i in range(8)]
            if packed:
                e += [f"v_pk_fma_f32 {vr(a + 2 * i, 2)}, {vr(a + 2 * i, 2)}, {vr(VS, 2)}, {vr(VS, 2)} op_sel_hi:[1,0,0]" for i in range(4)]
            else:
                e += [f"v_fma_f32 v{a + i}, v{a + i}, v{VS}, v{VS}" for i in range(8)]
            e += [f"v_rcp_f32 v{a + i}, v{a + i}" for i in range(8)]
            if packed:
                e += [f"v_pk_mul_f32 {vr(a + 2 * i, 2)}, {vr(a + 2 * i, 2)}, {vr(a + 8 + 2 * i, 2)}" for i in range(4)]
            else:
                e += [f"v_mul_f32 v{a + i}, v{a + i}, v{a + 8 + i}" for i in range(8)]
            p = E + 4 * (ct & 1)
            e += [f"v_cvt_pk_bf16_f32 v{p + i}, v{a + 2 * i}, v{a + 2 * i + 1}" for i in range(4)]
            pre = f"s_add_u32 {sAC}, {sAC}, 4096\n" if ct == 4 else ""
            e.append(pre + f"buffer_store_dwordx4 {vr(p, 4)}, v1, {WS}, {sAC} offen offset:{1024 * (ct & 3)} sc1")
            return [(t, ("e", ct)) for t in e]

        def corr(ct):
            a = vr(ACC + 16 * (ct % 4), 16)
            k(f"v_mfma_f32_32x32x8bf16_1k {a}, {vr(CA + 2 * (ct % 4), 2)}, {vr(VB, 2)}, {a}")

        def csread(ct):
            k(f"ds_read_b64 {vr(CA + 2 * (ct % 4), 2)}, v3 offset:{512 * ct}", tag=("cs", ct))

        def cost(t):
            if callable(t):
                return 8
            return sum(8 if l.startswith(("v_exp", "v_rcp", "v_rsq", "v_sqrt", "buffer")) else 4 for l in t.split("\n"))

        EA = [184, 136, 120, 168]
        DF = opt("edf", 3)
        units = [(g, t) for g in range(7 - DF) for t in range(2)] + [(g, 0) for g in range(7 - DF, 7)] + [(g, 1) for g in range(7 - DF, 7)]
        eseq = []
        for u, (g, t) in enumerate(units[:14 - DF]):
            if u == 13 - DF:
                eseq += [(u, j, c) for c in range(2) for j in range(4)]
            else:
                eseq += [(u, j, c) for j in range(4) for c in range(2)]
        eseq += [(u, j, c) for c in range(2) for u in range(14 - DF, 14) for j in range(4)]
        lastuse = {u: ND + i for i, (u, j, c) in enumerate(eseq)}
        lastacc = {2 * c + units[u][1]: ND + i for i, (u, j, c) in enumerate(eseq)}
        free = [(H + 16 * b, 171 + 4 * b) for b in range(7)] + [(200, 191)]
        SG, SDL = opt("sg", 0), opt("sdl", 28)
        stages = [[int(c) for c in s if int(c) < SG] for s in str(opt("stg", "01.23.45.6")).split(".")]
        stages = [s for s in stages if s]
        CLD = opt("cld", 0)
        if CLD:
            stages = [[-1]]
        checked = set()
        stage_of = {g: s for s, gs in enumerate(stages) for g in gs}
        L0, LS = opt("el0", 172), opt("els", 17) / 10
        FDL, CDL, CHK = opt("fdl", 13), opt("cdl", 28), opt("chk", 16)
        first = {}
        for u, (g, t) in enumerate(units):
            first.setdefault(stage_of.get(g, 0), L0 + 4 * LS * u)
        ubuf, eload, enext = {}, [(u, j) for u in range(14) for j in range(4)], L0
        stored, sent, asked, passed = {}, {}, {}, set()
        seen = set()

        def flagstore():
            return f"buffer_store_dwordx4 v[240:243], v244, {WS}, s76 offen sc1\ns_add_u32 s76, s76, 0x20000"

        def events(i):
            nonlocal enext
            spent = 0
            s = len(sent)
            if s < len(stages) and stages[s][-1] in stored and i >= stored[stages[s][-1]] + FDL:
                k.wait(vm=("e", stages[s][-1]))
                k(flagstore())
                sent[s] = i
                spent += 16
            s = len(asked)
            if s < len(stages) and s in sent and len(passed) == s and i >= max(sent[s] + CDL, first[s] - CHK - 1):
                k(f"s_mov_b32 s77, {WS_FQ + 0x20000 * s}")
                k(f"buffer_load_dword v248, v245, {WS}, s77 offen sc1", tag="PF")
                asked[s] = i
                spent += 12
            s = len(passed)
            if s in asked and i >= asked[s] + CHK:
                self.flagcheck("PF", "v245", "v248", "s77")
                passed.add(s)
                spent += 12
            if eload and i >= enext:
                u, j = eload[0]
                g, t = units[u]
                if stage_of[g] in passed if g < SG else (g in stored and i >= stored[g] + SDL and (passed or not CLD)):
                    if u not in ubuf:
                        ok = [f for f in free if f[1] <= i]
                        if ok:
                            free.remove(ok[0])
                            ubuf[u] = ok[0][0]
                            free.append((ok[0][0], lastuse[u]))
                    if u in ubuf:
                        sb = f"s{78 + 4 * t + j}"
                        k(f"buffer_load_dwordx4 {vr(ubuf[u] + 4 * j, 4)}, v1, {WS}, {sb} offen offset:{(g & 3) * 1024 * (1 - opt('xe', 0))} sc1", tag=("B", u, j))
                        if g == 3 and not opt("xe", 0):
                            k(f"s_add_u32 {sb}, {sb}, 4096")
                            spent += 4
                        eload.pop(0)
                        due = L0 + LS * (56 - len(eload))
                        enext = max(i + 1, due)
                        self.log.append(("ld", u, j, i))
                        spent += 8
            return spent

        self.log = []
        BUD, EBUD = opt("dbud", 20), opt("ebud", 24)
        hold = 0
        b = 0
        xch = {}
        for lt in range(3):
            for q in range(4):
                xch.setdefault(lastacc[lt] + 2 + q, []).append(f"ds_write_b128 v{4 + lt}, {vr(EA[lt] + 4 * q, 4)} offset:{1024 * q}")
        B1, B2 = lastacc[1] + opt("eb1", 0), lastacc[1] + opt("eb2", 9)

        def xread(lt):
            return [(f"ds_read_b128 {vr(EA[lt] + 4 * q, 4)}, v7 offset:{4096 * lt + 1024 * q}", ("c", lt, q)) for q in range(4)]

        def xadd(lt):
            g = []
            for q in range(4):
                g.append((lambda q=q: k.wait(lg=("c", lt, q)), None))
                g += [(f"v_add_f32 v{EA[0] + r}, v{EA[0] + r}, v{EA[lt] + r}", None) for r in range(4 * q, 4 * q + 4)]
            return g

        for i in range(ND + 112):
            if i < ND:
                ct, ks = seq[i]
                nxt = i + AH
                if nxt < ND and seq[nxt] == (5, 0):
                    assert not any(tg in (("G", 5), ("G", 6)) for _, tg in mem)
                    k.wait(vm=[("G", 5), ("G", 6)])
                    assert "CL" not in k.vm
                    stored[-1] = i - FDL
                    k("s_barrier")
                if ks == 0 and ct >= 4:
                    assert not any(tg == ("e", ct - 4) for _, tg in queue), ct
                if ct == 0 and ks in hgrp:
                    assert not any(tg == ("H", hgrp[ks] - 1) for _, tg in queue)
                    k.wait(vm=("H", hgrp[ks] - 1))
                    out = 28 - sum(1 for _, tg in queue if tg and tg[0] == "H")
                    self.datacheck([H + 4 * x for x in range(ks, hgrp[ks])], 248, hagain(ks, out))
                k.wait(lg=("a", i))
                self.mfma(vr(ACC + 16 * (ct % 4), 16), vr(AB + 4 * (i % NB), 4), vr(H + 4 * ks, 4), "0" if ks == 0 else None)
                if nxt < ND:
                    aread(nxt)
                if i % opt("tsd", 28) == 0:
                    self.stamp(f"d{i}", True)
                if i == opt("dwd", 40):
                    if not opt("g4", 1):
                        mem += gdma(4, LR)
                    mem += self.wd_loads(self.wdn, 56)
                if CLD and i >= CLD and self.acl and (i - CLD) % opt("cls", 2) == 0:
                    k(self.acl.pop(0), tag="CL")
                if i == 64:
                    assert not queue

                    def stcheck():
                        k.wait(vm="S")
                        self.datacheck(list(range(SL, SL + 14)), 248, sts)
                    queue.append((stcheck, None))
                    queue += [(f"v_add_f32 v{SL}, v{SL}, v{SL + c}", None) for c in range(1, 14)]
                    queue += [(t.strip(), None) for t in self.stats(SL, SL + 1, VC, VB, VS)]
                    queue += [(f"v_rsq_f32 v{VC}, v{VS}", None), (f"v_sqrt_f32 v{VS}, v{VS}", None),
                              (f"v_mul_f32 v{VC}, {f32(-math.log2(math.e))}, v{VC}", None)]
                if i == 83:
                    assert not queue and not any(tg == ("G", 4) for _, tg in mem)
                    k.wait(vm=("G", 4))
                    k("s_barrier")
                    for c in range(4):
                        csread(c)
                    mem = gdma(5, 0) + gdma(6, 28672) + mem
                    continue
                if i == 86:
                    k.wait(lg=("cs", 3))
                    for c in range(3):
                        corr(c)
                        queue += epilogue(c, False)
                    hold = 3
                    continue
                if i > 83 and ks == 27:
                    k.wait(lg=("cs", ct))
                    corr(ct)
                    if ct == 6:
                        assert not mem
                        self.stamp("D2", True)
                        k(f"s_cmp_ge_u32 {sCB}, 14\ns_cbranch_scc1 L_tail")
                        rest = list(queue) + epilogue(6, True)
                        nflag = len(stages) - len(sent)
                        queue += [(f"v_accvgpr_read_b32 v{EA[3] + r}, a{224 + r}", "res") for r in range(16)]
                    elif not queue:
                        hold = 4
                    queue += epilogue(ct, False)
                    continue
                if i > 83 and ks == 8 and ct < 6:
                    csread(ct + 1)
                b = min(b, 4) + BUD
            else:
                u, j, c = eseq[i - ND]
                g, t = units[u]
                lt = 2 * c + t
                assert (u, j) not in eload, (i, u, j)
                if lt not in seen:
                    assert 4 in stored
                    assert not any(tg in ("res", ("e", 5)) for _, tg in queue) or t == 0, (i, stored, len(queue))
                if g >= SG and u not in checked:
                    assert (u, 3) not in eload, (i, u)
                    k.wait(vm=("B", u, 3))
                    again = [f"s_add_u32 s60, s{74 + units[x][1]}, {7168 * y + 1024 * units[x][0]}\n"
                             f"buffer_load_dwordx4 {vr(ubuf[x] + 4 * y, 4)}, v1, {WS}, s60 offen sc1"
                             for x in range(u, 14) for y in range(4) if (x, y) not in eload and x not in checked]
                    self.datacheck([ubuf[u] + 4 * y for y in range(4)], 247, again)
                    checked.add(u)
                k.wait(vm=("B", u, j))
                self.mfma(vr(EA[lt], 16), ar(8 * (7 * j + g) + 4 * c, 4), vr(ubuf[u] + 4 * j, 4), "0" if (lt not in seen and lt < 3) else None)
                seen.add(lt)
                if i > ND and (i - ND) % opt("tsd", 28) == 0:
                    self.stamp(f"Ee{i - ND}", True)
                b = min(b, 4) + EBUD
                if i == B1 and B1 < B2:
                    k.wait(lg="all")
                    k("s_barrier")
                    queue += [x for p in zip(xread(0), xread(2)) for x in p] + xadd(2)
                for t in xch.get(i, []):
                    k(t)
                    b -= 8
                if i == B2:
                    k.wait(lg="all")
                    k("s_barrier")
                    if B1 >= B2:
                        queue += [x for p in zip(xread(0), xread(2)) for x in p] + xread(1) + xadd(2)
                    else:
                        queue = xread(1) + queue
                    queue += xadd(1)
            b -= events(i)
            if mem and (hold or i & 1):
                t, tg = mem.pop(0)
                k(t, tag=tg)
                b -= cost(t)
                if mem and mem[0][1] is None:
                    k(mem.pop(0)[0])
                    b -= 4
            if hold:
                hold -= 1
                continue
            while queue and b >= cost(queue[0][0]):
                t, tg = queue.pop(0)
                b -= cost(t)
                if callable(t):
                    t()
                else:
                    k(t, tag=tg)
                    if "buffer_store" in t:
                        stored[tg[1]] = i
                if i < 64:
                    break
        self.log += [("stored", stored), ("sent", sent), ("asked", asked), ("left", len(queue), self.blog)]
        for t, tg in queue:
            if callable(t):
                t()
            else:
                k(t, tag=tg)
        self.stamp("E1", True)
        o = EA[3]
        for s in range(2):
            for i in range(4 * s, 4 * s + 4):
                k(f"v_pk_add_f32 {vr(o + 2 * i, 2)}, {vr(o + 2 * i, 2)}, {vr(EA[0] + 2 * i, 2)}")
            for i in range(4 * s, 4 * s + 4):
                k(f"v_cvt_pk_bf16_f32 v{H + i}, v{o + 2 * i}, v{o + 2 * i + 1}")
            k(f"buffer_store_dwordx4 {vr(H + 4 * s, 4)}, v254, {OUT}, 0 offen offset:{16 * s} {self.pol('ont')}")
        self.stamp("E2")
        k("s_branch L_fin")
        k.label("L_tail")
        for t, tg in rest:
            k(t)
        k.wait(vm="all")
        for _ in range(nflag):
            k(flagstore())
        k(f"""s_cmp_lg_u32 s2, 255
        s_cbranch_scc1 L_fin
        s_lshl_b32 s55, {sW}, 6
        v_add_u32 v2, s55, v0
        v_lshlrev_b32 v2, 7, v2""")
        self.poll("v2", "v3", WS_FP)
        k("s_mov_b32 s50, 0")
        self.publish(WS_E, "s50", 8, 12)
        k.label("L_fin")
        if self.ts:
            assert not self.pend
            for i in range(6):
                k(f"v_writelane_b32 v255, s{90 + i}, {56 + i}")
            k(f"""s_memrealtime s[96:97]
            s_memtime s[98:99]
            s_waitcnt lgkmcnt(0)
            v_writelane_b32 v255, s96, 62
            v_writelane_b32 v255, s98, 63
            s_lshl_b32 s55, s2, 2
            s_add_u32 s55, s55, {sW}
            s_lshl_b32 s55, s55, 8
            s_add_u32 s55, s55, {WS_TS}
            v_lshlrev_b32 v2, 2, v0
            buffer_store_dword v255, v2, {WS}, s55 offen""")
            if self.ts == 2:
                k(f"""s_load_dwordx2 s[20:21], s[0:1], 64
                s_mov_b32 s22, 256
                v_readlane_b32 s56, v255, 0
                v_readlane_b32 s57, v255, 1
                s_sub_u32 s56, s96, s56
                v_subrev_u32 v255, s57, v255
                v_writelane_b32 v255, s56, 0
                s_lshl_b32 s55, s2, 2
                s_add_u32 s55, s55, {sW}
                s_lshl_b32 s55, s55, 8
                s_waitcnt lgkmcnt(0)
                buffer_store_dword v255, v2, {PA}, s55 offen""")
        if "spa" in self.opt:
            k(f"""s_cmp_lg_u32 s2, {self.opt.get("spw", 0)}
            s_cbranch_scc1 L_nospin
            s_memrealtime s[90:91]
            s_waitcnt lgkmcnt(0)
            s_sub_u32 s94, s94, s92
            s_min_u32 s94, s94, 20000
            s_mul_i32 s94, s94, 4""")
            k.label("L_spin")
            k("""s_memrealtime s[88:89]
            s_waitcnt lgkmcnt(0)
            s_sub_u32 s88, s88, s90
            s_cmp_lt_u32 s88, s94
            s_cbranch_scc1 L_spin""")
            k.label("L_nospin")
        k("s_waitcnt vmcnt(0)")
        k.label("L_end")
        k("s_endpgm")

    def build(self):
        self.prologue()
        self.phase_a()
        self.phase_b()
        self.phase_c()
        self.phase_de()
        self.late_code()
        self.k.lines = [l.replace("CODE_LAST", "0x8000") for l in self.k.lines]
        n = self.k.pad()
        self.misal = align8(self.k.lines)
        last = (sum(sizes(self.k.lines)) - 128) & ~3
        assert last >= 0x8000
        self.k.lines = [l.replace("v_min_u32 v127, 0x8000", f"v_min_u32 v127, {last}") for l in self.k.lines]
        ref = open(f"cdna_kernels/{NAME}.s.ref").read().split("\n")
        head = [l for l in ref if l.startswith(";") and "@launch" not in l]
        out = head + ["; @launch grid=(256,1,1) block=(256,1,1) lds=163840",
                      '.amdgcn_target "amdgcn-amd-amdhsa--gfx950"', ".text", f".globl {NAME}_kernel", ".p2align 8",
                      f".type {NAME}_kernel,@function", f"{NAME}_kernel:"]
        out += [l if l.endswith(":") else "    " + l for l in self.k.lines]
        out += ['.section .rodata,"a"', ".p2align 6", f".amdhsa_kernel {NAME}_kernel",
                "  .amdhsa_next_free_vgpr 512", "  .amdhsa_next_free_sgpr 102", "  .amdhsa_accum_offset 256",
                "  .amdhsa_group_segment_fixed_size 0", "  .amdhsa_kernarg_size 80", "  .amdhsa_user_sgpr_count 2",
                "  .amdhsa_user_sgpr_kernarg_segment_ptr 1", "  .amdhsa_system_sgpr_workgroup_id_x 1", ".end_amdhsa_kernel", ""]
        self.nbytes = sum(sizes(self.k.lines))
        self.nnop = n
        return "\n".join(out)


if __name__ == "__main__":
    args = dict(a.split("=") for a in sys.argv[2:])
    args = {a: int(b) if b.lstrip('-').isdigit() else b for a, b in args.items()}
    g = Gen(**args)
    text = g.build()
    open(sys.argv[1], "w").write(text)
    if g.ts:
        open(sys.argv[1] + ".ts", "w").write(" ".join([str(g.ts)] + g.tsn))
    print(f"{sys.argv[1]}: {g.nbytes} bytes of code, {g.nnop} pads, {g.misal} misaligned")
    if args.get("log"):
        print(g.log)
```

```python
import math
import struct
import sys

from asmlib import K, sizes, align8

NAME = "sequential_preLN__softmax_full_mha__glu_gated_glu__prompt"

WS_QKV, WS_O, WS_H, WS_ACT = 0, 0x600000, 0x800000, 0xA00000
WS_WGU, WS_WD, WS_WO, WS_CS = 0x1100000, 0x1500000, 0x1700000, 0x1780000
WS_FX, WS_FB, WS_FC, WS_FD, WS_E, WS_FP = 0x1800000, 0x1808000, 0x1810000, 0x1818000, 0x1820000, 0x1828000
WS_ST = 0x1880000
OOB = 0x40000000
WS_TS = 0x1900000
WS_FQ = 0x1A00000
WS_FA = 0x1A80000
WS_SIZE = 0x1B00000

X, WQ, WS, OUT, PA, PB = "s[4:7]", "s[8:11]", "s[12:15]", "s[16:19]", "s[20:23]", "s[24:27]"
sW, sA, sB, sTAG, sCNT, sONE, sFB = "s36", "s37", "s38", "s39", "s40", "s41", "s42"
sU, sPD, sPCS, sP0, sP1, sPST = "s43", "s44", "s45", "s46", "s47", "s48"
sXL = "s49"
sTB, sCB = "s88", "s89"
sO, sH, sST, sAC = "s3", "s34", "s100", "s101"
sA2, sB2, sPS, sPF = "s28", "s29", "s30", "s31"
vFLAG, vTAG = "v211", 212
LR = 114688
ONES = 0x3F803F80
U_D, U_O, U_END = 392, 588, 644
LQ, LX, LP = 57344, 147456, 151552
QA, ACC, RING, CS, CX, CA, VB, RS, ON, T0, RA, RB, C1 = 8, 40, 72, 104, 116, 124, 130, 132, 134, 136, 138, 140, 142
PK, SQ, SM, WKA, XA, VX, VWK, VP = 144, 160, 168, 176, 184, 188, 26, 28
WQA, CSW, CSR, QW, VWQ, VE, JUNK = 192, 196, 197, 198, 202, 203, 204


def f32(x):
    return hex(struct.unpack("<I", struct.pack("<f", x))[0])


def vr(b, n):
    return f"v[{b}:{b + n - 1}]"


def ar(b, n):
    return f"a[{b}:{b + n - 1}]"


class Gen:
    def __init__(self, ts=False, force_fb=False, **opt):
        self.k = K()
        self.ts = ts
        self.nts = 0
        self.tsn = []
        self.pend = []
        self.late = []
        self.force_fb = force_fb
        self.opt = opt

    def stamp(self, name, nw=False):
        if self.opt.get("spa") == name:
            self.k("s_memrealtime s[92:93]")
        if self.opt.get("spb") == name:
            self.k("s_memrealtime s[94:95]")
        if self.ts == 2 and name not in ("A0", "A3", "A7", "A9", "B0", "B1", "B3", "C0", "C3", "D0", "D4", "E0", "E2"):
            return
        if "tso" in self.opt and not name.startswith(tuple(self.opt["tso"])):
            return
        if self.ts == 4 and not name.startswith(tuple(self.opt.get("tsp", "d"))):
            return
        if self.ts:
            ops = {3: ["s_memrealtime"], 4: ["s_memrealtime", "s_memtime"]}.get(self.ts, ["s_memtime"])
            if not nw and self.pend:
                self.k("s_waitcnt lgkmcnt(0)")
            for r, l in self.pend:
                self.k(f"v_writelane_b32 v255, s{r}, {l}")
            self.pend = []
            for j, op in enumerate(ops):
                self.k(f"{op} s[{98 - 2 * j}:{99 - 2 * j}]")
                self.pend.append((98 - 2 * j, self.nts + 2))
                self.nts += 1
                self.tsn.append(name)
            assert self.nts <= 54
            if not nw:
                self.k("s_waitcnt lgkmcnt(0)")
                for r, l in self.pend:
                    self.k(f"v_writelane_b32 v255, s{r}, {l}")
                self.pend = []
                self.k.lg.clear()

    def mfma(self, d, a, b, c=None):
        c = d if c is None else c
        self.k(f"v_mfma_f32_32x32x16_bf16 {d}, {a}, {b}, {c}")

    def poll(self, vaddr, vtmp, base, cnt=None):
        k = self.k
        L, Dn = k.newlabel("poll"), k.newlabel("seen")
        if not isinstance(base, str):
            k(f"s_mov_b32 s60, {base}")
            base = "s60"
        k.label(L)
        if self.ts and cnt:
            k(f"s_add_u32 {cnt}, {cnt}, 1")
        k(f"buffer_load_dword {vtmp}, {vaddr}, {WS}, {base} offen sc1")
        k.wait(vm="all")
        k(f"""v_cmp_ne_u32 vcc, {sTAG}, {vtmp}
        s_cbranch_vccz {Dn}
        s_sub_u32 {sCNT}, {sCNT}, 1
        s_cselect_b32 {sCNT}, 0, {sCNT}
        s_cbranch_scc0 {L}""")
        k.label(Dn)

    def publish(self, base, sidx, vt, vo):
        k = self.k
        for i in range(4):
            k(f"v_mov_b32 v{vt + i}, {sTAG}")
        k(f"""s_lshl_b32 s60, {sidx}, 7
        s_add_u32 s60, s60, {base}
        s_cmp_eq_u32 {sW}, 0
        s_cselect_b32 s60, s60, {OOB}
        v_lshrrev_b32 v{vo}, 3, v0
        v_lshl_add_u32 v{vo}, v{vo}, 26, v1""")
        k.wait(vm="all")
        k(f"s_barrier\nbuffer_store_dwordx4 {vr(vt, 4)}, v{vo}, {WS}, s60 offen sc1")

    def stats(self, vs, vq, t0, vb, vrs):
        return f"""v_mov_b32 v{vq}, v{vs}
        v_permlane32_swap_b32 v{vs}, v{vq}
        v_mul_f32 v{vs}, {f32(-1.0 / 448)}, v{vs}
        v_mul_f32 v{vq}, {f32(1.0 / 448)}, v{vq}
        v_cvt_pk_bf16_f32 v{t0}, v{vs}, v{vs}
        v_fma_f32 v{vq}, -v{vs}, v{vs}, v{vq}
        v_and_b32 v{t0}, 0xffff0000, v{t0}
        v_max_f32 v{vq}, 0, v{vq}
        v_sub_f32 v{t0}, v{vs}, v{t0}
        v_add_f32 v{vrs}, {f32(1e-5)}, v{vq}
        v_cvt_pk_bf16_f32 v{vb}, v{vs}, v{t0}
        v_cvt_pk_bf16_f32 v{vb + 1}, v{vs}, v{t0}""".split("\n")

    def split2(self, vc, vd):
        return f"""v_cvt_pk_bf16_f32 v{vd}, v{vc}, v{vc}
        v_and_b32 v{vd + 1}, 0xffff0000, v{vd}
        v_sub_f32 v{vd + 1}, v{vc}, v{vd + 1}
        v_cvt_pk_bf16_f32 v{vd + 1}, v{vd + 1}, v{vd + 1}""".split("\n")

    def prologue(self):
        k = self.k
        k(f"""s_cmp_ge_u32 s2, 0x100
        s_cbranch_scc1 L_end
        s_load_dwordx16 s[64:79], s[0:1], 0
        s_load_dwordx2 s[12:13], s[0:1], 72""")
        if self.ts:
            k("s_memrealtime s[96:97]\ns_memtime s[98:99]")
        if "spa" in self.opt:
            k("s_memrealtime s[92:93]\ns_memrealtime s[94:95]")
        if self.opt.get("touch", 1):
            k.note("pull the whole code object into this die's L2 ahead of instruction fetch")
            if self.opt.get("touch", 1) == 2:
                k(f"""s_getpc_b64 s[86:87]
                v_lshlrev_b32 v127, 7, v0
                global_load_dword v{JUNK}, v127, s[86:87]
                v_add_u32 v127, 0x8000, v127
                v_min_u32 v127, CODE_LAST, v127
                global_load_dword v{JUNK}, v127, s[86:87]""")
            else:
                k(f"""s_getpc_b64 s[86:87]
                v_lshrrev_b32 v127, 4, v0
                s_lshr_b32 s50, s2, 3
                v_lshlrev_b32 v127, 5, v127
                v_add_u32 v127, s50, v127
                v_lshlrev_b32 v127, 7, v127
                v_min_u32 v127, CODE_LAST, v127
                global_load_dword v{JUNK}, v127, s[86:87]""")
        k(f"""v_lshrrev_b32 v2, 6, v0
        v_and_b32 v0, 63, v0
        s_and_b32 {sA}, s2, 7
        v_readfirstlane_b32 {sW}, v2
        s_lshl_b32 {sA}, {sA}, 1
        s_bfe_u32 s50, s2, 0x10003
        s_add_u32 {sA}, {sA}, s50
        s_lshr_b32 {sB}, s2, 4
        s_bfe_u32 {sA2}, s2, 0x20001
        s_lshl_b32 {sA2}, {sA2}, 2
        s_bfe_u32 s50, s2, 0x20003
        s_add_u32 {sA2}, {sA2}, s50
        s_and_b32 {sB2}, s2, 1
        s_lshl_b32 {sB2}, {sB2}, 3
        s_lshr_b32 s50, s2, 5
        s_add_u32 {sB2}, {sB2}, s50
        v_lshlrev_b32 v1, 4, v0
        s_mov_b32 {sCNT}, 0x40000
        s_mov_b32 {sONE}, {ONES}
        s_mov_b32 {sFB}, 0
        v_mov_b32 v254, 0""")
        mp = self.opt.get("map", 2)
        if mp == 0:
            k(f"s_mov_b32 {sTB}, {sA}\ns_mov_b32 {sCB}, {sB}")
        else:
            k(f"s_mov_b32 {sTB}, {sA2}\ns_and_b32 {sCB}, s2, 1\ns_lshl_b32 s50, s50, 1\ns_add_u32 {sCB}, {sCB}, s50")
        if mp == 2:
            k(f"s_mov_b32 {sA}, {sB2}\ns_mov_b32 {sB}, {sA2}")
        k(f"""s_mul_i32 s50, {sB2}, 112
        s_mul_i32 s52, {sW}, {16 * 2688}
        s_add_u32 s50, s50, s52
        s_add_u32 s50, s50, 896
        v_lshrrev_b32 v14, 3, v0
        v_and_b32 v15, 7, v0
        v_bfe_u32 v16, v0, 4, 1
        v_lshlrev_b32 v16, 2, v16
        v_xor_b32 v16, v15, v16
        v_min_u32 v16, 6, v16
        v_mul_u32_u24 v17, 2688, v14
        v_lshlrev_b32 v16, 4, v16
        v_add3_u32 v{VWK}, v17, v16, s50
        v_add_u32 v{VWK + 1}, {8 * 2688}, v{VWK}""")
        k(f"""v_lshrrev_b32 v16, 4, v0
        v_xor_b32 v16, v15, v16
        v_mul_u32_u24 v17, 896, v14
        s_lshl_b32 s52, {sA2}, 2
        s_add_u32 s52, s52, {sW}
        s_mul_i32 s52, s52, {32 * 896}
        v_lshlrev_b32 v18, 4, v16
        v_add3_u32 v{VX}, v17, v18, s52
        v_xor_b32 v{VX + 1}, 64, v{VX}
        v_add_u32 v{VX + 1}, {8 * 896}, v{VX + 1}
        v_add_u32 v{VX + 2}, {16 * 896}, v{VX}
        v_add_u32 v{VX + 3}, {16 * 896}, v{VX + 1}""")
        k(f"""s_lshl_b32 {sXL}, {sW}, 14
        s_add_u32 {sXL}, {sXL}, 86016""")
        k(f"""s_lshr_b32 s53, s2, 3
        s_mul_i32 s54, s53, 37
        s_lshr_b32 s54, s54, 8
        s_mul_i32 s54, s54, 7
        s_sub_u32 s53, s53, {'s54' if self.opt.get('rot', 1) else 's53'}
        s_lshl_b32 s51, {sW}, 11
        s_mul_i32 s33, s53, {64 * 2688}
        s_lshl_b32 s60, s53, 7
        s_mov_b32 s6, {2048 * 896}
        s_mov_b32 s7, 0x20000
        s_mov_b32 s10, {448 * 2688}
        s_mov_b32 s11, 0x20000
        s_mov_b32 s14, {WS_SIZE}
        s_mov_b32 s15, 0x20000
        s_mov_b32 s18, {2048 * 896}
        s_mov_b32 s19, 0x20000
        s_mov_b32 s23, 0x20000
        s_mov_b32 s27, 0x20000
        s_mov_b32 s58, {WS_E}
        v_mov_b32 v16, 0
        s_waitcnt lgkmcnt(0)
        s_mov_b32 s4, s64
        s_mov_b32 s5, s65
        s_mov_b32 s8, s66
        s_mov_b32 s9, s67""")
        if self.ts:
            k("v_writelane_b32 v255, s96, 0\nv_writelane_b32 v255, s98, 1")
            for i in range(6):
                k(f"s_mov_b32 s{90 + i}, 0")

    NEXT = f"s_add_u32 s53, s53, 1\ns_cmp_eq_u32 s53, 7\ns_cselect_b32 s53, 0, s53\ns_mul_i32 s33, s53, {64 * 2688}\ns_lshl_b32 s60, s53, 7"

    def a_dma(self, c):
        g = [(f"s_add_u32 m0, s51, {c * 8192 + t * 1024}", f"buffer_load_dwordx4 v{VWK + t}, {WQ}, s33 offen {self.pol('wnt')}lds", ("W", c)) for t in range(2)]
        g += [(f"s_add_u32 m0, {sXL}, {(c % 3) * 4096 + t * 1024}",
               f"buffer_load_dwordx4 v{VX + t}, {X}, s60 offen {self.pol('xnt')}lds" + ("\n" + self.NEXT if t == 3 else ""), ("X", c)) for t in range(4)]
        return g

    def q_dma(self, c):
        return (f"s_add_u32 m0, s52, {c * 4096}", f"buffer_load_dwordx4 v{VWQ}, {WQ}, s33 offen lds\n" + self.NEXT.rsplit("\n", 1)[0], ("Q", c))

    def pol(self, o):
        return ["", "nt ", "sc1 nt ", "sc0 sc1 nt ", "sc0 sc1 ", "sc1 "][self.opt.get(o, {"pnt": 1, "ont": 4}.get(o, 0))]

    def p_dma(self):
        return [(f"s_add_u32 m0, s{56 + h}, {t * 1024}", f"buffer_load_dwordx4 v{VP}, {srd}, {sb} offen {self.pol('pnt')}lds\ns_add_u32 {sb}, {sb}, {sPST}", "P")
                for h, (srd, sb) in enumerate(((PA, sP0), (PB, sP1))) for t in range(4)]

    def dma(self, g):
        for a, b, tg in g:
            self.k(a)
            self.k(b, tag=tg)

    def unit_setup(self):
        k = self.k
        k(f"""s_mov_b32 s16, s78
        s_mov_b32 s17, s79
        s_lshl_b32 {sU}, {sW}, 8
        s_add_u32 {sU}, {sU}, s2
        s_cmp_ge_u32 {sU}, {U_D}
        s_cbranch_scc1 L_u1
        s_mov_b32 s20, s72
        s_mov_b32 s21, s73
        s_mov_b32 s24, s74
        s_mov_b32 s25, s75
        s_mov_b32 s22, {448 * 3584}
        s_mul_i32 s58, {sU}, 4682
        s_lshr_b32 s58, s58, 16
        s_mul_i32 s59, s58, 14
        s_sub_u32 s59, {sU}, s59
        s_mul_i32 {sP0}, s59, {32 * 3584}
        s_lshl_b32 s61, s58, 7
        s_add_u32 {sP0}, {sP0}, s61
        s_mov_b32 {sP1}, {sP0}
        s_mov_b32 {sPST}, 3584
        s_mul_i32 {sPD}, s58, {4 * 28 * 1024}
        s_lshl_b32 s61, s59, 11
        s_add_u32 {sPD}, {sPD}, s61
        s_add_u32 {sPD}, {sPD}, {WS_WGU}
        s_mov_b32 {sPS}, 28672
        s_lshl_b32 {sPCS}, {sU}, 9
        s_add_u32 {sPCS}, {sPCS}, {WS_CS}
        s_branch L_u3""")
        k.label("L_u1")
        k(f"""s_mov_b32 {sPST}, 896
        s_mov_b32 {sPS}, 2048
        s_mov_b32 {sPCS}, {OOB}
        s_cmp_ge_u32 {sU}, {U_O}
        s_cbranch_scc1 L_u2
        s_mov_b32 s20, s76
        s_mov_b32 s21, s77
        s_mov_b32 s24, s76
        s_mov_b32 s25, s77
        s_mov_b32 s22, {1792 * 896}
        s_sub_u32 s61, {sU}, {U_D}
        s_mul_i32 s58, s61, 2341
        s_lshr_b32 s58, s58, 16
        s_mul_i32 s59, s58, 28
        s_sub_u32 s59, s61, s59
        s_mul_i32 {sP0}, s59, {64 * 896}
        s_lshl_b32 s58, s58, 7
        s_add_u32 {sP0}, {sP0}, s58
        s_add_u32 {sP1}, {sP0}, {32 * 896}
        s_lshl_b32 {sPD}, s61, 13
        s_add_u32 {sPD}, {sPD}, {WS_WD}
        s_branch L_u3""")
        k.label("L_u2")
        k(f"""s_mov_b32 s20, s68
        s_mov_b32 s21, s69
        s_mov_b32 s24, s68
        s_mov_b32 s25, s69
        s_cmp_lt_u32 {sU}, {U_END}
        s_cselect_b32 s22, {448 * 896}, 0
        s_sub_u32 s61, {sU}, {U_O}
        s_lshr_b32 s58, s61, 3
        s_and_b32 s59, s61, 7
        s_mul_i32 {sP0}, s59, {56 * 896}
        s_lshl_b32 s58, s58, 7
        s_add_u32 {sP0}, {sP0}, s58
        s_add_u32 {sP1}, {sP0}, {28 * 896}
        s_lshl_b32 {sPD}, s61, 13
        s_add_u32 {sPD}, {sPD}, {WS_WO}
        s_cmp_lt_u32 {sU}, {U_END}
        s_cselect_b32 {sPD}, {sPD}, {OOB}""")
        k.label("L_u3")
        k(f"""s_mov_b32 s26, s22
        s_lshl_b32 {sPF}, {sU}, 7
        s_add_u32 {sPF}, {sPF}, {WS_FP}
        s_cmp_lt_u32 {sU}, {U_END}
        s_cselect_b32 {sPF}, {sPF}, {OOB}
        v_lshrrev_b32 v16, 3, v0
        v_and_b32 v17, 7, v0
        v_mul_lo_u32 v16, v16, {sPST}
        v_lshl_add_u32 v{VP}, v17, 4, v16
        s_lshl_b32 {sPST}, {sPST}, 3""")

    def out_addrs(self):
        k = self.k
        k(f"""s_lshl_b32 s58, {sB}, 2
        s_add_u32 s58, s58, {sW}
        s_lshl_b32 s58, s58, 4
        s_add_u32 s58, s58, {sA}
        s_lshl_b32 s58, s58, 11
        s_add_u32 {sO}, s58, {WS_O}
        s_and_b32 s58, {sCB}, 1
        s_lshl_b32 s58, s58, 1
        s_lshl_b32 s59, {sTB}, 2
        s_add_u32 s58, s58, s59
        s_and_b32 s59, {sW}, 1
        s_add_u32 s62, s58, s59
        s_lshr_b32 s59, {sW}, 1
        s_and_b32 s63, {sCB}, 14
        s_add_u32 s63, s63, s59
        s_mul_i32 s58, s62, 14
        s_add_u32 s58, s58, s63
        s_lshl_b32 {sST}, s58, 8
        s_lshl_b32 {sH}, s58, 11
        s_add_u32 {sH}, {sH}, {WS_H}
        s_add_u32 {sST}, {sST}, {WS_ST}
        s_cmp_ge_u32 {sCB}, 14
        s_cselect_b32 {sH}, {OOB}, {sH}
        s_cselect_b32 {sST}, {OOB}, {sST}
        s_lshl_b32 s58, {sA2}, 2
        s_add_u32 s58, s58, {sW}
        s_mul_i32 {sAC}, s58, {112 * 1024}
        s_mul_i32 s59, {sB2}, 7168
        s_add_u32 {sAC}, {sAC}, s59
        s_add_u32 {sAC}, {sAC}, {WS_ACT}""")

    def clears(self):
        g = [f"buffer_store_dwordx4 a[220:223], v1, {WS}, {b} offen offset:{1024 * s} sc1" for b in ("s64", "s65") for s in range(2)]
        g.append(f"buffer_store_dword a220, v210, {WS}, s66 offen sc1")
        return g

    def flagcheck(self, tag, vaddr, vtmp, base):
        k = self.k
        L1, L2 = k.newlabel("fw"), k.newlabel("fok")
        k.wait(vm=tag)
        k(f"v_cmp_ne_u32 vcc, {sTAG}, {vtmp}\ns_cbranch_vccnz {L1}")
        k.label(L2)
        self.late.append(("poll", L1, L2, vaddr, vtmp, base))

    def datacheck(self, regs, vt, loads):
        k = self.k
        L1, L2 = k.newlabel("rs"), k.newlabel("rok")
        k("\n".join(self.maxchain(regs, vt)))
        k(f"v_cmp_eq_u32 vcc, -1, v{vt}\ns_cbranch_vccnz {L1}")
        k.label(L2)
        self.late.append(("respin", L1, L2, loads, regs, vt))

    def wo(self, i):
        return ar(224 + 4 * i, 4) if i < 8 else vr(216 + 4 * (i - 8), 4)

    @staticmethod
    def maxchain(regs, vt):
        g = []
        regs = list(regs)
        acc = regs.pop(0)
        while regs:
            if len(regs) >= 2:
                g.append(f"v_max3_u32 v{vt}, v{acc}, v{regs.pop(0)}, v{regs.pop(0)}")
            else:
                g.append(f"v_max_u32 v{vt}, v{acc}, v{regs.pop(0)}")
            acc = vt
        return g

    def a_setup(self):
        k = self.k
        k(f"""v_bfe_u32 v16, v0, 2, 2
        v_lshrrev_b32 v17, 5, v0
        v_lshl_add_u32 v18, v17, 3, v16
        v_bfe_u32 v19, v0, 4, 1
        v_lshlrev_b32 v19, 5, v19
        v_and_b32 v20, 3, v0
        v_lshl_add_u32 v19, v20, 3, v19
        v_bfe_u32 v21, v0, 3, 1
        v_lshlrev_b32 v21, 6, v21
        v_xor_b32 v22, v19, v21
        v_add_u32 v23, 56, v19
        v_xor_b32 v23, v23, v21
        v_lshl_add_u32 v22, v18, 7, v22
        v_lshl_add_u32 v23, v18, 7, v23
        v_lshl_add_u32 v24, v18, 6, v19
        s_and_b32 s58, {sB2}, 1
        s_lshl_b32 s58, s58, 3
        s_add_u32 s58, s58, {LQ}
        v_add_u32 v24, s58, v24
        v_and_b32 v25, 31, v0
        v_bfe_u32 v15, v0, 1, 3
        v_xor_b32 v15, v15, v17
        v_lshlrev_b32 v15, 4, v15
        v_lshl_add_u32 v15, v25, 7, v15
        v_add_u32 v15, {sXL}, v15""")
        for p in range(4):
            k(f"""s_add_u32 s58, {sW}, {p}
            s_and_b32 s58, s58, 3
            s_lshl_b32 s59, s58, 11
            v_add_u32 v{WKA + p}, s59, v22
            v_add_u32 v{WKA + 4 + p}, s59, v23
            s_lshl_b32 s59, s58, 10
            v_add_u32 v{WQA + p}, s59, v24
            s_lshl_b32 s58, s58, 5
            v_xor_b32 v{XA + p}, s58, v15""")
        k(f"""v_mov_b32 v{ON}, {sONE}
        v_mov_b32 v{ON + 1}, {sONE}
        v_mov_b32 v{RA + 1}, 0
        v_mov_b32 v{RB + 1}, 0
        v_cmp_gt_u32 vcc, 28, v0
        v_cndmask_b32 v{RB}, 0, v{ON}, vcc
        v_cmp_eq_u32 vcc, 28, v25
        v_cndmask_b32 v{C1}, 0, 1.0, vcc
        v_add_u32 v{CSR}, {LX}, v1
        s_lshl_b32 s58, {sW}, 2
        v_add_u32 v{CSW}, s58, v{CSR}
        s_lshl_b32 s58, {sW}, 11
        s_add_u32 s58, s58, 122880
        v_add_u32 v{QW}, s58, v1""")
        for u in range(3):
            k(f"v_xor_b32 v{QW + 1 + u}, {(3 - u) * 2048}, v{QW}")
        k(f"""v_lshrrev_b32 v16, 2, v0
        v_mul_u32_u24 v16, 2688, v16
        v_lshl_add_u32 v16, v20, 4, v16
        s_mul_i32 s58, {sB2}, 56
        s_andn2_b32 s58, s58, 15
        s_mul_i32 s59, {sW}, {16 * 2688}
        s_add_u32 s58, s58, s59
        v_add_u32 v{VWQ}, s58, v16
        s_lshl_b32 s52, {sW}, 10
        s_add_u32 s52, s52, {LQ}
        s_lshl_b32 s58, {sA2}, 2
        s_add_u32 s58, s58, {sW}
        s_lshl_b32 s50, s58, 11
        s_lshl_b32 s59, {sB2}, 18
        s_add_u32 s50, s50, s59
        s_add_u32 s50, s50, {16 << 17}
        s_lshl_b32 s61, s58, 4
        s_add_u32 s61, s61, {sB2}
        s_lshl_b32 s61, s61, 7
        s_add_u32 s61, s61, {WS_FA}
        v_lshrrev_b32 {vFLAG}, 3, v0
        v_lshl_add_u32 {vFLAG}, {vFLAG}, 26, v1""")

    def p_bases(self):
        self.k(f"""s_add_u32 s56, {sXL}, 12288
        s_cmp_eq_u32 {sW}, 0
        s_cselect_b32 s56, {118784 if self.opt.get("pat", 9) == 9 else "s56"}, s56
        s_lshl_b32 s57, {sW}, 12
        s_add_u32 s57, s57, {LP}
        s_cmp_eq_u32 {sW}, 3
        s_cselect_b32 s56, {LX - 8192 if self.opt.get("pat", 9) >= 7 else LX}, s56
        s_cselect_b32 s57, s56, s57""")

    def p_setup(self):
        k = self.k
        F = 216
        k(f"""v_bfe_u32 v20, v0, 2, 2
        v_lshrrev_b32 v21, 5, v0
        v_bfe_u32 v22, v0, 4, 1
        v_and_b32 v23, 3, v0
        s_cmp_ge_u32 {sU}, {U_D}
        s_cbranch_scc1 L_p1""")
        k(f"""v_lshl_add_u32 v20, v21, 4, v20
        v_lshlrev_b32 v20, 7, v20
        v_lshl_add_u32 v20, v23, 3, v20
        s_sub_u32 s58, s57, s56
        v_mul_u32_u24 v22, s58, v22
        v_add3_u32 v20, v20, v22, s56""")
        for q in range(4):
            for e in range(2):
                for h in range(2):
                    k(f"v_add_u32 v{F + 8 * q + 4 * e + 2 * h}, {32 * q + (8 * e + 4 * h) * 128}, v20")
        k("s_branch L_p2")
        k.label("L_p1")
        k(f"""v_lshl_add_u32 v20, v21, 2, v20
        v_lshlrev_b32 v20, 7, v20
        v_lshl_add_u32 v20, v22, 4, v20
        v_and_b32 v21, 1, v23
        v_lshl_add_u32 v20, v21, 5, v20
        v_lshrrev_b32 v21, 1, v23
        v_lshl_add_u32 v20, v21, 3, v20
        v_add_u32 v21, s57, v20
        v_add_u32 v20, s56, v20""")
        for e in range(4):
            for ct in range(2):
                for h in range(2):
                    k(f"v_add_u32 v{F + 8 * e + 4 * ct + 2 * h}, {64 * ct + (16 * (e & 1) + 8 * h) * 128}, v{20 + (e >> 1)}")
        k.label("L_p2")

    def small(self, d, a, b, first):
        self.k(f"v_mfma_f32_4x4x4bf16_1k {vr(d, 4)}, {a}, {b}, {'0' if first else vr(d, 4)}")

    def pass1(self, isv):
        k = self.k
        opt = self.opt.get
        NQ0, DEP, PAT = opt("nq0", 7), opt("adep", 2), opt("pat", 9)
        A6 = opt("a6", 6)

        def xr(c, p):
            return [(f"ds_read_b128 {ar(16 * c + 4 * p, 4)}, v{XA + p} offset:{(c % 3) * 4096}", ("x", c, p))]

        def wr(c, p):
            return [(f"ds_read_b64_tr_b16 {vr(RING + 8 * p + 4 * m + 2 * q, 2)}, v{WKA + 4 * m + p} offset:{c * 8192 + q * 512}", ("w", c, p))
                    for m in range(2) for q in range(2)]

        def emit(g, n=99):
            for _ in range(min(n, len(g))):
                k(*g.pop(0))

        def big(c, p, m):
            w, x = vr(RING + 8 * p + 4 * m, 4), ar(16 * c + 4 * p, 4)
            self.mfma(vr(ACC + 16 * m, 16), *((x, w) if isv else (w, x)), "0" if c + p == 0 else None)

        def xsm(c, p):
            for h in range(2):
                x = ar(16 * c + 4 * p + 2 * h, 2)
                if opt("xsk", 0) < 2 or c + p == 0:
                    self.small(SQ + 4 * h, x, x, c + p == 0)
                if opt("xsk", 0) < 1 or c + p == 0:
                    self.small(SM + 4 * h, vr(ON, 2), x, c + p == 0)

        def csm(c):
            for h in range(2):
                for m in range(2):
                    self.small(CS + 4 * m, vr(ON, 2), vr(RING + 4 * m + 2 * h, 2), c + h == 0)

        def arrive(c):
            k.wait(vm=("W" if c == 6 and not A6 else "X", c))
            k("s_barrier")
            self.stamp(f"A{c}", True)
            if c == 6 and A6:
                return wr(c, 0) + xr(c, 0) + xr(c, 1) + wr(c, 1)
            return (xr(c, 0) + xr(c, 1) if c < 6 else []) + wr(c, 0) + wr(c, 1)

        emit(arrive(0))
        k(f"v_readfirstlane_b32 {sTAG}, v{VE}\ns_add_u32 {sTAG}, {sTAG}, 0x9e3779b9")
        for i in range(4):
            k(f"v_mov_b32 v{vTAG + i}, {sTAG}")
        dq = []
        for c in range(6):
            if c == PAT - 2 and c < 5:
                dq += self.p_dma()
            dq += self.a_dma(c + DEP) if c + DEP < 7 else []
            if c == 5:
                dq += [self.q_dma(i) for i in range(NQ0)] + (self.p_dma() if PAT == 7 else [])
            per = max((len(dq) + 5) // 6, opt("aper", 1) if c >= opt("apc", 0) else 1)
            for half in range(2):
                k.wait(lg=[("x", c, 2 * half + 1), ("w", c, 0)])
                xsm(c, 2 * half), xsm(c, 2 * half + 1)
                if half == 0:
                    csm(c)
                for g in range(4):
                    p, m = 2 * half + g // 2, g & 1
                    k.wait(lg=("w", c, p))
                    if g and dq:
                        k(dq[0][0])
                    big(c, p, m)
                    if g and dq:
                        if DEP == 3 and dq[0][2] == ("X", c + 3):
                            k.wait(lg=("x", c, 3))
                        k(dq[0][1], tag=dq[0][2])
                        self.dma(dq[1:per])
                        dq = dq[per:]
                    if g == 0:
                        rd = arrive(c + 1) if half else xr(c, 2) + xr(c, 3) + wr(c, 2) + wr(c, 3)
                    emit(rd, 3 if g else 4)
                assert not rd
            assert not dq
        cxs = [[f"v_add_f32 v{CX + 4 * m}, v{CX + 4 * m}, v{CX + 4 * m + i}" for i in range(1, 4)] + self.split2(CX + 4 * m, CA + 2 * m) for m in range(2)]
        if A6:
            emit(xr(6, 2) + xr(6, 3))
            k.wait(lg=("w", 6, 0))
            csm(6)
            k.wait(lg=("x", 6, 1))
            xsm(6, 0)
            for m in range(2):
                k(f"ds_write_b32 v{CSW}, v{CS + 4 * m} offset:{1024 * m}", tag="cw")
            emit(wr(6, 2))
            xsm(6, 1)
            emit(wr(6, 3))
            k.wait(lg=("x", 6, 3))
            xsm(6, 2)
            k.wait(lg="cw")
            k("s_barrier")
            for m in range(2):
                k(f"ds_read_b128 {vr(CX + 4 * m, 4)}, v{CSR} offset:{1024 * m}", tag="cx")
            xsm(6, 3)
        else:
            emit(wr(6, 2))
            k.wait(lg=("w", 6, 0))
            csm(6)
            emit(wr(6, 3))
            for m in range(2):
                k(f"ds_write_b32 v{CSW}, v{CS + 4 * m} offset:{1024 * m}", tag="cw")
            k.wait(lg="cw")
            k("s_barrier")
            for m in range(2):
                k(f"ds_read_b128 {vr(CX + 4 * m, 4)}, v{CSR} offset:{1024 * m}", tag="cx")
            k.wait(vm=("X", 6))
            for p in range(4):
                emit(xr(6, p))
            k.wait(lg="cx")
            for m in range(2):
                k("\n".join([f"v_add_f32 v{CX + 4 * m}, v{CX + 4 * m}, v{CX + 4 * m + i}" for i in range(1, 4)] + self.split2(CX + 4 * m, CA + 2 * m)))
            for p in range(4):
                k.wait(lg=("x", 6, p))
                xsm(6, p)
        tail = [f"v_add_f32 v{SQ + i}, v{SQ + i}, v{SQ + 4 + i}" for i in range(4)]
        tail += [f"v_add_f32 v{SM}, v{SM}, v{SM + 4}"]
        tail += [f"v_cndmask_b32 v{SQ}, v{SQ}, v{SQ + i}, {m}" for i, m in ((1, "s[0:1]"), (2, "s[86:87]"), (3, "vcc"))]
        tail += [f"v_permlane32_swap_b32 v{SM}, v{SQ}", f"v_add_f32 v{SM}, v{SM}, v{SQ}"]
        tail += self.stats(SM, SQ, T0, VB, RS) + [f"v_rsq_f32 v{RS}, v{RS}"]
        if isv:
            tail += [f"v_and_b32 v{T0}, 0xffff0000, v{RS}", f"v_sub_f32 v{T0 + 1}, v{RS}, v{T0}", f"v_cvt_pk_bf16_f32 v{RA}, v{T0}, v{T0 + 1}"]
        for m in range(2):
            for p in range(4):
                k.wait(lg=("w", 6, p))
                big(6, p, m)
                if A6 and 4 * m + p == 2:
                    k.wait(lg="cx")
                    mix = [x for y in zip(*cxs) for x in y]
                    tail = [x for y in zip(tail, mix) for x in y] + tail[len(mix):] + mix[len(tail):]
                if m or p:
                    k("\n".join(tail[:A6 or 4]))
                    tail = tail[A6 or 4:]
        k("\n".join(tail))
        self.stamp("A7", True)
        if isv:
            k(f"v_mfma_f32_32x32x8bf16_1k {vr(QA, 16)}, {vr(RA, 2)}, {vr(RB, 2)}, 0")
        for m in range(2):
            a, b = vr(CA + 2 * m, 2), vr(VB, 2)
            k(f"v_mfma_f32_32x32x8bf16_1k {vr(ACC + 16 * m, 16)}, {b if isv else a}, {a if isv else b}, {vr(ACC + 16 * m, 16)}")
        k(f"s_add_u32 s57, s50, {1 << 17}")
        for m in range(2):
            a, p = ACC + 16 * m, PK + 8 * m
            for s in range(2):
                for i in range(4 * s, 4 * s + 4):
                    if isv:
                        k(f"v_pk_fma_f32 {vr(a + 2 * i, 2)}, {vr(a + 2 * i, 2)}, {vr(QA + 2 * i, 2)}, {vr(C1, 2)} op_sel_hi:[1,1,0]")
                    else:
                        k(f"v_pk_mul_f32 {vr(a + 2 * i, 2)}, {vr(a + 2 * i, 2)}, {vr(RS, 2)} op_sel_hi:[1,0]")
                for i in range(4 * s, 4 * s + 4):
                    k(f"v_cvt_pk_bf16_f32 v{p + i}, v{a + 2 * i}, v{a + 2 * i + 1}")
                if s and not isv:
                    k(f"s_mov_b32 exec_lo, 0\nv_mov_b32 v{p + 6}, {sONE}\nv_mov_b32 v{p + 7}, 0x3f80\ns_mov_b32 exec_lo, -1")
                k(f"buffer_store_dwordx4 {vr(p + 4 * s, 4)}, v1, {WS}, {'s57' if m else 's50'} offen offset:{1024 * s} sc1 {self.pol('knt')}", tag="KV")
        self.stamp("A8", True)

    def p_stores(self):
        g = []
        for p in range(4):
            for e in range(2):
                g.append((f"buffer_store_dwordx4 {vr(216 + 8 * p + 4 * e, 4)}, v1, {WS}, {sPD} offen offset:{1024 * e} sc1 {self.pol('snt')}", "PS"))
            if p < 3:
                g.append((f"s_add_u32 {sPD}, {sPD}, {sPS}", None))
        g.append((f"buffer_store_dwordx2 v[248:249], v250, {WS}, {sPCS} offen sc1", "PS"))
        return g

    def phase_a(self):
        k = self.k
        opt = self.opt.get
        if opt("tlb", 0):
            k.note("first touch of every page this launch uses, one page per workgroup of a die")
            k(f"""v_and_b32 v18, 15, v0
            v_min_u32 v18, 13, v18
            v_lshlrev_b32 v18, 21, v18
            v_mov_b32 v19, s13
            v_add_co_u32 v18, vcc, s12, v18
            v_addc_co_u32 v19, vcc, 0, v19, vcc""")
            for i, p in enumerate((2, 4, 5, 6, 7, 0, 1)):
                k(f"v_writelane_b32 v18, s{64 + 2 * p}, {16 + i}\nv_writelane_b32 v19, s{65 + 2 * p}, {16 + i}")
            if opt("tlb") == 2:
                k("s_lshr_b32 s55, s2, 3\ns_lshl_b64 exec, 1, s55")
            else:
                k("s_mov_b64 exec, 0x7fffff")
            k(f"global_load_dword v{JUNK}, v[18:19], off\ns_mov_b64 exec, -1")
        k(f"buffer_load_dword v{VE}, v16, {WS}, s58 offen sc1", tag="E")
        PAT = opt("pat", 9)
        self.stamp("S0")
        self.dma(self.a_dma(0))
        self.stamp("S1")
        self.unit_setup()
        if opt("nop", 0):
            k("s_mov_b32 s22, 0\ns_mov_b32 s26, 0")
        if PAT == 0:
            self.p_bases()
            self.dma(self.p_dma())
        self.stamp("Sp")
        self.out_addrs()
        self.b_setup()
        self.a_setup()
        self.p_bases()
        self.p_setup()
        self.stamp("S2")
        for c in range(1, opt("adep", 2)):
            self.dma(self.a_dma(c))
        if PAT == 1:
            self.dma(self.p_dma())
        if opt("warm", 1):
            k.note("pull this die's share of the query weights into its L2")
            k(f"""s_lshr_b32 s58, s2, 3
            s_mul_i32 s58, s58, {14 * 2688}
            s_and_b32 s59, s2, 1
            s_mul_i32 s59, s59, 3
            s_add_u32 s59, s59, {sW}
            s_lshl_b32 s59, s59, 7
            s_add_u32 s58, s58, s59
            v_min_u32 v16, 13, v0
            v_mul_u32_u24 v16, 2688, v16
            buffer_load_dword v{JUNK}, v16, {WQ}, s58 offen""")
        for r in (sPF, "s61")[:opt("ftw", 0)]:
            k(f"buffer_store_dwordx4 a[220:223], {vFLAG}, {WS}, {r} offen sc1")
        self.stamp("S3")
        k(f"""v_and_b32 v16, 3, v0
        v_cmp_eq_u32 s[0:1], 1, v16
        v_cmp_eq_u32 s[86:87], 2, v16
        v_cmp_eq_u32 vcc, 3, v16
        s_cmp_ge_u32 {sB2}, 8
        s_cbranch_scc1 L_v""")
        state = (list(k.vm), list(k.lg), self.nts, list(self.tsn), list(self.pend))
        self.pass1(False)
        k("s_branch L_q")
        k.label("L_v")
        k.vm, k.lg, self.nts, self.tsn, self.pend = state
        self.pass1(True)
        k.label("L_q")
        NQ0, NQ1 = opt("nq0", 7), opt("nq1", 0)
        self.dma([self.q_dma(c) for c in range(NQ0, NQ0 + NQ1)])
        if PAT == 8:
            self.p_bases()
            self.dma(self.p_dma())
        F = 216
        D = [248, 249, 140, 141]
        k(f"v_mul_f32 v{RS}, {f32(math.log2(math.e) / math.sqrt(28.0))}, v{RS}")

        def p_reads():
            k.wait(vm="P")
            for j in range(16):
                k(f"ds_read_b64_tr_b16 {vr(F + 2 * j, 2)}, v{F + 2 * j}", tag=("p", j // 4))

        def p_sums():
            k("\n".join(f"v_mov_b32 v{d}, 0" for d in D))
            for q in range(4):
                k.wait(lg=("p", q))
                k("\n".join(f"v_dot2c_f32_bf16 v{D[q]}, {sONE}, v{F + 8 * q + j}" for j in range(8)))
            k(f"""v_permlane32_swap_b32 v{D[0]}, v{D[2]}
            v_permlane32_swap_b32 v{D[1]}, v{D[3]}
            v_add_f32 v{D[0]}, v{D[0]}, v{D[2]}
            v_add_f32 v{D[1]}, v{D[1]}, v{D[3]}""")

        PPL = opt("ppl", 3)
        if PPL == 0:
            p_reads(), p_sums()
        self.stamp("Ap", True)
        QCK, QF = opt("qck", 30), opt("qf", 16)

        def flag():
            k.wait(vm="KV")
            k(f"buffer_store_dwordx4 {vr(vTAG, 4)}, {vFLAG}, {WS}, s61 offen sc1 {self.pol('fnt')}")
            self.stamp("A9", True)
            if PAT == 9:
                self.p_bases()
                self.dma(self.p_dma())

        def start():
            L1, L2 = k.newlabel("fw"), k.newlabel("fok")
            assert "KV" not in k.vm
            k(self.KBASE)
            PK_ = opt("pick", 1)
            if PK_:
                k(f"s_lshr_b32 s51, {sA2}, 2" if PK_ == 2 else f"s_lshr_b32 s51, {sA2}, 2\ns_and_b32 s51, s51, 1" if PK_ == 3 else "s_mov_b32 s51, 0")
                k("s_lshl_b32 s55, s51, 15\ns_or_b32 s50, s50, s55\ns_lshl_b32 s51, s51, 3\ns_or_b32 s51, s51, 0x80000")
                self.PICK = f"v_cmp_ne_u32 vcc, {sTAG}, v209\ns_bfe_u32 s55, vcc_lo, s51\ns_cmp_eq_u32 s55, 0"
            k.wait(vm="PF")
            k(f"{self.PICK}\ns_cbranch_scc0 {L1}")
            k.label(L2)
            self.late.append(("pick", L1, L2, None, None, None))
            if not PK_:
                k("s_ff1_i32_b32 s55, s55\ns_and_b32 s55, s55, 0x18\ns_lshl_b32 s55, s55, 12\ns_or_b32 s50, s50, s55")
            self.stamp("B0", True)
            for kt in range(opt("ns", 2)):
                for t, tg in self.kvload(kt):
                    k(t, tag=tg)
        LA = opt("qla", 5)
        QPL = opt("qpl", 29)
        nrd = [0]
        extra = []

        def qrd(lim):
            if nrd[0] < lim:
                n = nrd[0]
                for q in range(2):
                    k(f"ds_read_b64_tr_b16 {vr(RING + 4 * (n % 8) + 2 * q, 2)}, v{WQA + n % 4} offset:{(n // 4) * 4096 + q * 256}", tag=("q", n))
                nrd[0] += 1

        def ask():
            k(f"s_mov_b32 s60, {WS_FA}")
            k(self.ask0(), tag="PF")

        def steps(lo, hi):
            if lo == hi:
                return
            k.wait(vm=("Q", hi - 1))
            k("s_barrier")
            for _ in range(LA):
                qrd(4 * hi)
            for n in range(4 * lo, 4 * hi):
                k.wait(lg=("q", n))
                w = RING + 4 * (n % 8)
                if n % 4 == 0:
                    self.small(CS + 8, vr(ON, 2), vr(w, 2), n == 0)
                self.mfma(vr(QA, 16), vr(w, 4), ar(4 * n, 4), "0" if n == 0 else None)
                if n % 4 == 0:
                    self.small(CS + 8, vr(ON, 2), vr(w + 2, 2), False)
                qrd(4 * hi)
                if n == 25:
                    k(f"ds_write_b32 v{CSW}, v{CS + 8} offset:2048", tag="cw")
                if n == 26:
                    k.wait(lg="cw")
                    k("s_barrier")
                    k(f"ds_read_b128 {vr(CX, 4)}, v{CSR} offset:2048", tag="cx")
                if extra:
                    k(*extra.pop(0))
                    if extra and extra[0][1] is None:
                        k(extra.pop(0)[0])
                if n == QF:
                    flag()
                if n == QPL:
                    assert not extra
                    ask()
                if n == QCK:
                    start()

        steps(0, NQ0)
        self.dma([self.q_dma(c) for c in range(NQ0 + NQ1, 7)])
        if opt("pse", 0):
            extra = self.p_stores()
        steps(NQ0, NQ0 + NQ1)
        steps(NQ0 + NQ1, 7)
        assert not extra
        k.wait(lg="cx")
        k("\n".join([f"v_add_f32 v{CX}, v{CX}, v{CX + i}" for i in range(1, 4)] + self.split2(CX, CA)))
        k(f"v_mfma_f32_32x32x8bf16_1k {vr(QA, 16)}, {vr(CA, 2)}, {vr(VB, 2)}, {vr(QA, 16)}")
        if QPL == 28:
            ask()
        if QCK == 28:
            start()
        for s in range(2):
            for i in range(4 * s, 4 * s + 4):
                k(f"v_pk_mul_f32 {vr(QA + 2 * i, 2)}, {vr(QA + 2 * i, 2)}, {vr(RS, 2)} op_sel_hi:[1,0]")
            for i in range(4 * s, 4 * s + 4):
                k(f"v_cvt_pk_bf16_f32 v{32 + i}, v{QA + 2 * i}, v{QA + 2 * i + 1}")
            if s:
                k("s_mov_b32 exec_lo, 0\nv_mov_b32 v38, 0\nv_mov_b32 v39, 0\ns_mov_b32 exec_lo, -1")
            k(f"ds_write_b128 v{QW}, {vr(32 + 4 * s, 4)} offset:{1024 * s}")
        if QPL == 29:
            ask()
        self.stamp("Aq", True)
        if PPL == 1:
            p_reads(), p_sums()
        if QCK == 29:
            start()
        if PPL == 2:
            p_reads()
        k.wait(lg="all")
        if QPL == 30:
            ask()
        k("s_barrier")
        for u in range(3):
            for s in range(2):
                k(f"ds_read_b128 {vr(8 + 8 * u + 4 * s, 4)}, v{QW + 1 + u} offset:{1024 * s}", tag="Q")
        if QPL == 31:
            ask()
        if PPL == 2:
            p_sums()
        if PPL == 3:
            p_reads()
        if QCK > 29:
            start()
        if PPL == 3:
            p_sums()

    KBASE = f"s_lshl_b32 s50, {sA}, 4\ns_add_u32 s50, s50, {sW}\ns_add_u32 s50, s50, 256\ns_lshl_b32 s50, s50, 13"
    PICK = f"v_cmp_ne_u32 vcc, {sTAG}, v209\ns_sub_u32 s55, vcc_lo, 0x01010101\ns_andn2_b32 s55, s55, vcc_lo\ns_and_b32 s55, s55, 0x80808080"
    KVB = ["v144", "v160", "v176", "a192", "a0", "a16", "a32", "a48", "a64", "a80", "v192", "v144", "v160", "v176", "a192", "a176"]

    def ask0(self):
        t = f"buffer_load_dword v209, v207, {WS}, s60 offen sc1"
        return f"s_mov_b64 exec, 0xff\n{t}\ns_mov_b64 exec, -1" if self.opt.get("pick", 1) == 1 and self.opt.get("am", 1) else t

    def kvreg(self, kt, i):
        b = int(self.KVB[kt][1:]) + 4 * i
        return f"{self.KVB[kt][0]}[{b}:{b + 3}]"

    def kvload(self, kt):
        g = [(f"buffer_load_dwordx4 {self.kvreg(kt, i)}, v{208 if i & 2 else 1}, {WS}, s50 offen offset:{2048 * (kt & 1) + 1024 * (i & 1)} sc1",
              ("V" if i & 2 else "K", kt)) for i in range(4)]
        if kt & 1 and kt < 15:
            g.append((f"s_xor_b32 s50, s50, {4096 | ((kt >> 2) ^ ((kt + 1) >> 2)) << 15}", None))
        return g

    def b_setup(self):
        k = self.k
        sWD, sGL = "s32", "s54"
        k(f"""s_lshl_b32 s55, {sW}, 6
        s_lshr_b32 s56, {sA}, 1
        s_add_u32 s55, s55, s56
        v_and_b32 v2, 3, v0
        v_lshlrev_b32 v2, 4, v2
        v_bfe_u32 v3, v0, 2, 1
        v_lshl_add_u32 v2, v3, 3, v2
        v_bfe_u32 v3, v0, 3, 2
        v_lshl_add_u32 v2, v3, 8, v2
        v_add_u32 v2, s55, v2
        v_lshlrev_b32 v207, 7, v2
        v_and_b32 v2, 3, v0
        s_lshl_b32 s55, {sTB}, 4
        s_lshl_b32 s56, {sW}, 2
        s_add_u32 s55, s55, s56
        v_add_u32 v2, s55, v2
        v_lshlrev_b32 v2, 7, v2""")
        k(f"""s_mul_i32 s55, {sB2}, 7
        s_lshr_b32 s55, s55, 2
        s_add_u32 s71, s55, {sW}
        s_mul_i32 s55, s55, 14
        s_lshr_b32 s56, {sCB}, 1
        s_min_u32 s56, s56, 6
        s_mul_i32 s57, s56, 28
        s_mul_i32 s58, {sW}, 7
        s_add_u32 s57, s57, s58
        s_lshl_b32 {sWD}, s57, 13
        s_add_u32 {sWD}, {sWD}, {WS_WD}
        s_add_u32 s57, s57, {U_D - 42}
        s_lshl_b32 s56, s56, 3
        s_lshl_b32 s58, {sW}, 1
        s_add_u32 s56, s56, s58
        s_lshl_b32 s35, s56, 13
        s_add_u32 s35, s35, {WS_WO}
        s_add_u32 s56, s56, {U_O}
        s_cmp_ge_u32 {sCB}, 14
        s_cselect_b32 {sWD}, {OOB}, {sWD}
        s_cselect_b32 s35, {OOB}, s35
        v_add_u32 v4, s55, v0
        v_min_u32 v4, {U_D - 1}, v4
        v_add_u32 v5, s57, v0
        v_and_b32 v3, 1, v0
        v_add_u32 v3, s56, v3
        v_cmp_gt_u32 vcc, 49, v0
        v_cndmask_b32 v3, v3, v5, vcc
        v_cmp_gt_u32 vcc, 42, v0
        v_cndmask_b32 v3, v3, v4, vcc
        v_lshlrev_b32 v3, 7, v3""")
        for t in range(3):
            k(f"""s_xor_b32 s55, {sW}, {3 - t}
            s_mul_i32 s55, s55, 12288
            s_add_u32 s55, s55, {LR + 4096 * t}
            v_add_u32 v{4 + t}, s55, v1""")
        k(f"""s_mul_i32 s55, {sW}, 12288
        s_add_u32 s55, s55, {LR}
        v_add_u32 v7, s55, v1
        v_add_u32 v208, {1024 * 2048}, v1
        v_lshlrev_b32 v210, 2, v0
        s_lshr_b32 s55, {sW}, 1
        s_lshl_b32 s55, s55, 10
        v_add_u32 v253, s55, v1
        v_xor_b32 v252, 1024, v253
        v_and_b32 v254, 31, v0
        v_lshrrev_b32 v251, 5, v0
        v_lshlrev_b32 v250, 4, v254
        v_lshl_add_u32 v250, v251, 3, v250
        v_mul_u32_u24 v254, 896, v254
        v_lshl_add_u32 v254, v251, 5, v254
        s_mul_i32 s55, s62, {32 * 896}
        s_lshl_b32 s56, s63, 6
        s_add_u32 s55, s55, s56
        s_cmp_ge_u32 {sCB}, 14
        s_cselect_b32 s55, {OOB}, s55
        v_add_u32 v254, s55, v254
        s_mul_i32 s55, {sB2}, {7 * 28672}
        s_add_u32 s55, s55, {WS_WGU}
        v_add_u32 v251, s55, v1
        s_mul_i32 {sGL}, {sW}, 28672""")
        for i in range(4):
            k(f"v_accvgpr_write_b32 a{220 + i}, -1")
        k(f"""s_mov_b32 s64, {sO}
        s_mov_b32 s65, {sH}
        s_mov_b32 s66, {sST}
        s_lshl_b32 s67, {sB}, 4
        s_add_u32 s67, s67, {sA}
        s_lshl_b32 s67, s67, 7
        s_add_u32 s67, s67, {WS_FB}
        s_lshl_b32 s68, {sTB}, 4
        s_add_u32 s68, s68, {sCB}
        s_lshl_b32 s68, s68, 7
        s_add_u32 s68, s68, {WS_FC}
        s_cmp_eq_u32 {sW}, 0
        s_cselect_b32 s67, s67, {OOB}
        s_cselect_b32 s68, s68, {OOB}
        s_lshl_b32 s55, s62, 4
        s_lshl_b32 s56, {sW}, 2
        s_add_u32 s55, s55, s56
        s_lshl_b32 s55, s55, 11
        s_add_u32 s70, s55, {WS_O}
        s_xor_b32 s69, s55, 0x8000
        s_add_u32 s69, s69, {WS_O}
        s_cmp_ge_u32 {sCB}, 14
        s_cselect_b32 s69, {OOB}, s69
        s_cselect_b32 s70, {OOB}, s70
        s_min_u32 s71, s71, 27
        s_mul_i32 s71, s71, 7168
        s_add_u32 s71, s71, {WS_CS}
        s_cmp_lt_u32 {sW}, 3
        s_cselect_b32 s71, s71, {OOB}
        s_lshl_b32 s55, {sA2}, 2
        s_add_u32 s55, s55, {sW}
        s_mul_i32 s72, s55, 28672
        s_add_u32 s72, s72, {WS_H}
        s_mul_i32 s73, s55, 3584
        s_add_u32 s73, s73, {WS_ST}
        s_lshl_b32 s76, s55, 4
        s_add_u32 s76, s76, {sB2}
        s_lshl_b32 s76, s76, 7
        s_add_u32 s76, s76, {WS_FQ}
        s_add_u32 s56, {sGL}, {WS_ACT}
        s_mul_i32 s75, s62, {112 * 1024}
        s_add_u32 s75, s75, s56
        s_xor_b32 s74, s62, 1
        s_mul_i32 s74, s74, {112 * 1024}
        s_add_u32 s74, s74, s56
        s_cmp_ge_u32 {sCB}, 14
        s_cselect_b32 s74, {OOB}, s74
        s_cselect_b32 s75, {OOB}, s75""")
        for t in range(2):
            for j in range(4):
                k(f"s_add_u32 s{78 + 4 * t + j}, s{74 + t}, {7168 * j}")

    def phase_b(self):
        k = self.k
        Q, O, S, P, KV = 8, 40, 104, 136, 144
        sWD, sGL = "s32", "s54"
        k.label("L_attn")
        k(f"""s_mov_b32 s33, {sWD}
        s_mov_b32 s59, s35
        s_add_u32 s58, {sAC}, 4096""")
        pre = []
        for i in range(16):
            pre.append((f"buffer_load_dwordx4 {self.wo(i)}, v{252 + (i & 1)}, {WS}, s59 offen offset:{(i & 2) * 1024} sc1", "WO"))
            if i % 4 == 3:
                pre.append(("s_add_u32 s59, s59, 4096", None))
        for i in range(28):
            if i % 4 == 0:
                pre.append((f"s_add_u32 m0, {sGL}, {i * 1024}", None))
            pre.append((f"buffer_load_dwordx4 v251, {WS}, m0 offen offset:{(i % 4) * 1024} sc1 lds", "GU"))
        NWD = self.opt.get("nwd", 16)
        pre += self.wd_loads(0, NWD)
        self.wdn = NWD
        pst = [] if self.opt.get("pse", 0) else self.p_stores()

        TD = self.opt.get("td", 3)
        order = [(kt, u) for kt in range(16 - TD) for u in range(4)]
        order += [(kt, u) for kt in range(16 - TD, 16) for u in range(3)] + [(kt, 3) for kt in range(16 - TD, 16)]

        def smf(n, s):
            kt, u = order[n]
            d = vr(S + 16 * (n & 1), 16)
            self.mfma(d, self.kvreg(kt, s), vr(Q + 8 * u + 4 * s, 4), "0" if s == 0 else None)

        def pv(n, s):
            kt, u = order[n]
            self.mfma(vr(O + 16 * u, 16), self.kvreg(kt, 2 + s), vr(P + 4 * s, 4), "0" if (kt == 0 and s == 0) else None)

        k.wait(vm=("K", 0), lg="Q")
        smf(0, 0)
        smf(0, 1)
        PFL = self.opt.get("pfl", 11)
        PCHK = self.opt.get("pchk", 26)
        CLR = self.opt.get("clr", 99)
        FA2, FAD, CLW = self.opt.get("fa2", 3), self.opt.get("fad", 5), self.opt.get("clw", 58)
        queue = [x for t in range(self.opt.get("ns", 2), 4) for x in self.kvload(t)]
        queue = queue + pst if self.opt.get("psl", 1) else pst + queue
        clr = self.clears()
        SG = self.opt.get("sg", 0)
        acl = [f"buffer_store_dwordx4 a[220:223], v1, {WS}, {sAC if g < 4 else 's58'} offen offset:{1024 * (g & 3)} sc1" for g in range(SG, 7)]
        if self.opt.get("cld", 0):
            self.acl, acl = acl, []
        if CLR > PCHK:
            acl, clr = clr + acl, []
        if self.opt.get("cdw", 0):
            acl = [t.replace("dwordx4 a[220:223]", "dword a220") for t in acl]
        ACL, ACS = self.opt.get("acl", 26), self.opt.get("acs", 2)
        CLS = [int(x) for x in str(self.opt.get("cls", "18x22x27x28x29x30x34x38x42x46x50x54")).split("x") if x]
        fixed = {}
        for t in range(3):
            m = 4 * (order.index((15, t)) + 1) + 2
            for q in range(4):
                fixed.setdefault(m + q, []).append(f"ds_write_b128 v{4 + t}, {vr(O + 16 * t + 4 * q, 4)} offset:{1024 * q}")
        bar = m + 4 + self.opt.get("bbar", 1)
        hint = f"buffer_store_dwordx4 {vr(vTAG, 4)}, {vFLAG}, {WS}, s67 offen sc1"
        rds = [(f"ds_read_b128 {vr(O + 16 * j + 4 * q, 4)}, v7 offset:{4096 * j + 1024 * q}", ("c", j, q)) for q in range(4) for j in range(3)]
        HB = bar + self.opt.get("hb", 1)

        FBE = self.opt.get("fbe", 101)

        def askb():
            k(f"s_mov_b32 s60, {WS_FB}")
            k(f"buffer_load_dword v209, v2, {WS}, s60 offen sc1", tag="PF")

        def join():
            assert "CL" not in k.vm
            k.wait(lg="all")
            k("s_barrier")

        def slot(g):
            if g in fixed:
                if g == HB:
                    assert "CL" not in k.vm and "FL" not in k.vm
                    k(f"s_barrier\n{hint}")
                for t in fixed[g]:
                    k(t)
            elif g == bar:
                join()
            elif g > bar:
                if g == HB:
                    k(hint)
                if g == HB + FBE:
                    askb()
                for _ in range(self.opt.get("brd", 3)):
                    if rds:
                        t, tg = rds.pop(0)
                        k(t, tag=tg)
            elif queue:
                t, tg = queue[0]
                if not callable(t) and t.startswith("buffer_load_dwordx4"):
                    if credit[0] < 10:
                        return
                    dst = t.split()[1]
                    for x in range(16 if tg == "WD" else tg[1] if tg[0] in "KV" else 0):
                        if dst[:-1] in [self.kvreg(x, i) for i in range(4)] and g <= 4 * (order.index((x, 3)) + 1):
                            return
                queue.pop(0)
                if callable(t):
                    t()
                else:
                    k(t, tag=tg)
                    if t.startswith("buffer"):
                        credit[0] -= self.opt.get("clc", 15) if tg == "CL" else 10
                        self.blog.setdefault(str(tg and tg[0]) + str(tg == "WD"), [g // 4, 0])[1] = g // 4

        self.blog = {}
        credit = [0]
        for n in range(64):
            credit[0] = min(credit[0], 10) + self.opt.get("vpu", 27)
            kt, u = order[n]
            sb = S + 16 * (n & 1)
            if self.opt.get("tsb") and n % self.opt["tsb"] == 0:
                self.stamp(f"b{n}", True)
            if n == FA2:
                queue = [(f"buffer_load_dword v209, v207, {WS}, s60 offen sc1", "PF")] + queue
            if n == FA2 + FAD:
                queue.insert(0, (lambda: self.flagcheck("PF", "v207", "v209", WS_FA), None))
                queue += [x for t in range(4, 16) for x in self.kvload(t)]
            if n == PFL:
                assert not any(tg == "PS" for _, tg in queue)
                queue = [(lambda: k.wait(vm="PS"), None), (f"buffer_store_dwordx4 {vr(vTAG, 4)}, {vFLAG}, {WS}, {sPF} offen sc1", None)] + queue
            if n == self.opt.get("fcl", 14):
                queue = [(f"buffer_store_dwordx4 a[220:223], {vFLAG}, {WS}, {r} offen sc1", "FL") for r in ("s67", "s68")] + queue
            if n == CLW:
                assert not acl
                queue.insert(0, (lambda: k.wait(vm="CL"), None))
            if n >= CLR and clr and (n - CLR) % 2 == 0:
                queue.append((clr.pop(0), "CL"))
            if n in CLS:
                queue.insert(0, (acl.pop(0), "CL"))
            if not CLS and n >= ACL and (n - ACL) % ACS == 0:
                for _ in range(self.opt.get("acn", 1) if n < self.opt.get("acu", 99) else 1):
                    if acl:
                        queue.insert(0, (acl.pop(0), "CL"))
            if n == PCHK:
                assert n > FA2 + FAD
                queue = [(f"s_mov_b32 s60, {WS_FP}", None), (f"buffer_load_dword v209, v3, {WS}, s60 offen sc1", "PF")] + queue
            if n == PCHK + self.opt.get("pcd", 5):
                assert not clr
                queue.append((lambda: self.flagcheck("PF", "v3", "v209", WS_FP), None))
                queue += pre
            if n == 53:
                xl = [(f"buffer_load_dwordx4 {vr(KV + 4 * s, 4)}, v254, {X}, 0 offen offset:{16 * s}", "X") for s in range(2)]
                queue = queue + xl if self.opt.get("xq", 1) else xl + queue

            def ex(i):
                k(f"v_exp_f32 v{sb + i}, v{sb + i}")

            def cv(i):
                k(f"v_cvt_pk_bf16_f32 v{P + i}, v{sb + 2 * i}, v{sb + 2 * i + 1}")

            ex(0), ex(1)
            if n > 0:
                pv(n - 1, 1)
                assert n == 63 or not any(tg == ("V", order[n + 1][0]) for _, tg in queue)
                if not (n + 1 < 64 and k.wait(vm=("V", order[n + 1][0]))):
                    slot(4 * n)
                else:
                    assert 4 * n not in fixed
            ex(2), ex(3), cv(0), ex(4), ex(5), cv(1)
            if n + 1 < 64:
                smf(n + 1, 0)
            slot(4 * n + 1)
            ex(6), ex(7), cv(2), ex(8), ex(9), cv(3)
            if n + 1 < 64:
                smf(n + 1, 1)
            if not (n == 0 and k.wait(vm=("V", 0))):
                slot(4 * n + 2)
            ex(10), ex(11), cv(4), ex(12), ex(13), cv(5)
            pv(n, 0)
            slot(4 * n + 3)
            ex(14), ex(15), cv(6), cv(7)
        assert not queue, len(queue)
        pv(63, 1)
        g = 256
        while g <= max(bar, HB) or rds:
            slot(g)
            g += 1
        self.stamp("B1", True)
        o = O + 48
        for q in range(4):
            k.wait(lg=("c", 2, q))
            for j in (1, 2):
                for i in range(2):
                    r = O + 4 * q + 2 * i
                    k(f"v_pk_add_f32 {vr(r, 2)}, {vr(r, 2)}, {vr(r + 16 * j, 2)}")
        lo, hi = struct.unpack("<II", struct.pack("<ff", 2.0 ** -80, 2.0 ** 80))
        k(f"""v_add_f32 v248, v{o + 12}, v{O + 12}
        v_add_f32 v249, v{o + 12}, v{O + 12}""")
        adds = [f"v_pk_add_f32 {vr(o + 2 * i, 2)}, {vr(o + 2 * i, 2)}, {vr(O + 2 * i, 2)}" for i in range(8)]
        k("\n".join(adds[:2]))
        k(f"""v_permlane32_swap_b32 v249, v248
        s_mov_b32 s56, {hi - lo}""")
        k("\n".join(adds[2:4]))
        k(f"""v_subrev_u32 v249, {lo}, v248
        v_rcp_f32 v248, v248
        v_cmp_lt_u32 vcc, s56, v249""")
        k("\n".join(adds[4:]))
        if self.force_fb:
            k(f"s_and_b32 vcc_lo, {sW}, {self.force_fb - 1}" if self.force_fb > 1 else "s_mov_b32 vcc_lo, 1")
        k(f"""s_andn2_b32 s57, vcc_lo, {sFB}
        s_cselect_b32 s55, {OOB}, {sO}
        s_cselect_b32 {sO}, {sO}, {OOB}""")
        if FBE == 50:
            askb()
        for s in range(2):
            for i in range(4 * s, 4 * s + 4):
                k(f"v_pk_mul_f32 {vr(o + 2 * i, 2)}, {vr(o + 2 * i, 2)}, v[248:249] op_sel_hi:[1,0]")
            for i in range(4 * s, 4 * s + 4):
                k(f"v_cvt_pk_bf16_f32 v{P + i}, v{o + 2 * i}, v{o + 2 * i + 1}")
            if s:
                k(f"s_mov_b32 exec_lo, 0\nv_mov_b32 v{P + 6}, 0\nv_mov_b32 v{P + 7}, 0\ns_mov_b32 exec_lo, -1")
            k(f"buffer_store_dwordx4 {vr(P + 4 * s, 4)}, v1, {WS}, s55 offen offset:{1024 * s} sc1")
        self.stamp("B2", True)
        if FBE == 99:
            askb()
        CSE = self.opt.get("cse", 7)

        def csl(lo, hi):
            for i in range(lo, hi):
                k(f"buffer_load_dwordx4 {vr(72 + 4 * i, 4)}, v1, {WS}, {'s71' if i < 4 else 's55'} offen offset:{(i % 4) * 1024} sc1", tag="cs")

        k(f"""v_mov_b32 v248, s57
        v_and_b32 v249, 3, v0
        ds_write_b32 v7, v248
        v_mul_u32_u24 v249, 12288, v249
        v_add_u32 v249, {LR}, v249
        s_add_u32 s50, s69, 4096
        s_add_u32 s51, s70, 4096
        s_add_u32 s55, s71, 4096""")
        k.wait(vm=["X", "GU"])
        if FBE != 101:
            csl(0, CSE)
        for i in range(8):
            k(f"v_lshlrev_b32 v{S + 2 * i}, 16, v{KV + i}\nv_and_b32 v{S + 1 + 2 * i}, 0xffff0000, v{KV + i}")
        if FBE == 101:
            csl(0, CSE)
        n = self.opt.get("nwa", 0)
        for t, tg in self.wd_loads(self.wdn, self.wdn + n):
            k(t, tag=tg)
        self.wdn += n
        if FBE > 99:
            askb()
        assert "PF" in k.vm
        self.flagcheck("PF", "v2", "v209", WS_FB)
        self.stamp("C0", True)
        self.oload = []
        for t in range(2):
            for ks in range(8):
                sb = f"s{69 + t}" if ks < 4 else f"s{50 + t}"
                self.oload.append(f"buffer_load_dwordx4 {vr(136 + 32 * t + 4 * ks, 4)}, v1, {WS}, {sb} offen offset:{1024 * (ks & 3)} sc1")
                k(self.oload[-1], tag=("O", 8 * t + ks))
        k.wait(lg="all")
        k("s_barrier\nds_read_b32 v248, v249")
        csl(CSE, 7)
        n = self.opt.get("nwb", 0)
        for t, tg in self.wd_loads(self.wdn, self.wdn + n):
            k(t, tag=tg)
        self.wdn += n
        k.wait(lg="all")
        k("s_barrier\nv_cmp_ne_u32 vcc, 0, v248\ns_cbranch_vccnz L_fb")

    def wd_loads(self, lo, hi):
        g = []
        for i in range(lo, hi):
            g.append((f"buffer_load_dwordx4 {ar(4 * i, 4)}, v{252 + (i & 1)}, {WS}, s33 offen offset:{(i & 2) * 1024} sc1", "WD"))
            if i % 4 == 3:
                g.append(("s_add_u32 s33, s33, 4096", None))
        return g

    def late_code(self):
        k = self.k
        Q, S, KV = 8, 104, 144
        for kind, L1, L2, x, y, z in self.late:
            k.label(L1)
            if kind == "poll":
                self.poll(x, y, z, {WS_FB: "s90", WS_FC: "s92", "s77": "s95", WS_FA: "s93"}.get(z))
            elif kind == "pick":
                if self.ts:
                    k("s_add_u32 s94, s94, 1")
                k(self.ask0())
                k.wait(vm="all")
                k(f"""{self.PICK}
                s_cbranch_scc1 {L2}
                s_sub_u32 {sCNT}, {sCNT}, 1
                s_cselect_b32 {sCNT}, 0, {sCNT}
                s_cbranch_scc0 {L1}""")
            elif kind == "call":
                x()
                k.wait(vm="all")
            else:
                if self.ts:
                    c = "s91" if z == 209 else "s95" if z == 247 else "s94" if len(y) == 14 else "s93"
                    k(f"s_add_u32 {c}, {c}, 1")
                k("\n".join(x))
                k.wait(vm="all")
                k("\n".join(self.maxchain(y, z)))
                k(f"""v_cmp_eq_u32 vcc, -1, v{z}
                s_cbranch_vccz {L2}
                s_sub_u32 {sCNT}, {sCNT}, 1
                s_cselect_b32 {sCNT}, 0, {sCNT}
                s_cbranch_scc0 {L1}""")
            k(f"s_branch {L2}")
        k.label("L_fb")
        k(f"""s_waitcnt vmcnt(0) lgkmcnt(0)
        s_barrier
        s_mov_b32 {sFB}, -1
        s_mov_b32 {sPD}, {OOB}
        s_mov_b32 {sPCS}, {OOB}
        s_mov_b32 {sPF}, {OOB}
        s_mov_b32 s64, {OOB}
        s_mov_b32 s65, {OOB}
        s_mov_b32 s66, {OOB}
        s_lshl_b32 s50, {sA}, 6
        s_lshl_b32 s55, {sW}, 4
        s_add_u32 s50, s50, s55
        s_add_u32 s50, s50, 1024
        s_lshl_b32 s50, s50, 11
        s_mov_b32 s51, 16""")
        for u in range(4):
            k(f"v_mov_b32 v{228 + u}, 0xff800000")
        k.label("L_fbl")
        for s in range(2):
            k(f"buffer_load_dwordx4 {vr(KV + 4 * s, 4)}, v1, {WS}, s50 offen offset:{1024 * s} sc1")
        k("s_add_u32 s50, s50, 2048\ns_waitcnt vmcnt(0)")
        for u in range(4):
            self.mfma(vr(S, 16), vr(KV, 4), vr(Q + 8 * u, 4), "0")
            self.mfma(vr(S, 16), vr(KV + 4, 4), vr(Q + 8 * u + 4, 4))
            for i in range(8):
                k(f"v_max3_f32 v{228 + u}, v{228 + u}, v{S + 2 * i}, v{S + 2 * i + 1}")
        k("s_sub_u32 s51, s51, 1\ns_cmp_lg_u32 s51, 0\ns_cbranch_scc1 L_fbl")
        k(f"v_lshlrev_b32 v216, 2, v0\ns_lshl_b32 s57, {sW}, 8")
        for u in range(4):
            k(f"""v_mov_b32 v218, v{228 + u}
            v_permlane32_swap_b32 v218, v{228 + u}
            v_max_f32 v{228 + u}, v218, v{228 + u}
            s_xor_b32 s55, {sW}, {3 - u}
            s_lshl_b32 s55, s55, 10
            s_add_u32 s55, s55, {LR}
            v_add_u32 v{220 + u}, s55, v216
            v_add_u32 v217, s57, v{220 + u}
            ds_write_b32 v217, v{228 + u}""")
        k("s_waitcnt lgkmcnt(0)\ns_barrier")
        for u in range(4):
            for j in range(4):
                k(f"ds_read_b32 v{224 + j}, v{220 + u} offset:{256 * j}")
            k(f"""s_waitcnt lgkmcnt(0)
            v_max3_f32 v224, v224, v225, v226
            v_max_f32 v224, v224, v227
            v_sub_f32 v224, 0, v224
            v_cvt_pk_bf16_f32 v225, v224, v224
            v_and_b32 v225, 0xffff0000, v225
            v_sub_f32 v225, v224, v225
            v_cvt_pk_bf16_f32 v226, v224, v225
            v_and_b32 v227, 0xffff0000, v226
            v_sub_f32 v227, v225, v227
            v_cvt_pk_bf16_f32 v227, v227, 0
            s_mov_b32 exec_lo, 0
            v_mov_b32 v{Q + 8 * u + 6}, v226
            v_mov_b32 v{Q + 8 * u + 7}, v227
            s_mov_b32 exec_lo, -1""")
        k(f"{self.KBASE}\ns_mov_b32 s60, {WS_FA}\nv_mov_b32 v207, 0")
        for kt in range(self.opt.get("ns", 2)):
            k("\n".join(t for t, _ in self.kvload(kt)))
        k("s_waitcnt vmcnt(0)\ns_barrier\ns_branch L_attn")
        k.vm.clear()
        k.lg.clear()

    def phase_c(self):
        k = self.k
        ACC, OF, XR = 8, 136, 104
        FCE = self.opt.get("fce", 13)
        k(f"""s_lshl_b32 s55, {sA2}, 4
        s_lshr_b32 s56, {sW}, 1
        s_add_u32 s55, s55, s56
        v_min_u32 v249, 6, v0
        v_lshlrev_b32 v249, 1, v249
        v_add_u32 v249, s55, v249
        v_lshlrev_b32 v249, 7, v249""")

        def ask():
            k(f"s_mov_b32 s60, {WS_FC}")
            k(f"buffer_load_dword v248, v249, {WS}, s60 offen sc1", tag="PF")

        k(f"s_cmp_ge_u32 {sCB}, 14\ns_cbranch_scc1 L_cidle")
        self.late.append(("call", "L_cidle", "L_c1", ask if FCE < 10 else lambda: None, None, None))
        self.askc = ask
        loads = self.oload

        def arrive(f):
            k.wait(vm=("O", f + 1))
            self.datacheck([OF + 4 * f, OF + 4 * f + 4], 209, loads[f:])

        def mm(lt, ks):
            c, t = divmod(lt, 2)
            self.mfma(vr(ACC + 16 * lt, 16), self.wo(2 * ks + c), vr(OF + 32 * t + 4 * ks, 4), None if ks else vr(XR, 16) if lt == 3 else "0")

        def wr(lt):
            return [f"ds_write_b128 v{4 + lt}, {vr(ACC + 16 * lt + 4 * q, 4)} offset:{1024 * q}" for q in range(4)]

        for p in range(4):
            arrive(2 * p)
            for lt, ks in ((0, 0), (0, 1), (2, 0), (2, 1)):
                mm(lt, 2 * p + ks)
        w = wr(0) + wr(2)
        for ks in range(8):
            if ks % 2 == 0:
                arrive(8 + ks)
            mm(1, ks)
            if ks - 8 == self.opt.get("hc", 0):
                k(f"buffer_store_dwordx4 {vr(vTAG, 4)}, {vFLAG}, {WS}, s68 offen sc1")
            if ks >= 1:
                k(w.pop(0))
        C2 = self.opt.get("c2", 0)
        o = ACC + 48
        hint = f"buffer_store_dwordx4 {vr(vTAG, 4)}, {vFLAG}, {WS}, s68 offen sc1"
        if C2:
            def rd(j, q):
                k(f"ds_read_b128 {vr(ACC + 16 * j + 4 * q, 4)}, v7 offset:{4096 * j + 1024 * q}", tag=("c", j, q))

            def add(q):
                k.wait(lg=("c", 2, q))
                for r in range(ACC + 4 * q, ACC + 4 * q + 4):
                    k(f"v_add_f32 v{r}, v{r}, v{r + 32}")

            HC, CB = self.opt.get("hc", 0), self.opt.get("cb2", 6)
            w1 = wr(1)
            for ks in range(8):
                mm(3, ks)
                if ks == 0:
                    k(w.pop(0))
                if ks == C2:
                    k.wait(lg="all")
                    k("s_barrier")
                if ks in (2, 3):
                    for _ in range(2):
                        k(w1.pop(0), tag="w1")
                if C2 <= ks < C2 + 4:
                    rd(0, ks - C2), rd(2, ks - C2)
                if ks == CB:
                    k.wait(lg="w1")
                    k("s_barrier")
                    if HC > ks:
                        k(hint)
                    for q in range(4):
                        rd(1, q)
                if ks == HC:
                    assert ks >= C2
                    k(hint)
                if ks >= C2 + 2 and ks - C2 - 2 < 4:
                    add(ks - C2 - 2)
            self.stamp("C1", True)
            for q in range(6 - C2, 4):
                add(q)
            for q in range(4):
                k.wait(lg=("c", 1, q))
                for i in range(2):
                    r = ACC + 4 * q + 2 * i
                    k(f"v_pk_add_f32 {vr(r, 2)}, {vr(r, 2)}, {vr(r + 16, 2)}")
            for h in range(2):
                for i in range(4 * h, 4 * h + 4):
                    k(f"v_pk_add_f32 {vr(o + 2 * i, 2)}, {vr(o + 2 * i, 2)}, {vr(ACC + 2 * i, 2)}")
                for i in range(4 * h, 4 * h + 4):
                    k(f"v_cvt_pk_bf16_f32 v{OF + i}, v{o + 2 * i}, v{o + 2 * i + 1}")
                k(f"buffer_store_dwordx4 {vr(OF + 4 * h, 4)}, v1, {WS}, {sH} offen offset:{1024 * h} sc1")
        else:
            w += [None] + wr(1)
            for ks in range(8):
                mm(3, ks)
                if ks == self.opt.get("hc", 0):
                    k(hint)
                if w:
                    t = w.pop(0)
                    if t:
                        k(t)
            self.stamp("C1", True)
            k.wait(lg="all")
            k("s_barrier")
            if self.opt.get("hc", 0) > 7:
                k(hint)
            for q in range(4):
                for j in range(3):
                    k(f"ds_read_b128 {vr(ACC + 16 * j + 4 * q, 4)}, v7 offset:{4096 * j + 1024 * q}", tag=("c", j, q))
            o = ACC + 48
            if FCE == 0:
                ask()
            for q in range(4):
                for j in range(3):
                    k.wait(lg=("c", j, q))
                    for i in range(2):
                        r = o + 4 * q + 2 * i
                        k(f"v_pk_add_f32 {vr(r, 2)}, {vr(r, 2)}, {vr(ACC + 16 * j + 4 * q + 2 * i, 2)}")
                for i in range(2):
                    k(f"v_cvt_pk_bf16_f32 v{OF + 2 * q + i}, v{o + 4 * q + 2 * i}, v{o + 4 * q + 2 * i + 1}")
                if q == FCE:
                    ask()
                if q & 1:
                    k(f"buffer_store_dwordx4 {vr(OF + 2 * q - 2, 4)}, v1, {WS}, {sH} offen offset:{512 * (q - 1)} sc1")
        if FCE == 4:
            ask()
        k(f"v_pk_add_f32 v[16:17], {vr(o, 2)}, {vr(o + 2, 2)}\nv_pk_mul_f32 v[18:19], {vr(o, 2)}, {vr(o, 2)}")
        for i in range(1, 8):
            if i > 1:
                k(f"v_pk_add_f32 v[16:17], v[16:17], {vr(o + 2 * i, 2)}")
            k(f"v_pk_fma_f32 v[18:19], {vr(o + 2 * i, 2)}, {vr(o + 2 * i, 2)}, v[18:19]")
        k(f"""v_add_f32 v16, v16, v17
        v_add_f32 v18, v18, v19
        v_permlane32_swap_b32 v16, v18
        v_add_f32 v16, v16, v18
        buffer_store_dword v16, v210, {WS}, {sST} offen sc1""")
        if FCE == 9:
            ask()
        k.label("L_c1")
        self.stamp("C3", True)

    def phase_de(self):
        k = self.k
        opt = self.opt.get
        H, ACC, AB, T = 8, 120, 184, 216
        CL, CS = 72, 100
        LCS = LR + 28672
        sGU = "s53"
        HA = opt("dha", 12)
        assert HA <= 12

        def hload(ks, sb="s50"):
            return f"buffer_load_dwordx4 {vr(H + 4 * ks, 4)}, v1, {WS}, {sb} offen offset:{1024 * (ks & 3)} sc1"

        queue = [(hload(ks) + ("\ns_add_u32 s50, s50, 4096" if ks & 3 == 3 else ""), ("H", ks)) for ks in range(28)]

        def begin():
            self.flagcheck("PF", "v249", "v248", WS_FC)
            self.stamp("D0", True)
            for _ in range(HA):
                t, tg = queue.pop(0)
                k(t, tag=tg)

        k("s_mov_b32 s50, s72\ns_barrier")
        if opt("dbe", 0):
            begin()
        k(f"""s_mul_i32 s52, {sW}, 7168
        s_mul_i32 {sGU}, {sB2}, {7 * 28672}
        s_add_u32 {sGU}, {sGU}, s52
        s_add_u32 {sGU}, {sGU}, {WS_WGU + 4 * 28672}""")

        def gdma(ct, lds):
            g = []
            for i in range(7):
                t = ""
                if i % 4 == 0:
                    t = f"s_add_u32 m0, s52, {lds + i * 1024}\ns_add_u32 s56, {sGU}, {(ct - 4) * 28672 + i * 1024}\n"
                g.append((t + f"buffer_load_dwordx4 v1, {WS}, s56 offen offset:{(i % 4) * 1024} sc1 lds", ("G", ct)))
            return g

        mem = []
        if opt("g4", 1):
            for i, (t, tg) in enumerate(gdma(4, LR)):
                k(t, tag=tg)
                if opt("fce", 13) == 10 + i:
                    self.askc()
        n = opt("nwc", 0)
        for t, tg in self.wd_loads(self.wdn, self.wdn + n):
            k(t, tag=tg)
        self.wdn += n
        for i in range(16):
            k(f"v_accvgpr_write_b32 a{224 + i}, v{56 + i}")
        assert not opt("sg", 0)
        k(f"""v_mov_b32 v250, v210
        v_lshlrev_b32 v2, 3, v0
        s_lshl_b32 s55, {sW}, 11
        s_add_u32 s55, s55, {LCS}
        v_add_u32 v3, s55, v2""")
        if opt("oc", 2) == 2:
            k.note("output goes through LDS (v244 write address): four neighbouring lanes then cover 64 contiguous bytes of one row")
            k(f"""v_readfirstlane_b32 s55, v254
            v_lshrrev_b32 v245, 2, v0
            v_mul_u32_u24 v245, 1792, v245
            v_and_b32 v246, 3, v0
            v_lshl_add_u32 v245, v246, 4, v245
            v_add_u32 v254, s55, v245
            s_mul_i32 s55, {sW}, 12288
            s_add_u32 s55, s55, 57344
            v_and_b32 v245, 1, v0
            v_mul_u32_u24 v245, 1040, v245
            v_bfe_u32 v246, v0, 1, 4
            v_lshl_add_u32 v245, v246, 6, v245
            v_and_b32 v246, 32, v0
            v_add3_u32 v244, v245, v246, s55""")
        if opt("oc", 2) == 1:
            k.note("output address: four neighbouring lanes cover 64 contiguous bytes of one row")
            k("""v_readfirstlane_b32 s55, v254
            v_lshrrev_b32 v245, 5, v0
            v_and_b32 v246, 28, v0
            v_add_u32 v245, v245, v246
            v_mul_u32_u24 v245, 896, v245
            v_and_b32 v246, 3, v0
            v_lshl_add_u32 v245, v246, 4, v245
            v_add_u32 v254, s55, v245""")
        for i in range(4):
            k(f"v_subrev_u32 v{4 + i}, {LR - 57344}, v{4 + i}")
        k.wait(vm="cs")
        for i in range(1, 7):
            for h in range(2):
                k(f"v_pk_add_f32 {vr(CL + 2 * h, 2)}, {vr(CL + 2 * h, 2)}, {vr(CL + 4 * i + 2 * h, 2)}")
        for q in range(4):
            k("\n".join(self.split2(CL + q, CS + 2 * q)))
            k(f"ds_write_b64 v3, {vr(CS + 2 * q, 2)} offset:{512 * q}")
        k(f"""s_mul_i32 s55, {sB2}, 7
        s_and_b32 s55, s55, 3
        s_lshl_b32 s55, s55, 9
        s_add_u32 s55, s55, {LCS}
        v_add_u32 v3, s55, v2
        v_add_u32 v2, 57344, v1
        v_add_u32 v251, {LR}, v1""")
        k.wait(lg="all")

        slot_of = {0: 0, 1: 1, 2: 2, 3: 3, 4: "R", 5: 0, 6: 1}
        seq = [(ct, ks) for ks in range(28) for ct in range(3)] + [(ct, ks) for ct in range(3, 7) for ks in range(28)]
        ND = len(seq)
        NB = 8
        AH = opt("dah", 5)

        def aread(i):
            ct, ks = seq[i]
            s = slot_of[ct]
            if s == "R":
                va, off = "v251", ks * 1024
            elif s < 2:
                va, off = "v1", s * 28672 + ks * 1024
            else:
                va, off = "v2", (s - 2) * 28672 + ks * 1024
            k(f"ds_read_b128 {vr(AB + 4 * (i % NB), 4)}, {va} offset:{off}", tag=("a", i))

        for i in range(AH):
            aread(i)
        if not opt("dbe", 0):
            begin()

        def hagain(lo, hi):
            g = []
            for ks in range(lo, hi):
                if ks == lo or ks & 3 == 0:
                    g.append(f"s_add_u32 s60, s72, {4096 * (ks >> 2)}")
                g.append(hload(ks, "s60"))
            return g

        SL = ACC + 48
        sts = [f"buffer_load_dword v{SL + c}, v250, {WS}, s73 offen offset:{256 * c} sc1" for c in range(14)]
        queue += [(t, "S") for t in sts]
        hgrp = {0: 2, 2: 4, 4: 8, 8: 12, 12: 16, 16: 20, 20: 24, 24: 28} if opt("hg", 4) == 4 else {i: i + 2 for i in range(0, 28, 2)}

        VB, VC, VS = T + 2, T + 4, T + 6
        CA = T + 8
        E = T + 16

        def epilogue(ct, packed):
            a = ACC + 16 * (ct % 4)
            e = []
            if packed:
                e += [f"v_pk_mul_f32 {vr(a + 2 * i, 2)}, {vr(a + 2 * i, 2)}, {vr(VC, 2)} op_sel_hi:[1,0]" for i in range(4)]
            else:
                e += [f"v_mul_f32 v{a + i}, v{VC}, v{a + i}" for i in range(8)]
            e += [f"v_exp_f32 v{a + i}, v{a + i}" for i in range(8)]
            if packed:
                e += [f"v_pk_fma_f32 {vr(a + 2 * i, 2)}, {vr(a + 2 * i, 2)}, {vr(VS, 2)}, {vr(VS, 2)} op_sel_hi:[1,0,0]" for i in range(4)]
            else:
                e += [f"v_fma_f32 v{a + i}, v{a + i}, v{VS}, v{VS}" for i in range(8)]
            e += [f"v_rcp_f32 v{a + i}, v{a + i}" for i in range(8)]
            if packed:
                e += [f"v_pk_mul_f32 {vr(a + 2 * i, 2)}, {vr(a + 2 * i, 2)}, {vr(a + 8 + 2 * i, 2)}" for i in range(4)]
            else:
                e += [f"v_mul_f32 v{a + i}, v{a + i}, v{a + 8 + i}" for i in range(8)]
            p = E + 4 * (ct & 1)
            e += [f"v_cvt_pk_bf16_f32 v{p + i}, v{a + 2 * i}, v{a + 2 * i + 1}" for i in range(4)]
            pre = f"s_add_u32 {sAC}, {sAC}, 4096\n" if ct == 4 else ""
            e.append(pre + f"buffer_store_dwordx4 {vr(p, 4)}, v1, {WS}, {sAC} offen offset:{1024 * (ct & 3)} sc1")
            return [(t, ("e", ct)) for t in e]

        def corr(ct):
            a = vr(ACC + 16 * (ct % 4), 16)
            k(f"v_mfma_f32_32x32x8bf16_1k {a}, {vr(CA + 2 * (ct % 4), 2)}, {vr(VB, 2)}, {a}")

        def csread(ct):
            k(f"ds_read_b64 {vr(CA + 2 * (ct % 4), 2)}, v3 offset:{512 * ct}", tag=("cs", ct))

        def cost(t):
            if callable(t):
                return 8
            return sum(8 if l.startswith(("v_exp", "v_rcp", "v_rsq", "v_sqrt", "buffer")) else 4 for l in t.split("\n"))

        EA = [184, 136, 120, 168]
        DF = opt("edf", 3)
        units = [(g, t) for g in range(7 - DF) for t in range(2)] + [(g, 0) for g in range(7 - DF, 7)] + [(g, 1) for g in range(7 - DF, 7)]
        eseq = []
        for u, (g, t) in enumerate(units[:14 - DF]):
            if u == 13 - DF:
                eseq += [(u, j, c) for c in range(2) for j in range(4)]
            else:
                eseq += [(u, j, c) for j in range(4) for c in range(2)]
        eseq += [(u, j, c) for c in range(2) for u in range(14 - DF, 14) for j in range(4)]
        lastuse = {u: ND + i for i, (u, j, c) in enumerate(eseq)}
        lastacc = {2 * c + units[u][1]: ND + i for i, (u, j, c) in enumerate(eseq)}
        free = [(H + 16 * b, 171 + 4 * b) for b in range(7)] + [(200, 191)]
        SG, SDL = opt("sg", 0), opt("sdl", 30)
        stages = [[int(c) for c in s if int(c) < SG] for s in str(opt("stg", "01.23.45.6")).split(".")]
        stages = [s for s in stages if s]
        CLD = opt("cld", 0)
        if CLD:
            stages = [[-1]]
        checked = set()
        stage_of = {g: s for s, gs in enumerate(stages) for g in gs}
        L0, LS = opt("el0", 172), opt("els", 18) / 10
        FDL, CDL, CHK = opt("fdl", 13), opt("cdl", 28), opt("chk", 16)
        first = {}
        for u, (g, t) in enumerate(units):
            first.setdefault(stage_of.get(g, 0), L0 + 4 * LS * u)
        ubuf, eload, enext = {}, [(u, j) for u in range(14) for j in range(4)], L0
        stored, sent, asked, passed = {}, {}, {}, set()
        seen = set()

        def flagstore():
            return f"buffer_store_dwordx4 v[240:243], v244, {WS}, s76 offen sc1\ns_add_u32 s76, s76, 0x20000"

        def events(i):
            nonlocal enext
            spent = 0
            s = len(sent)
            if s < len(stages) and stages[s][-1] in stored and i >= stored[stages[s][-1]] + FDL:
                k.wait(vm=("e", stages[s][-1]))
                k(flagstore())
                sent[s] = i
                spent += 16
            s = len(asked)
            if s < len(stages) and s in sent and len(passed) == s and i >= max(sent[s] + CDL, first[s] - CHK - 1):
                k(f"s_mov_b32 s77, {WS_FQ + 0x20000 * s}")
                k(f"buffer_load_dword v248, v245, {WS}, s77 offen sc1", tag="PF")
                asked[s] = i
                spent += 12
            s = len(passed)
            if s in asked and i >= asked[s] + CHK:
                self.flagcheck("PF", "v245", "v248", "s77")
                passed.add(s)
                spent += 12
            if eload and i >= enext:
                u, j = eload[0]
                g, t = units[u]
                if stage_of[g] in passed if g < SG else (g in stored and i >= stored[g] + SDL and (passed or not CLD)):
                    if u not in ubuf:
                        ok = [f for f in free if f[1] <= i]
                        if ok:
                            free.remove(ok[0])
                            ubuf[u] = ok[0][0]
                            free.append((ok[0][0], lastuse[u]))
                    if u in ubuf:
                        sb = f"s{78 + 4 * t + j}"
                        k(f"buffer_load_dwordx4 {vr(ubuf[u] + 4 * j, 4)}, v1, {WS}, {sb} offen offset:{(g & 3) * 1024 * (1 - opt('xe', 0))} sc1", tag=("B", u, j))
                        if g == 3 and not opt("xe", 0):
                            k(f"s_add_u32 {sb}, {sb}, 4096")
                            spent += 4
                        eload.pop(0)
                        due = L0 + LS * (56 - len(eload))
                        enext = max(i + 1, due)
                        self.log.append(("ld", u, j, i))
                        spent += 8
            return spent

        self.log = []
        BUD, EBUD = opt("dbud", 20), opt("ebud", 24)
        hold = 0
        b = 0
        xch = {}
        for lt in range(3):
            for q in range(4):
                xch.setdefault(lastacc[lt] + 2 + q, []).append(f"ds_write_b128 v{4 + lt}, {vr(EA[lt] + 4 * q, 4)} offset:{1024 * q}")
        B1, B2 = lastacc[1] + opt("eb1", 0), lastacc[1] + opt("eb2", 9)

        def xread(lt):
            return [(f"ds_read_b128 {vr(EA[lt] + 4 * q, 4)}, v7 offset:{4096 * lt + 1024 * q}", ("c", lt, q)) for q in range(4)]

        def xadd(lt):
            g = []
            for q in range(4):
                g.append((lambda q=q: k.wait(lg=("c", lt, q)), None))
                g += [(f"v_add_f32 v{EA[0] + r}, v{EA[0] + r}, v{EA[lt] + r}", None) for r in range(4 * q, 4 * q + 4)]
            return g

        def fill():
            nonlocal b
            if hold or not queue or callable(queue[0][0]) or not queue[0][0].startswith("v_"):
                return False
            t, tg = queue.pop(0)
            k(t)
            fill.trans = cost(t) > 4
            b = min(b, 4) - cost(t)
            return True

        for i in range(ND + 112):
            if i < ND:
                ct, ks = seq[i]
                nxt = i + AH
                if nxt < ND and seq[nxt] == (5, 0):
                    assert not any(tg in (("G", 5), ("G", 6)) for _, tg in mem)
                    k.wait(vm=[("G", 5), ("G", 6)][:2 - opt("g6", 0)])
                    assert "CL" not in k.vm
                    stored[-1] = i - FDL
                    k("s_barrier")
                if nxt < ND and seq[nxt] == (6, 0) and opt("g6", 0):
                    k.wait(vm=("G", 6))
                    k("s_barrier")
                if ks == 0 and ct >= 4:
                    assert not any(tg == ("e", ct - 4) for _, tg in queue), ct
                if ct == 0 and ks in hgrp:
                    assert not any(tg == ("H", hgrp[ks] - 1) for _, tg in queue)
                    k.wait(vm=("H", hgrp[ks] - 1))
                    out = 28 - sum(1 for _, tg in queue if tg and tg[0] == "H")
                    self.datacheck([H + 4 * x for x in range(ks, hgrp[ks])], 248, hagain(ks, out))
                W2 = opt("dw2", 1)
                if i % W2 == 0:
                    k.wait(lg=("a", min(i + W2, ND) - 1))
                assert ("a", i) not in k.lg
                if "D" in opt("x16", ""):
                    for h in range(2):
                        d = vr(ACC + 16 * (ct % 4) + 8 * (ks & 1) + 4 * h, 4)
                        k(f"v_mfma_f32_16x16x32_bf16 {d}, {vr(AB + 4 * (i % NB), 4)}, {vr(H + 4 * (ks ^ h), 4)}, {'0' if ks < 2 else d}")
                        if nxt < ND and not h:
                            aread(nxt)
                            if fill() and not fill.trans:
                                fill()
                else:
                    self.mfma(vr(ACC + 16 * (ct % 4), 16), vr(AB + 4 * (i % NB), 4), vr(H + 4 * ks, 4), "0" if ks == 0 else None)
                    if nxt < ND:
                        aread(nxt)
                if i % opt("tsd", 28) == 0:
                    self.stamp(f"d{i}", True)
                if i == opt("dwd", 36):
                    if not opt("g4", 1):
                        mem += gdma(4, LR)
                    mem += self.wd_loads(self.wdn, 56)
                if CLD and i >= CLD and self.acl and (i - CLD) % opt("cls", 2) == 0:
                    k(self.acl.pop(0), tag="CL")
                if i == opt("stc", 68):
                    assert not queue

                    def stcheck():
                        k.wait(vm="S")
                        self.datacheck(list(range(SL, SL + 14)), 248, sts)
                    queue.append((stcheck, None))
                    queue += [(f"v_add_f32 v{SL}, v{SL}, v{SL + c}", None) for c in range(1, 14)]
                    queue += [(t.strip(), None) for t in self.stats(SL, SL + 1, VC, VB, VS)]
                    queue += [(f"v_rsq_f32 v{VC}, v{VS}", None), (f"v_sqrt_f32 v{VS}, v{VS}", None),
                              (f"v_mul_f32 v{VC}, {f32(-math.log2(math.e))}, v{VC}", None)]
                if i == 83:
                    assert not queue and not any(tg == ("G", 4) for _, tg in mem)
                    k.wait(vm=("G", 4))
                    k("s_barrier")
                    for c in range(4):
                        csread(c)
                    mem = gdma(5, 0) + gdma(6, 28672) + mem
                    continue
                if i == 86:
                    k.wait(lg=("cs", 3))
                    for c in range(3):
                        corr(c)
                        queue += epilogue(c, False)
                    hold = 3
                    continue
                if i > 83 and ks == 27:
                    k.wait(lg=("cs", ct))
                    corr(ct)
                    if ct == 6:
                        assert not mem
                        self.stamp("D2", True)
                        k(f"s_cmp_ge_u32 {sCB}, 14\ns_cbranch_scc1 L_tail")
                        rest = list(queue) + epilogue(6, True)
                        nflag = len(stages) - len(sent)
                        queue += [(f"v_accvgpr_read_b32 v{EA[3] + r}, a{224 + r}", "res") for r in range(16)]
                    elif not queue:
                        hold = 4
                    queue += epilogue(ct, False)
                    continue
                if i > 83 and ks == 8 and ct < 6:
                    csread(ct + 1)
                b = min(b, 4) + BUD
            else:
                u, j, c = eseq[i - ND]
                g, t = units[u]
                lt = 2 * c + t
                assert (u, j) not in eload, (i, u, j)
                if lt not in seen:
                    assert 4 in stored
                    assert not any(tg in ("res", ("e", 5)) for _, tg in queue) or t == 0, (i, stored, len(queue))
                if g >= SG and u not in checked:
                    assert (u, 3) not in eload, (i, u)
                    k.wait(vm=("B", u, 3))
                    again = [f"s_add_u32 s60, s{74 + units[x][1]}, {7168 * y + 1024 * units[x][0]}\n"
                             f"buffer_load_dwordx4 {vr(ubuf[x] + 4 * y, 4)}, v1, {WS}, s60 offen sc1"
                             for x in range(u, 14) for y in range(4) if (x, y) not in eload and x not in checked]
                    self.datacheck([ubuf[u] + 4 * y for y in range(4)], 247, again)
                    checked.add(u)
                k.wait(vm=("B", u, j))
                if "E" in opt("x16", ""):
                    for h in range(2):
                        d = vr(EA[lt] + 8 * (j & 1) + 4 * h, 4)
                        k(f"v_mfma_f32_16x16x32_bf16 {d}, {ar(8 * (7 * j + g) + 4 * c, 4)}, {vr(ubuf[u] + 4 * (j ^ h), 4)}, {'0' if (g == 0 and j < 2 and lt < 3) else d}")
                        if not h and fill():
                            fill()
                else:
                    self.mfma(vr(EA[lt], 16), ar(8 * (7 * j + g) + 4 * c, 4), vr(ubuf[u] + 4 * j, 4), "0" if (lt not in seen and lt < 3) else None)
                seen.add(lt)
                if i > ND and (i - ND) % opt("tsd", 28) == 0:
                    self.stamp(f"Ee{i - ND}", True)
                b = min(b, 4) + EBUD
                if i == B1 and B1 < B2:
                    k.wait(lg="all")
                    k("s_barrier")
                    queue += [x for p in zip(xread(0), xread(2)) for x in p] + xadd(2)
                for t in xch.get(i, []):
                    k(t)
                    b -= 8
                if i == B2:
                    k.wait(lg="all")
                    k("s_barrier")
                    if B1 >= B2:
                        queue += [x for p in zip(xread(0), xread(2)) for x in p] + xread(1) + xadd(2)
                    else:
                        queue = xread(1) + queue
                    queue += xadd(1)
            b -= events(i)
            if mem and (hold or i & 1 or (mem[0][1][0] == "G" and i < opt("gr", 0)) or i < opt("wr", 0)):
                t, tg = mem.pop(0)
                k(t, tag=tg)
                b -= cost(t)
                if mem and mem[0][1] is None:
                    k(mem.pop(0)[0])
                    b -= 4
            if hold:
                hold -= 1
                continue
            while queue and b >= cost(queue[0][0]):
                t, tg = queue.pop(0)
                b -= cost(t)
                if callable(t):
                    t()
                else:
                    k(t, tag=tg)
                    if "buffer_store" in t:
                        stored[tg[1]] = i
                if i < opt("stc", 68):
                    break
        self.log += [("stored", stored), ("sent", sent), ("asked", asked), ("left", len(queue), self.blog)]
        for t, tg in queue:
            if callable(t):
                t()
            else:
                k(t, tag=tg)
        self.stamp("E1", True)
        o = EA[3]
        for s in range(2):
            for i in range(4 * s, 4 * s + 4):
                k(f"v_pk_add_f32 {vr(o + 2 * i, 2)}, {vr(o + 2 * i, 2)}, {vr(EA[0] + 2 * i, 2)}")
            for i in range(4 * s, 4 * s + 4):
                k(f"v_cvt_pk_bf16_f32 v{H + i}, v{o + 2 * i}, v{o + 2 * i + 1}")
            if not opt("oc", 2):
                k(f"buffer_store_dwordx4 {vr(H + 4 * s, 4)}, v254, {OUT}, 0 offen offset:{16 * s} {self.pol('ont')}")
            if opt("oc", 2) == 2:
                k(f"ds_write_b128 v244, {vr(H + 4 * s, 4)} offset:{16 * s}")
        if opt("oc", 2) == 2:
            for s in range(2):
                k(f"ds_read_b128 {vr(H + 8 + 4 * s, 4)}, v7 offset:{1040 * s}", tag=("o", s))
            for s in range(2):
                k.wait(lg=("o", s))
                k(f"buffer_store_dwordx4 {vr(H + 8 + 4 * s, 4)}, v254, {OUT}, 0 offen offset:{896 * s} {self.pol('ont')}")
        if opt("oc", 2) == 1:
            def sel(d, own, other, mask, perm):
                k(f"s_mov_b32 vcc_lo, {mask}\ns_mov_b32 vcc_hi, {mask}")
                for i in range(4):
                    k(f"v_cndmask_b32_dpp v{d + i}, v{other + i}, v{own + i}, vcc quad_perm:{perm} row_mask:0xf bank_mask:0xf")
            sel(H + 12, H + 4, H, "0xaaaaaaaa", "[1,0,3,2]")
            sel(H + 8, H, H + 4, "0x55555555", "[1,0,3,2]")
            for i in range(4):
                k(f"v_permlane32_swap_b32 v{H + 8 + i}, v{H + 12 + i}")
            sel(H, H + 8, H + 12, "0x33333333", "[2,3,0,1]")
            k(f"buffer_store_dwordx4 {vr(H, 4)}, v254, {OUT}, 0 offen {self.pol('ont')}")
            sel(H + 4, H + 12, H + 8, "0xcccccccc", "[2,3,0,1]")
            k(f"buffer_store_dwordx4 {vr(H + 4, 4)}, v254, {OUT}, 0 offen offset:1792 {self.pol('ont')}")
        self.stamp("E2")
        if self.ts:
            k("s_waitcnt vmcnt(0)")
            self.stamp("E3")
        k("s_branch L_fin")
        k.label("L_tail")
        for t, tg in rest:
            k(t)
        k.wait(vm="all")
        for _ in range(nflag):
            k(flagstore())
        k(f"""s_cmp_lg_u32 s2, 255
        s_cbranch_scc1 L_fin
        s_lshl_b32 s55, {sW}, 6
        v_add_u32 v2, s55, v0
        v_lshlrev_b32 v2, 7, v2""")
        self.poll("v2", "v3", WS_FP)
        k("s_mov_b32 s50, 0")
        self.publish(WS_E, "s50", 8, 12)
        k.label("L_fin")
        if self.ts:
            assert not self.pend
            for i in range(6):
                k(f"v_writelane_b32 v255, s{90 + i}, {56 + i}")
            k(f"""s_memrealtime s[96:97]
            s_memtime s[98:99]
            s_waitcnt lgkmcnt(0)
            v_writelane_b32 v255, s96, 62
            v_writelane_b32 v255, s98, 63
            s_lshl_b32 s55, s2, 2
            s_add_u32 s55, s55, {sW}
            s_lshl_b32 s55, s55, 8
            s_add_u32 s55, s55, {WS_TS}
            v_lshlrev_b32 v2, 2, v0
            buffer_store_dword v255, v2, {WS}, s55 offen""")
            if self.ts == 2:
                k(f"""s_load_dwordx2 s[20:21], s[0:1], 64
                s_mov_b32 s22, 256
                v_readlane_b32 s56, v255, 0
                v_readlane_b32 s57, v255, 1
                s_sub_u32 s56, s96, s56
                v_subrev_u32 v255, s57, v255
                v_writelane_b32 v255, s56, 0
                s_lshl_b32 s55, s2, 2
                s_add_u32 s55, s55, {sW}
                s_lshl_b32 s55, s55, 8
                s_waitcnt lgkmcnt(0)
                buffer_store_dword v255, v2, {PA}, s55 offen""")
        if "spa" in self.opt:
            k(f"""s_cmp_lg_u32 s2, {self.opt.get("spw", 0)}
            s_cbranch_scc1 L_nospin
            s_memrealtime s[90:91]
            s_waitcnt lgkmcnt(0)
            s_sub_u32 s94, s94, s92
            s_min_u32 s94, s94, 20000
            s_mul_i32 s94, s94, 4""")
            k.label("L_spin")
            k("""s_memrealtime s[88:89]
            s_waitcnt lgkmcnt(0)
            s_sub_u32 s88, s88, s90
            s_cmp_lt_u32 s88, s94
            s_cbranch_scc1 L_spin""")
            k.label("L_nospin")
        if not opt("nfw", 0):
            k("s_waitcnt vmcnt(0)")
        k.label("L_end")
        k("s_endpgm")

    def build(self):
        self.prologue()
        self.phase_a()
        self.phase_b()
        self.phase_c()
        self.phase_de()
        self.late_code()
        self.k.lines = [l.replace("CODE_LAST", "0x8000") for l in self.k.lines]
        n = self.k.pad()
        self.misal = align8(self.k.lines)
        last = (sum(sizes(self.k.lines)) - 128) & ~3
        assert last >= 0x8000
        self.k.lines = [l.replace("v_min_u32 v127, 0x8000", f"v_min_u32 v127, {last}") for l in self.k.lines]
        ref = open(f"cdna_kernels/{NAME}.s.ref").read().split("\n")
        head = [l for l in ref if l.startswith(";") and "@launch" not in l]
        out = head + ["; @launch grid=(256,1,1) block=(256,1,1) lds=163840",
                      '.amdgcn_target "amdgcn-amd-amdhsa--gfx950"', ".text", f".globl {NAME}_kernel", ".p2align 8",
                      f".type {NAME}_kernel,@function", f"{NAME}_kernel:"]
        out += [l if l.endswith(":") else "    " + l for l in self.k.lines]
        out += ['.section .rodata,"a"', ".p2align 6", f".amdhsa_kernel {NAME}_kernel",
                "  .amdhsa_next_free_vgpr 512", "  .amdhsa_next_free_sgpr 102", "  .amdhsa_accum_offset 256",
                "  .amdhsa_group_segment_fixed_size 0", "  .amdhsa_kernarg_size 80", "  .amdhsa_user_sgpr_count 2",
                "  .amdhsa_user_sgpr_kernarg_segment_ptr 1", "  .amdhsa_system_sgpr_workgroup_id_x 1", ".end_amdhsa_kernel", ""]
        self.nbytes = sum(sizes(self.k.lines))
        self.nnop = n
        return "\n".join(out)


if __name__ == "__main__":
    args = dict(a.split("=") for a in sys.argv[2:])
    args = {a: int(b) if b.lstrip('-').isdigit() else b for a, b in args.items()}
    g = Gen(**args)
    text = g.build()
    open(sys.argv[1], "w").write(text)
    if g.ts:
        open(sys.argv[1] + ".ts", "w").write(" ".join([str(g.ts)] + g.tsn))
    print(f"{sys.argv[1]}: {g.nbytes} bytes of code, {g.nnop} pads, {g.misal} misaligned")
    if args.get("log"):
        print(g.log)
```

```python
import math
import struct
import sys

from asmlib import K, sizes, align8

NAME = "sequential_preLN__softmax_full_mha__glu_gated_glu__prompt"

WS_QKV, WS_O, WS_H, WS_ACT = 0, 0x600000, 0x800000, 0xA00000
WS_WGU, WS_WD, WS_WO, WS_CS = 0x1100000, 0x1500000, 0x1700000, 0x1780000
WS_FX, WS_FB, WS_FC, WS_FD, WS_E, WS_FP = 0x1800000, 0x1808000, 0x1810000, 0x1818000, 0x1820000, 0x1828000
WS_ST = 0x1880000
OOB = 0x40000000
WS_TS = 0x1900000
WS_FQ = 0x1A00000
WS_FA = 0x1A80000
WS_SIZE = 0x1B00000

X, WQ, WS, OUT, PA, PB = "s[4:7]", "s[8:11]", "s[12:15]", "s[16:19]", "s[20:23]", "s[24:27]"
sW, sA, sB, sTAG, sCNT, sONE, sFB = "s36", "s37", "s38", "s39", "s40", "s41", "s42"
sU, sPD, sPCS, sP0, sP1, sPST = "s43", "s44", "s45", "s46", "s47", "s48"
sXL = "s49"
sTB, sCB = "s88", "s89"
sO, sH, sST, sAC = "s3", "s34", "s100", "s101"
sA2, sB2, sPS, sPF = "s28", "s29", "s30", "s31"
vFLAG, vTAG = "v211", 212
LR = 114688
ONES = 0x3F803F80
U_D, U_O, U_END = 392, 588, 644
LQ, LX, LP = 57344, 147456, 151552
QA, ACC, RING, CS, CX, CA, VB, RS, ON, T0, RA, RB, C1 = 8, 40, 72, 104, 116, 124, 130, 132, 134, 136, 138, 140, 142
PK, SQ, SM, WKA, XA, VX, VWK, VP = 144, 160, 168, 176, 184, 188, 26, 28
WQA, CSW, CSR, QW, VWQ, VE, JUNK = 192, 196, 197, 198, 202, 203, 204


def f32(x):
    return hex(struct.unpack("<I", struct.pack("<f", x))[0])


def vr(b, n):
    return f"v[{b}:{b + n - 1}]"


def ar(b, n):
    return f"a[{b}:{b + n - 1}]"


class Gen:
    def __init__(self, ts=False, force_fb=False, **opt):
        self.k = K()
        self.ts = ts
        self.nts = 0
        self.tsn = []
        self.pend = []
        self.late = []
        self.force_fb = force_fb
        self.opt = opt

    def stamp(self, name, nw=False):
        if self.opt.get("spa") == name:
            self.k("s_memrealtime s[92:93]")
        if self.opt.get("spb") == name:
            self.k("s_memrealtime s[94:95]")
        if self.ts == 2 and name not in ("A0", "A3", "A7", "A9", "B0", "B1", "B3", "C0", "C3", "D0", "D4", "E0", "E2"):
            return
        if "tso" in self.opt and not name.startswith(tuple(self.opt["tso"])):
            return
        if self.ts == 4 and not name.startswith(tuple(self.opt.get("tsp", "d"))):
            return
        if self.ts:
            ops = {3: ["s_memrealtime"], 4: ["s_memrealtime", "s_memtime"]}.get(self.ts, ["s_memtime"])
            if not nw and self.pend:
                self.k("s_waitcnt lgkmcnt(0)")
            for r, l in self.pend:
                self.k(f"v_writelane_b32 v255, s{r}, {l}")
            self.pend = []
            for j, op in enumerate(ops):
                self.k(f"{op} s[{98 - 2 * j}:{99 - 2 * j}]")
                self.pend.append((98 - 2 * j, self.nts + 2))
                self.nts += 1
                self.tsn.append(name)
            assert self.nts <= 54
            if not nw:
                self.k("s_waitcnt lgkmcnt(0)")
                for r, l in self.pend:
                    self.k(f"v_writelane_b32 v255, s{r}, {l}")
                self.pend = []
                self.k.lg.clear()

    def mfma(self, d, a, b, c=None):
        c = d if c is None else c
        self.k(f"v_mfma_f32_32x32x16_bf16 {d}, {a}, {b}, {c}")

    def poll(self, vaddr, vtmp, base, cnt=None):
        k = self.k
        L, Dn = k.newlabel("poll"), k.newlabel("seen")
        if not isinstance(base, str):
            k(f"s_mov_b32 s60, {base}")
            base = "s60"
        k.label(L)
        if self.ts and cnt:
            k(f"s_add_u32 {cnt}, {cnt}, 1")
        k(f"buffer_load_dword {vtmp}, {vaddr}, {WS}, {base} offen sc1")
        k.wait(vm="all")
        k(f"""v_cmp_ne_u32 vcc, {sTAG}, {vtmp}
        s_cbranch_vccz {Dn}
        s_sub_u32 {sCNT}, {sCNT}, 1
        s_cselect_b32 {sCNT}, 0, {sCNT}
        s_cbranch_scc0 {L}""")
        k.label(Dn)

    def publish(self, base, sidx, vt, vo):
        k = self.k
        for i in range(4):
            k(f"v_mov_b32 v{vt + i}, {sTAG}")
        k(f"""s_lshl_b32 s60, {sidx}, 7
        s_add_u32 s60, s60, {base}
        s_cmp_eq_u32 {sW}, 0
        s_cselect_b32 s60, s60, {OOB}
        v_lshrrev_b32 v{vo}, 3, v0
        v_lshl_add_u32 v{vo}, v{vo}, 26, v1""")
        k.wait(vm="all")
        k(f"s_barrier\nbuffer_store_dwordx4 {vr(vt, 4)}, v{vo}, {WS}, s60 offen sc1")

    def stats(self, vs, vq, t0, vb, vrs):
        return f"""v_mov_b32 v{vq}, v{vs}
        v_permlane32_swap_b32 v{vs}, v{vq}
        v_mul_f32 v{vs}, {f32(-1.0 / 448)}, v{vs}
        v_mul_f32 v{vq}, {f32(1.0 / 448)}, v{vq}
        v_cvt_pk_bf16_f32 v{t0}, v{vs}, v{vs}
        v_fma_f32 v{vq}, -v{vs}, v{vs}, v{vq}
        v_and_b32 v{t0}, 0xffff0000, v{t0}
        v_max_f32 v{vq}, 0, v{vq}
        v_sub_f32 v{t0}, v{vs}, v{t0}
        v_add_f32 v{vrs}, {f32(1e-5)}, v{vq}
        v_cvt_pk_bf16_f32 v{vb}, v{vs}, v{t0}
        v_cvt_pk_bf16_f32 v{vb + 1}, v{vs}, v{t0}""".split("\n")

    def split2(self, vc, vd):
        return f"""v_cvt_pk_bf16_f32 v{vd}, v{vc}, v{vc}
        v_and_b32 v{vd + 1}, 0xffff0000, v{vd}
        v_sub_f32 v{vd + 1}, v{vc}, v{vd + 1}
        v_cvt_pk_bf16_f32 v{vd + 1}, v{vd + 1}, v{vd + 1}""".split("\n")

    def prologue(self):
        k = self.k
        k(f"""s_cmp_ge_u32 s2, 0x100
        s_cbranch_scc1 L_end
        s_load_dwordx16 s[64:79], s[0:1], 0
        s_load_dwordx2 s[12:13], s[0:1], 72""")
        if self.ts:
            k("s_memrealtime s[96:97]\ns_memtime s[98:99]")
        if "spa" in self.opt:
            k("s_memrealtime s[92:93]\ns_memrealtime s[94:95]")
        if self.opt.get("touch", 1):
            k.note("pull the whole code object into this die's L2 ahead of instruction fetch")
            if self.opt.get("touch", 1) == 2:
                k(f"""s_getpc_b64 s[86:87]
                v_lshlrev_b32 v127, 7, v0
                global_load_dword v{JUNK}, v127, s[86:87]
                v_add_u32 v127, 0x8000, v127
                v_min_u32 v127, CODE_LAST, v127
                global_load_dword v{JUNK}, v127, s[86:87]""")
            else:
                k(f"""s_getpc_b64 s[86:87]
                v_lshrrev_b32 v127, 4, v0
                s_lshr_b32 s50, s2, 3
                v_lshlrev_b32 v127, 5, v127
                v_add_u32 v127, s50, v127
                v_lshlrev_b32 v127, 7, v127
                v_min_u32 v127, CODE_LAST, v127
                global_load_dword v{JUNK}, v127, s[86:87]""")
        k(f"""v_lshrrev_b32 v2, 6, v0
        v_and_b32 v0, 63, v0
        s_and_b32 {sA}, s2, 7
        v_readfirstlane_b32 {sW}, v2
        s_lshl_b32 {sA}, {sA}, 1
        s_bfe_u32 s50, s2, 0x10003
        s_add_u32 {sA}, {sA}, s50
        s_lshr_b32 {sB}, s2, 4
        s_bfe_u32 {sA2}, s2, 0x20001
        s_lshl_b32 {sA2}, {sA2}, 2
        s_bfe_u32 s50, s2, 0x20003
        s_add_u32 {sA2}, {sA2}, s50
        s_and_b32 {sB2}, s2, 1
        s_lshl_b32 {sB2}, {sB2}, 3
        s_lshr_b32 s50, s2, 5
        s_add_u32 {sB2}, {sB2}, s50
        v_lshlrev_b32 v1, 4, v0
        s_mov_b32 {sCNT}, 0x40000
        s_mov_b32 {sONE}, {ONES}
        s_mov_b32 {sFB}, 0
        v_mov_b32 v254, 0""")
        mp = self.opt.get("map", 2)
        if mp == 0:
            k(f"s_mov_b32 {sTB}, {sA}\ns_mov_b32 {sCB}, {sB}")
        else:
            k(f"s_mov_b32 {sTB}, {sA2}\ns_and_b32 {sCB}, s2, 1\ns_lshl_b32 s50, s50, 1\ns_add_u32 {sCB}, {sCB}, s50")
        if mp == 2:
            k(f"s_mov_b32 {sA}, {sB2}\ns_mov_b32 {sB}, {sA2}")
        k(f"""s_mul_i32 s50, {sB2}, 112
        s_mul_i32 s52, {sW}, {16 * 2688}
        s_add_u32 s50, s50, s52
        s_add_u32 s50, s50, 896
        v_lshrrev_b32 v14, 3, v0
        v_and_b32 v15, 7, v0
        v_bfe_u32 v16, v0, 4, 1
        v_lshlrev_b32 v16, 2, v16
        v_xor_b32 v16, v15, v16
        v_min_u32 v16, 6, v16
        v_mul_u32_u24 v17, 2688, v14
        v_lshlrev_b32 v16, 4, v16
        v_add3_u32 v{VWK}, v17, v16, s50
        v_add_u32 v{VWK + 1}, {8 * 2688}, v{VWK}""")
        k(f"""v_lshrrev_b32 v16, 4, v0
        v_xor_b32 v16, v15, v16
        v_mul_u32_u24 v17, 896, v14
        s_lshl_b32 s52, {sA2}, 2
        s_add_u32 s52, s52, {sW}
        s_mul_i32 s52, s52, {32 * 896}
        v_lshlrev_b32 v18, 4, v16
        v_add3_u32 v{VX}, v17, v18, s52
        v_xor_b32 v{VX + 1}, 64, v{VX}
        v_add_u32 v{VX + 1}, {8 * 896}, v{VX + 1}
        v_add_u32 v{VX + 2}, {16 * 896}, v{VX}
        v_add_u32 v{VX + 3}, {16 * 896}, v{VX + 1}""")
        k(f"""s_lshl_b32 {sXL}, {sW}, 14
        s_add_u32 {sXL}, {sXL}, 86016""")
        k(f"""s_lshr_b32 s53, s2, 3
        s_mul_i32 s54, s53, 37
        s_lshr_b32 s54, s54, 8
        s_mul_i32 s54, s54, 7
        s_sub_u32 s53, s53, {'s54' if self.opt.get('rot', 1) else 's53'}
        s_lshl_b32 s51, {sW}, 11
        s_mul_i32 s33, s53, {64 * 2688}
        s_lshl_b32 s60, s53, 7
        s_mov_b32 s6, {2048 * 896}
        s_mov_b32 s7, 0x20000
        s_mov_b32 s10, {448 * 2688}
        s_mov_b32 s11, 0x20000
        s_mov_b32 s14, {WS_SIZE}
        s_mov_b32 s15, 0x20000
        s_mov_b32 s18, {2048 * 896}
        s_mov_b32 s19, 0x20000
        s_mov_b32 s23, 0x20000
        s_mov_b32 s27, 0x20000
        s_mov_b32 s58, {WS_E}
        v_mov_b32 v16, 0
        s_waitcnt lgkmcnt(0)
        s_mov_b32 s4, s64
        s_mov_b32 s5, s65
        s_mov_b32 s8, s66
        s_mov_b32 s9, s67""")
        if self.ts:
            k("v_writelane_b32 v255, s96, 0\nv_writelane_b32 v255, s98, 1")
            for i in range(6):
                k(f"s_mov_b32 s{90 + i}, 0")

    NEXT = f"s_add_u32 s53, s53, 1\ns_cmp_eq_u32 s53, 7\ns_cselect_b32 s53, 0, s53\ns_mul_i32 s33, s53, {64 * 2688}\ns_lshl_b32 s60, s53, 7"

    def a_dma(self, c):
        g = [(f"s_add_u32 m0, s51, {c * 8192 + t * 1024}", f"buffer_load_dwordx4 v{VWK + t}, {WQ}, s33 offen {self.pol('wnt')}lds", ("W", c)) for t in range(2)]
        g += [(f"s_add_u32 m0, {sXL}, {(c % 3) * 4096 + t * 1024}",
               f"buffer_load_dwordx4 v{VX + t}, {X}, s60 offen {self.pol('xnt')}lds" + ("\n" + self.NEXT if t == 3 else ""), ("X", c)) for t in range(4)]
        return g

    def q_dma(self, c):
        return (f"s_add_u32 m0, s52, {c * 4096}", f"buffer_load_dwordx4 v{VWQ}, {WQ}, s33 offen lds\n" + self.NEXT.rsplit("\n", 1)[0], ("Q", c))

    def pol(self, o):
        return ["", "nt ", "sc1 nt ", "sc0 sc1 nt ", "sc0 sc1 ", "sc1 "][self.opt.get(o, {"pnt": 1, "ont": 4}.get(o, 0))]

    def p_dma(self):
        return [(f"s_add_u32 m0, s{56 + h}, {t * 1024}", f"buffer_load_dwordx4 v{VP}, {srd}, {sb} offen {self.pol('pnt')}lds\ns_add_u32 {sb}, {sb}, {sPST}", "P")
                for h, (srd, sb) in enumerate(((PA, sP0), (PB, sP1))) for t in range(4)]

    def dma(self, g):
        for a, b, tg in g:
            self.k(a)
            self.k(b, tag=tg)

    def unit_setup(self):
        k = self.k
        k(f"""s_mov_b32 s16, s78
        s_mov_b32 s17, s79
        s_lshl_b32 {sU}, {sW}, 8
        s_add_u32 {sU}, {sU}, s2
        s_cmp_ge_u32 {sU}, {U_D}
        s_cbranch_scc1 L_u1
        s_mov_b32 s20, s72
        s_mov_b32 s21, s73
        s_mov_b32 s24, s74
        s_mov_b32 s25, s75
        s_mov_b32 s22, {448 * 3584}
        s_mul_i32 s58, {sU}, 4682
        s_lshr_b32 s58, s58, 16
        s_mul_i32 s59, s58, 14
        s_sub_u32 s59, {sU}, s59
        s_mul_i32 {sP0}, s59, {32 * 3584}
        s_lshl_b32 s61, s58, 7
        s_add_u32 {sP0}, {sP0}, s61
        s_mov_b32 {sP1}, {sP0}
        s_mov_b32 {sPST}, 3584
        s_mul_i32 {sPD}, s58, {4 * 28 * 1024}
        s_lshl_b32 s61, s59, 11
        s_add_u32 {sPD}, {sPD}, s61
        s_add_u32 {sPD}, {sPD}, {WS_WGU}
        s_mov_b32 {sPS}, 28672
        s_lshl_b32 {sPCS}, {sU}, 9
        s_add_u32 {sPCS}, {sPCS}, {WS_CS}
        s_branch L_u3""")
        k.label("L_u1")
        k(f"""s_mov_b32 {sPST}, 896
        s_mov_b32 {sPS}, 2048
        s_mov_b32 {sPCS}, {OOB}
        s_cmp_ge_u32 {sU}, {U_O}
        s_cbranch_scc1 L_u2
        s_mov_b32 s20, s76
        s_mov_b32 s21, s77
        s_mov_b32 s24, s76
        s_mov_b32 s25, s77
        s_mov_b32 s22, {1792 * 896}
        s_sub_u32 s61, {sU}, {U_D}
        s_mul_i32 s58, s61, 2341
        s_lshr_b32 s58, s58, 16
        s_mul_i32 s59, s58, 28
        s_sub_u32 s59, s61, s59
        s_mul_i32 {sP0}, s59, {64 * 896}
        s_lshl_b32 s58, s58, 7
        s_add_u32 {sP0}, {sP0}, s58
        s_add_u32 {sP1}, {sP0}, {32 * 896}
        s_lshl_b32 {sPD}, s61, 13
        s_add_u32 {sPD}, {sPD}, {WS_WD}
        s_branch L_u3""")
        k.label("L_u2")
        k(f"""s_mov_b32 s20, s68
        s_mov_b32 s21, s69
        s_mov_b32 s24, s68
        s_mov_b32 s25, s69
        s_cmp_lt_u32 {sU}, {U_END}
        s_cselect_b32 s22, {448 * 896}, 0
        s_sub_u32 s61, {sU}, {U_O}
        s_lshr_b32 s58, s61, 3
        s_and_b32 s59, s61, 7
        s_mul_i32 {sP0}, s59, {56 * 896}
        s_lshl_b32 s58, s58, 7
        s_add_u32 {sP0}, {sP0}, s58
        s_add_u32 {sP1}, {sP0}, {28 * 896}
        s_lshl_b32 {sPD}, s61, 13
        s_add_u32 {sPD}, {sPD}, {WS_WO}
        s_cmp_lt_u32 {sU}, {U_END}
        s_cselect_b32 {sPD}, {sPD}, {OOB}""")
        k.label("L_u3")
        k(f"""s_mov_b32 s26, s22
        s_lshl_b32 {sPF}, {sU}, 7
        s_add_u32 {sPF}, {sPF}, {WS_FP}
        s_cmp_lt_u32 {sU}, {U_END}
        s_cselect_b32 {sPF}, {sPF}, {OOB}
        v_lshrrev_b32 v16, 3, v0
        v_and_b32 v17, 7, v0
        v_mul_lo_u32 v16, v16, {sPST}
        v_lshl_add_u32 v{VP}, v17, 4, v16
        s_lshl_b32 {sPST}, {sPST}, 3""")

    def out_addrs(self):
        k = self.k
        k(f"""s_lshl_b32 s58, {sB}, 2
        s_add_u32 s58, s58, {sW}
        s_lshl_b32 s58, s58, 4
        s_add_u32 s58, s58, {sA}
        s_lshl_b32 s58, s58, 11
        s_add_u32 {sO}, s58, {WS_O}
        s_and_b32 s58, {sCB}, 1
        s_lshl_b32 s58, s58, 1
        s_lshl_b32 s59, {sTB}, 2
        s_add_u32 s58, s58, s59
        s_and_b32 s59, {sW}, 1
        s_add_u32 s62, s58, s59
        s_lshr_b32 s59, {sW}, 1
        s_and_b32 s63, {sCB}, 14
        s_add_u32 s63, s63, s59
        s_mul_i32 s58, s62, 14
        s_add_u32 s58, s58, s63
        s_lshl_b32 {sST}, s58, 8
        s_lshl_b32 {sH}, s58, 11
        s_add_u32 {sH}, {sH}, {WS_H}
        s_add_u32 {sST}, {sST}, {WS_ST}
        s_cmp_ge_u32 {sCB}, 14
        s_cselect_b32 {sH}, {OOB}, {sH}
        s_cselect_b32 {sST}, {OOB}, {sST}
        s_lshl_b32 s58, {sA2}, 2
        s_add_u32 s58, s58, {sW}
        s_mul_i32 {sAC}, s58, {112 * 1024}
        s_mul_i32 s59, {sB2}, 7168
        s_add_u32 {sAC}, {sAC}, s59
        s_add_u32 {sAC}, {sAC}, {WS_ACT}""")

    def clears(self):
        g = [f"buffer_store_dwordx4 a[220:223], v1, {WS}, {b} offen offset:{1024 * s} sc1" for b in ("s64", "s65") for s in range(2)]
        g.append(f"buffer_store_dword a220, v210, {WS}, s66 offen sc1")
        return g

    def flagcheck(self, tag, vaddr, vtmp, base):
        k = self.k
        L1, L2 = k.newlabel("fw"), k.newlabel("fok")
        k.wait(vm=tag)
        k(f"v_cmp_ne_u32 vcc, {sTAG}, {vtmp}\ns_cbranch_vccnz {L1}")
        k.label(L2)
        self.late.append(("poll", L1, L2, vaddr, vtmp, base))

    def datacheck(self, regs, vt, loads):
        k = self.k
        L1, L2 = k.newlabel("rs"), k.newlabel("rok")
        k("\n".join(self.maxchain(regs, vt)))
        k(f"v_cmp_eq_u32 vcc, -1, v{vt}\ns_cbranch_vccnz {L1}")
        k.label(L2)
        self.late.append(("respin", L1, L2, loads, regs, vt))

    def wo(self, i):
        return ar(224 + 4 * i, 4) if i < 8 else vr(216 + 4 * (i - 8), 4)

    @staticmethod
    def maxchain(regs, vt):
        g = []
        regs = list(regs)
        acc = regs.pop(0)
        while regs:
            if len(regs) >= 2:
                g.append(f"v_max3_u32 v{vt}, v{acc}, v{regs.pop(0)}, v{regs.pop(0)}")
            else:
                g.append(f"v_max_u32 v{vt}, v{acc}, v{regs.pop(0)}")
            acc = vt
        return g

    def a_setup(self):
        k = self.k
        k(f"""v_bfe_u32 v16, v0, 2, 2
        v_lshrrev_b32 v17, 5, v0
        v_lshl_add_u32 v18, v17, 3, v16
        v_bfe_u32 v19, v0, 4, 1
        v_lshlrev_b32 v19, 5, v19
        v_and_b32 v20, 3, v0
        v_lshl_add_u32 v19, v20, 3, v19
        v_bfe_u32 v21, v0, 3, 1
        v_lshlrev_b32 v21, 6, v21
        v_xor_b32 v22, v19, v21
        v_add_u32 v23, 56, v19
        v_xor_b32 v23, v23, v21
        v_lshl_add_u32 v22, v18, 7, v22
        v_lshl_add_u32 v23, v18, 7, v23
        v_lshl_add_u32 v24, v18, 6, v19
        s_and_b32 s58, {sB2}, 1
        s_lshl_b32 s58, s58, 3
        s_add_u32 s58, s58, {LQ}
        v_add_u32 v24, s58, v24
        v_and_b32 v25, 31, v0
        v_bfe_u32 v15, v0, 1, 3
        v_xor_b32 v15, v15, v17
        v_lshlrev_b32 v15, 4, v15
        v_lshl_add_u32 v15, v25, 7, v15
        v_add_u32 v15, {sXL}, v15""")
        for p in range(4):
            k(f"""s_add_u32 s58, {sW}, {p}
            s_and_b32 s58, s58, 3
            s_lshl_b32 s59, s58, 11
            v_add_u32 v{WKA + p}, s59, v22
            v_add_u32 v{WKA + 4 + p}, s59, v23
            s_lshl_b32 s59, s58, 10
            v_add_u32 v{WQA + p}, s59, v24
            s_lshl_b32 s58, s58, 5
            v_xor_b32 v{XA + p}, s58, v15""")
        k(f"""v_mov_b32 v{ON}, {sONE}
        v_mov_b32 v{ON + 1}, {sONE}
        v_mov_b32 v{RA + 1}, 0
        v_mov_b32 v{RB + 1}, 0
        v_cmp_gt_u32 vcc, 28, v0
        v_cndmask_b32 v{RB}, 0, v{ON}, vcc
        v_cmp_eq_u32 vcc, 28, v25
        v_cndmask_b32 v{C1}, 0, 1.0, vcc
        v_add_u32 v{CSR}, {LX}, v1
        s_lshl_b32 s58, {sW}, 2
        v_add_u32 v{CSW}, s58, v{CSR}
        s_lshl_b32 s58, {sW}, 11
        s_add_u32 s58, s58, 122880
        v_add_u32 v{QW}, s58, v1""")
        for u in range(3):
            k(f"v_xor_b32 v{QW + 1 + u}, {(3 - u) * 2048}, v{QW}")
        k(f"""v_lshrrev_b32 v16, 2, v0
        v_mul_u32_u24 v16, 2688, v16
        v_lshl_add_u32 v16, v20, 4, v16
        s_mul_i32 s58, {sB2}, 56
        s_andn2_b32 s58, s58, 15
        s_mul_i32 s59, {sW}, {16 * 2688}
        s_add_u32 s58, s58, s59
        v_add_u32 v{VWQ}, s58, v16
        s_lshl_b32 s52, {sW}, 10
        s_add_u32 s52, s52, {LQ}
        s_lshl_b32 s58, {sA2}, 2
        s_add_u32 s58, s58, {sW}
        s_lshl_b32 s50, s58, 11
        s_lshl_b32 s59, {sB2}, 18
        s_add_u32 s50, s50, s59
        s_add_u32 s50, s50, {16 << 17}
        s_lshl_b32 s61, s58, 4
        s_add_u32 s61, s61, {sB2}
        s_lshl_b32 s61, s61, 7
        s_add_u32 s61, s61, {WS_FA}
        v_lshrrev_b32 {vFLAG}, 3, v0
        v_lshl_add_u32 {vFLAG}, {vFLAG}, 26, v1""")

    def p_bases(self):
        self.k(f"""s_add_u32 s56, {sXL}, 12288
        s_cmp_eq_u32 {sW}, 0
        s_cselect_b32 s56, {118784 if self.opt.get("pat", 9) == 9 else "s56"}, s56
        s_lshl_b32 s57, {sW}, 12
        s_add_u32 s57, s57, {LP}
        s_cmp_eq_u32 {sW}, 3
        s_cselect_b32 s56, {LX - 8192 if self.opt.get("pat", 9) >= 7 else LX}, s56
        s_cselect_b32 s57, s56, s57""")

    def p_setup(self):
        k = self.k
        F = 216
        k(f"""v_bfe_u32 v20, v0, 2, 2
        v_lshrrev_b32 v21, 5, v0
        v_bfe_u32 v22, v0, 4, 1
        v_and_b32 v23, 3, v0
        s_cmp_ge_u32 {sU}, {U_D}
        s_cbranch_scc1 L_p1""")
        k(f"""v_lshl_add_u32 v20, v21, 4, v20
        v_lshlrev_b32 v20, 7, v20
        v_lshl_add_u32 v20, v23, 3, v20
        s_sub_u32 s58, s57, s56
        v_mul_u32_u24 v22, s58, v22
        v_add3_u32 v20, v20, v22, s56""")
        for q in range(4):
            for e in range(2):
                for h in range(2):
                    k(f"v_add_u32 v{F + 8 * q + 4 * e + 2 * h}, {32 * q + (8 * e + 4 * h) * 128}, v20")
        k("s_branch L_p2")
        k.label("L_p1")
        k(f"""v_lshl_add_u32 v20, v21, 2, v20
        v_lshlrev_b32 v20, 7, v20
        v_lshl_add_u32 v20, v22, 4, v20
        v_and_b32 v21, 1, v23
        v_lshl_add_u32 v20, v21, 5, v20
        v_lshrrev_b32 v21, 1, v23
        v_lshl_add_u32 v20, v21, 3, v20
        v_add_u32 v21, s57, v20
        v_add_u32 v20, s56, v20""")
        for e in range(4):
            for ct in range(2):
                for h in range(2):
                    k(f"v_add_u32 v{F + 8 * e + 4 * ct + 2 * h}, {64 * ct + (16 * (e & 1) + 8 * h) * 128}, v{20 + (e >> 1)}")
        k.label("L_p2")

    def small(self, d, a, b, first):
        self.k(f"v_mfma_f32_4x4x4bf16_1k {vr(d, 4)}, {a}, {b}, {'0' if first else vr(d, 4)}")

    def pass1(self, isv):
        k = self.k
        opt = self.opt.get
        NQ0, DEP, PAT = opt("nq0", 7), opt("adep", 2), opt("pat", 9)
        A6 = opt("a6", 6)

        def xr(c, p):
            return [(f"ds_read_b128 {ar(16 * c + 4 * p, 4)}, v{XA + p} offset:{(c % 3) * 4096}", ("x", c, p))]

        def wr(c, p):
            return [(f"ds_read_b64_tr_b16 {vr(RING + 8 * p + 4 * m + 2 * q, 2)}, v{WKA + 4 * m + p} offset:{c * 8192 + q * 512}", ("w", c, p))
                    for m in range(2) for q in range(2)]

        def emit(g, n=99):
            for _ in range(min(n, len(g))):
                k(*g.pop(0))

        def big(c, p, m):
            w, x = vr(RING + 8 * p + 4 * m, 4), ar(16 * c + 4 * p, 4)
            self.mfma(vr(ACC + 16 * m, 16), *((x, w) if isv else (w, x)), "0" if c + p == 0 else None)

        def xsm(c, p):
            for h in range(2):
                x = ar(16 * c + 4 * p + 2 * h, 2)
                if opt("xsk", 0) < 2 or c + p == 0:
                    self.small(SQ + 4 * h, x, x, c + p == 0)
                if opt("xsk", 0) < 1 or c + p == 0:
                    self.small(SM + 4 * h, vr(ON, 2), x, c + p == 0)

        def csm(c):
            for h in range(2):
                for m in range(2):
                    self.small(CS + 4 * m, vr(ON, 2), vr(RING + 4 * m + 2 * h, 2), c + h == 0)

        def arrive(c):
            k.wait(vm=("W" if c == 6 and not A6 else "X", c))
            k("s_barrier")
            self.stamp(f"A{c}", True)
            if c == 6 and A6:
                return wr(c, 0) + xr(c, 0) + xr(c, 1) + wr(c, 1)
            return (xr(c, 0) + xr(c, 1) if c < 6 else []) + wr(c, 0) + wr(c, 1)

        emit(arrive(0))
        k(f"v_readfirstlane_b32 {sTAG}, v{VE}\ns_add_u32 {sTAG}, {sTAG}, 0x9e3779b9")
        for i in range(4):
            k(f"v_mov_b32 v{vTAG + i}, {sTAG}")
        dq = []
        for c in range(6):
            if c == PAT - 2 and c < 5:
                dq += self.p_dma()
            dq += self.a_dma(c + DEP) if c + DEP < 7 else []
            if c == 5:
                dq += [self.q_dma(i) for i in range(NQ0)] + (self.p_dma() if PAT == 7 else [])
            per = max((len(dq) + 5) // 6, opt("aper", 1) if c >= opt("apc", 0) else 1)
            for half in range(2):
                k.wait(lg=[("x", c, 2 * half + 1), ("w", c, 0)])
                xsm(c, 2 * half), xsm(c, 2 * half + 1)
                if half == 0:
                    csm(c)
                for g in range(4):
                    p, m = 2 * half + g // 2, g & 1
                    k.wait(lg=("w", c, p))
                    if g and dq:
                        k(dq[0][0])
                    big(c, p, m)
                    if g and dq:
                        if DEP == 3 and dq[0][2] == ("X", c + 3):
                            k.wait(lg=("x", c, 3))
                        k(dq[0][1], tag=dq[0][2])
                        self.dma(dq[1:per])
                        dq = dq[per:]
                    if g == 0:
                        rd = arrive(c + 1) if half else xr(c, 2) + xr(c, 3) + wr(c, 2) + wr(c, 3)
                    emit(rd, 3 if g else 4)
                assert not rd
            assert not dq
        cxs = [[f"v_add_f32 v{CX + 4 * m}, v{CX + 4 * m}, v{CX + 4 * m + i}" for i in range(1, 4)] + self.split2(CX + 4 * m, CA + 2 * m) for m in range(2)]
        if A6:
            emit(xr(6, 2) + xr(6, 3))
            k.wait(lg=("w", 6, 0))
            csm(6)
            k.wait(lg=("x", 6, 1))
            xsm(6, 0)
            for m in range(2):
                k(f"ds_write_b32 v{CSW}, v{CS + 4 * m} offset:{1024 * m}", tag="cw")
            emit(wr(6, 2))
            xsm(6, 1)
            emit(wr(6, 3))
            k.wait(lg=("x", 6, 3))
            xsm(6, 2)
            k.wait(lg="cw")
            k("s_barrier")
            for m in range(2):
                k(f"ds_read_b128 {vr(CX + 4 * m, 4)}, v{CSR} offset:{1024 * m}", tag="cx")
            xsm(6, 3)
        else:
            emit(wr(6, 2))
            k.wait(lg=("w", 6, 0))
            csm(6)
            emit(wr(6, 3))
            for m in range(2):
                k(f"ds_write_b32 v{CSW}, v{CS + 4 * m} offset:{1024 * m}", tag="cw")
            k.wait(lg="cw")
            k("s_barrier")
            for m in range(2):
                k(f"ds_read_b128 {vr(CX + 4 * m, 4)}, v{CSR} offset:{1024 * m}", tag="cx")
            k.wait(vm=("X", 6))
            for p in range(4):
                emit(xr(6, p))
            k.wait(lg="cx")
            for m in range(2):
                k("\n".join([f"v_add_f32 v{CX + 4 * m}, v{CX + 4 * m}, v{CX + 4 * m + i}" for i in range(1, 4)] + self.split2(CX + 4 * m, CA + 2 * m)))
            for p in range(4):
                k.wait(lg=("x", 6, p))
                xsm(6, p)
        tail = [f"v_add_f32 v{SQ + i}, v{SQ + i}, v{SQ + 4 + i}" for i in range(4)]
        tail += [f"v_add_f32 v{SM}, v{SM}, v{SM + 4}"]
        tail += [f"v_cndmask_b32 v{SQ}, v{SQ}, v{SQ + i}, {m}" for i, m in ((1, "s[0:1]"), (2, "s[86:87]"), (3, "vcc"))]
        tail += [f"v_permlane32_swap_b32 v{SM}, v{SQ}", f"v_add_f32 v{SM}, v{SM}, v{SQ}"]
        tail += self.stats(SM, SQ, T0, VB, RS) + [f"v_rsq_f32 v{RS}, v{RS}"]
        if isv:
            tail += [f"v_and_b32 v{T0}, 0xffff0000, v{RS}", f"v_sub_f32 v{T0 + 1}, v{RS}, v{T0}", f"v_cvt_pk_bf16_f32 v{RA}, v{T0}, v{T0 + 1}"]
        for m in range(2):
            for p in range(4):
                k.wait(lg=("w", 6, p))
                big(6, p, m)
                if A6 and 4 * m + p == 2:
                    k.wait(lg="cx")
                    mix = [x for y in zip(*cxs) for x in y]
                    tail = [x for y in zip(tail, mix) for x in y] + tail[len(mix):] + mix[len(tail):]
                if m or p:
                    k("\n".join(tail[:A6 or 4]))
                    tail = tail[A6 or 4:]
        k("\n".join(tail))
        self.stamp("A7", True)
        if isv:
            k(f"v_mfma_f32_32x32x8bf16_1k {vr(QA, 16)}, {vr(RA, 2)}, {vr(RB, 2)}, 0")
        for m in range(2):
            a, b = vr(CA + 2 * m, 2), vr(VB, 2)
            k(f"v_mfma_f32_32x32x8bf16_1k {vr(ACC + 16 * m, 16)}, {b if isv else a}, {a if isv else b}, {vr(ACC + 16 * m, 16)}")
        k(f"s_add_u32 s57, s50, {1 << 17}")
        for m in range(2):
            a, p = ACC + 16 * m, PK + 8 * m
            for s in range(2):
                for i in range(4 * s, 4 * s + 4):
                    if isv:
                        k(f"v_pk_fma_f32 {vr(a + 2 * i, 2)}, {vr(a + 2 * i, 2)}, {vr(QA + 2 * i, 2)}, {vr(C1, 2)} op_sel_hi:[1,1,0]")
                    else:
                        k(f"v_pk_mul_f32 {vr(a + 2 * i, 2)}, {vr(a + 2 * i, 2)}, {vr(RS, 2)} op_sel_hi:[1,0]")
                for i in range(4 * s, 4 * s + 4):
                    k(f"v_cvt_pk_bf16_f32 v{p + i}, v{a + 2 * i}, v{a + 2 * i + 1}")
                if s and not isv:
                    k(f"s_mov_b32 exec_lo, 0\nv_mov_b32 v{p + 6}, {sONE}\nv_mov_b32 v{p + 7}, 0x3f80\ns_mov_b32 exec_lo, -1")
                k(f"buffer_store_dwordx4 {vr(p + 4 * s, 4)}, v1, {WS}, {'s57' if m else 's50'} offen offset:{1024 * s} sc1 {self.pol('knt')}", tag="KV")
        self.stamp("A8", True)

    def p_stores(self):
        g = []
        for p in range(4):
            for e in range(2):
                g.append((f"buffer_store_dwordx4 {vr(216 + 8 * p + 4 * e, 4)}, v1, {WS}, {sPD} offen offset:{1024 * e} sc1 {self.pol('snt')}", "PS"))
            if p < 3:
                g.append((f"s_add_u32 {sPD}, {sPD}, {sPS}", None))
        g.append((f"buffer_store_dwordx2 v[248:249], v250, {WS}, {sPCS} offen sc1", "PS"))
        return g

    def phase_a(self):
        k = self.k
        opt = self.opt.get
        if opt("tlb", 0):
            k.note("first touch of every page this launch uses, one page per workgroup of a die")
            k(f"""v_and_b32 v18, 15, v0
            v_min_u32 v18, 13, v18
            v_lshlrev_b32 v18, 21, v18
            v_mov_b32 v19, s13
            v_add_co_u32 v18, vcc, s12, v18
            v_addc_co_u32 v19, vcc, 0, v19, vcc""")
            for i, p in enumerate((2, 4, 5, 6, 7, 0, 1)):
                k(f"v_writelane_b32 v18, s{64 + 2 * p}, {16 + i}\nv_writelane_b32 v19, s{65 + 2 * p}, {16 + i}")
            if opt("tlb") == 2:
                k("s_lshr_b32 s55, s2, 3\ns_lshl_b64 exec, 1, s55")
            else:
                k("s_mov_b64 exec, 0x7fffff")
            k(f"global_load_dword v{JUNK}, v[18:19], off\ns_mov_b64 exec, -1")
        k(f"buffer_load_dword v{VE}, v16, {WS}, s58 offen sc1", tag="E")
        PAT = opt("pat", 9)
        self.stamp("S0")
        self.dma(self.a_dma(0))
        self.stamp("S1")
        self.unit_setup()
        if opt("nop", 0):
            k("s_mov_b32 s22, 0\ns_mov_b32 s26, 0")
        if PAT == 0:
            self.p_bases()
            self.dma(self.p_dma())
        self.stamp("Sp")
        self.out_addrs()
        self.b_setup()
        self.a_setup()
        self.p_bases()
        self.p_setup()
        self.stamp("S2")
        for c in range(1, opt("adep", 2)):
            self.dma(self.a_dma(c))
        if PAT == 1:
            self.dma(self.p_dma())
        if opt("warm", 1):
            k.note("pull this die's share of the query weights into its L2")
            k(f"""s_lshr_b32 s58, s2, 3
            s_mul_i32 s58, s58, {14 * 2688}
            s_and_b32 s59, s2, 1
            s_mul_i32 s59, s59, 3
            s_add_u32 s59, s59, {sW}
            s_lshl_b32 s59, s59, 7
            s_add_u32 s58, s58, s59
            v_min_u32 v16, 13, v0
            v_mul_u32_u24 v16, 2688, v16
            buffer_load_dword v{JUNK}, v16, {WQ}, s58 offen""")
        for r in (sPF, "s61")[:opt("ftw", 0)]:
            k(f"buffer_store_dwordx4 a[220:223], {vFLAG}, {WS}, {r} offen sc1")
        self.stamp("S3")
        k(f"""v_and_b32 v16, 3, v0
        v_cmp_eq_u32 s[0:1], 1, v16
        v_cmp_eq_u32 s[86:87], 2, v16
        v_cmp_eq_u32 vcc, 3, v16
        s_cmp_ge_u32 {sB2}, 8
        s_cbranch_scc1 L_v""")
        state = (list(k.vm), list(k.lg), self.nts, list(self.tsn), list(self.pend))
        self.pass1(False)
        k("s_branch L_q")
        k.label("L_v")
        k.vm, k.lg, self.nts, self.tsn, self.pend = state
        self.pass1(True)
        k.label("L_q")
        NQ0, NQ1 = opt("nq0", 7), opt("nq1", 0)
        self.dma([self.q_dma(c) for c in range(NQ0, NQ0 + NQ1)])
        if PAT == 8:
            self.p_bases()
            self.dma(self.p_dma())
        F = 216
        D = [248, 249, 140, 141]
        k(f"v_mul_f32 v{RS}, {f32(math.log2(math.e) / math.sqrt(28.0))}, v{RS}")

        def p_reads():
            k.wait(vm="P")
            for j in range(16):
                k(f"ds_read_b64_tr_b16 {vr(F + 2 * j, 2)}, v{F + 2 * j}", tag=("p", j // 4))

        def p_sums():
            k("\n".join(f"v_mov_b32 v{d}, 0" for d in D))
            for q in range(4):
                k.wait(lg=("p", q))
                k("\n".join(f"v_dot2c_f32_bf16 v{D[q]}, {sONE}, v{F + 8 * q + j}" for j in range(8)))
            k(f"""v_permlane32_swap_b32 v{D[0]}, v{D[2]}
            v_permlane32_swap_b32 v{D[1]}, v{D[3]}
            v_add_f32 v{D[0]}, v{D[0]}, v{D[2]}
            v_add_f32 v{D[1]}, v{D[1]}, v{D[3]}""")

        PPL = opt("ppl", 3)
        if PPL == 0:
            p_reads(), p_sums()
        self.stamp("Ap", True)
        QCK, QF = opt("qck", 30), opt("qf", 16)

        def flag():
            k.wait(vm="KV")
            k(f"buffer_store_dwordx4 {vr(vTAG, 4)}, {vFLAG}, {WS}, s61 offen sc1 {self.pol('fnt')}")
            self.stamp("A9", True)
            if PAT == 9:
                self.p_bases()
                self.dma(self.p_dma())

        def start():
            L1, L2 = k.newlabel("fw"), k.newlabel("fok")
            assert "KV" not in k.vm
            k(self.KBASE)
            PK_ = opt("pick", 1)
            if PK_:
                k(f"s_lshr_b32 s51, {sA2}, 2" if PK_ == 2 else f"s_lshr_b32 s51, {sA2}, 2\ns_and_b32 s51, s51, 1" if PK_ == 3 else "s_mov_b32 s51, 0")
                k("s_lshl_b32 s55, s51, 15\ns_or_b32 s50, s50, s55\ns_lshl_b32 s51, s51, 3\ns_or_b32 s51, s51, 0x80000")
                self.PICK = f"v_cmp_ne_u32 vcc, {sTAG}, v209\ns_bfe_u32 s55, vcc_lo, s51\ns_cmp_eq_u32 s55, 0"
            k.wait(vm="PF")
            k(f"{self.PICK}\ns_cbranch_scc0 {L1}")
            k.label(L2)
            self.late.append(("pick", L1, L2, None, None, None))
            if not PK_:
                k("s_ff1_i32_b32 s55, s55\ns_and_b32 s55, s55, 0x18\ns_lshl_b32 s55, s55, 12\ns_or_b32 s50, s50, s55")
            self.stamp("B0", True)
            for kt in range(opt("ns", 2)):
                for t, tg in self.kvload(kt):
                    k(t, tag=tg)
        LA = opt("qla", 5)
        QPL = opt("qpl", 29)
        nrd = [0]
        extra = []

        def qrd(lim):
            if nrd[0] < lim:
                n = nrd[0]
                for q in range(2):
                    k(f"ds_read_b64_tr_b16 {vr(RING + 4 * (n % 8) + 2 * q, 2)}, v{WQA + n % 4} offset:{(n // 4) * 4096 + q * 256}", tag=("q", n))
                nrd[0] += 1

        def ask():
            k(f"s_mov_b32 s60, {WS_FA}")
            k(self.ask0(), tag="PF")

        def steps(lo, hi):
            if lo == hi:
                return
            k.wait(vm=("Q", hi - 1))
            k("s_barrier")
            for _ in range(LA):
                qrd(4 * hi)
            for n in range(4 * lo, 4 * hi):
                k.wait(lg=("q", n))
                w = RING + 4 * (n % 8)
                if n % 4 == 0:
                    self.small(CS + 8, vr(ON, 2), vr(w, 2), n == 0)
                self.mfma(vr(QA, 16), vr(w, 4), ar(4 * n, 4), "0" if n == 0 else None)
                if n % 4 == 0:
                    self.small(CS + 8, vr(ON, 2), vr(w + 2, 2), False)
                qrd(4 * hi)
                if n == 25:
                    k(f"ds_write_b32 v{CSW}, v{CS + 8} offset:2048", tag="cw")
                if n == 26:
                    k.wait(lg="cw")
                    k("s_barrier")
                    k(f"ds_read_b128 {vr(CX, 4)}, v{CSR} offset:2048", tag="cx")
                if extra:
                    k(*extra.pop(0))
                    if extra and extra[0][1] is None:
                        k(extra.pop(0)[0])
                if n == QF:
                    flag()
                if n == QPL:
                    assert not extra
                    ask()
                if n == QCK:
                    start()

        steps(0, NQ0)
        self.dma([self.q_dma(c) for c in range(NQ0 + NQ1, 7)])
        if opt("pse", 0):
            extra = self.p_stores()
        steps(NQ0, NQ0 + NQ1)
        steps(NQ0 + NQ1, 7)
        assert not extra
        k.wait(lg="cx")
        k("\n".join([f"v_add_f32 v{CX}, v{CX}, v{CX + i}" for i in range(1, 4)] + self.split2(CX, CA)))
        k(f"v_mfma_f32_32x32x8bf16_1k {vr(QA, 16)}, {vr(CA, 2)}, {vr(VB, 2)}, {vr(QA, 16)}")
        if QPL == 28:
            ask()
        if QCK == 28:
            start()
        for s in range(2):
            for i in range(4 * s, 4 * s + 4):
                k(f"v_pk_mul_f32 {vr(QA + 2 * i, 2)}, {vr(QA + 2 * i, 2)}, {vr(RS, 2)} op_sel_hi:[1,0]")
            for i in range(4 * s, 4 * s + 4):
                k(f"v_cvt_pk_bf16_f32 v{32 + i}, v{QA + 2 * i}, v{QA + 2 * i + 1}")
            if s:
                k("s_mov_b32 exec_lo, 0\nv_mov_b32 v38, 0\nv_mov_b32 v39, 0\ns_mov_b32 exec_lo, -1")
            k(f"ds_write_b128 v{QW}, {vr(32 + 4 * s, 4)} offset:{1024 * s}")
        if QPL == 29:
            ask()
        self.stamp("Aq", True)
        if PPL == 1:
            p_reads(), p_sums()
        if QCK == 29:
            start()
        if PPL == 2:
            p_reads()
        k.wait(lg="all")
        if QPL == 30:
            ask()
        k("s_barrier")
        for u in range(3):
            for s in range(2):
                k(f"ds_read_b128 {vr(8 + 8 * u + 4 * s, 4)}, v{QW + 1 + u} offset:{1024 * s}", tag="Q")
        if QPL == 31:
            ask()
        if PPL == 2:
            p_sums()
        if PPL == 3:
            p_reads()
        if QCK > 29:
            start()
        if PPL == 3:
            p_sums()

    KBASE = f"s_lshl_b32 s50, {sA}, 4\ns_add_u32 s50, s50, {sW}\ns_add_u32 s50, s50, 256\ns_lshl_b32 s50, s50, 13"
    PICK = f"v_cmp_ne_u32 vcc, {sTAG}, v209\ns_sub_u32 s55, vcc_lo, 0x01010101\ns_andn2_b32 s55, s55, vcc_lo\ns_and_b32 s55, s55, 0x80808080"
    KVB = ["v144", "v160", "v176", "a192", "a0", "a16", "a32", "a48", "a64", "a80", "v192", "v144", "v160", "v176", "a192", "a176"]

    def ask0(self):
        t = f"buffer_load_dword v209, v207, {WS}, s60 offen sc1"
        return f"s_mov_b64 exec, 0xff\n{t}\ns_mov_b64 exec, -1" if self.opt.get("pick", 1) == 1 and self.opt.get("am", 1) else t

    def kvreg(self, kt, i):
        b = int(self.KVB[kt][1:]) + 4 * i
        return f"{self.KVB[kt][0]}[{b}:{b + 3}]"

    def kvload(self, kt):
        g = [(f"buffer_load_dwordx4 {self.kvreg(kt, i)}, v{208 if i & 2 else 1}, {WS}, s50 offen offset:{2048 * (kt & 1) + 1024 * (i & 1)} sc1",
              ("V" if i & 2 else "K", kt)) for i in range(4)]
        if kt & 1 and kt < 15:
            g.append((f"s_xor_b32 s50, s50, {4096 | ((kt >> 2) ^ ((kt + 1) >> 2)) << 15}", None))
        return g

    def b_setup(self):
        k = self.k
        sWD, sGL = "s32", "s54"
        k(f"""s_lshl_b32 s55, {sW}, 6
        s_lshr_b32 s56, {sA}, 1
        s_add_u32 s55, s55, s56
        v_and_b32 v2, 3, v0
        v_lshlrev_b32 v2, 4, v2
        v_bfe_u32 v3, v0, 2, 1
        v_lshl_add_u32 v2, v3, 3, v2
        v_bfe_u32 v3, v0, 3, 2
        v_lshl_add_u32 v2, v3, 8, v2
        v_add_u32 v2, s55, v2
        v_lshlrev_b32 v207, 7, v2
        v_and_b32 v2, 3, v0
        s_lshl_b32 s55, {sTB}, 4
        s_lshl_b32 s56, {sW}, 2
        s_add_u32 s55, s55, s56
        v_add_u32 v2, s55, v2
        v_lshlrev_b32 v2, 7, v2""")
        k(f"""s_mul_i32 s55, {sB2}, 7
        s_lshr_b32 s55, s55, 2
        s_add_u32 s71, s55, {sW}
        s_mul_i32 s55, s55, 14
        s_lshr_b32 s56, {sCB}, 1
        s_min_u32 s56, s56, 6
        s_mul_i32 s57, s56, 28
        s_mul_i32 s58, {sW}, 7
        s_add_u32 s57, s57, s58
        s_lshl_b32 {sWD}, s57, 13
        s_add_u32 {sWD}, {sWD}, {WS_WD}
        s_add_u32 s57, s57, {U_D - 42}
        s_lshl_b32 s56, s56, 3
        s_lshl_b32 s58, {sW}, 1
        s_add_u32 s56, s56, s58
        s_lshl_b32 s35, s56, 13
        s_add_u32 s35, s35, {WS_WO}
        s_add_u32 s56, s56, {U_O}
        s_cmp_ge_u32 {sCB}, 14
        s_cselect_b32 {sWD}, {OOB}, {sWD}
        s_cselect_b32 s35, {OOB}, s35
        v_add_u32 v4, s55, v0
        v_min_u32 v4, {U_D - 1}, v4
        v_add_u32 v5, s57, v0
        v_and_b32 v3, 1, v0
        v_add_u32 v3, s56, v3
        v_cmp_gt_u32 vcc, 49, v0
        v_cndmask_b32 v3, v3, v5, vcc
        v_cmp_gt_u32 vcc, 42, v0
        v_cndmask_b32 v3, v3, v4, vcc
        v_lshlrev_b32 v3, 7, v3""")
        for t in range(3):
            k(f"""s_xor_b32 s55, {sW}, {3 - t}
            s_mul_i32 s55, s55, 12288
            s_add_u32 s55, s55, {LR + 4096 * t}
            v_add_u32 v{4 + t}, s55, v1""")
        k(f"""s_mul_i32 s55, {sW}, 12288
        s_add_u32 s55, s55, {LR}
        v_add_u32 v7, s55, v1
        v_add_u32 v208, {1024 * 2048}, v1
        v_lshlrev_b32 v210, 2, v0
        s_lshr_b32 s55, {sW}, 1
        s_lshl_b32 s55, s55, 10
        v_add_u32 v253, s55, v1
        v_xor_b32 v252, 1024, v253
        v_and_b32 v254, 31, v0
        v_lshrrev_b32 v251, 5, v0
        v_lshlrev_b32 v250, 4, v254
        v_lshl_add_u32 v250, v251, 3, v250
        v_mul_u32_u24 v254, 896, v254
        v_lshl_add_u32 v254, v251, 5, v254
        s_mul_i32 s55, s62, {32 * 896}
        s_lshl_b32 s56, s63, 6
        s_add_u32 s55, s55, s56
        s_cmp_ge_u32 {sCB}, 14
        s_cselect_b32 s55, {OOB}, s55
        v_add_u32 v254, s55, v254
        s_mul_i32 s55, {sB2}, {7 * 28672}
        s_add_u32 s55, s55, {WS_WGU}
        v_add_u32 v251, s55, v1
        s_mul_i32 {sGL}, {sW}, 28672""")
        for i in range(4):
            k(f"v_accvgpr_write_b32 a{220 + i}, -1")
        k(f"""s_mov_b32 s64, {sO}
        s_mov_b32 s65, {sH}
        s_mov_b32 s66, {sST}
        s_lshl_b32 s67, {sB}, 4
        s_add_u32 s67, s67, {sA}
        s_lshl_b32 s67, s67, 7
        s_add_u32 s67, s67, {WS_FB}
        s_lshl_b32 s68, {sTB}, 4
        s_add_u32 s68, s68, {sCB}
        s_lshl_b32 s68, s68, 7
        s_add_u32 s68, s68, {WS_FC}
        s_cmp_eq_u32 {sW}, 0
        s_cselect_b32 s67, s67, {OOB}
        s_cselect_b32 s68, s68, {OOB}
        s_lshl_b32 s55, s62, 4
        s_lshl_b32 s56, {sW}, 2
        s_add_u32 s55, s55, s56
        s_lshl_b32 s55, s55, 11
        s_add_u32 s70, s55, {WS_O}
        s_xor_b32 s69, s55, 0x8000
        s_add_u32 s69, s69, {WS_O}
        s_cmp_ge_u32 {sCB}, 14
        s_cselect_b32 s69, {OOB}, s69
        s_cselect_b32 s70, {OOB}, s70
        s_min_u32 s71, s71, 27
        s_mul_i32 s71, s71, 7168
        s_add_u32 s71, s71, {WS_CS}
        s_cmp_lt_u32 {sW}, 3
        s_cselect_b32 s71, s71, {OOB}
        s_lshl_b32 s55, {sA2}, 2
        s_add_u32 s55, s55, {sW}
        s_mul_i32 s72, s55, 28672
        s_add_u32 s72, s72, {WS_H}
        s_mul_i32 s73, s55, 3584
        s_add_u32 s73, s73, {WS_ST}
        s_lshl_b32 s76, s55, 4
        s_add_u32 s76, s76, {sB2}
        s_lshl_b32 s76, s76, 7
        s_add_u32 s76, s76, {WS_FQ}
        s_add_u32 s56, {sGL}, {WS_ACT}
        s_mul_i32 s75, s62, {112 * 1024}
        s_add_u32 s75, s75, s56
        s_xor_b32 s74, s62, 1
        s_mul_i32 s74, s74, {112 * 1024}
        s_add_u32 s74, s74, s56
        s_cmp_ge_u32 {sCB}, 14
        s_cselect_b32 s74, {OOB}, s74
        s_cselect_b32 s75, {OOB}, s75""")
        for t in range(2):
            for j in range(4):
                k(f"s_add_u32 s{78 + 4 * t + j}, s{74 + t}, {7168 * j}")

    def phase_b(self):
        k = self.k
        Q, O, S, P, KV = 8, 40, 104, 136, 144
        sWD, sGL = "s32", "s54"
        k.label("L_attn")
        k(f"""s_mov_b32 s33, {sWD}
        s_mov_b32 s59, s35
        s_add_u32 s58, {sAC}, 4096""")
        pre = []
        for i in range(16):
            pre.append((f"buffer_load_dwordx4 {self.wo(i)}, v{252 + (i & 1)}, {WS}, s59 offen offset:{(i & 2) * 1024} sc1", "WO"))
            if i % 4 == 3:
                pre.append(("s_add_u32 s59, s59, 4096", None))
        for i in range(28):
            if i % 4 == 0:
                pre.append((f"s_add_u32 m0, {sGL}, {i * 1024}", None))
            pre.append((f"buffer_load_dwordx4 v251, {WS}, m0 offen offset:{(i % 4) * 1024} sc1 lds", "GU"))
        NWD = self.opt.get("nwd", 16)
        pre += self.wd_loads(0, NWD)
        self.wdn = NWD
        pst = [] if self.opt.get("pse", 0) else self.p_stores()

        TD = self.opt.get("td", 3)
        order = [(kt, u) for kt in range(16 - TD) for u in range(4)]
        order += [(kt, u) for kt in range(16 - TD, 16) for u in range(3)] + [(kt, 3) for kt in range(16 - TD, 16)]

        def smf(n, s):
            kt, u = order[n]
            d = vr(S + 16 * (n & 1), 16)
            self.mfma(d, self.kvreg(kt, s), vr(Q + 8 * u + 4 * s, 4), "0" if s == 0 else None)

        def pv(n, s):
            kt, u = order[n]
            self.mfma(vr(O + 16 * u, 16), self.kvreg(kt, 2 + s), vr(P + 4 * s, 4), "0" if (kt == 0 and s == 0) else None)

        k.wait(vm=("K", 0), lg="Q")
        smf(0, 0)
        smf(0, 1)
        PFL = self.opt.get("pfl", 11)
        PCHK = self.opt.get("pchk", 26)
        CLR = self.opt.get("clr", 99)
        FA2, FAD, CLW = self.opt.get("fa2", 3), self.opt.get("fad", 5), self.opt.get("clw", 58)
        queue = [x for t in range(self.opt.get("ns", 2), 4) for x in self.kvload(t)]
        queue = queue + pst if self.opt.get("psl", 1) else pst + queue
        clr = self.clears()
        SG = self.opt.get("sg", 0)
        acl = [f"buffer_store_dwordx4 a[220:223], v1, {WS}, {sAC if g < 4 else 's58'} offen offset:{1024 * (g & 3)} sc1" for g in range(SG, 7)]
        if self.opt.get("cld", 0):
            self.acl, acl = acl, []
        if CLR > PCHK:
            acl, clr = clr + acl, []
        if self.opt.get("cdw", 0):
            acl = [t.replace("dwordx4 a[220:223]", "dword a220") for t in acl]
        ACL, ACS = self.opt.get("acl", 26), self.opt.get("acs", 2)
        CLS = [int(x) for x in str(self.opt.get("cls", "18x22x27x28x29x30x34x38x42x46x50x54")).split("x") if x]
        fixed = {}
        for t in range(3):
            m = 4 * (order.index((15, t)) + 1) + 2
            for q in range(4):
                fixed.setdefault(m + q, []).append(f"ds_write_b128 v{4 + t}, {vr(O + 16 * t + 4 * q, 4)} offset:{1024 * q}")
        bar = m + 4 + self.opt.get("bbar", 1)
        hint = f"buffer_store_dwordx4 {vr(vTAG, 4)}, {vFLAG}, {WS}, s67 offen sc1"
        rds = [(f"ds_read_b128 {vr(O + 16 * j + 4 * q, 4)}, v7 offset:{4096 * j + 1024 * q}", ("c", j, q)) for q in range(4) for j in range(3)]
        HB = bar + self.opt.get("hb", 1)

        FBE = self.opt.get("fbe", 101)

        def askb():
            k(f"s_mov_b32 s60, {WS_FB}")
            k(f"buffer_load_dword v209, v2, {WS}, s60 offen sc1", tag="PF")

        def join():
            assert "CL" not in k.vm
            k.wait(lg="all")
            k("s_barrier")

        def slot(g):
            if g in fixed:
                if g == HB:
                    assert "CL" not in k.vm and "FL" not in k.vm
                    k(f"s_barrier\n{hint}")
                for t in fixed[g]:
                    k(t)
            elif g == bar:
                join()
            elif g > bar:
                if g == HB:
                    k(hint)
                if g == HB + FBE:
                    askb()
                for _ in range(self.opt.get("brd", 3)):
                    if rds:
                        t, tg = rds.pop(0)
                        k(t, tag=tg)
            elif queue:
                t, tg = queue[0]
                if not callable(t) and t.startswith("buffer_load_dwordx4"):
                    if credit[0] < 10:
                        return
                    dst = t.split()[1]
                    for x in range(16 if tg == "WD" else tg[1] if tg[0] in "KV" else 0):
                        if dst[:-1] in [self.kvreg(x, i) for i in range(4)] and g <= 4 * (order.index((x, 3)) + 1):
                            return
                queue.pop(0)
                if callable(t):
                    t()
                else:
                    k(t, tag=tg)
                    if t.startswith("buffer"):
                        credit[0] -= self.opt.get("clc", 15) if tg == "CL" else 10
                        self.blog.setdefault(str(tg and tg[0]) + str(tg == "WD"), [g // 4, 0])[1] = g // 4

        self.blog = {}
        credit = [0]
        for n in range(64):
            credit[0] = min(credit[0], 10) + self.opt.get("vpu", 27)
            kt, u = order[n]
            sb = S + 16 * (n & 1)
            if self.opt.get("tsb") and n % self.opt["tsb"] == 0:
                self.stamp(f"b{n}", True)
            if n == FA2:
                queue = [(f"buffer_load_dword v209, v207, {WS}, s60 offen sc1", "PF")] + queue
            if n == FA2 + FAD:
                queue.insert(0, (lambda: self.flagcheck("PF", "v207", "v209", WS_FA), None))
                queue += [x for t in range(4, 16) for x in self.kvload(t)]
            if n == PFL:
                assert not any(tg == "PS" for _, tg in queue)
                queue = [(lambda: k.wait(vm="PS"), None), (f"buffer_store_dwordx4 {vr(vTAG, 4)}, {vFLAG}, {WS}, {sPF} offen sc1", None)] + queue
            if n == self.opt.get("fcl", 14):
                queue = [(f"buffer_store_dwordx4 a[220:223], {vFLAG}, {WS}, {r} offen sc1", "FL") for r in ("s67", "s68")] + queue
            if n == CLW:
                assert not acl
                queue.insert(0, (lambda: k.wait(vm="CL"), None))
            if n >= CLR and clr and (n - CLR) % 2 == 0:
                queue.append((clr.pop(0), "CL"))
            if n in CLS:
                queue.insert(0, (acl.pop(0), "CL"))
            if not CLS and n >= ACL and (n - ACL) % ACS == 0:
                for _ in range(self.opt.get("acn", 1) if n < self.opt.get("acu", 99) else 1):
                    if acl:
                        queue.insert(0, (acl.pop(0), "CL"))
            if n == PCHK:
                assert n > FA2 + FAD
                queue = [(f"s_mov_b32 s60, {WS_FP}", None), (f"buffer_load_dword v209, v3, {WS}, s60 offen sc1", "PF")] + queue
            if n == PCHK + self.opt.get("pcd", 5):
                assert not clr
                queue.append((lambda: self.flagcheck("PF", "v3", "v209", WS_FP), None))
                queue += pre
            if n == 53:
                xl = [(f"buffer_load_dwordx4 {vr(KV + 4 * s, 4)}, v254, {X}, 0 offen offset:{16 * s}", "X") for s in range(2)]
                queue = queue + xl if self.opt.get("xq", 1) else xl + queue

            def ex(i):
                k(f"v_exp_f32 v{sb + i}, v{sb + i}")

            def cv(i):
                k(f"v_cvt_pk_bf16_f32 v{P + i}, v{sb + 2 * i}, v{sb + 2 * i + 1}")

            ex(0), ex(1)
            if n > 0:
                pv(n - 1, 1)
                assert n == 63 or not any(tg == ("V", order[n + 1][0]) for _, tg in queue)
                if not (n + 1 < 64 and k.wait(vm=("V", order[n + 1][0]))):
                    slot(4 * n)
                else:
                    assert 4 * n not in fixed
            ex(2), ex(3), cv(0), ex(4), ex(5), cv(1)
            if n + 1 < 64:
                smf(n + 1, 0)
            slot(4 * n + 1)
            ex(6), ex(7), cv(2), ex(8), ex(9), cv(3)
            if n + 1 < 64:
                smf(n + 1, 1)
            if not (n == 0 and k.wait(vm=("V", 0))):
                slot(4 * n + 2)
            ex(10), ex(11), cv(4), ex(12), ex(13), cv(5)
            pv(n, 0)
            slot(4 * n + 3)
            ex(14), ex(15), cv(6), cv(7)
        assert not queue, len(queue)
        pv(63, 1)
        g = 256
        while g <= max(bar, HB) or rds:
            slot(g)
            g += 1
        self.stamp("B1", True)
        o = O + 48
        for q in range(4):
            k.wait(lg=("c", 2, q))
            for j in (1, 2):
                for i in range(2):
                    r = O + 4 * q + 2 * i
                    k(f"v_pk_add_f32 {vr(r, 2)}, {vr(r, 2)}, {vr(r + 16 * j, 2)}")
        lo, hi = struct.unpack("<II", struct.pack("<ff", 2.0 ** -80, 2.0 ** 80))
        k(f"""v_add_f32 v248, v{o + 12}, v{O + 12}
        v_add_f32 v249, v{o + 12}, v{O + 12}""")
        adds = [f"v_pk_add_f32 {vr(o + 2 * i, 2)}, {vr(o + 2 * i, 2)}, {vr(O + 2 * i, 2)}" for i in range(8)]
        k("\n".join(adds[:2]))
        k(f"""v_permlane32_swap_b32 v249, v248
        s_mov_b32 s56, {hi - lo}""")
        k("\n".join(adds[2:4]))
        k(f"""v_subrev_u32 v249, {lo}, v248
        v_rcp_f32 v248, v248
        v_cmp_lt_u32 vcc, s56, v249""")
        k("\n".join(adds[4:]))
        if self.force_fb:
            k(f"s_and_b32 vcc_lo, {sW}, {self.force_fb - 1}" if self.force_fb > 1 else "s_mov_b32 vcc_lo, 1")
        k(f"""s_andn2_b32 s57, vcc_lo, {sFB}
        s_cselect_b32 s55, {OOB}, {sO}
        s_cselect_b32 {sO}, {sO}, {OOB}""")
        if FBE == 50:
            askb()
        for s in range(2):
            for i in range(4 * s, 4 * s + 4):
                k(f"v_pk_mul_f32 {vr(o + 2 * i, 2)}, {vr(o + 2 * i, 2)}, v[248:249] op_sel_hi:[1,0]")
            for i in range(4 * s, 4 * s + 4):
                k(f"v_cvt_pk_bf16_f32 v{P + i}, v{o + 2 * i}, v{o + 2 * i + 1}")
            if s:
                k(f"s_mov_b32 exec_lo, 0\nv_mov_b32 v{P + 6}, 0\nv_mov_b32 v{P + 7}, 0\ns_mov_b32 exec_lo, -1")
            k(f"buffer_store_dwordx4 {vr(P + 4 * s, 4)}, v1, {WS}, s55 offen offset:{1024 * s} sc1")
        self.stamp("B2", True)
        if FBE == 99:
            askb()
        CSE = self.opt.get("cse", 7)

        def csl(lo, hi):
            for i in range(lo, hi):
                k(f"buffer_load_dwordx4 {vr(72 + 4 * i, 4)}, v1, {WS}, {'s71' if i < 4 else 's55'} offen offset:{(i % 4) * 1024} sc1", tag="cs")

        k(f"""v_mov_b32 v248, s57
        v_and_b32 v249, 3, v0
        ds_write_b32 v7, v248
        v_mul_u32_u24 v249, 12288, v249
        v_add_u32 v249, {LR}, v249
        s_add_u32 s50, s69, 4096
        s_add_u32 s51, s70, 4096
        s_add_u32 s55, s71, 4096""")
        k.wait(vm=["X", "GU"])
        if FBE != 101:
            csl(0, CSE)
        for i in range(8):
            k(f"v_lshlrev_b32 v{S + 2 * i}, 16, v{KV + i}\nv_and_b32 v{S + 1 + 2 * i}, 0xffff0000, v{KV + i}")
        if FBE == 101:
            csl(0, CSE)
        n = self.opt.get("nwa", 2)
        for t, tg in self.wd_loads(self.wdn, self.wdn + n):
            k(t, tag=tg)
        self.wdn += n
        if FBE > 99:
            askb()
        assert "PF" in k.vm
        self.flagcheck("PF", "v2", "v209", WS_FB)
        self.stamp("C0", True)
        self.oload = []
        for t in range(2):
            for ks in range(8):
                sb = f"s{69 + t}" if ks < 4 else f"s{50 + t}"
                self.oload.append(f"buffer_load_dwordx4 {vr(136 + 32 * t + 4 * ks, 4)}, v1, {WS}, {sb} offen offset:{1024 * (ks & 3)} sc1")
                if 8 * t + ks < self.opt.get("oha", 10):
                    k(self.oload[-1], tag=("O", 8 * t + ks))
        k.wait(lg="all")
        k("s_barrier\nds_read_b32 v248, v249")
        csl(CSE, 7)
        n = self.opt.get("nwb", 0)
        for t, tg in self.wd_loads(self.wdn, self.wdn + n):
            k(t, tag=tg)
        self.wdn += n
        k.wait(lg="all")
        k("s_barrier\nv_cmp_ne_u32 vcc, 0, v248\ns_cbranch_vccnz L_fb")

    def wd_loads(self, lo, hi):
        g = []
        for i in range(lo, hi):
            g.append((f"buffer_load_dwordx4 {ar(4 * i, 4)}, v{252 + (i & 1)}, {WS}, s33 offen offset:{(i & 2) * 1024} sc1", "WD"))
            if i % 4 == 3:
                g.append(("s_add_u32 s33, s33, 4096", None))
        return g

    def late_code(self):
        k = self.k
        Q, S, KV = 8, 104, 144
        for kind, L1, L2, x, y, z in self.late:
            k.label(L1)
            if kind == "poll":
                self.poll(x, y, z, {WS_FB: "s90", WS_FC: "s92", "s77": "s95", WS_FA: "s93"}.get(z))
            elif kind == "pick":
                if self.ts:
                    k("s_add_u32 s94, s94, 1")
                k(self.ask0())
                k.wait(vm="all")
                k(f"""{self.PICK}
                s_cbranch_scc1 {L2}
                s_sub_u32 {sCNT}, {sCNT}, 1
                s_cselect_b32 {sCNT}, 0, {sCNT}
                s_cbranch_scc0 {L1}""")
            elif kind == "call":
                x()
                k.wait(vm="all")
            else:
                if self.ts:
                    c = "s91" if z == 209 else "s95" if z == 247 else "s94" if len(y) == 14 else "s93"
                    k(f"s_add_u32 {c}, {c}, 1")
                k("\n".join(x))
                k.wait(vm="all")
                k("\n".join(self.maxchain(y, z)))
                k(f"""v_cmp_eq_u32 vcc, -1, v{z}
                s_cbranch_vccz {L2}
                s_sub_u32 {sCNT}, {sCNT}, 1
                s_cselect_b32 {sCNT}, 0, {sCNT}
                s_cbranch_scc0 {L1}""")
            k(f"s_branch {L2}")
        k.label("L_fb")
        k(f"""s_waitcnt vmcnt(0) lgkmcnt(0)
        s_barrier
        s_mov_b32 {sFB}, -1
        s_mov_b32 {sPD}, {OOB}
        s_mov_b32 {sPCS}, {OOB}
        s_mov_b32 {sPF}, {OOB}
        s_mov_b32 s64, {OOB}
        s_mov_b32 s65, {OOB}
        s_mov_b32 s66, {OOB}
        s_lshl_b32 s50, {sA}, 6
        s_lshl_b32 s55, {sW}, 4
        s_add_u32 s50, s50, s55
        s_add_u32 s50, s50, 1024
        s_lshl_b32 s50, s50, 11
        s_mov_b32 s51, 16""")
        for u in range(4):
            k(f"v_mov_b32 v{228 + u}, 0xff800000")
        k.label("L_fbl")
        for s in range(2):
            k(f"buffer_load_dwordx4 {vr(KV + 4 * s, 4)}, v1, {WS}, s50 offen offset:{1024 * s} sc1")
        k("s_add_u32 s50, s50, 2048\ns_waitcnt vmcnt(0)")
        for u in range(4):
            self.mfma(vr(S, 16), vr(KV, 4), vr(Q + 8 * u, 4), "0")
            self.mfma(vr(S, 16), vr(KV + 4, 4), vr(Q + 8 * u + 4, 4))
            for i in range(8):
                k(f"v_max3_f32 v{228 + u}, v{228 + u}, v{S + 2 * i}, v{S + 2 * i + 1}")
        k("s_sub_u32 s51, s51, 1\ns_cmp_lg_u32 s51, 0\ns_cbranch_scc1 L_fbl")
        k(f"v_lshlrev_b32 v216, 2, v0\ns_lshl_b32 s57, {sW}, 8")
        for u in range(4):
            k(f"""v_mov_b32 v218, v{228 + u}
            v_permlane32_swap_b32 v218, v{228 + u}
            v_max_f32 v{228 + u}, v218, v{228 + u}
            s_xor_b32 s55, {sW}, {3 - u}
            s_lshl_b32 s55, s55, 10
            s_add_u32 s55, s55, {LR}
            v_add_u32 v{220 + u}, s55, v216
            v_add_u32 v217, s57, v{220 + u}
            ds_write_b32 v217, v{228 + u}""")
        k("s_waitcnt lgkmcnt(0)\ns_barrier")
        for u in range(4):
            for j in range(4):
                k(f"ds_read_b32 v{224 + j}, v{220 + u} offset:{256 * j}")
            k(f"""s_waitcnt lgkmcnt(0)
            v_max3_f32 v224, v224, v225, v226
            v_max_f32 v224, v224, v227
            v_sub_f32 v224, 0, v224
            v_cvt_pk_bf16_f32 v225, v224, v224
            v_and_b32 v225, 0xffff0000, v225
            v_sub_f32 v225, v224, v225
            v_cvt_pk_bf16_f32 v226, v224, v225
            v_and_b32 v227, 0xffff0000, v226
            v_sub_f32 v227, v225, v227
            v_cvt_pk_bf16_f32 v227, v227, 0
            s_mov_b32 exec_lo, 0
            v_mov_b32 v{Q + 8 * u + 6}, v226
            v_mov_b32 v{Q + 8 * u + 7}, v227
            s_mov_b32 exec_lo, -1""")
        k(f"{self.KBASE}\ns_mov_b32 s60, {WS_FA}\nv_mov_b32 v207, 0")
        for kt in range(self.opt.get("ns", 2)):
            k("\n".join(t for t, _ in self.kvload(kt)))
        k("s_waitcnt vmcnt(0)\ns_barrier\ns_branch L_attn")
        k.vm.clear()
        k.lg.clear()

    def phase_c(self):
        k = self.k
        ACC, OF, XR = 8, 136, 104
        FCE = self.opt.get("fce", 12)
        k(f"""s_lshl_b32 s55, {sA2}, 4
        s_lshr_b32 s56, {sW}, 1
        s_add_u32 s55, s55, s56
        v_min_u32 v249, 6, v0
        v_lshlrev_b32 v249, 1, v249
        v_add_u32 v249, s55, v249
        v_lshlrev_b32 v249, 7, v249""")

        def ask():
            k(f"s_mov_b32 s60, {WS_FC}")
            k(f"buffer_load_dword v248, v249, {WS}, s60 offen sc1", tag="PF")

        k(f"s_cmp_ge_u32 {sCB}, 14\ns_cbranch_scc1 L_cidle")
        self.late.append(("call", "L_cidle", "L_c1", ask if FCE < 10 else lambda: None, None, None))
        self.askc = ask
        loads = self.oload

        def arrive(f):
            k.wait(vm=("O", f + 1))
            self.datacheck([OF + 4 * f, OF + 4 * f + 4], 209, loads[f:])

        def mm(lt, ks):
            c, t = divmod(lt, 2)
            self.mfma(vr(ACC + 16 * lt, 16), self.wo(2 * ks + c), vr(OF + 32 * t + 4 * ks, 4), None if ks else vr(XR, 16) if lt == 3 else "0")

        def wr(lt):
            return [f"ds_write_b128 v{4 + lt}, {vr(ACC + 16 * lt + 4 * q, 4)} offset:{1024 * q}" for q in range(4)]

        nxt = self.opt.get("oha", 10)
        assert nxt >= 8
        for p in range(4):
            arrive(2 * p)
            for lt, ks in ((0, 0), (0, 1), (2, 0), (2, 1)):
                mm(lt, 2 * p + ks)
                if nxt < 16 and (ks == 0 or self.opt.get("orr", 1) == 1):
                    k(loads[nxt], tag=("O", nxt))
                    nxt += 1
        assert nxt == 16
        w = wr(0) + wr(2)
        for ks in range(8):
            if ks % 2 == 0:
                arrive(8 + ks)
            mm(1, ks)
            if ks - 8 == self.opt.get("hc", 0):
                k(f"buffer_store_dwordx4 {vr(vTAG, 4)}, {vFLAG}, {WS}, s68 offen sc1")
            if ks >= 1:
                k(w.pop(0))
        C2 = self.opt.get("c2", 0)
        o = ACC + 48
        hint = f"buffer_store_dwordx4 {vr(vTAG, 4)}, {vFLAG}, {WS}, s68 offen sc1"
        if C2:
            def rd(j, q):
                k(f"ds_read_b128 {vr(ACC + 16 * j + 4 * q, 4)}, v7 offset:{4096 * j + 1024 * q}", tag=("c", j, q))

            def add(q):
                k.wait(lg=("c", 2, q))
                for r in range(ACC + 4 * q, ACC + 4 * q + 4):
                    k(f"v_add_f32 v{r}, v{r}, v{r + 32}")

            HC, CB = self.opt.get("hc", 0), self.opt.get("cb2", 6)
            w1 = wr(1)
            for ks in range(8):
                mm(3, ks)
                if ks == 0:
                    k(w.pop(0))
                if ks == C2:
                    k.wait(lg="all")
                    k("s_barrier")
                if ks in (2, 3):
                    for _ in range(2):
                        k(w1.pop(0), tag="w1")
                if C2 <= ks < C2 + 4:
                    rd(0, ks - C2), rd(2, ks - C2)
                if ks == CB:
                    k.wait(lg="w1")
                    k("s_barrier")
                    if HC > ks:
                        k(hint)
                    for q in range(4):
                        rd(1, q)
                if ks == HC:
                    assert ks >= C2
                    k(hint)
                if ks >= C2 + 2 and ks - C2 - 2 < 4:
                    add(ks - C2 - 2)
            self.stamp("C1", True)
            for q in range(6 - C2, 4):
                add(q)
            for q in range(4):
                k.wait(lg=("c", 1, q))
                for i in range(2):
                    r = ACC + 4 * q + 2 * i
                    k(f"v_pk_add_f32 {vr(r, 2)}, {vr(r, 2)}, {vr(r + 16, 2)}")
            for h in range(2):
                for i in range(4 * h, 4 * h + 4):
                    k(f"v_pk_add_f32 {vr(o + 2 * i, 2)}, {vr(o + 2 * i, 2)}, {vr(ACC + 2 * i, 2)}")
                for i in range(4 * h, 4 * h + 4):
                    k(f"v_cvt_pk_bf16_f32 v{OF + i}, v{o + 2 * i}, v{o + 2 * i + 1}")
                k(f"buffer_store_dwordx4 {vr(OF + 4 * h, 4)}, v1, {WS}, {sH} offen offset:{1024 * h} sc1")
        else:
            w += [None] + wr(1)
            for ks in range(8):
                mm(3, ks)
                if ks == self.opt.get("hc", 0):
                    k(hint)
                if w:
                    t = w.pop(0)
                    if t:
                        k(t)
            self.stamp("C1", True)
            k.wait(lg="all")
            k("s_barrier")
            if self.opt.get("hc", 0) > 7:
                k(hint)
            for q in range(4):
                for j in range(3):
                    k(f"ds_read_b128 {vr(ACC + 16 * j + 4 * q, 4)}, v7 offset:{4096 * j + 1024 * q}", tag=("c", j, q))
            o = ACC + 48
            if FCE == 0:
                ask()
            for q in range(4):
                for j in range(3):
                    k.wait(lg=("c", j, q))
                    for i in range(2):
                        r = o + 4 * q + 2 * i
                        k(f"v_pk_add_f32 {vr(r, 2)}, {vr(r, 2)}, {vr(ACC + 16 * j + 4 * q + 2 * i, 2)}")
                for i in range(2):
                    k(f"v_cvt_pk_bf16_f32 v{OF + 2 * q + i}, v{o + 4 * q + 2 * i}, v{o + 4 * q + 2 * i + 1}")
                if q == FCE:
                    ask()
                if q & 1:
                    k(f"buffer_store_dwordx4 {vr(OF + 2 * q - 2, 4)}, v1, {WS}, {sH} offen offset:{512 * (q - 1)} sc1")
        if FCE == 4:
            ask()
        k(f"v_pk_add_f32 v[16:17], {vr(o, 2)}, {vr(o + 2, 2)}\nv_pk_mul_f32 v[18:19], {vr(o, 2)}, {vr(o, 2)}")
        for i in range(1, 8):
            if i > 1:
                k(f"v_pk_add_f32 v[16:17], v[16:17], {vr(o + 2 * i, 2)}")
            k(f"v_pk_fma_f32 v[18:19], {vr(o + 2 * i, 2)}, {vr(o + 2 * i, 2)}, v[18:19]")
        k(f"""v_add_f32 v16, v16, v17
        v_add_f32 v18, v18, v19
        v_permlane32_swap_b32 v16, v18
        v_add_f32 v16, v16, v18
        buffer_store_dword v16, v210, {WS}, {sST} offen sc1""")
        if FCE == 9:
            ask()
        k.label("L_c1")
        self.stamp("C3", True)

    def phase_de(self):
        k = self.k
        opt = self.opt.get
        H, ACC, AB, T = 8, 120, 184, 216
        CL, CS = 72, 100
        LCS = LR + 28672
        sGU = "s53"
        HA = opt("dha", 10)
        assert HA <= 12

        def hload(ks, sb="s50"):
            return f"buffer_load_dwordx4 {vr(H + 4 * ks, 4)}, v1, {WS}, {sb} offen offset:{1024 * (ks & 3)} sc1"

        queue = [(hload(ks) + ("\ns_add_u32 s50, s50, 4096" if ks & 3 == 3 else ""), ("H", ks)) for ks in range(28)]

        def begin():
            self.flagcheck("PF", "v249", "v248", WS_FC)
            self.stamp("D0", True)
            for _ in range(HA):
                t, tg = queue.pop(0)
                k(t, tag=tg)

        k("s_mov_b32 s50, s72\ns_barrier")
        if opt("dbe", 0):
            begin()
        k(f"""s_mul_i32 s52, {sW}, 7168
        s_mul_i32 {sGU}, {sB2}, {7 * 28672}
        s_add_u32 {sGU}, {sGU}, s52
        s_add_u32 {sGU}, {sGU}, {WS_WGU + 4 * 28672}""")

        def gdma(ct, lds):
            g = []
            for i in range(7):
                t = ""
                if i % 4 == 0:
                    t = f"s_add_u32 m0, s52, {lds + i * 1024}\ns_add_u32 s56, {sGU}, {(ct - 4) * 28672 + i * 1024}\n"
                g.append((t + f"buffer_load_dwordx4 v1, {WS}, s56 offen offset:{(i % 4) * 1024} sc1 lds", ("G", ct)))
            return g

        mem = []
        if opt("g4", 1):
            for i, (t, tg) in enumerate(gdma(4, LR)):
                k(t, tag=tg)
                if opt("fce", 12) == 10 + i:
                    self.askc()
        n = opt("nwc", 0)
        for t, tg in self.wd_loads(self.wdn, self.wdn + n):
            k(t, tag=tg)
        self.wdn += n
        for i in range(16):
            k(f"v_accvgpr_write_b32 a{224 + i}, v{56 + i}")
        assert not opt("sg", 0)
        k(f"""v_mov_b32 v250, v210
        v_lshlrev_b32 v2, 3, v0
        s_lshl_b32 s55, {sW}, 11
        s_add_u32 s55, s55, {LCS}
        v_add_u32 v3, s55, v2""")
        if opt("oc", 2) == 2:
            k.note("output goes through LDS (v244 write address): four neighbouring lanes then cover 64 contiguous bytes of one row")
            k(f"""v_readfirstlane_b32 s55, v254
            v_lshrrev_b32 v245, 2, v0
            v_mul_u32_u24 v245, 1792, v245
            v_and_b32 v246, 3, v0
            v_lshl_add_u32 v245, v246, 4, v245
            v_add_u32 v254, s55, v245
            s_mul_i32 s55, {sW}, 12288
            s_add_u32 s55, s55, 57344
            v_and_b32 v245, 1, v0
            v_mul_u32_u24 v245, 1040, v245
            v_bfe_u32 v246, v0, 1, 4
            v_lshl_add_u32 v245, v246, 6, v245
            v_and_b32 v246, 32, v0
            v_add3_u32 v244, v245, v246, s55""")
        if opt("oc", 2) == 1:
            k.note("output address: four neighbouring lanes cover 64 contiguous bytes of one row")
            k("""v_readfirstlane_b32 s55, v254
            v_lshrrev_b32 v245, 5, v0
            v_and_b32 v246, 28, v0
            v_add_u32 v245, v245, v246
            v_mul_u32_u24 v245, 896, v245
            v_and_b32 v246, 3, v0
            v_lshl_add_u32 v245, v246, 4, v245
            v_add_u32 v254, s55, v245""")
        for i in range(4):
            k(f"v_subrev_u32 v{4 + i}, {LR - 57344}, v{4 + i}")
        k.wait(vm="cs")
        for i in range(1, 7):
            for h in range(2):
                k(f"v_pk_add_f32 {vr(CL + 2 * h, 2)}, {vr(CL + 2 * h, 2)}, {vr(CL + 4 * i + 2 * h, 2)}")
        for q in range(4):
            k("\n".join(self.split2(CL + q, CS + 2 * q)))
            k(f"ds_write_b64 v3, {vr(CS + 2 * q, 2)} offset:{512 * q}")
        k(f"""s_mul_i32 s55, {sB2}, 7
        s_and_b32 s55, s55, 3
        s_lshl_b32 s55, s55, 9
        s_add_u32 s55, s55, {LCS}
        v_add_u32 v3, s55, v2
        v_add_u32 v2, 57344, v1
        v_add_u32 v251, {LR}, v1""")
        k.wait(lg="all")

        slot_of = {0: 0, 1: 1, 2: 2, 3: 3, 4: "R", 5: 0, 6: 1}
        seq = [(ct, ks) for ks in range(28) for ct in range(3)] + [(ct, ks) for ct in range(3, 7) for ks in range(28)]
        ND = len(seq)
        NB = 8
        AH = opt("dah", 6)

        def aread(i):
            ct, ks = seq[i]
            s = slot_of[ct]
            if s == "R":
                va, off = "v251", ks * 1024
            elif s < 2:
                va, off = "v1", s * 28672 + ks * 1024
            else:
                va, off = "v2", (s - 2) * 28672 + ks * 1024
            k(f"ds_read_b128 {vr(AB + 4 * (i % NB), 4)}, {va} offset:{off}", tag=("a", i))

        for i in range(AH):
            aread(i)
        if not opt("dbe", 0):
            begin()

        def hagain(lo, hi):
            g = []
            for ks in range(lo, hi):
                if ks == lo or ks & 3 == 0:
                    g.append(f"s_add_u32 s60, s72, {4096 * (ks >> 2)}")
                g.append(hload(ks, "s60"))
            return g

        SL = ACC + 48
        sts = [f"buffer_load_dword v{SL + c}, v250, {WS}, s73 offen offset:{256 * c} sc1" for c in range(14)]
        queue += [(t, "S") for t in sts]
        hgrp = {0: 2, 2: 4, 4: 8, 8: 12, 12: 16, 16: 20, 20: 24, 24: 28} if opt("hg", 4) == 4 else {i: i + 2 for i in range(0, 28, 2)}

        VB, VC, VS = T + 2, T + 4, T + 6
        CA = T + 8
        E = T + 16

        def epilogue(ct, packed):
            a = ACC + 16 * (ct % 4)
            e = []
            if packed:
                e += [f"v_pk_mul_f32 {vr(a + 2 * i, 2)}, {vr(a + 2 * i, 2)}, {vr(VC, 2)} op_sel_hi:[1,0]" for i in range(4)]
            else:
                e += [f"v_mul_f32 v{a + i}, v{VC}, v{a + i}" for i in range(8)]
            e += [f"v_exp_f32 v{a + i}, v{a + i}" for i in range(8)]
            if packed:
                e += [f"v_pk_fma_f32 {vr(a + 2 * i, 2)}, {vr(a + 2 * i, 2)}, {vr(VS, 2)}, {vr(VS, 2)} op_sel_hi:[1,0,0]" for i in range(4)]
            else:
                e += [f"v_fma_f32 v{a + i}, v{a + i}, v{VS}, v{VS}" for i in range(8)]
            e += [f"v_rcp_f32 v{a + i}, v{a + i}" for i in range(8)]
            if packed:
                e += [f"v_pk_mul_f32 {vr(a + 2 * i, 2)}, {vr(a + 2 * i, 2)}, {vr(a + 8 + 2 * i, 2)}" for i in range(4)]
            else:
                e += [f"v_mul_f32 v{a + i}, v{a + i}, v{a + 8 + i}" for i in range(8)]
            p = E + 4 * (ct & 1)
            e += [f"v_cvt_pk_bf16_f32 v{p + i}, v{a + 2 * i}, v{a + 2 * i + 1}" for i in range(4)]
            pre = f"s_add_u32 {sAC}, {sAC}, 4096\n" if ct == 4 else ""
            e.append(pre + f"buffer_store_dwordx4 {vr(p, 4)}, v1, {WS}, {sAC} offen offset:{1024 * (ct & 3)} sc1")
            return [(t, ("e", ct)) for t in e]

        def corr(ct):
            a = vr(ACC + 16 * (ct % 4), 16)
            k(f"v_mfma_f32_32x32x8bf16_1k {a}, {vr(CA + 2 * (ct % 4), 2)}, {vr(VB, 2)}, {a}")

        def csread(ct):
            k(f"ds_read_b64 {vr(CA + 2 * (ct % 4), 2)}, v3 offset:{512 * ct}", tag=("cs", ct))

        def cost(t):
            if callable(t):
                return 8
            return sum(8 if l.startswith(("v_exp", "v_rcp", "v_rsq", "v_sqrt", "buffer")) else 4 for l in t.split("\n"))

        EA = [184, 136, 120, 168]
        DF = opt("edf", 3)
        units = [(g, t) for g in range(7 - DF) for t in range(2)] + [(g, 0) for g in range(7 - DF, 7)] + [(g, 1) for g in range(7 - DF, 7)]
        eseq = []
        for u, (g, t) in enumerate(units[:14 - DF]):
            if u == 13 - DF:
                eseq += [(u, j, c) for c in range(2) for j in range(4)]
            else:
                eseq += [(u, j, c) for j in range(4) for c in range(2)]
        eseq += [(u, j, c) for c in range(2) for u in range(14 - DF, 14) for j in range(4)]
        lastuse = {u: ND + i for i, (u, j, c) in enumerate(eseq)}
        lastacc = {2 * c + units[u][1]: ND + i for i, (u, j, c) in enumerate(eseq)}
        free = [(H + 16 * b, 171 + 4 * b) for b in range(7)] + [(200, 191)]
        SG, SDL = opt("sg", 0), opt("sdl", 30)
        stages = [[int(c) for c in s if int(c) < SG] for s in str(opt("stg", "01.23.45.6")).split(".")]
        stages = [s for s in stages if s]
        CLD = opt("cld", 0)
        if CLD:
            stages = [[-1]]
        checked = set()
        stage_of = {g: s for s, gs in enumerate(stages) for g in gs}
        L0, LS = opt("el0", 172), opt("els", 18) / 10
        FDL, CDL, CHK = opt("fdl", 13), opt("cdl", 28), opt("chk", 16)
        first = {}
        for u, (g, t) in enumerate(units):
            first.setdefault(stage_of.get(g, 0), L0 + 4 * LS * u)
        ubuf, eload, enext = {}, [(u, j) for u in range(14) for j in range(4)], L0
        stored, sent, asked, passed = {}, {}, {}, set()
        seen = set()

        def flagstore():
            return f"buffer_store_dwordx4 v[240:243], v244, {WS}, s76 offen sc1\ns_add_u32 s76, s76, 0x20000"

        def events(i):
            nonlocal enext
            spent = 0
            s = len(sent)
            if s < len(stages) and stages[s][-1] in stored and i >= stored[stages[s][-1]] + FDL:
                k.wait(vm=("e", stages[s][-1]))
                k(flagstore())
                sent[s] = i
                spent += 16
            s = len(asked)
            if s < len(stages) and s in sent and len(passed) == s and i >= max(sent[s] + CDL, first[s] - CHK - 1):
                k(f"s_mov_b32 s77, {WS_FQ + 0x20000 * s}")
                k(f"buffer_load_dword v248, v245, {WS}, s77 offen sc1", tag="PF")
                asked[s] = i
                spent += 12
            s = len(passed)
            if s in asked and i >= asked[s] + CHK:
                self.flagcheck("PF", "v245", "v248", "s77")
                passed.add(s)
                spent += 12
            if eload and i >= enext:
                u, j = eload[0]
                g, t = units[u]
                if stage_of[g] in passed if g < SG else (g in stored and i >= stored[g] + SDL and (passed or not CLD)):
                    if u not in ubuf:
                        ok = [f for f in free if f[1] <= i]
                        if ok:
                            free.remove(ok[0])
                            ubuf[u] = ok[0][0]
                            free.append((ok[0][0], lastuse[u]))
                    if u in ubuf:
                        sb = f"s{78 + 4 * t + j}"
                        k(f"buffer_load_dwordx4 {vr(ubuf[u] + 4 * j, 4)}, v1, {WS}, {sb} offen offset:{(g & 3) * 1024 * (1 - opt('xe', 0))} sc1", tag=("B", u, j))
                        if g == 3 and not opt("xe", 0):
                            k(f"s_add_u32 {sb}, {sb}, 4096")
                            spent += 4
                        eload.pop(0)
                        due = L0 + LS * (56 - len(eload))
                        enext = max(i + 1, due)
                        self.log.append(("ld", u, j, i))
                        spent += 8
            return spent

        self.log = []
        BUD, EBUD = opt("dbud", 20), opt("ebud", 24)
        hold = 0
        b = 0
        xch = {}
        for lt in range(3):
            for q in range(4):
                xch.setdefault(lastacc[lt] + 2 + q, []).append(f"ds_write_b128 v{4 + lt}, {vr(EA[lt] + 4 * q, 4)} offset:{1024 * q}")
        B1, B2 = lastacc[1] + opt("eb1", 0), lastacc[1] + opt("eb2", 9)

        def xread(lt):
            return [(f"ds_read_b128 {vr(EA[lt] + 4 * q, 4)}, v7 offset:{4096 * lt + 1024 * q}", ("c", lt, q)) for q in range(4)]

        def xadd(lt):
            g = []
            for q in range(4):
                g.append((lambda q=q: k.wait(lg=("c", lt, q)), None))
                g += [(f"v_add_f32 v{EA[0] + r}, v{EA[0] + r}, v{EA[lt] + r}", None) for r in range(4 * q, 4 * q + 4)]
            return g

        def fill():
            nonlocal b
            if hold or not queue or callable(queue[0][0]) or not queue[0][0].startswith("v_"):
                return False
            t, tg = queue.pop(0)
            k(t)
            fill.trans = cost(t) > 4
            b = min(b, 4) - cost(t)
            return True

        for i in range(ND + 112):
            if i < ND:
                ct, ks = seq[i]
                nxt = i + AH
                if nxt < ND and seq[nxt] == (5, 0):
                    assert not any(tg in (("G", 5), ("G", 6)) for _, tg in mem)
                    k.wait(vm=[("G", 5), ("G", 6)][:2 - opt("g6", 0)])
                    assert "CL" not in k.vm
                    stored[-1] = i - FDL
                    k("s_barrier")
                if nxt < ND and seq[nxt] == (6, 0) and opt("g6", 0):
                    k.wait(vm=("G", 6))
                    k("s_barrier")
                if ks == 0 and ct >= 4:
                    assert not any(tg == ("e", ct - 4) for _, tg in queue), ct
                if ct == 0 and ks in hgrp:
                    assert not any(tg == ("H", hgrp[ks] - 1) for _, tg in queue)
                    k.wait(vm=("H", hgrp[ks] - 1))
                    out = 28 - sum(1 for _, tg in queue if tg and tg[0] == "H")
                    self.datacheck([H + 4 * x for x in range(ks, hgrp[ks])], 248, hagain(ks, out))
                W2 = opt("dw2", 2)
                if i % W2 == 0:
                    k.wait(lg=("a", min(i + W2, ND) - 1))
                assert ("a", i) not in k.lg
                if "D" in opt("x16", ""):
                    for h in range(2):
                        d = vr(ACC + 16 * (ct % 4) + 8 * (ks & 1) + 4 * h, 4)
                        k(f"v_mfma_f32_16x16x32_bf16 {d}, {vr(AB + 4 * (i % NB), 4)}, {vr(H + 4 * (ks ^ h), 4)}, {'0' if ks < 2 else d}")
                        if nxt < ND and not h:
                            aread(nxt)
                            if fill() and not fill.trans:
                                fill()
                else:
                    self.mfma(vr(ACC + 16 * (ct % 4), 16), vr(AB + 4 * (i % NB), 4), vr(H + 4 * ks, 4), "0" if ks == 0 else None)
                    if nxt < ND:
                        aread(nxt)
                if i % opt("tsd", 28) == 0:
                    self.stamp(f"d{i}", True)
                if i == opt("dwd", 44):
                    if not opt("g4", 1):
                        mem += gdma(4, LR)
                    mem += self.wd_loads(self.wdn, 56)
                if CLD and i >= CLD and self.acl and (i - CLD) % opt("cls", 2) == 0:
                    k(self.acl.pop(0), tag="CL")
                if i == opt("stc", 68):
                    assert not queue

                    def stcheck():
                        k.wait(vm="S")
                        self.datacheck(list(range(SL, SL + 14)), 248, sts)
                    queue.append((stcheck, None))
                    queue += [(f"v_add_f32 v{SL}, v{SL}, v{SL + c}", None) for c in range(1, 14)]
                    queue += [(t.strip(), None) for t in self.stats(SL, SL + 1, VC, VB, VS)]
                    queue += [(f"v_rsq_f32 v{VC}, v{VS}", None), (f"v_sqrt_f32 v{VS}, v{VS}", None),
                              (f"v_mul_f32 v{VC}, {f32(-math.log2(math.e))}, v{VC}", None)]
                if i == 83:
                    assert not queue and not any(tg == ("G", 4) for _, tg in mem)
                    k.wait(vm=("G", 4))
                    k("s_barrier")
                    for c in range(4):
                        csread(c)
                    mem = gdma(5, 0) + gdma(6, 28672) + mem
                    continue
                if i == 86:
                    k.wait(lg=("cs", 3))
                    for c in range(3):
                        corr(c)
                        queue += epilogue(c, False)
                    hold = 3
                    continue
                if i > 83 and ks == 27:
                    k.wait(lg=("cs", ct))
                    corr(ct)
                    if ct == 6:
                        assert not mem
                        self.stamp("D2", True)
                        k(f"s_cmp_ge_u32 {sCB}, 14\ns_cbranch_scc1 L_tail")
                        rest = list(queue) + epilogue(6, True)
                        nflag = len(stages) - len(sent)
                        queue += [(f"v_accvgpr_read_b32 v{EA[3] + r}, a{224 + r}", "res") for r in range(16)]
                    elif not queue:
                        hold = 4
                    queue += epilogue(ct, False)
                    continue
                if i > 83 and ks == 8 and ct < 6:
                    csread(ct + 1)
                b = min(b, 4) + BUD
            else:
                u, j, c = eseq[i - ND]
                g, t = units[u]
                lt = 2 * c + t
                assert (u, j) not in eload, (i, u, j)
                if lt not in seen:
                    assert 4 in stored
                    assert not any(tg in ("res", ("e", 5)) for _, tg in queue) or t == 0, (i, stored, len(queue))
                if g >= SG and u not in checked:
                    assert (u, 3) not in eload, (i, u)
                    k.wait(vm=("B", u, 3))
                    again = [f"s_add_u32 s60, s{74 + units[x][1]}, {7168 * y + 1024 * units[x][0]}\n"
                             f"buffer_load_dwordx4 {vr(ubuf[x] + 4 * y, 4)}, v1, {WS}, s60 offen sc1"
                             for x in range(u, 14) for y in range(4) if (x, y) not in eload and x not in checked]
                    self.datacheck([ubuf[u] + 4 * y for y in range(4)], 247, again)
                    checked.add(u)
                k.wait(vm=("B", u, j))
                if "E" in opt("x16", ""):
                    for h in range(2):
                        d = vr(EA[lt] + 8 * (j & 1) + 4 * h, 4)
                        k(f"v_mfma_f32_16x16x32_bf16 {d}, {ar(8 * (7 * j + g) + 4 * c, 4)}, {vr(ubuf[u] + 4 * (j ^ h), 4)}, {'0' if (g == 0 and j < 2 and lt < 3) else d}")
                        if not h and fill():
                            fill()
                else:
                    self.mfma(vr(EA[lt], 16), ar(8 * (7 * j + g) + 4 * c, 4), vr(ubuf[u] + 4 * j, 4), "0" if (lt not in seen and lt < 3) else None)
                seen.add(lt)
                if i > ND and (i - ND) % opt("tsd", 28) == 0:
                    self.stamp(f"Ee{i - ND}", True)
                b = min(b, 4) + EBUD
                if i == B1 and B1 < B2:
                    k.wait(lg="all")
                    k("s_barrier")
                    queue += [x for p in zip(xread(0), xread(2)) for x in p] + xadd(2)
                for t in xch.get(i, []):
                    k(t)
                    b -= 8
                if i == B2:
                    k.wait(lg="all")
                    k("s_barrier")
                    if B1 >= B2:
                        queue += [x for p in zip(xread(0), xread(2)) for x in p] + xread(1) + xadd(2)
                    else:
                        queue = xread(1) + queue
                    queue += xadd(1)
            b -= events(i)
            if mem and (hold or i & 1 or (mem[0][1][0] == "G" and i < opt("gr", 0)) or i < opt("wr", 0)):
                t, tg = mem.pop(0)
                k(t, tag=tg)
                b -= cost(t)
                if mem and mem[0][1] is None:
                    k(mem.pop(0)[0])
                    b -= 4
            if hold:
                hold -= 1
                continue
            while queue and b >= cost(queue[0][0]):
                if queue[0][1] and queue[0][1][0] == "H" and (i * 10) % opt("hr", 20) >= 10:
                    break
                t, tg = queue.pop(0)
                b -= cost(t)
                if callable(t):
                    t()
                else:
                    k(t, tag=tg)
                    if "buffer_store" in t:
                        stored[tg[1]] = i
                if i < opt("stc", 68):
                    break
        self.log += [("stored", stored), ("sent", sent), ("asked", asked), ("left", len(queue), self.blog)]
        for t, tg in queue:
            if callable(t):
                t()
            else:
                k(t, tag=tg)
        self.stamp("E1", True)
        o = EA[3]
        for s in range(2):
            for i in range(4 * s, 4 * s + 4):
                k(f"v_pk_add_f32 {vr(o + 2 * i, 2)}, {vr(o + 2 * i, 2)}, {vr(EA[0] + 2 * i, 2)}")
            for i in range(4 * s, 4 * s + 4):
                k(f"v_cvt_pk_bf16_f32 v{H + i}, v{o + 2 * i}, v{o + 2 * i + 1}")
            if not opt("oc", 2):
                k(f"buffer_store_dwordx4 {vr(H + 4 * s, 4)}, v254, {OUT}, 0 offen offset:{16 * s} {self.pol('ont')}")
            if opt("oc", 2) == 2:
                k(f"ds_write_b128 v244, {vr(H + 4 * s, 4)} offset:{16 * s}")
        if opt("oc", 2) == 2:
            for s in range(2):
                k(f"ds_read_b128 {vr(H + 8 + 4 * s, 4)}, v7 offset:{1040 * s}", tag=("o", s))
            for s in range(2):
                k.wait(lg=("o", s))
                k(f"buffer_store_dwordx4 {vr(H + 8 + 4 * s, 4)}, v254, {OUT}, 0 offen offset:{896 * s} {self.pol('ont')}")
        if opt("oc", 2) == 1:
            def sel(d, own, other, mask, perm):
                k(f"s_mov_b32 vcc_lo, {mask}\ns_mov_b32 vcc_hi, {mask}")
                for i in range(4):
                    k(f"v_cndmask_b32_dpp v{d + i}, v{other + i}, v{own + i}, vcc quad_perm:{perm} row_mask:0xf bank_mask:0xf")
            sel(H + 12, H + 4, H, "0xaaaaaaaa", "[1,0,3,2]")
            sel(H + 8, H, H + 4, "0x55555555", "[1,0,3,2]")
            for i in range(4):
                k(f"v_permlane32_swap_b32 v{H + 8 + i}, v{H + 12 + i}")
            sel(H, H + 8, H + 12, "0x33333333", "[2,3,0,1]")
            k(f"buffer_store_dwordx4 {vr(H, 4)}, v254, {OUT}, 0 offen {self.pol('ont')}")
            sel(H + 4, H + 12, H + 8, "0xcccccccc", "[2,3,0,1]")
            k(f"buffer_store_dwordx4 {vr(H + 4, 4)}, v254, {OUT}, 0 offen offset:1792 {self.pol('ont')}")
        self.stamp("E2")
        if self.ts:
            k("s_waitcnt vmcnt(0)")
            self.stamp("E3")
        k("s_branch L_fin")
        k.label("L_tail")
        for t, tg in rest:
            k(t)
        k.wait(vm="all")
        for _ in range(nflag):
            k(flagstore())
        k(f"""s_cmp_lg_u32 s2, 255
        s_cbranch_scc1 L_fin
        s_lshl_b32 s55, {sW}, 6
        v_add_u32 v2, s55, v0
        v_lshlrev_b32 v2, 7, v2""")
        self.poll("v2", "v3", WS_FP)
        k("s_mov_b32 s50, 0")
        self.publish(WS_E, "s50", 8, 12)
        k.label("L_fin")
        if self.ts:
            assert not self.pend
            for i in range(6):
                k(f"v_writelane_b32 v255, s{90 + i}, {56 + i}")
            k(f"""s_memrealtime s[96:97]
            s_memtime s[98:99]
            s_waitcnt lgkmcnt(0)
            v_writelane_b32 v255, s96, 62
            v_writelane_b32 v255, s98, 63
            s_lshl_b32 s55, s2, 2
            s_add_u32 s55, s55, {sW}
            s_lshl_b32 s55, s55, 8
            s_add_u32 s55, s55, {WS_TS}
            v_lshlrev_b32 v2, 2, v0
            buffer_store_dword v255, v2, {WS}, s55 offen""")
            if self.ts == 2:
                k(f"""s_load_dwordx2 s[20:21], s[0:1], 64
                s_mov_b32 s22, 256
                v_readlane_b32 s56, v255, 0
                v_readlane_b32 s57, v255, 1
                s_sub_u32 s56, s96, s56
                v_subrev_u32 v255, s57, v255
                v_writelane_b32 v255, s56, 0
                s_lshl_b32 s55, s2, 2
                s_add_u32 s55, s55, {sW}
                s_lshl_b32 s55, s55, 8
                s_waitcnt lgkmcnt(0)
                buffer_store_dword v255, v2, {PA}, s55 offen""")
        if "spa" in self.opt:
            k(f"""s_cmp_lg_u32 s2, {self.opt.get("spw", 0)}
            s_cbranch_scc1 L_nospin
            s_memrealtime s[90:91]
            s_waitcnt lgkmcnt(0)
            s_sub_u32 s94, s94, s92
            s_min_u32 s94, s94, 20000
            s_mul_i32 s94, s94, 4""")
            k.label("L_spin")
            k("""s_memrealtime s[88:89]
            s_waitcnt lgkmcnt(0)
            s_sub_u32 s88, s88, s90
            s_cmp_lt_u32 s88, s94
            s_cbranch_scc1 L_spin""")
            k.label("L_nospin")
        if not opt("nfw", 0):
            k("s_waitcnt vmcnt(0)")
        k.label("L_end")
        k("s_endpgm")

    def build(self):
        self.prologue()
        self.phase_a()
        self.phase_b()
        self.phase_c()
        self.phase_de()
        self.late_code()
        self.k.lines = [l.replace("CODE_LAST", "0x8000") for l in self.k.lines]
        n = self.k.pad()
        self.misal = align8(self.k.lines)
        last = (sum(sizes(self.k.lines)) - 128) & ~3
        assert last >= 0x8000
        self.k.lines = [l.replace("v_min_u32 v127, 0x8000", f"v_min_u32 v127, {last}") for l in self.k.lines]
        ref = open(f"cdna_kernels/{NAME}.s.ref").read().split("\n")
        head = [l for l in ref if l.startswith(";") and "@launch" not in l]
        out = head + ["; @launch grid=(256,1,1) block=(256,1,1) lds=163840",
                      '.amdgcn_target "amdgcn-amd-amdhsa--gfx950"', ".text", f".globl {NAME}_kernel", ".p2align 8",
                      f".type {NAME}_kernel,@function", f"{NAME}_kernel:"]
        out += [l if l.endswith(":") else "    " + l for l in self.k.lines]
        out += ['.section .rodata,"a"', ".p2align 6", f".amdhsa_kernel {NAME}_kernel",
                "  .amdhsa_next_free_vgpr 512", "  .amdhsa_next_free_sgpr 102", "  .amdhsa_accum_offset 256",
                "  .amdhsa_group_segment_fixed_size 0", "  .amdhsa_kernarg_size 80", "  .amdhsa_user_sgpr_count 2",
                "  .amdhsa_user_sgpr_kernarg_segment_ptr 1", "  .amdhsa_system_sgpr_workgroup_id_x 1", ".end_amdhsa_kernel", ""]
        self.nbytes = sum(sizes(self.k.lines))
        self.nnop = n
        return "\n".join(out)


if __name__ == "__main__":
    args = dict(a.split("=") for a in sys.argv[2:])
    args = {a: int(b) if b.lstrip('-').isdigit() else b for a, b in args.items()}
    g = Gen(**args)
    text = g.build()
    open(sys.argv[1], "w").write(text)
    if g.ts:
        open(sys.argv[1] + ".ts", "w").write(" ".join([str(g.ts)] + g.tsn))
    print(f"{sys.argv[1]}: {g.nbytes} bytes of code, {g.nnop} pads, {g.misal} misaligned")
    if args.get("log"):
        print(g.log)
```
